```python
import torch

def _softmax(x, axis=-1):
    return torch.softmax(x, dim=axis)
def _gelu(x):
    return torch.nn.functional.gelu(x, approximate="tanh")
def _silu(x):
    return torch.nn.functional.silu(x)
def _sigmoid(x):
    return torch.sigmoid(x)
def _layernorm(x, axis=-1, eps=1e-5):
    m = x.mean(dim=axis, keepdim=True)
    v = x.var(dim=axis, keepdim=True, unbiased=False)
    return (x - m) / torch.sqrt(v + eps)
def _scatter_add(tgt, idx, src, axis=0):
    return tgt.clone().index_add_(axis, idx, src)
def _segment_sum(src, seg, n):
    out = torch.zeros((n,) + src.shape[1:], dtype=src.dtype)
    return out.index_add_(0, seg, src)
def _pad(x, pw):
    flat = tuple(v for pair in reversed(pw) for v in pair)
    return torch.nn.functional.pad(x, flat)

kernel_name = 'concat_heads__linear_attn_block__sliding_local_dilated__prompt'

def setup_inputs():

    _w = (lambda a: (lambda t: t.to(torch.bfloat16) if t.is_floating_point() else t)(torch.as_tensor(a)))
    def _A_setup():
        B, S, D = 1, 2048, 640
        return {
            "x": _w((lambda *s: torch.randn(*s, dtype=torch.bfloat16) * 0.05)(B, S, D)),
            "wqkv": _w((lambda *s: torch.randn(*s, dtype=torch.bfloat16) * 1.6)(D, 3 * D)),
            "wo": _w((lambda *s: torch.randn(*s, dtype=torch.bfloat16) * 0.8)(D, D)),
        }
    _A_in = _A_setup()

    def _B_setup():
        B, S, D = 1, 2048, 640
        return {
            "x": _w((lambda *s: torch.randn(*s, dtype=torch.bfloat16) * 0.2)(B, S, D)),
            "wqkv": _w((lambda *s: torch.randn(*s, dtype=torch.bfloat16) * 0.2)(D, 3 * D)),
            "wo": _w((lambda *s: torch.randn(*s, dtype=torch.bfloat16) * 0.05)(D, D)),
        }
    _B_in = _B_setup()

    return {
        "A_x": _A_in["x"],
        "A_wqkv": _A_in["wqkv"],
        "A_wo": _A_in["wo"],
        "B_x": _B_in["x"],
        "B_wqkv": _B_in["wqkv"],
        "B_wo": _B_in["wo"],
    }

def reference(A_x, A_wqkv, A_wo, B_x, B_wqkv, B_wo):
    def _A_ref(x, wqkv, wo):
        B, S, D = x.shape
        H = 32; Dh = D // H
        qkv = (lambda x, *d: x.permute(*d))((x @ wqkv).reshape(B, S, 3, H, Dh), 2, 0, 3, 1, 4)
        q, k, v = qkv[0], qkv[1], qkv[2]
        phi = lambda t: torch.where(t > 0, t + 1, torch.exp(t)) + 1e-6
        pq, pk = phi(q), phi(k)
        kv = torch.einsum("bhsd,bhse->bhde", pk, v)
        z = torch.einsum("bhsd->bhd", pk)
        num = torch.einsum("bhqd,bhde->bhqe", pq, kv)
        den = torch.einsum("bhqd,bhd->bhq", pq, z)[..., None] + 1e-6
        o = num / den
        return (lambda x, *d: x.permute(*d))(o, 0, 2, 1, 3).reshape(B, S, D) @ wo

    def _B_ref(x, wqkv, wo):
        B, S, D = x.shape
        H = 32; Dh = D // H
        W, dil = 8, 2
        qkv = (lambda x, *d: x.permute(*d))((x @ wqkv).reshape(B, S, 3, H, Dh), 2, 0, 3, 1, 4)
        q, k, v = qkv[0], qkv[1], qkv[2]
        scale = Dh ** -0.5
        pos = torch.arange(S)
        off = torch.arange(W) * dil
        idx = pos[:, None] - off[None, :]
        mask = idx >= 0
        idx_c = torch.where(mask, idx, 0).reshape(-1)
        kg = k[:, :, idx_c, :].reshape(B, H, S, W, Dh)
        vg = v[:, :, idx_c, :].reshape(B, H, S, W, Dh)
        logits = torch.einsum("bhsd,bhswd->bhsw", q, kg) * scale
        logits = torch.where(mask[None, None, :, :], logits, -1e9)
        attn = _softmax(logits, axis=-1)
        o = torch.einsum("bhsw,bhswd->bhsd", attn, vg)
        return (lambda x, *d: x.permute(*d))(o, 0, 2, 1, 3).reshape(B, S, D) @ wo

    a = _A_ref(A_x, A_wqkv, A_wo)
    b = _B_ref(B_x, B_wqkv, B_wo)
    return torch.concatenate([a, b], axis=-1)
```

```python
import re

TRANS = ("v_exp_f32", "v_log_f32", "v_rcp_f32", "v_rsq_f32", "v_sqrt_f32", "v_sin_f32", "v_cos_f32")

def regs_of(tok):
    tok = tok.strip()
    tok = re.sub(r"^-", "", tok)
    tok = re.sub(r"^\|(.*)\|$", r"\1", tok)
    m = re.fullmatch(r"abs\((.*)\)", tok)
    if m: tok = m.group(1)
    m = re.fullmatch(r"([vs])\[(\d+):(\d+)\]", tok)
    if m: return [(m.group(1), i) for i in range(int(m.group(2)), int(m.group(3)) + 1)]
    m = re.fullmatch(r"([vs])(\d+)", tok)
    if m: return [(m.group(1), int(m.group(2)))]
    if tok in ("vcc", "vcc_lo", "vcc_hi"): return [("x", "vcc")]
    if tok in ("exec", "exec_lo", "exec_hi"): return [("x", "exec")]
    if tok == "m0": return [("x", "m0")]
    return []

class Ins:
    def __init__(self, text):
        self.text = text
        t = text.split(";")[0].strip()
        parts = t.split(None, 1)
        self.op = parts[0]
        ops = []
        if len(parts) > 1:
            for o in parts[1].split(","):
                o = o.strip()
                ops.append(o.split()[0] if o else o)
        self.ops = ops
        op = self.op
        base = re.sub(r"_(e32|e64|dpp|sdwa)$", "", op)
        self.base = base
        self.is_mfma = op.startswith("v_mfma")
        self.is_valu = op.startswith("v_") and not self.is_mfma
        self.is_salu = op.startswith("s_")
        self.is_ds = op.startswith("ds_")
        self.is_vmem = op.startswith("buffer_") or op.startswith("global_")
        self.is_trans = base in TRANS
        self.is_perm = base.startswith("v_permlane")
        self.is_dpp = "quad_perm" in text or "row_" in text or op.endswith("_dpp")
        self.is_ldsdma = self.is_vmem and re.search(r"\blds\b", t) is not None
        R = [regs_of(o) for o in ops]
        self.w = []; self.r = []
        if self.is_mfma:
            self.w = R[0]; self.ra = R[1] + R[2]; self.rc = R[3]; self.r = self.ra + self.rc
        elif self.is_valu:
            if base.startswith("v_cmp"):
                self.w = R[0]; self.r = sum(R[1:], [])
            elif self.is_perm:
                self.w = R[0] + R[1]; self.r = R[0] + R[1]
            elif base in ("v_add_co_u32", "v_addc_co_u32", "v_sub_co_u32"):
                self.w = R[0] + R[1]; self.r = sum(R[2:], [])
            else:
                self.w = R[0]; self.r = sum(R[1:], [])
                if base in ("v_fmac_f32", "v_dot2c_f32_bf16", "v_writelane_b32"): self.r += R[0]
                if base == "v_cndmask_b32" and len(ops) == 3: self.r += [("x", "vcc")]
        elif self.is_ds:
            if "read" in op or "bpermute" in op or "swizzle" in op:
                self.w = R[0]; self.r = sum(R[1:], [])
            else:
                self.r = sum(R, [])
        elif self.is_vmem:
            if op.startswith("buffer_wbl2") or op.startswith("buffer_inv"):
                pass
            elif "load" in op and not self.is_ldsdma:
                self.w = R[0]; self.r = sum(R[1:], [])
            else:
                self.r = sum(R, [])
                if self.is_ldsdma: self.r += [("x", "m0")]
            self.store_wide = ("store" in op and ("x3" in op or "x4" in op))
            self.sdata = []
            if self.store_wide:
                self.sdata = R[0] if op.startswith("buffer_") else R[1]
        elif self.is_salu:
            if op.startswith("s_cmp") or op.startswith("s_cbranch") or op in ("s_branch", "s_waitcnt", "s_barrier", "s_nop", "s_endpgm", "s_sleep", "s_setprio", "s_bitcmp1_b32", "s_bitcmp0_b32"):
                self.r = sum(R, [])
            else:
                self.w = R[0] if R else []; self.r = sum(R[1:], [])
        self.states = 1
        if op == "s_nop": self.states = int(ops[0], 0) + 1

class Asm:
    def __init__(self):
        self.lines = []
        self.hist = []
        self.vm = []
        self.lg = []
        self.nops_inserted = 0
        self.uid = 0

    def raw(self, s):
        self.lines.append(s)

    def comment(self, s):
        self.lines.append("    ; " + s)

    def label(self, name, reset=True):
        self.lines.append(name + ":")

    def need(self, ins):
        need = 0; dist = 0
        for p in reversed(self.hist):
            if dist >= 20: break
            req = 0
            pw = set(p.w)
            if p.is_valu:
                vw = {x for x in pw if x[0] == "v"}
                sw = {x for x in pw if x[0] == "s" or x == ("x", "vcc")}
                if ins.is_mfma and vw & set(ins.r): req = max(req, 2)
                if p.is_trans and ins.is_valu and not ins.is_trans and vw & set(ins.r): req = max(req, 1)
                if (ins.is_perm or ins.is_dpp) and vw & set(ins.r): req = max(req, 2)
                if ins.base in ("v_readfirstlane_b32", "v_readlane_b32") and vw & set(ins.r): req = max(req, 1)
                if ins.is_valu and sw & set(ins.r): req = max(req, 4 if ins.base in ("v_readlane_b32", "v_writelane_b32") else 2)
                if ins.is_vmem and sw & set(ins.r): req = max(req, 5)
                if ins.is_salu and sw & set(ins.r) and not ins.op.startswith("s_cbranch"): req = max(req, 1)
                if ("x", "exec") in pw: req = max(req, 5)
            if p.is_mfma:
                if ins.is_mfma:
                    if pw & set(ins.ra): req = max(req, 8)
                    if pw & set(ins.rc) and p.w != ins.rc: req = max(req, 6)
                    if pw & set(ins.w) and p.w != ins.rc: req = max(req, 8)
                elif ins.is_valu or ins.is_ds or ins.is_vmem:
                    if pw & (set(ins.r) | set(ins.w)): req = max(req, 8)
                if ins.is_valu and set(p.rc) & set(ins.w): req = max(req, 3)
            if p.is_salu and ("x", "m0") in pw and ins.is_vmem and ins.is_ldsdma: req = max(req, 1)
            if p.is_vmem and p.store_wide and set(p.sdata) & set(ins.w): req = max(req, 2)
            if req - dist > need: need = req - dist
            dist += p.states
        return need

    def __call__(self, text, tag=None):
        ins = Ins(text)
        if ins.is_ds and len(self.lg) >= 15:
            self.lg = self.lg[-12:]
            self("s_waitcnt lgkmcnt(12)")
        n = self.need(ins)
        while n > 0:
            k = min(n, 16)
            nop = Ins(f"s_nop {k-1}")
            self.lines.append(f"    s_nop {k-1}"); self.hist.append(nop); self.nops_inserted += k
            n -= k
        self.lines.append("    " + text)
        self.hist.append(ins)
        if len(self.hist) > 64: self.hist = self.hist[-40:]
        if tag is None:
            self.uid += 1; tag = f"_{self.uid}"
        if ins.is_vmem: self.vm.append(tag)
        if ins.is_ds: self.lg.append(tag)
        return tag

    def fence(self, n=10):
        self(f"s_nop {n-1}")

    def wait(self, vm=None, lg=None):
        parts = []
        if vm is not None:
            if vm == "all": k = 0
            else:
                tags = vm if isinstance(vm, (list, tuple)) else [vm]
                idx = [i for i, t in enumerate(self.vm) if t in tags]
                k = len(self.vm) - 1 - max(idx) if idx else None
            if k is not None:
                if k < len(self.vm) or vm == "all":
                    kk = min(k, 63); parts.append(f"vmcnt({kk})"); self.vm = self.vm[len(self.vm) - kk:] if kk else []
        if lg is not None:
            if lg == "all": k = 0
            else:
                tags = lg if isinstance(lg, (list, tuple)) else [lg]
                idx = [i for i, t in enumerate(self.lg) if t in tags]
                k = len(self.lg) - 1 - max(idx) if idx else None
            if k is not None:
                kk = min(k, 15); parts.append(f"lgkmcnt({kk})"); self.lg = self.lg[len(self.lg) - kk:] if kk else []
        if parts: self("s_waitcnt " + " ".join(parts))

    def text(self):
        return "\n".join(self.lines) + "\n"

def vr(a, n=1):
    return f"v{a}" if n == 1 else f"v[{a}:{a+n-1}]"
def sr(a, n=1):
    return f"s{a}" if n == 1 else f"s[{a}:{a+n-1}]"
```

```python
import sys, os, struct
from asmlib import Asm, vr, sr

KNAME = "concat_heads__linear_attn_block__sliding_local_dilated__prompt_kernel"
OPT = dict(pro=3, G=5, stamps=0, L=4, Lb=2, force_slow=0, wb=1, codepf=1, outflag="sc1", gat_at=3, prio=0)
for a in sys.argv[2:]:
    k, v = a.split("="); OPT[k] = int(v) if v.lstrip("-").isdigit() else v

def f2u(x): return struct.unpack("<I", struct.pack("<f", x))[0]

SLOT = 36864; UNIT = 10240
SC = 20480
EE_A = SC
RED = SC + 8192
OPS = SC
EQX = SC + 24576 + 4096
EXB = SC
OST = SC
WO_BASE = 6 * UNIT
WQ_UNIT = [8, 10, 12, 14, 0]
WS_O = 0; WS_KV = 0x600000; WS_HALO = 0x700000; WS_FLAG = 0x800000; WS_RDY = 0x810000; WS_E = 0x820000; WS_STAMP = 0x900000
WS_SIZE = 0x10000000
SPIN_MAX = 200000

SX, SW, SO, SD, SS, SG = 16, 20, 24, 28, 32, 36
sB, sRT, sHG, sWV, sI, sC, sXCC, sN, sFAST = 40, 41, 42, 43, 44, 45, 46, 47, 48
sXO, sWK = 50, 60
sW1K, sX2K = 70, 71
sT0, sT1, sT2, sT3 = 72, 73, 74, 75
sOB, sKVP, sKVG, sHP, sHG2, sFP, sFC = 76, 77, 78, 79, 49, 9, 8
sM = 80
sSPIN = 92
sK = 94
sTM = 96
sOC = 98
sOUT = 99
vXD0, vXD1, vWD = 1, 2, 3
vXA0, vXA1, vWA, vWE, vL = 6, 7, 8, 9, 10
vT = 11
vST = 15
ACC1 = 16; WF = 56; XB = 96
def X(ks, rt): return XB + (ks * 2 + rt) * 4

a = Asm()
stamp_idx = [0]
def stamp(name):
    if not OPT["stamps"]: return
    i = STAMPS.index(name)
    a(f"s_memtime {sr(sTM,2)}")
    a("s_waitcnt lgkmcnt(0)"); a.lg = []
    a(f"v_writelane_b32 v{vST}, s{sTM}, {i}")
STAMPS = ["start", "issued", "b0", "b1", "b2", "b3", "b4", "b5", "b6", "b7", "b8", "b9", "p1end", "E1", "pub1", "p1", "p2", "p3", "p4", "p2end", "E2", "ostore", "oack", "E3", "polled", "ofirst", "g2end", "end"]

def srd(d, lo, hi, size):
    a(f"s_mov_b32 s{d}, s{lo}"); a(f"s_mov_b32 s{d+1}, s{hi}")
    a(f"s_mov_b32 s{d+2}, {size}"); a(f"s_mov_b32 s{d+3}, 0x20000")

def set_mask(s, val):
    a(f"s_mov_b32 s{s}, 0x{val & 0xffffffff:x}"); a(f"s_mov_b32 s{s+1}, 0x{val >> 32:x}")

def lanemask(f):
    m = 0
    for l in range(64):
        if f(l): m |= 1 << l
    return m

def wvoff(dst, q, pitch, swap, second):
    a(f"s_add_u32 s{sT0}, s{sWV}, {8*q}")
    a(f"s_cmp_ge_u32 s{sT0}, 10")
    a(f"s_cselect_b32 s{sT1}, {second}, 0")
    a(f"s_cselect_b32 s{sT2}, 10, 0")
    a(f"s_sub_u32 s{sT0}, s{sT0}, s{sT2}")
    a(f"s_lshl_b32 s{sT0}, s{sT0}, 6")
    a(f"v_add_u32 v{vT}, s{sT0}, v{vL}")
    a(f"v_mul_u32_u24 v{vT+1}, 6554, v{vT}")
    a(f"v_lshrrev_b32 v{vT+1}, 16, v{vT+1}")
    a(f"v_mul_u32_u24 v{vT+2}, 10, v{vT+1}")
    a(f"v_sub_u32 v{vT}, v{vT}, v{vT+2}")
    if swap:
        a(f"v_lshrrev_b32 v{vT+2}, 1, v{vT+1}")
        a(f"v_xor_b32 v{vT+2}, v{vT+2}, v{vT+1}")
        a(f"v_bfe_u32 v{vT+2}, v{vT+2}, 2, 1")
        a(f"v_mul_u32_u24 v{vT+2}, 12, v{vT+2}")
        a(f"v_xor_b32 v{vT+1}, v{vT+1}, v{vT+2}")
    a(f"v_mul_u32_u24 v{vT+1}, {pitch}, v{vT+1}")
    a(f"v_lshl_add_u32 v{vT}, v{vT}, 4, v{vT+1}")
    a(f"v_add_u32 v{dst}, s{sT1}, v{vT}")

def dma_chunk(c, step):
    base = (step % 4) * SLOT
    ops = []
    ops.append(([f"s_add_u32 m0, s{sX2K}, {base}"], f"buffer_load_dwordx4 v{vXD0}, {sr(SX,4)}, s{sXO+step} offen lds"))
    for q in range(3 if c == 0 else 2):
        ops.append(([f"s_add_u32 m0, s{sW1K}, {base + 16384 + q*8192}"], f"buffer_load_dwordx4 v{vWD+q}, {sr(SW,4)}, s{sWK+step} offen lds"))
        if q == 0:
            ops.append(([f"s_add_u32 m0, s{sX2K}, {base + 1024}"], f"buffer_load_dwordx4 v{vXD1}, {sr(SX,4)}, s{sXO+step} offen lds"))
    return ops

def dma_wq(c, u):
    base = WQ_UNIT[u] * UNIT
    ops = []
    for q in range(3 if c == 0 else 2):
        pre = []
        if q == 0: pre.append(f"s_sub_u32 s{sT3}, s{sWK+2*u}, 1280")
        elif q == 2 or c == 1: pre.append(f"s_sub_u32 s{sT3}, s{sWK+2*u+1}, 1280")
        else:
            pre += [f"s_cmp_lt_u32 s{sWV}, 2", f"s_cselect_b32 s{sT3}, s{sWK+2*u}, s{sWK+2*u+1}", f"s_sub_u32 s{sT3}, s{sT3}, 1280"]
        pre.append(f"s_add_u32 m0, s{sW1K}, {base + q*8192}")
        ops.append((pre, f"buffer_load_dwordx4 v{vWD+q}, {sr(SW,4)}, s{sT3} offen lds"))
    return ops

def dma_wo(c, u):
    base = WO_BASE + u * 2 * UNIT
    ops = []
    for q in range(3 if c == 0 else 2):
        pre = [f"s_mul_i32 s{sT3}, s{sHG}, 160", f"s_add_u32 s{sT3}, s{sT3}, {u*128*1280}", f"s_add_u32 m0, s{sW1K}, {base + q*8192}"]
        ops.append((pre, f"buffer_load_dwordx4 v{vWD+q}, {sr(SO,4)}, s{sT3} offen lds"))
    return ops

def emit_op(op, tag):
    if callable(op): return op()
    for p in op[0]: a(p)
    a(op[1], tag)

def spin_begin(name):
    a(f"s_mov_b32 s{sSPIN}, 0")
    a.label(name)
def spin_check(name, done):
    a(f"s_add_u32 s{sSPIN}, s{sSPIN}, 1")
    a(f"s_cmp_lt_u32 s{sSPIN}, {SPIN_MAX}")
    a(f"s_cbranch_scc1 {name}")
    a.label(done)

LOG2E = 1.4426950408889634
def phi_pack(src, n, dst_list, tmp):
    for i in range(0, n, 2):
        a(f"v_pk_mul_f32 {vr(tmp+i,2)}, {vr(src+i,2)}, {sr(sK,2)}")
    for i in range(n):
        a(f"v_exp_f32_e64 v{tmp+i}, v{tmp+i} clamp")
        a(f"v_max_f32 v{src+i}, 0x{f2u(1e-6):x}, v{src+i}")
    for i in range(0, n, 2):
        a(f"v_pk_add_f32 {vr(src+i,2)}, {vr(src+i,2)}, {vr(tmp+i,2)}")
    for d in dst_list:
        for i in range(0, n, 2):
            a(f"v_cvt_pk_bf16_f32 v{d+i//2}, v{src+i}, v{src+i+1}")

def pack(src, dst):
    a(f"v_cvt_pk_bf16_f32 v{dst}, v{src}, v{src+1}")
    a(f"v_cvt_pk_bf16_f32 v{dst+1}, v{src+2}, v{src+3}")

def mfma(d, A, B, C):
    c = C if isinstance(C, str) else vr(C, 4)
    a(f"v_mfma_f32_16x16x32_bf16 {vr(d,4)}, {vr(A,4)}, {vr(B,4)}, {c}")

def pipeline(items, reads, mf, bounds, boundary, L, Lb, extra):
    rd = 0; m = 0; tags = {}; pend = []; every = 1; cnt = 0
    N = items
    bl = sorted(bounds)
    while m < N:
        can_read = rd < N and rd - m < L + 1
        if can_read and rd in bounds and rd - m > Lb: can_read = False
        if can_read:
            if rd in bounds:
                for op in pend: emit_op(op[0], op[1])
                pend = list(boundary(bounds[rd]))
                nxt = [x for x in bl if x > rd]
                span = (nxt[0] if nxt else N) - rd
                every = max(1, (span - 1) // max(1, len(pend))); cnt = 0
            tags[rd] = reads(rd); rd += 1
        else:
            a.wait(lg=tags[m])
            pre_done = None
            cnt += 1
            op = None
            if pend and cnt % every == 0:
                op = pend.pop(0)
                if not callable(op[0]):
                    for p in op[0][0]: a(p)
            mf(m)
            if op is not None:
                if callable(op[0]): op[0]()
                else: a(op[0][1], op[1])
            extra(m)
            m += 1
    for op in pend: emit_op(op[0], op[1])

def prologue():
    a.raw(f"; @launch grid=(256,1,1) block=(512,1,1) lds=163840")
    a.raw('.amdgcn_target "amdgcn-amd-amdhsa--gfx950"')
    a.raw(".text"); a.raw(f".globl {KNAME}"); a.raw(".p2align 8"); a.raw(f".type {KNAME},@function")
    a.label(KNAME)
    a("s_cmp_ge_u32 s2, 256")
    a("s_cbranch_scc1 L_end")
    a(f"s_bfe_u32 s{sB}, s2, 0x10002")
    a(f"s_mul_i32 s3, s{sB}, 24")
    a("s_add_u32 s76, s0, s3"); a("s_addc_u32 s77, s1, 0")
    a("s_load_dwordx4 s[4:7], s[76:77], 0")
    a("s_load_dwordx2 s[8:9], s[76:77], 16")
    a("s_load_dwordx4 s[12:15], s[0:1], 48")
    a("s_load_dwordx2 s[10:11], s[0:1], 64")
    a(f"v_lshrrev_b32 v{vT}, 6, v0")
    a(f"v_and_b32 v{vL}, 63, v0")
    a(f"v_readfirstlane_b32 s{sWV}, v{vT}")
    if OPT["stamps"]:
        a(f"v_mov_b32 v{vST}, 0")
        a(f"s_memtime {sr(sTM,2)}")
        a(f"s_memrealtime s[100:101]")
    a(f"s_and_b32 s{sRT}, s2, 3"); a(f"s_lshl_b32 s{sRT}, s{sRT}, 2")
    a(f"s_bfe_u32 s3, s2, 0x20003"); a(f"s_add_u32 s{sRT}, s{sRT}, s3")
    a(f"s_lshr_b32 s{sHG}, s2, 5")
    a(f"s_and_b32 s{sI}, s{sWV}, 3"); a(f"s_lshr_b32 s{sC}, s{sWV}, 2")
    a(f"s_lshl_b32 s{sW1K}, s{sWV}, 10"); a(f"s_lshl_b32 s{sX2K}, s{sWV}, 11")
    a(f"v_lshrrev_b32 v{vT}, 3, v{vL}")
    a(f"v_lshrrev_b32 v{vT+1}, 4, v{vL}")
    a(f"v_xor_b32 v{vT+1}, v{vT+1}, v{vL}")
    a(f"v_and_b32 v{vT+1}, 7, v{vT+1}")
    a(f"v_mul_u32_u24 v{vT}, 1280, v{vT}")
    a(f"v_lshl_add_u32 v{vXD0}, v{vT+1}, 4, v{vT}")
    a(f"v_xor_b32 v{vXD1}, 64, v{vXD0}")
    a(f"v_add_u32 v{vXD1}, 10240, v{vXD1}")
    for q in range(3): wvoff(vWD + q, q, 3840, True, 1280)
    G = OPT["G"]
    a(f"s_lshl_b32 s{sT0}, s3, 1"); a(f"s_add_u32 s{sT0}, s{sT0}, s{sHG}")
    if G == 1: a(f"s_mov_b32 s{sT0}, 0")
    elif G == 2: a(f"s_add_u32 s{sT0}, s3, s{sHG}"); a(f"s_and_b32 s{sT0}, s{sT0}, 1")
    else:
        for _ in range(2 if G == 5 else 1):
            a(f"s_cmp_ge_u32 s{sT0}, {G}"); a(f"s_cselect_b32 s{sT1}, {G}, 0"); a(f"s_sub_u32 s{sT0}, s{sT0}, s{sT1}")
    a(f"s_lshl_b32 s{sT1}, s{sRT}, 3"); a(f"s_add_u32 s{sT1}, s{sT1}, s{sWV}"); a(f"s_mul_i32 s{sT1}, s{sT1}, 20480")
    a(f"s_mul_i32 s{sT2}, s{sHG}, 160"); a(f"s_add_u32 s{sT2}, s{sT2}, 1280")
    for s in range(10):
        w0 = (s // G) * G
        a(f"s_add_u32 s{sT3}, s{sT0}, {s % G}")
        if G > 1:
            a(f"s_cmp_ge_u32 s{sT3}, {G}"); a(f"s_cselect_b32 s{sXO+s}, {G}, 0"); a(f"s_sub_u32 s{sT3}, s{sT3}, s{sXO+s}")
        if w0: a(f"s_add_u32 s{sT3}, s{sT3}, {w0}")
        a(f"s_mul_i32 s{sWK+s}, s{sT3}, 245760"); a(f"s_add_u32 s{sWK+s}, s{sWK+s}, s{sT2}")
        a(f"s_lshl_b32 s{sT3}, s{sT3}, 7"); a(f"s_add_u32 s{sXO+s}, s{sT3}, s{sT1}")
    a("s_waitcnt lgkmcnt(0)")
    if OPT["stamps"]:
        a(f"v_writelane_b32 v{vST}, s{sTM}, 0")
        a(f"v_writelane_b32 v{vST}, s100, 40")
    srd(SX, 4, 5, 2621440); srd(SW, 6, 7, 2457600)
    a(f"s_cmp_eq_u32 s{sC}, 0")
    a("s_cbranch_scc0 L_pro_c1")

def prologue2(c):
    tags = {}
    for step in range(OPT['pro']):
        for k, op in enumerate(dma_chunk(c, step)):
            emit_op(op, f"ch{step}")
    stamp("issued")
    srd(SO, 8, 9, 819200); srd(SD, 12, 13, 5242880); srd(SS, 10, 11, WS_SIZE); srd(SG, 14, 15, 256)
    a(f"s_getreg_b32 s{sXCC}, hwreg(HW_REG_XCC_ID, 0, 3)")
    if c == 0:
        a(f"s_or_b32 s3, s2, s{sWV}")
        a("s_cmp_eq_u32 s3, 0")
        a(f"s_cbranch_scc0 L_nononce")
        a(f"s_add_u32 s4, s10, {WS_E}"); a("s_addc_u32 s5, s11, 0")
        a("s_load_dword s6, s[4:5], 0")
        a("s_waitcnt lgkmcnt(0)")
        a("s_add_u32 s6, s6, 0x9e3779b0"); a("s_or_b32 s6, s6, 8"); a("s_andn2_b32 s6, s6, 7")
        a(f"v_mov_b32 v{vT}, s6"); a(f"v_mov_b32 v{vT+1}, 0"); a(f"s_mov_b32 s3, {WS_E}")
        a("s_mov_b64 exec, 1")
        n0 = len(a.vm)
        a(f"buffer_store_dword v{vT}, v{vT+1}, {sr(SG,4)}, 0 offen sc1")
        a(f"buffer_store_dword v{vT}, v{vT+1}, {sr(SS,4)}, s3 offen sc1")
        a("s_mov_b64 exec, -1")
        a.vm = a.vm[:n0]
        a.label("L_nononce")
    a(f"v_and_b32 v{vT}, 15, v{vL}")
    a(f"v_lshrrev_b32 v{vT+1}, 4, v{vL}")
    a(f"v_lshrrev_b32 v{vT+2}, 1, v{vT}")
    a(f"v_xor_b32 v{vT+2}, v{vT+2}, v{vT+1}")
    a(f"v_lshlrev_b32 v{vT+2}, 4, v{vT+2}")
    a(f"v_lshl_add_u32 v{vT+2}, v{vT}, 7, v{vT+2}")
    a(f"s_lshl_b32 s3, s{sI}, 12")
    a(f"v_add_u32 v{vXA0}, s3, v{vT+2}")
    a(f"v_xor_b32 v{vXA1}, 64, v{vXA0}")
    a(f"v_lshrrev_b32 v{vT}, 5, v{vL}"); a(f"v_lshlrev_b32 v{vT}, 4, v{vT}")
    a(f"v_bfe_u32 v{vT+2}, v{vL}, 2, 3")
    a(f"v_add_u32 v{vT}, v{vT}, v{vT+2}")
    a(f"v_mul_u32_u24 v{vT}, 160, v{vT}")
    a(f"v_and_b32 v{vT+1}, 3, v{vL}")
    a(f"v_lshl_add_u32 v{vWA}, v{vT+1}, 3, v{vT}")
    if c: a(f"v_add_u32 v{vWA}, 80, v{vWA}")
    a(f"v_mad_u32_u24 v{vWE}, v{vT+1}, 40, v{vT}")
    a(f"v_add_u32 v{vWE}, {32 + (UNIT if c else 0)}, v{vWE}")
    a(f"s_lshl_b32 s3, s{sB}, 4"); a(f"s_add_u32 s3, s3, s{sRT}")
    a(f"s_lshl_b32 s4, s3, 3")
    a(f"s_add_u32 s5, s4, s{sWV}"); a(f"s_mul_i32 s{sOC}, s5, 20480")
    a(f"s_lshl_b32 s5, s{sI}, 1"); a(f"s_add_u32 s4, s4, s5"); a(f"s_mul_i32 s{sOB}, s4, 20480")
    a(f"s_lshl_b32 s4, s3, 2")
    a(f"s_add_u32 s5, s4, s{sI}"); a(f"s_lshl_b32 s5, s5, 7"); a(f"s_lshl_b32 s6, s{sHG}, 3"); a(f"s_add_u32 s5, s5, s6")
    a(f"s_add_u32 s{sFP}, s5, {WS_FLAG + 4*c}")
    a(f"s_lshr_b32 s5, s{sWV}, 1"); a(f"s_add_u32 s5, s4, s5"); a(f"s_lshl_b32 s5, s5, 7"); a(f"s_add_u32 s{sFC}, s5, {WS_FLAG}")
    a(f"s_lshl_b32 s4, s{sHG}, 16"); a(f"s_lshl_b32 s5, s{sI}, 9"); a(f"s_add_u32 s4, s4, s5")
    a(f"s_add_u32 s{sKVG}, s4, {WS_KV + c*2048}")
    a(f"s_lshl_b32 s5, s{sRT}, 12"); a(f"s_add_u32 s{sKVP}, s{sKVG}, s5")
    a(f"s_lshl_b32 s4, s{sRT}, 3"); a(f"s_add_u32 s4, s4, s{sHG}"); a(f"s_mul_i32 s4, s4, 6144")
    a(f"s_add_u32 s{sHP}, s4, {WS_HALO + c*3072}")
    a(f"s_add_u32 s{sHG2}, s4, {WS_HALO - 8*6144}")
    a(f"s_lshl_b32 s4, s{sRT}, 3"); a(f"s_add_u32 s4, s4, s{sWV}"); a(f"s_mul_i32 s4, s4, 40960")
    a(f"s_mul_i32 s5, s{sB}, 1280"); a(f"s_add_u32 s4, s4, s5"); a(f"s_mul_i32 s5, s{sHG}, 160"); a(f"s_add_u32 s{sOUT}, s4, s5")
    a(f"s_mov_b32 s{sK}, 0x{f2u(LOG2E):x}"); a(f"s_mov_b32 s{sK+1}, 0x{f2u(LOG2E):x}")
    if OPT["codepf"]:
        a("s_getpc_b64 s[4:5]")
        a.label(f"L_pc{c}")
        a(f"s_sub_u32 s4, s4, L_pc{c}-{KNAME}"); a("s_subb_u32 s5, s5, 0")
        a(f"s_lshr_b32 s3, s2, 3"); a(f"s_lshl_b32 s3, s3, 3"); a(f"s_add_u32 s3, s3, s{sWV}"); a("s_lshl_b32 s3, s3, 8")
        a(f"v_lshl_add_u32 v{vT}, v{vL}, 7, s3")
        a(f"v_min_u32 v{vT}, L_codeend-{KNAME}-4, v{vT}")
        a(f"v_mov_b32 v{vT+2}, s5")
        a(f"v_add_co_u32 v{vT+1}, vcc, s4, v{vT}")
        a(f"v_addc_co_u32 v{vT+2}, vcc, 0, v{vT+2}, vcc")
        a("s_mov_b64 exec, 3")
        a(f"global_load_dword v{vT+3}, {vr(vT+1,2)}, off")
        a("s_mov_b64 exec, -1")
    a(f"s_cmp_eq_u32 s{sB}, 0")
    a(f"s_cbranch_scc0 L_path_1{c}")

def path(b, c):
    P = f"{b}{c}"
    A_ = (b == 0)
    a.label(f"L_path_{P}")
    vL8 = vT + 3
    a(f"v_mov_b32 v76, -1"); a(f"v_mov_b32 v77, -1")
    a(f"v_lshlrev_b32 v78, 3, v{vL}")
    if A_:
        a(f"buffer_store_dwordx2 v[76:77], v78, {sr(SS,4)}, s{sKVP} offen sc1")
        for i in range(4): a(f"v_mov_b32 v{80+i}, 0x{f2u(1e-6):x}")
    else:
        a(f"s_cmp_eq_u32 s{sI}, 3"); a(f"s_cbranch_scc0 L_nopre_{P}")
        n0 = len(a.vm)
        for k in range(5):
            a(f"buffer_store_dwordx2 v[76:77], v78, {sr(SS,4)}, s{sHP} offen offset:{k*512} sc1")
        a.vm = a.vm[:n0]
        a.label(f"L_nopre_{P}")

    def acc1(t, rt): return ACC1 + (t * 2 + rt) * 4
    Tor = [not A_, not A_, False, False, (not A_) and c == 0]
    eps1 = [A_, A_, False, False, A_ and c == 0]
    def reads(n):
        sg, t = divmod(n, 5); s = sg & 1; tg = []
        if t == 0:
            for rt in range(2):
                tg.append(a(f"ds_read_b128 {vr(X(sg,rt),4)}, v{vXA1 if s else vXA0} offset:{rt*2048}"))
        w = WF + (n % 5) * 4
        for h in range(2):
            off = 16384 + s * 5120 + h * 1280
            if t < 4: tg.append(a(f"ds_read_b64_tr_b16 {vr(w+2*h,2)}, v{vWA} offset:{off + (UNIT if t >= 2 else 0) + 40*(t&1)}"))
            else: tg.append(a(f"ds_read_b64_tr_b16 {vr(w+2*h,2)}, v{vWE} offset:{off}"))
        return tg
    def mf(n):
        sg, t = divmod(n, 5); w = WF + (n % 5) * 4
        for rt in range(2):
            C = acc1(t, rt) if sg else (80 if eps1[t] else "0")
            if Tor[t]: mfma(acc1(t, rt), w, X(sg, rt), C)
            else: mfma(acc1(t, rt), X(sg, rt), w, C)
    def nonce_load():
        a(f"v_mov_b32 v{vT}, 0")
        a(f"buffer_load_dword v{vT+1}, v{vT}, {sr(SG,4)}, 0 offen sc1", "nonce")
    def nonce_check():
        a(f"v_readfirstlane_b32 s{sN}, v{vT+1}")
        a(f"s_cmp_lg_u32 s{sN}, 0"); a(f"s_cbranch_scc1 L_nok_{P}")
        spin_begin(f"L_nsp_{P}")
        sv = list(a.vm)
        a(f"buffer_load_dword v{vT+1}, v{vT}, {sr(SG,4)}, 0 offen sc1"); a("s_waitcnt vmcnt(0)")
        a(f"v_readfirstlane_b32 s{sN}, v{vT+1}")
        a(f"s_cmp_lg_u32 s{sN}, 0"); a(f"s_cbranch_scc1 L_nok_{P}")
        a.vm = sv
        spin_check(f"L_nsp_{P}", f"L_nok_{P}")
    def rdy_store():
        a(f"s_cmp_eq_u32 s{sWV}, 0"); a(f"s_cbranch_scc0 L_nordy_{P}")
        a(f"s_lshl_b32 s3, s{sB}, 4"); a(f"s_add_u32 s3, s3, s{sRT}"); a(f"s_lshl_b32 s3, s3, 3"); a(f"s_add_u32 s3, s3, s{sHG}")
        a(f"s_lshl_b32 s3, s3, 7"); a(f"s_add_u32 s3, s3, {WS_RDY}")
        a(f"s_or_b32 s4, s{sN}, s{sXCC}")
        a(f"v_mov_b32 v{vT+1}, s4"); a(f"v_mov_b32 v{vT}, 0")
        a("s_mov_b64 exec, 1")
        n0 = len(a.vm)
        a(f"buffer_store_dword v{vT+1}, v{vT}, {sr(SS,4)}, s3 offen sc1")
        a.vm = a.vm[:n0]
        a("s_mov_b64 exec, -1")
        a.label(f"L_nordy_{P}")
    def rdy_addr():
        a(f"s_lshl_b32 s3, s{sB}, 4"); a(f"s_add_u32 s4, s3, s{sRT}"); a(f"s_lshl_b32 s4, s4, 3")
        a(f"v_add_u32 v{vT}, s4, v{vL}")
        if A_:
            a(f"s_lshl_b32 s5, s3, 3"); a(f"s_add_u32 s5, s5, s{sHG}"); a(f"s_sub_u32 s5, s5, 64")
            a(f"v_lshl_add_u32 v{vT+1}, v{vL}, 3, s5")
        else:
            a(f"s_max_u32 s5, s{sRT}, 1"); a(f"s_sub_u32 s5, s5, 1"); a(f"s_add_u32 s5, s5, s3"); a(f"s_lshl_b32 s5, s5, 3"); a(f"s_add_u32 s5, s5, s{sHG}")
            a(f"v_mov_b32 v{vT+1}, s5")
        set_mask(sM, 0xff)
        a(f"v_cndmask_b32_e64 v{vT}, v{vT+1}, v{vT}, {sr(sM,2)}")
        a(f"v_lshlrev_b32 v{vT}, 7, v{vT}")
        a(f"s_mov_b32 s3, {WS_RDY}")
        a("s_mov_b64 exec, 0xffffff")
        a(f"buffer_load_dword v{vT+1}, v{vT}, {sr(SS,4)}, s3 offen sc1", "rdy")
        a("s_mov_b64 exec, -1")
    def rdy_check():
        def test():
            a(f"v_and_b32 v{vT+2}, -8, v{vT+1}")
            a("s_mov_b64 exec, 0xffffff")
            a(f"v_cmp_ne_u32 vcc, s{sN}, v{vT+2}")
            a("s_mov_b64 exec, -1")
            a(f"s_cbranch_vccz L_rok_{P}")
        test()
        spin_begin(f"L_rsp_{P}")
        sv = list(a.vm)
        a(f"s_mov_b32 s3, {WS_RDY}")
        a("s_mov_b64 exec, 0xffffff")
        a(f"buffer_load_dword v{vT+1}, v{vT}, {sr(SS,4)}, s3 offen sc1"); a("s_waitcnt vmcnt(0)")
        test()
        a.vm = sv
        spin_check(f"L_rsp_{P}", f"L_rok_{P}")
        a(f"s_or_b32 s3, s{sN}, s{sXCC}")
        a("s_mov_b64 exec, 0xff")
        a(f"v_cmp_ne_u32 vcc, s3, v{vT+1}")
        a("s_mov_b64 exec, -1")
        a(f"s_cmp_eq_u32 vcc_lo, 0")
        a(f"s_cselect_b32 s{sFAST}, {0 if OPT['force_slow'] else 1}, 0")
    def fix_wd_for_q():
        if c == 0:
            a(f"s_cmp_lt_u32 s{sWV}, 2"); a(f"s_cselect_b32 s3, 0, 1280")
            a(f"v_subrev_u32 v{vWD+1}, s3, v{vWD+1}"); a(f"v_subrev_u32 v{vWD+2}, 1280, v{vWD+2}")
        else:
            a(f"v_subrev_u32 v{vWD+1}, 1280, v{vWD+1}")
    def bnd1(ch):
        if ch > 0:
            d = SLOT if ch % 4 else -3 * SLOT
            for r in (vXA0, vXA1, vWA, vWE): a(f"v_add_u32 v{r}, {d}, v{r}")
        a.wait(vm=[f"ch{ch}"] + (["nonce"] if ch == 4 else []), lg="all" if ch else None)
        a("s_barrier")
        stamp(f"b{ch}")
        ops = []
        if ch == 0:
            for st in range(OPT['pro'], 3): ops += [(op, f"ch{st}") for op in dma_chunk(c, st)]
        if ch + 3 <= 9: ops += [(op, f"ch{ch+3}") for op in dma_chunk(c, ch + 3)]
        if ch == 1: ops.insert(0, (nonce_load, None))
        if ch == 4:
            ops.insert(0, (nonce_check, None))
            if c == 0: ops.insert(1, (rdy_store, None))
        if ch == 7: ops += [(fix_wd_for_q, None)] + [(op, "wq0") for op in dma_wq(c, 0)]
        if ch == 8: ops += [(op, f"wq{u}") for u in (1, 2) for op in dma_wq(c, u)]
        if ch == 9: ops += [(rdy_addr, None)] + [(op, f"wq{u}") for u in (3, 4) for op in dma_wq(c, u)]
        return ops
    pipeline(100, reads, mf, {10 * ch: ch for ch in range(10)}, bnd1, OPT["L"], OPT["Lb"], lambda n: None)
    stamp("p1end")

    hA, hB = 2 * c, 2 * c + 1
    gm = lambda h: lanemask(lambda l: (l >> 4) == h)
    half = lanemask(lambda l: (l >> 5) == c)
    vL16 = vXA0
    a(f"v_lshlrev_b32 v{vL16}, 4, v{vL}")
    a(f"v_lshlrev_b32 v{vXA1}, 3, v{vL}")
    vL8 = vXA1
    a(f"v_add_u32 v{vWA}, {WQ_UNIT[0]*UNIT - SLOT}, v{vWA}")
    a(f"v_add_u32 v{vWE}, {WQ_UNIT[0]*UNIT - SLOT - (UNIT if c else 0)}, v{vWE}")
    if A_:
        KAa, KAb, VBa, VBb, EkA, EvB = 56, 60, 64, 68, 72, 76
        TMP = 84
        if c == 0:
            phi_pack(acc1(4, 0), 8, [EkA], TMP)
            src = EkA
        else:
            pack(acc1(4, 0), EvB); pack(acc1(4, 1), EvB + 2); src = EvB
        a(f"v_add_u32 v{vT+3}, s{sW1K}, v{vL16}")
        a(f"ds_write_b128 v{vT+3}, {vr(src,4)} offset:{EE_A}")
        phi_pack(acc1(0, 0), 8, [KAa], TMP)
        phi_pack(acc1(1, 0), 8, [KAb], TMP)
        for t, d in ((2, VBa), (3, VBb)):
            pack(acc1(t, 0), d); pack(acc1(t, 1), d + 2)
    else:
        KA = {("a", 0): 56, ("b", 0): 60, ("a", 1): 64, ("b", 1): 68, ("a", -1): 112, ("b", -1): 116}
        Va, Vb, Ev = 72, 78, 84
        for rt in range(2):
            pack(acc1(0, rt), KA[("a", rt)]); pack(acc1(1, rt), KA[("b", rt)])
            pack(acc1(2, rt), Va + 2 + 2 * rt); pack(acc1(3, rt), Vb + 2 + 2 * rt)
            if c == 0:
                pack(acc1(4, rt), KA[("a", rt)] + 2); pack(acc1(4, rt), KA[("b", rt)] + 2)
            else:
                pack(acc1(4, rt), Ev + 2 + 2 * rt)
        Eown = [KA[("a", 0)] + 2, KA[("a", 1)] + 2] if c == 0 else [Ev + 2, Ev + 4]
        xs = [KA[("a", 1)], KA[("b", 1)], Va + 4, Vb + 4, Eown[1], Eown[0]]
        a(f"s_cmp_eq_u32 s{sI}, 3"); a(f"s_cbranch_scc0 L_nohp_{P}")
        n0 = len(a.vm)
        for k in range(5):
            for j in range(2): a(f"v_min_u32 v{xs[k]+j}, -2, v{xs[k]+j}")
            a(f"buffer_store_dwordx2 {vr(xs[k],2)}, v{vL8}, {sr(SS,4)}, s{sHP} offen offset:{k*512} sc1")
        a.vm = a.vm[:n0]
        a.label(f"L_nohp_{P}")
    sv = None
    a.wait(vm=["wq0", "rdy"], lg="all")
    rdy_check()
    a("s_barrier")
    stamp("E1")
    for q in range(3 if c == 0 else 2): wvoff(vWD + q, q, 1280, False, 64 * 1280)
    first_ops = [(op, "wo") for op in dma_wo(c, 0)]
    if A_:
        a(f"v_and_b32 v{vT}, 0x31, v{vL}")
        a(f"v_bfe_u32 v{vT+1}, v{vL}, 2, 2")
        a(f"v_lshl_add_u32 v{vT}, v{vT+1}, 1, v{vT}")
        a(f"v_lshlrev_b32 v{vT}, 4, v{vT}")
        a(f"s_lshl_b32 s3, s{sI}, 10")
        a(f"v_add_u32 v{vT}, s3, v{vT}")
        t1 = a(f"ds_read_b128 {vr(EvB,4)}, v{vT} offset:{EE_A + 4096 + 128*c}")
        tg = [t1]
        if c == 1:
            a(f"v_add_u32 v{vT+1}, s3, v{vL16}")
            tg.append(a(f"ds_read_b128 {vr(EkA,4)}, v{vT+1} offset:{EE_A}"))
        for op in first_ops: emit_op(op[0], op[1])
        first_ops = []
        a(f"v_mov_b32 v80, 0x3f803f80")
        set_mask(sM, 0x3333333333333333); set_mask(sM + 2, 0x11dd11dd11dd11dd); set_mask(sM + 4, gm(hA))
        a.wait(lg=tg)
        for j in range(4): a(f"v_cndmask_b32_e64 v{EvB+j}, v{EvB+j}, v80, {sr(sM,2)}")
        D = [16 + 4 * k for k in range(7)]
        mfma(D[0], KAa, VBa, "0"); mfma(D[1], KAb, VBb, "0"); mfma(D[4], EkA, VBa, "0"); mfma(D[5], EkA, VBb, "0")
        mfma(D[2], KAa, EvB, "0"); mfma(D[3], KAb, EvB, "0"); mfma(D[6], EkA, EvB, "0")
        a(f"s_lshl_b32 s3, s{sI}, 10")
        a(f"v_add_u32 v{vT}, s3, v{vL16}")
        a(f"v_xor_b32 v{vT+1}, 512, v{vT}")
        rb = RED + c * 16384
        a(f"ds_write_b128 v{vT}, {vr(D[0],4)} offset:{rb}")
        a(f"ds_write_b128 v{vT}, {vr(D[1],4)} offset:{rb + 4096}")
        for j in range(4): a(f"v_cndmask_b32_e64 v{D[4]+j}, v{D[5]+j}, v{D[4]+j}, {sr(sM+4,2)}")
        for j in range(4): a(f"v_cndmask_b32_e64 v{D[2]+j}, v{D[3]+j}, v{D[2]+j}, {sr(sM+2,2)}")
        a(f"ds_write_b128 v{vT}, {vr(D[2],4)} offset:{rb + 8192}")
        set_mask(sM + 6, half)
        a(f"s_mov_b64 exec, {sr(sM+6,2)}")
        a(f"ds_write_b128 v{vT}, {vr(D[4],4)} offset:{rb + 12288}")
        a(f"ds_write_b128 v{vT+1}, {vr(D[6],4)} offset:{rb + 12288}")
        a("s_mov_b64 exec, -1")
        a.wait(lg="all")
        a("s_barrier")
        a(f"s_lshl_b32 s3, s{sI}, 12")
        a(f"v_add_u32 v{vT}, s3, v{vL16}")
        tg = [a(f"ds_read_b128 {vr(56+4*k,4)}, v{vT} offset:{rb + k*1024}") for k in range(4)]
        a.wait(lg=tg[1])
        for j in (0, 2): a(f"v_pk_add_f32 {vr(56+j,2)}, {vr(56+j,2)}, {vr(60+j,2)}")
        a.wait(lg=tg[3])
        for j in (0, 2): a(f"v_pk_add_f32 {vr(64+j,2)}, {vr(64+j,2)}, {vr(68+j,2)}")
        for j in (0, 2): a(f"v_pk_add_f32 {vr(56+j,2)}, {vr(56+j,2)}, {vr(64+j,2)}")
        pack(56, 60)
        for j in range(2): a(f"v_min_u32 v{60+j}, -2, v{60+j}")
        a(f"buffer_store_dwordx2 v[60:61], v{vL8}, {sr(SS,4)}, s{sKVP} offen sc1")
        for i in range(4): a(f"v_mov_b32 v{92+i}, 0x{f2u(1e-6):x}")
    else:
        a(f"s_mul_i32 s3, s{sWV}, 3072")
        a(f"v_add_u32 v{vT}, s3, v{vL8}")
        for k in range(6): a(f"ds_write_b64 v{vT}, {vr(xs[k],2)} offset:{EXB + k*512}")
    stamp("pub1")

    ACC2 = 16; WF2 = 36
    def acc2(t, rt): return ACC2 + (t * 2 + rt) * 4 if t < 2 else ACC2 + 16
    def reads2(n):
        sg, t = divmod(n, 3); w = WF2 + (n % 5) * 4; tg = []
        for h in range(2):
            off = ((sg >> 1) & 1) * UNIT + (sg & 1) * 5120 + h * 1280
            if t < 2: tg.append(a(f"ds_read_b64_tr_b16 {vr(w+2*h,2)}, v{vWA} offset:{off + 40*t}"))
            else: tg.append(a(f"ds_read_b64_tr_b16 {vr(w+2*h,2)}, v{vWE} offset:{off}"))
        return tg
    def mf2(n):
        sg, t = divmod(n, 3); w = WF2 + (n % 5) * 4
        for rt in ((0, 1) if t < 2 else (c,)):
            C = acc2(t, rt) if sg else (92 if A_ else "0")
            mfma(acc2(t, rt), w, X(sg, rt), C)
    def opreload():
        a(f"v_and_b32 v{vT}, 7, v{vL}"); a(f"v_lshlrev_b32 v{vT}, 7, v{vT}")
        a(f"s_lshl_b32 s3, s{sHG}, 11"); a(f"s_add_u32 s3, s3, {c*1024}")
        a(f"v_add_u32 v{vT}, s3, v{vT}")
        a(f"v_bfe_u32 v{vT+1}, v{vL}, 3, 1"); a(f"v_mul_u32_u24 v{vT+1}, 20480, v{vT+1}"); a(f"v_add_u32 v{vT}, v{vT}, v{vT+1}")
        a(f"v_and_b32 v{vT+1}, 3, v{vL}"); a(f"v_lshlrev_b32 v{vT+1}, 7, v{vT+1}")
        a(f"s_lshl_b32 s3, s{sHG}, 9"); a(f"s_add_u32 s3, s3, 16384")
        a(f"v_add_u32 v{vT+1}, s3, v{vT+1}")
        a(f"v_bfe_u32 v{vT+2}, v{vL}, 2, 1"); a(f"v_mul_u32_u24 v{vT+2}, 20480, v{vT+2}"); a(f"v_add_u32 v{vT+1}, v{vT+1}, v{vT+2}")
        set_mask(sM, 0xffff)
        a(f"v_cndmask_b32_e64 v{vT}, v{vT+1}, v{vT}, {sr(sM,2)}")
        a("s_mov_b64 exec, 0xffffff")
        a(f"buffer_load_dword v{vT+1}, v{vT}, {sr(SS,4)}, s{sOB} offen sc1")
        a("s_mov_b64 exec, 1")
        a(f"v_mov_b32 v{vT+2}, 0")
        a(f"buffer_load_dword v{vT+3}, v{vT+2}, {sr(SS,4)}, s{sFC} offen sc1")
        a("s_mov_b64 exec, -1")
    GA = 56
    def gather(tag="gat"):
        for r in range(16):
            a(f"s_add_u32 s3, s{sKVG}, {r*4096}")
            a(f"buffer_load_dwordx2 {vr(GA+2*r,2)}, v{vL8}, {sr(SS,4)}, s3 offen sc1", tag)
    HL = [90, 92, Va, Vb, 94, Ev] if not A_ else None
    def halo_loads():
        offs = [c*3072, c*3072 + 512, c*3072 + 1024, c*3072 + 1536, 2048, 3072 + 2048]
        for d, o in zip(HL, offs):
            a(f"s_add_u32 s3, s{sHG2}, {o}")
            a(f"buffer_load_dwordx2 {vr(d,2)}, v{vL8}, {sr(SS,4)}, s3 offen sc1")
    def halo_issue():
        a(f"s_cmp_eq_u32 s{sI}, 0"); a(f"s_cselect_b32 s3, s{sRT}, 0"); a("s_cmp_eq_u32 s3, 0")
        a(f"s_cbranch_scc1 L_nohl_{P}")
        n0 = len(a.vm); halo_loads(); a.vm = a.vm[:n0]
        a.label(f"L_nohl_{P}")
    def bnd2(u):
        ops = []
        if u == 0:
            ops = first_ops + [(opreload, None)]
        else:
            d = (WQ_UNIT[u] - WQ_UNIT[u - 1]) * UNIT
            for r in (vWA, vWE): a(f"v_add_u32 v{r}, {d}, v{r}")
            a.wait(vm=f"wq{u}", lg="all")
            a("s_barrier")
            stamp(f"p{u}")
            ops = [(op, "wo") for op in dma_wo(c, u)]
        if u == OPT["gat_at"]: ops = ops + [(gather if A_ else halo_issue, None)]
        return ops
    pipeline(60, reads2, mf2, {12 * u: u for u in range(5)}, bnd2, OPT["L"], OPT["Lb"], lambda n: None)
    stamp("p2end")

    QB = {("a", 0): 96, ("b", 0): 100, ("a", 1): 104, ("b", 1): 108}
    oc = 1 - c
    a(f"s_lshl_b32 s3, s{sWV}, 9")
    a(f"v_add_u32 v{vT+3}, s3, v{vL8}")
    a(f"v_xor_b32 v{vT+2}, 2048, v{vT+3}")
    if A_:
        phi_pack(acc2(2, c), 4, [QB[("a", c)] + 2, QB[("b", c)] + 2], 120)
        a(f"ds_write_b64 v{vT+3}, {vr(QB[('a',c)]+2,2)} offset:{EQX}")
        a.wait(vm="gat")
        def gtest():
            a(f"v_max3_u32 v120, v{GA}, v{GA+1}, v{GA+2}")
            for k in range(3, 31, 2): a(f"v_max3_u32 v120, v120, v{GA+k}, v{GA+k+1}")
            a(f"v_max_u32 v120, v120, v{GA+31}")
            a(f"v_cmp_eq_u32 vcc, -1, v120")
            a(f"s_cbranch_vccz L_gok_{P}")
        gtest()
        spin_begin(f"L_gsp_{P}")
        sv = list(a.vm)
        gather(None); a("s_waitcnt vmcnt(0)")
        gtest()
        a.vm = sv
        spin_check(f"L_gsp_{P}", f"L_gok_{P}")
        for r in range(16):
            t = 124 + (r & 1) * 4; acc = 132 + (r & 1) * 4
            dst = acc if r < 2 else t
            for j in range(2):
                a(f"v_lshlrev_b32 v{dst+2*j}, 16, v{GA+2*r+j}")
                a(f"v_and_b32 v{dst+2*j+1}, 0xffff0000, v{GA+2*r+j}")
            if r >= 2:
                for j in (0, 2): a(f"v_pk_add_f32 {vr(acc+j,2)}, {vr(acc+j,2)}, {vr(t+j,2)}")
        for j in (0, 2): a(f"v_pk_add_f32 {vr(132+j,2)}, {vr(132+j,2)}, {vr(136+j,2)}")
        pack(132, 124)
        a(f"s_lshl_b32 s3, s{sI}, 9")
        a(f"v_add_u32 v{vT}, s3, v{vL8}")
        a(f"ds_write_b64 v{vT}, v[124:125] offset:{OPS + c*2048}")
        for t, h in ((0, "a"), (1, "b")):
            for rt in range(2): phi_pack(acc2(t, rt), 4, [QB[(h, rt)]], 120 + 4 * ((t * 2 + rt) & 1))
        a.wait(lg="all")
        a("s_barrier")
        stamp("E2")
        A1a, A1b, Axa, Axb, T3, T2 = 128, 132, 136, 140, 144, 146
        ob = OPS + c * 2048
        a(f"v_xor_b32 v{vT}, 256, v{vL8}")
        tq = [a(f"ds_read_b64 {vr(QB[(h,oc)]+2,2)}, v{vT+2} offset:{EQX}") for h in "ab"]
        t0 = a(f"ds_read_b64 {vr(A1a,2)}, v{vL8} offset:{ob}")
        t1 = a(f"ds_read_b64 {vr(A1b,2)}, v{vL8} offset:{ob + 512}")
        t3 = a(f"ds_read_b64 {vr(T3,2)}, v{vL8} offset:{ob + 1536}")
        t2 = a(f"ds_read_b64 {vr(T2,2)}, v{vL8} offset:{ob + 1024}")
        t4 = a(f"ds_read_b64 {vr(Axa+2,2)}, v{vT} offset:{ob + 1536}")
        ma = lambda l: (0x11dd >> (l & 15)) & 1
        set_mask(sM, gm(hA)); set_mask(sM + 2, gm(hB)); set_mask(sM + 4, 0x11dd11dd11dd11dd)
        set_mask(sM + 6, lanemask(lambda l: ((l >> 4) == hA and ma(l)) or ((l >> 4) == hB and not ma(l))))
        set_mask(sM + 8, lanemask(lambda l: l < 32))
        a(f"v_mov_b32 v{Axb+2}, 0"); a(f"v_mov_b32 v{Axb+3}, 0")
        C0 = 148
        a(f"v_mov_b32 v{C0}, 0x{f2u(1e-6):x}"); a(f"v_mov_b32 v{C0+1}, 0x{f2u(1e-6):x}"); a(f"v_mov_b32 v{C0+2}, 0"); a(f"v_mov_b32 v{C0+3}, 0")
        a.wait(lg=t3)
        for j in range(2):
            a(f"v_cndmask_b32_e64 v{A1a+2+j}, 0, v{T3+j}, {sr(sM,2)}")
            a(f"v_cndmask_b32_e64 v{A1b+2+j}, 0, v{T3+j}, {sr(sM+2,2)}")
        a.wait(lg=t4)
        for j in range(2):
            a(f"v_cndmask_b32_e64 v{Axa+j}, 0, v{T2+j}, {sr(sM+4,2)}")
            a(f"v_cndmask_b32_e64 v{Axb+j}, v{T2+j}, 0, {sr(sM+4,2)}")
            a(f"v_cndmask_b32_e64 v{Axa+2+j}, 0, v{Axa+2+j}, {sr(sM+6,2)}")
        O = {(k, rt): 152 + (rt * 3 + i) * 4 for rt in range(2) for i, k in enumerate("xab")}
        for rt in range(2): mfma(O[("x", rt)], Axa, QB[("a", rt)], C0)
        for rt in range(2): mfma(O[("a", rt)], A1a, QB[("a", rt)], "0")
        for rt in range(2): mfma(O[("x", rt)], Axb, QB[("b", rt)], O[("x", rt)])
        for rt in range(2): mfma(O[("b", rt)], A1b, QB[("b", rt)], "0")
        OM = [176, 180]; OX = [184, 186]
        for rt in range(2):
            x = O[("x", rt)]
            a(f"v_rcp_f32 v{x}, v{x}"); a(f"v_rcp_f32 v{x+1}, v{x+1}")
        for rt in range(2):
            x = O[("x", rt)]
            for j in (0, 2):
                a(f"v_pk_mul_f32 {vr(O[('a',rt)]+j,2)}, {vr(O[('a',rt)]+j,2)}, {vr(x,2)} op_sel_hi:[1,0]")
                a(f"v_pk_mul_f32 {vr(O[('b',rt)]+j,2)}, {vr(O[('b',rt)]+j,2)}, {vr(x,2)} op_sel:[0,1] op_sel_hi:[1,1]")
            a(f"v_cndmask_b32_e64 v{x}, v{x+1}, v{x}, {sr(sM+8,2)}")
            pack(O[("a", rt)], OM[rt]); pack(O[("b", rt)], OM[rt] + 2)
            a(f"v_pk_mul_f32 {vr(x+2,2)}, {vr(x+2,2)}, {vr(x,2)} op_sel_hi:[1,0]")
            a(f"v_cvt_pk_bf16_f32 v{OX[rt]}, v{x+2}, v{x+3}")
    else:
        EQ = {c: 232, oc: 234}
        pack(acc2(2, c), EQ[c])
        a(f"ds_write_b64 v{vT+3}, {vr(EQ[c],2)} offset:{EQX}")
        for t, h in ((0, "a"), (1, "b")):
            for rt in range(2): pack(acc2(t, rt), QB[(h, rt)])
        BO, BP, BP0, ONES = 120, 124, 128, 228
        a(f"v_mov_b32 v236, 0x{f2u(-1e30):x}")
        for j in range(4):
            def own(l): d = (l & 15) - 4 * (l >> 4) - j; return d >= 0 and d % 2 == 0
            def prv(l): d = (l & 15) - 4 * (l >> 4) - j; return d <= -2 and d % 2 == 0
            set_mask(sM, lanemask(own)); set_mask(sM + 2, lanemask(prv))
            a(f"v_cndmask_b32_e64 v{BO+j}, v236, 0, {sr(sM,2)}")
            a(f"v_cndmask_b32_e64 v{BP+j}, v236, 0, {sr(sM+2,2)}")
            a(f"v_mov_b32 v{ONES+j}, 0x3f803f80")
        for j in range(4): a(f"v_mov_b32 v{BP0+j}, v{BP+j}")
        a(f"s_xor_b32 s3, s{sWV}, 4"); a(f"s_mul_i32 s3, s3, 3072")
        a(f"v_add_u32 v{vT}, s3, v{vL8}")
        for rt in range(2):
            o = EXB + (4 if rt else 5) * 512
            if c == 0: a(f"ds_read_b64 {vr(Ev+2+2*rt,2)}, v{vT} offset:{o}")
            else:
                for h in "ab": a(f"ds_read_b64 {vr(KA[(h,rt)]+2,2)}, v{vT} offset:{o}")
        a(f"s_cmp_eq_u32 s{sI}, 0"); a(f"s_cbranch_scc1 L_halo_{P}")
        svl = list(a.lg)
        a(f"s_sub_u32 s3, s{sI}, 1"); a(f"s_mul_i32 s3, s3, 3072")
        a(f"v_add_u32 v{vT}, s3, v{vL8}")
        cb = EXB + c * 4 * 3072
        a(f"ds_read_b64 {vr(KA[('a',-1)],2)}, v{vT} offset:{cb}")
        a(f"ds_read_b64 {vr(KA[('b',-1)],2)}, v{vT} offset:{cb + 512}")
        a(f"ds_read_b64 {vr(Va,2)}, v{vT} offset:{cb + 1024}")
        a(f"ds_read_b64 {vr(Vb,2)}, v{vT} offset:{cb + 1536}")
        for h in "ab": a(f"ds_read_b64 {vr(KA[(h,-1)]+2,2)}, v{vT} offset:{EXB + 2048}")
        a(f"ds_read_b64 {vr(Ev,2)}, v{vT} offset:{EXB + 4*3072 + 2048}")
        a(f"s_branch L_hdone_{P}")
        a.label(f"L_halo_{P}")
        a(f"s_cmp_eq_u32 s{sRT}, 0"); a(f"s_cbranch_scc0 L_hwait_{P}")
        for d in HL: a(f"v_mov_b32 v{d}, 0"); a(f"v_mov_b32 v{d+1}, 0")
        for j in range(4): a(f"v_mov_b32 v{BP0+j}, v236")
        a(f"s_branch L_hok_{P}")
        a.label(f"L_hwait_{P}")
        sv = list(a.vm)
        def htest():
            a("s_waitcnt vmcnt(0)")
            a(f"v_max3_u32 v237, v{HL[0]}, v{HL[0]+1}, v{HL[1]}")
            a(f"v_max3_u32 v237, v237, v{HL[1]+1}, v{HL[2]}")
            a(f"v_max3_u32 v237, v237, v{HL[2]+1}, v{HL[3]}")
            a(f"v_max3_u32 v237, v237, v{HL[3]+1}, v{HL[4]}")
            a(f"v_max3_u32 v237, v237, v{HL[4]+1}, v{HL[5]}")
            a(f"v_max_u32 v237, v237, v{HL[5]+1}")
            a(f"v_cmp_eq_u32 vcc, -1, v237")
            a(f"s_cbranch_vccz L_hok_{P}")
        htest()
        spin_begin(f"L_hsp_{P}")
        halo_loads(); htest()
        spin_check(f"L_hsp_{P}", f"L_hok_{P}")
        a.vm = sv
        for j in range(2):
            a(f"v_mov_b32 v{KA[('a',-1)]+j}, v{90+j}"); a(f"v_mov_b32 v{KA[('b',-1)]+j}, v{92+j}")
            a(f"v_mov_b32 v{KA[('a',-1)]+2+j}, v{94+j}"); a(f"v_mov_b32 v{KA[('b',-1)]+2+j}, v{94+j}")
        a.label(f"L_hdone_{P}")
        a.wait(lg="all")
        a("s_barrier")
        stamp("E2")
        tq = a(f"ds_read_b64 {vr(EQ[oc],2)}, v{vT+2} offset:{EQX}")
        set_mask(sM, gm(hA)); set_mask(sM + 2, gm(hB))
        a(f"s_mov_b32 s{sK}, 0x{f2u(LOG2E * 20 ** -0.5):x}")
        for rt in (c, oc):
            if rt == oc: a.wait(lg=tq)
            for j in range(2):
                a(f"v_cndmask_b32_e64 v{QB[('a',rt)]+2+j}, 0, v{EQ[rt]+j}, {sr(sM,2)}")
                a(f"v_cndmask_b32_e64 v{QB[('b',rt)]+2+j}, 0, v{EQ[rt]+j}, {sr(sM+2,2)}")
        units = [(h, rt) for rt in (c, oc) for h in "ab"]
        S = {u: 132 + 8 * k for k, u in enumerate(units)}
        PB = {u: 164 + 4 * k for k, u in enumerate(units)}
        Om = {u: 180 + 12 * k for k, u in enumerate(units)}
        MX = {u: 238 + 2 * k for k, u in enumerate(units)}
        for u in units:
            h, rt = u
            mfma(S[u], KA[(h, rt - 1)], QB[u], BP0 if rt == 0 else BP)
            mfma(S[u] + 4, KA[(h, rt)], QB[u], BO)
        for u in units:
            s_, m = S[u], MX[u]
            a(f"v_max3_f32 v{m}, v{s_}, v{s_+1}, v{s_+2}")
            a(f"v_max3_f32 v{m+1}, v{s_+3}, v{s_+4}, v{s_+5}")
            a(f"v_max3_f32 v{m}, v{m}, v{s_+6}, v{s_+7}")
            a(f"v_max_f32 v{m}, v{m}, v{m+1}")
        for perm in ("v_permlane32_swap_b32", "v_permlane16_swap_b32"):
            for u in units: a(f"v_mov_b32 v{MX[u]+1}, v{MX[u]}")
            for u in units: a(f"{perm} v{MX[u]}, v{MX[u]+1}")
            for u in units: a(f"v_max_f32 v{MX[u]}, v{MX[u]}, v{MX[u]+1}")
        for u in units: a(f"v_mul_f32 v{MX[u]}, s{sK}, v{MX[u]}")
        V = {"a": Va, "b": Vb}
        for u in units:
            h, rt = u; s_ = S[u]
            for j in range(8): a(f"v_fma_f32 v{s_+j}, v{s_+j}, s{sK}, -v{MX[u]}")
            for j in range(8): a(f"v_exp_f32 v{s_+j}, v{s_+j}")
            pack(s_, PB[u]); pack(s_ + 4, PB[u] + 2)
            mfma(Om[u] + 8, ONES, PB[u], "0")
            mfma(Om[u], V[h] + 2 * rt, PB[u], "0")
            mfma(Om[u] + 4, Ev + 2 * rt, PB[u], "0")
        OM = [96, 100]; OX = [104, 106]
        for u in units: a(f"v_rcp_f32 v{Om[u]+8}, v{Om[u]+8}")
        for rt in (c, oc):
            ua, ub = ("a", rt), ("b", rt)
            for u in (ua, ub):
                for j in (0, 2): a(f"v_pk_mul_f32 {vr(Om[u]+j,2)}, {vr(Om[u]+j,2)}, {vr(Om[u]+8,2)} op_sel_hi:[1,0]")
            pack(Om[ua], OM[rt]); pack(Om[ub], OM[rt] + 2)
            for j in range(5): a(f"v_cndmask_b32_e64 v{Om[ua]+4+j}, v{Om[ub]+4+j}, v{Om[ua]+4+j}, {sr(sM,2)}")
            for j in (0, 2): a(f"v_pk_mul_f32 {vr(Om[ua]+4+j,2)}, {vr(Om[ua]+4+j,2)}, {vr(Om[ua]+8,2)} op_sel_hi:[1,0]")
            pack(Om[ua] + 4, OX[rt])
    a(f"s_lshl_b32 s3, s{sHG}, 11"); a(f"s_add_u32 s3, s3, s{sOB}"); a(f"s_add_u32 s3, s3, {c*1024}")
    a(f"s_add_u32 s4, s3, 20480")
    a(f"s_lshl_b32 s5, s{sHG}, 9"); a(f"s_add_u32 s5, s5, s{sOB}"); a(f"s_add_u32 s5, s5, 16384")
    a(f"s_add_u32 s6, s5, 20480")
    set_mask(sM + 2, half)
    a(f"v_mov_b32 v{vT}, s{sN}"); a(f"v_mov_b32 v{vT+1}, 0")
    a(f"s_cmp_eq_u32 s{sFAST}, 1"); a(f"s_cbranch_scc1 L_fast_{P}")
    for fl, end in ((" sc1", f"s_branch L_pubd_{P}"), ("", None)):
        if not fl: a.label(f"L_fast_{P}")
        a(f"buffer_store_dwordx4 {vr(OM[0],4)}, v{vL16}, {sr(SS,4)}, s3 offen{fl}")
        a(f"buffer_store_dwordx4 {vr(OM[1],4)}, v{vL16}, {sr(SS,4)}, s4 offen{fl}")
        if A_:
            a(f"buffer_store_dword v{OX[0]}, v{vL8}, {sr(SS,4)}, s5 offen offset:{4*c}{fl}")
            a(f"buffer_store_dword v{OX[1]}, v{vL8}, {sr(SS,4)}, s6 offen offset:{4*c}{fl}")
        else:
            a(f"s_mov_b64 exec, {sr(sM+2,2)}")
            a(f"buffer_store_dwordx2 {vr(OX[0],2)}, v{vL8}, {sr(SS,4)}, s5 offen{fl}")
            a(f"buffer_store_dwordx2 {vr(OX[1],2)}, v{vL8}, {sr(SS,4)}, s6 offen{fl}")
        if OPT["stamps"] and not fl:
            a("s_mov_b64 exec, -1"); stamp("ostore")
        a("s_mov_b64 exec, 1")
        a("s_waitcnt vmcnt(0)")
        a(f"buffer_store_dword v{vT}, v{vT+1}, {sr(SS,4)}, s{sFP} offen{fl}")
        a("s_mov_b64 exec, -1")
        if end: a(end)
    a.label(f"L_pubd_{P}")
    a.vm = ["flag"]
    stamp("oack")
    a(f"v_and_b32 v{vT+2}, 3, v{vL}")
    if A_:
        a(f"v_bfe_u32 v{vT}, v{vL}, 3, 1"); a(f"v_mul_u32_u24 v{vT}, 40, v{vT}")
        a(f"v_lshrrev_b32 v{vT+1}, 5, v{vL}"); a(f"v_mad_u32_u24 v{vT}, v{vT+1}, 20, v{vT}")
        a(f"v_bfe_u32 v{vT+1}, v{vL}, 4, 1"); a(f"v_lshl_add_u32 v{vT}, v{vT+1}, 1, v{vT}")
        a(f"v_bfe_u32 v{vT+1}, v{vL}, 2, 1"); a(f"v_add_u32 v{vT}, v{vT}, v{vT+1}")
    else:
        a(f"v_lshrrev_b32 v{vT}, 4, v{vL}"); a(f"v_mul_u32_u24 v{vT}, 20, v{vT}")
        a(f"v_bfe_u32 v{vT+1}, v{vL}, 2, 2"); a(f"v_add_u32 v{vT}, v{vT}, v{vT+1}")
    a(f"v_mul_u32_u24 v{vT}, 160, v{vT}")
    a(f"v_lshl_add_u32 v{vWE}, v{vT+2}, 3, v{vT}")
    a("s_branch L_phase2")

def phase2():
    a.label("L_phase2")
    a.vm = ["flag"]; a.lg = []
    vL16, vL8 = vXA0, vXA1
    vM0, vM1, vE0, vE1 = 1, 2, 3, 4
    a(f"v_lshrrev_b32 v{vT}, 2, v{vL}"); a(f"v_mul_u32_u24 v{vT}, 160, v{vT}")
    a(f"v_and_b32 v{vT+1}, 3, v{vL}"); a(f"v_lshl_add_u32 v{vT}, v{vT+1}, 3, v{vT}")
    a(f"v_add_u32 v{vM0}, {WO_BASE}, v{vT}"); a(f"v_add_u32 v{vM1}, {WO_BASE + 51200}, v{vT}")
    a(f"v_add_u32 v{vE0}, {WO_BASE}, v{vWE}"); a(f"v_add_u32 v{vE1}, {WO_BASE + 51200}, v{vWE}")
    a("s_barrier")
    stamp("E3")
    OF = 96; ACC = 16
    bufs = [176 + 4 * k for k in range(20)] + [36 + 4 * k for k in range(15)]
    NB = len(bufs)
    def reads(n):
        f, t = divmod(n, 5); w = bufs[n % NB]; tg = []
        for h in range(2):
            if f < 16: row = 40 * f + 20 * h; b0, b1 = vM0, vM1
            else: row = 80 * (2 * (f - 16) + h) + 16; b0, b1 = vE0, vE1
            base = b0 if row < 320 else b1; off = (row - (0 if row < 320 else 320)) * 160 + 32 * t
            tg.append(a(f"ds_read_b64_tr_b16 {vr(w+2*h,2)}, v{base} offset:{off}"))
        return tg
    tags = {}
    for n in range(NB): tags[n] = reads(n)
    a(f"v_lshlrev_b32 v{vT}, 2, v{vL}")
    a("s_mov_b64 exec, 0xffff")
    spin_begin("L_poll")
    a(f"buffer_load_dword v{vT+1}, v{vT}, {sr(SS,4)}, s{sFC} offen sc1")
    a("s_waitcnt vmcnt(0)")
    a(f"v_cmp_ne_u32 vcc, s{sN}, v{vT+1}")
    a("s_cbranch_vccz L_polled")
    spin_check("L_poll", "L_polled")
    a("s_mov_b64 exec, -1")
    a.vm = []
    stamp("polled")
    for f in range(16):
        if f % 4 == 0: a(f"s_add_u32 s3, s{sOC}, {f*1024}")
        a(f"buffer_load_dwordx4 {vr(OF+4*f,4)}, v{vL16}, {sr(SS,4)}, s3 offen offset:{(f%4)*1024} sc1", f"o{f}")
    a(f"s_add_u32 s3, s{sOC}, 16384")
    for k in range(8):
        a(f"buffer_load_dwordx2 {vr(OF+64+2*k,2)}, v{vL8}, {sr(SS,4)}, s3 offen offset:{k*512} sc1", f"o{16+k//2}")
    if OPT["wb"]:
        a(f"s_cmp_eq_u32 s{sWV}, {OPT['wb']-1}"); a(f"s_cselect_b32 s3, s{sFAST}, 0"); a("s_cmp_eq_u32 s3, 1")
        a("s_cbranch_scc0 L_nowb")
        n0 = len(a.vm); a("buffer_wbl2 sc1"); a.vm = a.vm[:n0]
        a.label("L_nowb")
    vSA, vSR, vSG = 5, 11, 12
    RA = [8, 9, 11]; GA_ = [12, 13, 14]
    a(f"s_mul_i32 s4, s{sWV}, 2816"); a(f"s_add_u32 s4, s4, {OST}")
    for j in range(3):
        a(f"v_add_u32 v{RA[j]}, {64*j}, v{vL}")
        a(f"v_mul_u32_u24 v{GA_[j]}, 6554, v{RA[j]}"); a(f"v_lshrrev_b32 v{GA_[j]}, 16, v{GA_[j]}")
        a(f"v_mul_u32_u24 v{vSA}, 10, v{GA_[j]}"); a(f"v_sub_u32 v{RA[j]}, v{RA[j]}, v{vSA}")
        a(f"v_lshlrev_b32 v{RA[j]}, 4, v{RA[j]}")
        a(f"v_mul_u32_u24 v{vSA}, 176, v{GA_[j]}")
        a(f"v_mul_u32_u24 v{GA_[j]}, 2560, v{GA_[j]}"); a(f"v_add_u32 v{GA_[j]}, v{GA_[j]}, v{RA[j]}")
        a(f"v_add3_u32 v{RA[j]}, v{RA[j]}, v{vSA}, s4")
    a(f"v_and_b32 v{vSA}, 15, v{vL}"); a(f"v_mul_u32_u24 v{vSA}, 176, v{vSA}")
    a(f"v_lshrrev_b32 v0, 4, v{vL}"); a(f"v_lshlrev_b32 v0, 3, v0"); a(f"v_add3_u32 v{vSA}, v{vSA}, v0, s4")
    rd = NB
    for n in range(100):
        f, t = divmod(n, 5)
        a.wait(vm=f"o{f}" if t == 0 else None, lg=tags[n])
        if n == 0: stamp("ofirst")
        mfma(ACC + 4 * t, bufs[n % NB], OF + 4 * f, ACC + 4 * t if f else "0")
        if rd < 100: tags[rd] = reads(rd); rd += 1
    stamp("g2end")
    for t in range(5):
        pack(ACC + 4 * t, 36 + 2 * t)
        a(f"ds_write_b64 v{vSA}, {vr(36+2*t,2)} offset:{32*t}")
    a.wait(lg="all")
    tg = []
    for j in range(3):
        if j == 2: a("s_mov_b32 exec_hi, 0")
        tg.append(a(f"ds_read_b128 {vr(48+4*j,4)}, v{RA[j]}"))
    a("s_mov_b64 exec, -1")
    fl = OPT["outflag"]; fl = "" if fl == "none" else " " + fl
    for j in range(3):
        a.wait(lg=tg[j])
        if j == 2: a("s_mov_b32 exec_hi, 0")
        a(f"buffer_store_dwordx4 {vr(48+4*j,4)}, v{GA_[j]}, {sr(SD,4)}, s{sOUT} offen{fl}")
    if OPT["stamps"]:
        a("s_mov_b64 exec, -1")
        a("s_waitcnt vmcnt(0)")
        stamp("end")
        a(f"s_memrealtime s[100:101]"); a("s_waitcnt lgkmcnt(0)"); a(f"v_writelane_b32 v{vST}, s100, 41")
        a(f"v_writelane_b32 v{vST}, s{sFAST}, 42")
        a(f"s_lshl_b32 s3, s2, 3"); a(f"s_add_u32 s3, s3, s{sWV}"); a("s_lshl_b32 s3, s3, 8"); a(f"s_add_u32 s3, s3, {WS_STAMP}")
        a(f"v_lshlrev_b32 v0, 2, v{vL}")
        a(f"buffer_store_dword v{vST}, v0, {sr(SS,4)}, s3 offen")
    a.label("L_end")
    a("s_endpgm")
    a.label("L_codeend")

prologue()
vm0 = list(a.vm)
states = {}
for c in range(2):
    if c == 1: a.label("L_pro_c1")
    a.vm = []; a.lg = []
    prologue2(c)
    sv = list(a.vm)
    path(0, c)
    a.vm = list(sv); a.lg = []
    path(1, c)
phase2()
a.raw(f""".section .rodata,"a"
.p2align 6
.amdhsa_kernel {KNAME}
  .amdhsa_next_free_vgpr 256
  .amdhsa_next_free_sgpr 102
  .amdhsa_accum_offset 256
  .amdhsa_group_segment_fixed_size 0
  .amdhsa_kernarg_size 72
  .amdhsa_user_sgpr_count 2
  .amdhsa_user_sgpr_kernarg_segment_ptr 1
  .amdhsa_system_sgpr_workgroup_id_x 1
.end_amdhsa_kernel""")
open(sys.argv[1], "w").write(a.text())
print("nops inserted:", a.nops_inserted, "lines:", len(a.lines), file=sys.stderr)
```

```python
import re

TRANS = ("v_exp_f32", "v_log_f32", "v_rcp_f32", "v_rsq_f32", "v_sqrt_f32", "v_sin_f32", "v_cos_f32")

def regs_of(tok):
    tok = tok.strip()
    tok = re.sub(r"^-", "", tok)
    tok = re.sub(r"^\|(.*)\|$", r"\1", tok)
    m = re.fullmatch(r"abs\((.*)\)", tok)
    if m: tok = m.group(1)
    m = re.fullmatch(r"([vs])\[(\d+):(\d+)\]", tok)
    if m: return [(m.group(1), i) for i in range(int(m.group(2)), int(m.group(3)) + 1)]
    m = re.fullmatch(r"([vs])(\d+)", tok)
    if m: return [(m.group(1), int(m.group(2)))]
    if tok in ("vcc", "vcc_lo", "vcc_hi"): return [("x", "vcc")]
    if tok in ("exec", "exec_lo", "exec_hi"): return [("x", "exec")]
    if tok == "m0": return [("x", "m0")]
    return []

class Ins:
    def __init__(self, text):
        self.text = text
        t = text.split(";")[0].strip()
        parts = t.split(None, 1)
        self.op = parts[0]
        ops = []
        if len(parts) > 1:
            for o in parts[1].split(","):
                o = o.strip()
                ops.append(o.split()[0] if o else o)
        self.ops = ops
        op = self.op
        base = re.sub(r"_(e32|e64|dpp|sdwa)$", "", op)
        self.base = base
        self.is_mfma = op.startswith("v_mfma")
        self.is_valu = op.startswith("v_") and not self.is_mfma
        self.is_salu = op.startswith("s_")
        self.is_ds = op.startswith("ds_")
        self.is_vmem = op.startswith("buffer_") or op.startswith("global_")
        self.is_trans = base in TRANS
        self.is_perm = base.startswith("v_permlane")
        self.is_dpp = "quad_perm" in text or "row_" in text or op.endswith("_dpp")
        self.is_ldsdma = self.is_vmem and re.search(r"\blds\b", t) is not None
        R = [regs_of(o) for o in ops]
        self.w = []; self.r = []
        if self.is_mfma:
            self.w = R[0]; self.ra = R[1] + R[2]; self.rc = R[3]; self.r = self.ra + self.rc
        elif self.is_valu:
            if base.startswith("v_cmp"):
                self.w = R[0]; self.r = sum(R[1:], [])
            elif self.is_perm:
                self.w = R[0] + R[1]; self.r = R[0] + R[1]
            elif base in ("v_add_co_u32", "v_addc_co_u32", "v_sub_co_u32"):
                self.w = R[0] + R[1]; self.r = sum(R[2:], [])
            else:
                self.w = R[0]; self.r = sum(R[1:], [])
                if base in ("v_fmac_f32", "v_dot2c_f32_bf16", "v_writelane_b32"): self.r += R[0]
                if base == "v_cndmask_b32" and len(ops) == 3: self.r += [("x", "vcc")]
        elif self.is_ds:
            if "read" in op or "bpermute" in op or "swizzle" in op:
                self.w = R[0]; self.r = sum(R[1:], [])
            else:
                self.r = sum(R, [])
        elif self.is_vmem:
            if op.startswith("buffer_wbl2") or op.startswith("buffer_inv"):
                pass
            elif "load" in op and not self.is_ldsdma:
                self.w = R[0]; self.r = sum(R[1:], [])
            else:
                self.r = sum(R, [])
                if self.is_ldsdma: self.r += [("x", "m0")]
            self.store_wide = ("store" in op and ("x3" in op or "x4" in op))
            self.sdata = []
            if self.store_wide:
                self.sdata = R[0] if op.startswith("buffer_") else R[1]
        elif self.is_salu:
            if op.startswith("s_cmp") or op.startswith("s_cbranch") or op in ("s_branch", "s_waitcnt", "s_barrier", "s_nop", "s_endpgm", "s_sleep", "s_setprio", "s_bitcmp1_b32", "s_bitcmp0_b32"):
                self.r = sum(R, [])
            else:
                self.w = R[0] if R else []; self.r = sum(R[1:], [])
        self.states = 1
        if op == "s_nop": self.states = int(ops[0], 0) + 1

class Asm:
    def __init__(self):
        self.lines = []
        self.hist = []
        self.vm = []
        self.lg = []
        self.nops_inserted = 0
        self.uid = 0

    def raw(self, s):
        self.lines.append(s)

    def comment(self, s):
        self.lines.append("    ; " + s)

    def label(self, name, reset=True):
        self.lines.append(name + ":")

    def need(self, ins):
        need = 0; dist = 0
        for p in reversed(self.hist):
            if dist >= 20: break
            req = 0
            pw = set(p.w)
            if p.is_valu:
                vw = {x for x in pw if x[0] == "v"}
                sw = {x for x in pw if x[0] == "s" or x == ("x", "vcc")}
                if ins.is_mfma and vw & set(ins.r): req = max(req, 2)
                if p.is_trans and ins.is_valu and not ins.is_trans and vw & set(ins.r): req = max(req, 1)
                if (ins.is_perm or ins.is_dpp) and vw & set(ins.r): req = max(req, 2)
                if ins.base in ("v_readfirstlane_b32", "v_readlane_b32") and vw & set(ins.r): req = max(req, 1)
                if ins.is_valu and sw & set(ins.r): req = max(req, 4 if ins.base in ("v_readlane_b32", "v_writelane_b32") else 2)
                if ins.is_vmem and sw & set(ins.r): req = max(req, 5)
                if ins.is_salu and sw & set(ins.r) and not ins.op.startswith("s_cbranch"): req = max(req, 1)
                if ("x", "exec") in pw: req = max(req, 5)
            if p.is_mfma:
                if ins.is_mfma:
                    if pw & set(ins.ra): req = max(req, 8)
                    if pw & set(ins.rc) and p.w != ins.rc: req = max(req, 6)
                    if pw & set(ins.w) and p.w != ins.rc: req = max(req, 8)
                elif ins.is_valu or ins.is_ds or ins.is_vmem:
                    if pw & (set(ins.r) | set(ins.w)): req = max(req, 8)
                if ins.is_valu and set(p.rc) & set(ins.w): req = max(req, 3)
            if p.is_salu and ("x", "m0") in pw and ins.is_vmem and ins.is_ldsdma: req = max(req, 1)
            if p.is_vmem and p.store_wide and set(p.sdata) & set(ins.w): req = max(req, 2)
            if req - dist > need: need = req - dist
            dist += p.states
        return need

    def __call__(self, text, tag=None):
        ins = Ins(text)
        if ins.is_ds and len(self.lg) >= 15:
            self.lg = self.lg[-12:]
            self("s_waitcnt lgkmcnt(12)")
        n = self.need(ins)
        while n > 0:
            k = min(n, 16)
            nop = Ins(f"s_nop {k-1}")
            self.lines.append(f"    s_nop {k-1}"); self.hist.append(nop); self.nops_inserted += k
            n -= k
        self.lines.append("    " + text)
        self.hist.append(ins)
        if len(self.hist) > 64: self.hist = self.hist[-40:]
        if tag is None:
            self.uid += 1; tag = f"_{self.uid}"
        if ins.is_vmem: self.vm.append(tag)
        if ins.is_ds: self.lg.append(tag)
        return tag

    def fence(self, n=10):
        self(f"s_nop {n-1}")

    def wait(self, vm=None, lg=None, keep=False):
        parts = []
        if vm is not None:
            if vm == "all": k = 0
            else:
                tags = vm if isinstance(vm, (list, tuple)) else [vm]
                idx = [i for i, t in enumerate(self.vm) if t in tags]
                k = sum(1 for t in self.vm[max(idx) + 1:] if not t.startswith("~")) if idx else None
            if k is not None:
                kk = min(k, 63); parts.append(f"vmcnt({kk})")
                if vm == "all": self.vm = []
                elif not keep: self.vm = self.vm[max(idx) + 1:]
        if lg is not None:
            if lg == "all": k = 0
            else:
                tags = lg if isinstance(lg, (list, tuple)) else [lg]
                idx = [i for i, t in enumerate(self.lg) if t in tags]
                k = len(self.lg) - 1 - max(idx) if idx else None
            if k is not None:
                kk = min(k, 15); parts.append(f"lgkmcnt({kk})"); self.lg = self.lg[len(self.lg) - kk:] if kk else []
        if parts: self("s_waitcnt " + " ".join(parts))

    def text(self):
        return "\n".join(self.lines) + "\n"

def vr(a, n=1):
    return f"v{a}" if n == 1 else f"v[{a}:{a+n-1}]"
def sr(a, n=1):
    return f"s{a}" if n == 1 else f"s[{a}:{a+n-1}]"
```

```python
import sys, os, struct
from collections import deque
from asmlib import Asm, vr, sr

KNAME = "concat_heads__linear_attn_block__sliding_local_dilated__prompt_kernel"
OPT = dict(worot=0, wbn=49, wbw=4, tqonly=0, st0=-1, stn=6, stq=1, stp=1, srate=3, prel1=-1, ofl="nt", npoll=5, pre1=10, gspread=1, LA=2, p1n=3, win="", ea=0, eb=-1, ec=3, ecg=0, pst=-1, rev0=0, wodef=2, wnt=0, wont=0, pnt=0, xrot=1, prest=0, xnt=1, t0=0, wosched=0, G=10, stamps=0, L=4, Lb=2, L2=8, Lb2=4, force_slow=0, wb=0, codepf=1, outflag="nt", gat_at=3, pro=2, tq=-1,
           oburst=6, npre=30, rdy_at=4, prel_at=1, stampset="all")
for x in sys.argv[2:]:
    k, v = x.split("="); OPT[k] = int(v) if v.lstrip("-").isdigit() else v

def f2u(x): return struct.unpack("<I", struct.pack("<f", x))[0]

SLOT = 36864; UNIT = 10240
SC = 20480
EE_A = SC; RED = SC + 8192; OPS = SC; EQX = SC + 28672; EXB = SC; OST = SC
BCAST = 147456 + 64
WO_BASE = 6 * UNIT
WQ_UNIT = [8, 10, 12, 0, 14]
CST = 148480
EE_A2 = 154624
OPX = 0
WS_KV = 0x600000; WS_HALO = 0x700000; WS_FLAG = 0x800000; WS_RDY = 0x810000; WS_E = 0x820000; WS_STAMP = 0x900000
WS_SIZE = 0x10000000
SPIN_MAX = 200000
EPS = f2u(1e-6)
LOG2E = 1.4426950408889634

SX, SW, SO, SD, SS, SG = 16, 20, 24, 28, 32, 36
sB, sRT, sHG, sWV, sI, sC, sXCC, sN, sFAST = 40, 41, 42, 43, 44, 45, 46, 47, 48
sXO, sWK = 50, 60
sW1K, sX2K = 70, 71
sT0, sT1, sT2, sT3 = 72, 73, 74, 75
sOB, sKVP, sKVG, sHP, sHG2, sFP, sFC = 76, 77, 78, 79, 49, 9, 8
sM = 80
sSPIN = 92; sCUR = 93; sDUTY = 90
sK = 94; sTM = 96; sOC = 98; sOUT = 99; sOE = 91
vXD0, vXD1, vWD = 1, 2, 3
vXA0, vXA1, vWA, vWE, vL = 6, 7, 8, 9, 10
vT = 11; vST = 15
vWO = 90; vPRE = 93; vGAD = 94
ACC1 = 16; WF = 56; XB = 96
def X(ks, rt): return XB + (ks * 2 + rt) * 4

a = Asm()
STAMPS = ["start", "issued", "b0", "b1", "b2", "b3", "b4", "b5", "b6", "b7", "b8", "b9", "p1end", "E1", "pub1", "p1", "p2", "p3", "p4", "p2end", "E2", "ostore", "oack", "E3", "polled", "ofirst", "g2end", "end"]
FEW = {"issued", "b0", "b1", "b5", "p1end", "pub1", "p2end", "ostore", "polled", "g2end", "end"}
def stamp(name):
    if not OPT["stamps"]: return
    if OPT["stampset"] == "few" and name not in FEW: return
    a(f"s_memtime {sr(sTM,2)}")
    a("s_waitcnt lgkmcnt(0)"); a.lg = []
    a(f"v_writelane_b32 v{vST}, s{sTM}, {STAMPS.index(name)}")

def srd(d, lo, hi, size):
    a(f"s_mov_b32 s{d}, s{lo}"); a(f"s_mov_b32 s{d+1}, s{hi}")
    a(f"s_mov_b32 s{d+2}, {size}"); a(f"s_mov_b32 s{d+3}, 0x20000")
def mask_ins(s, val):
    if s == "vcc": return [f"s_mov_b32 vcc_lo, 0x{val & 0xffffffff:x}", f"s_mov_b32 vcc_hi, 0x{val >> 32:x}"]
    return [f"s_mov_b32 s{s}, 0x{val & 0xffffffff:x}", f"s_mov_b32 s{s+1}, 0x{val >> 32:x}"]
def set_mask(s, val):
    for i in mask_ins(s, val): a(i)
def lanemask(f):
    m = 0
    for l in range(64):
        if f(l): m |= 1 << l
    return m

def wvoff_ins(dst, q, pitch, swap, second):
    r = [f"s_add_u32 s{sT0}, s{sWV}, {8*q}", f"s_cmp_ge_u32 s{sT0}, 10", f"s_cselect_b32 s{sT1}, {second}, 0", f"s_cselect_b32 s{sT2}, 10, 0",
         f"s_sub_u32 s{sT0}, s{sT0}, s{sT2}", f"s_lshl_b32 s{sT0}, s{sT0}, 6",
         f"v_add_u32 v{vT}, s{sT0}, v{vL}", f"v_mul_u32_u24 v{vT+1}, 6554, v{vT}", f"v_lshrrev_b32 v{vT+1}, 16, v{vT+1}",
         f"v_mul_u32_u24 v{vT+2}, 10, v{vT+1}", f"v_sub_u32 v{vT}, v{vT}, v{vT+2}"]
    if swap:
        r += [f"v_lshrrev_b32 v{vT+2}, 1, v{vT+1}", f"v_xor_b32 v{vT+2}, v{vT+2}, v{vT+1}", f"v_and_b32 v{vT+2}, 4, v{vT+2}",
              f"v_mul_u32_u24 v{vT+2}, 3, v{vT+2}", f"v_xor_b32 v{vT+1}, v{vT+1}, v{vT+2}"]
    r += [f"v_mul_u32_u24 v{vT+1}, {pitch}, v{vT+1}", f"v_lshlrev_b32 v{vT}, 4, v{vT}", f"v_add3_u32 v{dst}, v{vT}, v{vT+1}, s{sT1}"]
    return r
def wvoff(*args):
    for i in wvoff_ins(*args): a(i)

XF = " nt" if OPT["xnt"] else ""
WFL = " nt" if OPT["wnt"] else ""
WOFL = " nt" if OPT["wont"] else ""
def dma_chunk(c, step):
    base = (step % 4) * SLOT
    ops = [([f"s_add_u32 m0, s{sX2K}, {base}"], f"buffer_load_dwordx4 v{vXD0}, {sr(SX,4)}, s{sXO+step} offen{XF} lds"),
           ([f"s_add_u32 m0, s{sX2K}, {base + 1024}"], f"buffer_load_dwordx4 v{vXD1}, {sr(SX,4)}, s{sXO+step} offen{XF} lds")]
    for q in range(3 if c == 0 else 2):
        ops.append(([f"s_add_u32 m0, s{sW1K}, {base + 16384 + q*8192}"], f"buffer_load_dwordx4 v{vWD+q}, {sr(SW,4)}, s{sWK+step} offen{WFL} lds"))
    return ops
def dma_wq(c, u):
    base = WQ_UNIT[u] * UNIT
    ops = []
    for q in range(3 if c == 0 else 2):
        pre = []
        if q == 0: pre.append(f"s_sub_u32 s{sT3}, s{sWK+2*u}, 1280")
        elif q == 2 or c == 1: pre.append(f"s_sub_u32 s{sT3}, s{sWK+2*u+1}, 1280")
        else: pre += [f"s_cmp_lt_u32 s{sWV}, 2", f"s_cselect_b32 s{sT3}, s{sWK+2*u}, s{sWK+2*u+1}", f"s_sub_u32 s{sT3}, s{sT3}, 1280"]
        pre.append(f"s_add_u32 m0, s{sW1K}, {base + q*8192}")
        ops.append((pre, f"buffer_load_dwordx4 v{vWD+q}, {sr(SW,4)}, s{sT3} offen{WFL} lds"))
    return ops
sWOR = 86
def dma_wo(c, u):
    base = WO_BASE + u * 2 * UNIT
    ops = []
    if u < OPT["worot"]:
        for q in range(3 if c == 0 else 2):
            pre = [f"s_lshl_b32 s{sT3}, s{sWOR+u}, 3", f"s_add_u32 s{sT3}, s{sT3}, s{sCUR}", f"s_add_u32 s{sT2}, s{sW1K}, s{sWOR+u}", f"s_add_u32 m0, s{sT2}, {WO_BASE + q*8192}"]
            ops.append((pre, f"buffer_load_dwordx4 v{vWO+q}, {sr(SO,4)}, s{sT3} offen{WOFL} lds"))
        return ops
    for q in range(3 if c == 0 else 2):
        pre = [f"s_add_u32 s{sT3}, s{sCUR}, {u*128*1280}", f"s_add_u32 m0, s{sW1K}, {base + q*8192}"]
        ops.append((pre, f"buffer_load_dwordx4 v{vWO+q}, {sr(SO,4)}, s{sT3} offen{WOFL} lds"))
    return ops
def emit_op(op, tag):
    if callable(op): return op()
    for p in op[0]: a(p)
    a(op[1], tag)

def spin_begin(name):
    a(f"s_mov_b32 s{sSPIN}, 0"); a.label(name)
def spin_check(name, done):
    a(f"s_add_u32 s{sSPIN}, s{sSPIN}, 1"); a(f"s_cmp_lt_u32 s{sSPIN}, {SPIN_MAX}"); a(f"s_cbranch_scc1 {name}")
    a.label(done)

def phi_ins(src, n, dst_list, tmp):
    r = []
    for i in range(n): r.append(f"v_mul_f32 v{tmp+i}, s{sK}, v{src+i}")
    for i in range(n):
        r.append(f"v_exp_f32_e64 v{tmp+i}, v{tmp+i} clamp")
        r.append(f"v_max_f32 v{src+i}, s{sK+1}, v{src+i}")
    for i in range(n): r.append(f"v_add_f32 v{src+i}, v{src+i}, v{tmp+i}")
    for d in dst_list:
        for i in range(0, n, 2): r.append(f"v_cvt_pk_bf16_f32 v{d+i//2}, v{src+i}, v{src+i+1}")
    return r
def phi_pack(*args):
    for i in phi_ins(*args): a(i)
def pack_ins(src, dst):
    return [f"v_cvt_pk_bf16_f32 v{dst}, v{src}, v{src+1}", f"v_cvt_pk_bf16_f32 v{dst+1}, v{src+2}, v{src+3}"]
def pack(src, dst):
    for i in pack_ins(src, dst): a(i)
def mfma(d, A, B, C):
    c = C if isinstance(C, str) else vr(C, 4)
    a(f"v_mfma_f32_16x16x32_bf16 {vr(d,4)}, {vr(A,4)}, {vr(B,4)}, {c}")

def emit_side(x):
    if callable(x): x(); return 4
    if isinstance(x, list):
        for y in x: a(y)
        return max(1, sum(1 for y in x if y.startswith("v_")))
    a(x); return 1

def pipeline(N, reads, mf, bounds, boundary, L, Lb, bufs, newbufs={}, side={}, side_rate=3):
    rd = 0; m = 0; tags = {}; bufof = {}; pend = []; every = 1; cnt = 0
    free = deque(bufs); bl = sorted(bounds); sq = deque()
    while m < N:
        can_read = rd < N and rd - m < L + 1 and len(free) > 0
        if can_read and rd in bounds and rd - m > Lb: can_read = False
        if can_read:
            if rd in bounds:
                for op in pend: emit_op(op[0], op[1])
                pend = list(boundary(bounds[rd]))
                nxt = [x for x in bl if x > rd]
                span = (nxt[0] if nxt else N) - rd
                every = max(1, (span - 1) // max(1, len(pend))); cnt = 0
            bufof[rd] = free.popleft()
            tags[rd] = reads(rd, bufof[rd]); rd += 1
        else:
            a.wait(lg=tags[m])
            cnt += 1; op = None
            if pend and cnt % every == 0:
                op = pend.pop(0)
                if not callable(op[0]):
                    for p in op[0][0]: a(p)
            mf(m, bufof[m])
            free.append(bufof[m])
            for b_ in newbufs.get(m, []): free.append(b_)
            if op is not None:
                if callable(op[0]): op[0]()
                else: a(op[0][1], op[1])
            for x in side.get(m, []): sq.append(x)
            k = 0
            while sq and k < side_rate:
                k += emit_side(sq.popleft())
            m += 1
    for op in pend: emit_op(op[0], op[1])
    while sq: emit_side(sq.popleft())

def step_offsets_win(s):
    sizes = [int(x) for x in str(OPT["win"]).split(",")]
    w0 = 0
    for sz in sizes:
        if s < w0 + sz: break
        w0 += sz
    if sz == 1:
        a(f"s_add_u32 s{sWK+s}, s5, {s*245760}"); a(f"s_add_u32 s{sXO+s}, s4, {s*128}")
        return
    a(f"s_add_u32 s{sT3}, s{sCUR}, {s - w0}"); a(f"s_and_b32 s{sT3}, s{sT3}, {sz-1}"); a(f"s_add_u32 s{sT3}, s{sT3}, {w0}")
    a(f"s_mul_i32 s{sWK+s}, s{sT3}, 245760"); a(f"s_add_u32 s{sWK+s}, s{sWK+s}, s5")
    a(f"s_lshl_b32 s{sXO+s}, s{sT3}, 7"); a(f"s_add_u32 s{sXO+s}, s{sXO+s}, s4")

def touch_steps(c, s0, n, par, tag):
    a(f"s_lshr_b32 s3, s2, 3"); a(f"s_and_b32 s6, s3, 1"); a(f"s_cmp_eq_u32 s6, {par}"); a(f"s_cbranch_scc0 L_nt_{tag}")
    a(f"s_lshr_b32 s3, s3, 1")
    a(f"s_and_b32 s6, s2, 3")
    if c == 1:
        a(f"s_cmp_eq_u32 s{sWV}, 4"); a(f"s_cbranch_scc0 L_tw_{tag}")
    if n < 5 and c == 1: a(f"s_branch L_nt_{tag}")
    else:
        a(f"s_lshl_b32 s6, s6, 4"); a(f"s_add_u32 s6, s6, s3"); a(f"s_mul_i32 s6, s6, {32*1280}")
        a(f"s_lshl_b32 s7, s{sWV}, 7"); a(f"s_add_u32 s6, s6, s7"); a(f"s_add_u32 s6, s6, {s0*128}")
        a(f"v_mul_u32_u24 v86, 1280, v{vL}")
        a("s_mov_b32 exec_hi, 0")
        a(f"buffer_load_dword v87, v86, {sr(SX,4)}, s6 offen nt", "~t")
        a("s_mov_b32 exec_hi, -1")
        if c == 1: a(f"s_branch L_nt_{tag}")
    if c == 1:
        a.label(f"L_tw_{tag}")
        a(f"s_lshl_b32 s6, s6, 4"); a(f"s_add_u32 s6, s6, s3"); a(f"s_mul_i32 s6, s6, 3840"); a(f"s_add_u32 s6, s6, {s0*245760 + 1280}")
        a(f"s_sub_u32 s7, s{sWV}, 5"); a(f"s_mul_i32 s7, s7, 34")
        a(f"v_add_u32 v86, s7, v{vL}"); a(f"v_min_u32 v86, {20*n-1}, v86")
        a(f"v_mul_u32_u24 v87, 3277, v86"); a(f"v_lshrrev_b32 v87, 16, v87")
        a(f"v_mul_u32_u24 v88, 20, v87"); a(f"v_sub_u32 v86, v86, v88"); a(f"v_lshlrev_b32 v86, 7, v86")
        a(f"v_mul_u32_u24 v87, 245760, v87"); a(f"v_add_u32 v86, v86, v87")
        a("s_mov_b32 exec_hi, 3")
        a(f"buffer_load_dword v87, v86, {sr(SW,4)}, s6 offen", "~t")
        a("s_mov_b32 exec_hi, -1")
    a.label(f"L_nt_{tag}")

def touch_qo(c):
    if OPT["tqonly"] and c == 1: return
    a(f"s_lshl_b32 s3, s{sRT}, 3"); a(f"s_add_u32 s3, s3, s{sHG}"); a(f"s_mul_i32 s3, s3, 50"); a(f"s_mul_i32 s6, s{sI}, 13"); a("s_add_u32 s3, s3, s6")
    a(f"v_add_u32 v86, s3, v{vL}")
    if c == 0:
        a(f"v_mul_u32_u24 v87, 52429, v86"); a(f"v_lshrrev_b32 v87, 19, v87")
        a(f"v_mul_u32_u24 v88, 10, v87"); a(f"v_sub_u32 v86, v86, v88"); a(f"v_lshlrev_b32 v86, 7, v86")
        a(f"v_mul_u32_u24 v87, 3840, v87"); a(f"v_add_u32 v86, v86, v87")
    else:
        a(f"v_lshlrev_b32 v86, 7, v86")
    a("s_mov_b64 exec, 0x1fff")
    a(f"buffer_load_dword v87, v86, {sr(SW if c == 0 else SO,4)}, 0 offen")
    a("s_mov_b64 exec, -1")

def prestore(c):
    a(f"s_lshl_b32 s3, s{sHG}, 11"); a(f"s_add_u32 s3, s3, s{sOB}"); a(f"s_add_u32 s3, s3, {c*1024}"); a("s_add_u32 s4, s3, 20480")
    a(f"s_lshl_b32 s5, s{sHG}, 9"); a(f"s_add_u32 s5, s5, s{sOB}"); a(f"s_add_u32 s5, s5, {16384 + c*256}"); a("s_add_u32 s6, s5, 20480")
    a(f"v_lshlrev_b32 v79, 4, v{vL}")
    a(f"buffer_store_dwordx4 v[80:83], v79, {sr(SS,4)}, s3 offen sc1")
    a(f"buffer_store_dwordx4 v[80:83], v79, {sr(SS,4)}, s4 offen sc1")
    a("s_mov_b64 exec, 0xffff")
    a(f"buffer_store_dwordx4 v[80:83], v79, {sr(SS,4)}, s5 offen sc1")
    a(f"buffer_store_dwordx4 v[80:83], v79, {sr(SS,4)}, s6 offen sc1")
    a("s_mov_b64 exec, -1")

def step_offsets(s):
    if OPT["win"]: return step_offsets_win(s)
    G = OPT["G"]; w0 = (s // G) * G
    if w0: a(f"s_add_u32 s{sT3}, s{sCUR}, {w0}"); src = sT3
    else: src = sCUR
    a(f"s_mul_i32 s{sWK+s}, s{src}, 245760"); a(f"s_add_u32 s{sWK+s}, s{sWK+s}, s5")
    a(f"s_lshl_b32 s{sXO+s}, s{src}, 7"); a(f"s_add_u32 s{sXO+s}, s{sXO+s}, s4")
    if G > 1 and s < 9:
        a(f"s_add_u32 s{sCUR}, s{sCUR}, 1"); a(f"s_cmp_eq_u32 s{sCUR}, {G}"); a(f"s_cselect_b32 s{sCUR}, 0, s{sCUR}")

def prologue():
    a.raw(f"; @launch grid=(256,1,1) block=(512,1,1) lds=163840")
    a.raw('.amdgcn_target "amdgcn-amd-amdhsa--gfx950"')
    a.raw(".text"); a.raw(f".globl {KNAME}"); a.raw(".p2align 8"); a.raw(f".type {KNAME},@function")
    a.label(KNAME)
    a("s_cmp_ge_u32 s2, 256")
    a("s_cbranch_scc1 L_end")
    a(f"s_bfe_u32 s{sB}, s2, 0x10002")
    a(f"s_mul_i32 s3, s{sB}, 24")
    a("s_add_u32 s76, s0, s3"); a("s_addc_u32 s77, s1, 0")
    a(f"s_load_dwordx4 s[{sM}:{sM+3}], s[76:77], 0")
    a("s_load_dwordx2 s[8:9], s[76:77], 16")
    a("s_load_dwordx4 s[12:15], s[0:1], 48")
    a("s_load_dwordx2 s[10:11], s[0:1], 64")
    a(f"v_lshrrev_b32 v{vT}, 6, v0")
    a(f"v_and_b32 v{vL}, 63, v0")
    a(f"v_readfirstlane_b32 s{sWV}, v{vT}")
    if OPT["stamps"]:
        a(f"v_mov_b32 v{vST}, 0"); a(f"s_memtime {sr(sTM,2)}"); a("s_memrealtime s[100:101]")
    a(f"v_lshrrev_b32 v{vT}, 3, v{vL}")
    a(f"v_lshrrev_b32 v{vT+1}, 4, v{vL}")
    a(f"v_xor_b32 v{vT+1}, v{vT+1}, v{vL}")
    a(f"v_and_b32 v{vT+1}, 7, v{vT+1}")
    a(f"v_mul_u32_u24 v{vT}, 1280, v{vT}")
    a(f"v_lshl_add_u32 v{vXD0}, v{vT+1}, 4, v{vT}")
    a(f"v_xor_b32 v{vXD1}, 64, v{vXD0}")
    a(f"v_add_u32 v{vXD1}, 10240, v{vXD1}")
    a(f"s_and_b32 s{sRT}, s2, 3"); a(f"s_lshl_b32 s{sRT}, s{sRT}, 2")
    a(f"s_bfe_u32 s3, s2, 0x20003"); a(f"s_add_u32 s{sRT}, s{sRT}, s3")
    a(f"s_lshr_b32 s{sHG}, s2, 5")
    a(f"s_lshr_b32 s{sC}, s{sWV}, 2")
    a(f"s_lshl_b32 s{sW1K}, s{sWV}, 10"); a(f"s_lshl_b32 s{sX2K}, s{sWV}, 11")
    G = OPT["G"]
    if OPT["win"]: a(f"s_mov_b32 s{sCUR}, s3")
    elif G == 1: a(f"s_mov_b32 s{sCUR}, 0")
    elif G == 2: a(f"s_add_u32 s{sCUR}, s3, s{sHG}"); a(f"s_and_b32 s{sCUR}, s{sCUR}, 1")
    else:
        a(f"s_lshl_b32 s{sCUR}, s3, 1"); a(f"s_add_u32 s{sCUR}, s{sCUR}, s{sHG}")
        if OPT["xrot"]: a(f"s_and_b32 s{sT1}, s2, 3"); a(f"s_add_u32 s{sCUR}, s{sCUR}, s{sT1}")
        for _ in range(3 if G == 5 else 1):
            a(f"s_cmp_ge_u32 s{sCUR}, {G}"); a(f"s_cselect_b32 s{sT1}, {G}, 0"); a(f"s_sub_u32 s{sCUR}, s{sCUR}, s{sT1}")
    a(f"s_lshl_b32 s4, s{sRT}, 3"); a(f"s_add_u32 s4, s4, s{sWV}"); a(f"s_mul_i32 s4, s4, 20480")
    a(f"s_mul_i32 s5, s{sHG}, 160"); a(f"s_add_u32 s5, s5, 1280")
    step_offsets(0)
    for q in range(2): wvoff(vWD + q, q, 3840, True, 1280)
    a(f"s_mov_b32 s{SX+2}, 2621440"); a(f"s_mov_b32 s{SX+3}, 0x20000"); a(f"s_mov_b32 s{SW+2}, 2457600"); a(f"s_mov_b32 s{SW+3}, 0x20000")
    if OPT["codepf"]:
        a("s_getpc_b64 s[6:7]")
        a.label(f"L_pc")
        a(f"s_sub_u32 s6, s6, L_pc-{KNAME}"); a("s_subb_u32 s7, s7, 0")
        a(f"s_lshr_b32 s3, s2, 3"); a(f"s_lshl_b32 s3, s3, 3"); a(f"s_add_u32 s3, s3, s{sWV}"); a("s_lshl_b32 s3, s3, 8")
        a(f"v_lshl_add_u32 v86, v{vL}, 7, s3")
        a(f"v_min_u32 v86, L_codeend-{KNAME}-4, v86")
        a(f"v_mov_b32 v89, s7")
        a(f"v_add_co_u32 v88, vcc, s6, v86")
        a(f"v_addc_co_u32 v89, vcc, 0, v89, vcc")
    a("s_waitcnt lgkmcnt(0)")
    a(f"s_mov_b32 s{SX}, s{sM}"); a(f"s_mov_b32 s{SX+1}, s{sM+1}"); a(f"s_mov_b32 s{SW}, s{sM+2}"); a(f"s_mov_b32 s{SW+1}, s{sM+3}")
    if OPT["codepf"] == 1:
        a("s_mov_b64 exec, 3"); a(f"global_load_dword v87, v[88:89], off"); a("s_mov_b64 exec, -1")
    ops = dma_chunk(0, 0)
    for op in ops[:4]: emit_op(op, "ch0")
    wvoff(vWD + 2, 2, 3840, True, 1280)
    a(f"s_cmp_eq_u32 s{sC}, 0"); a("s_cbranch_scc0 L_no5")
    emit_op(ops[4], "~c0")
    a.label("L_no5")
    if OPT["codepf"] == 2:
        a("s_mov_b64 exec, 3"); a(f"global_load_dword v87, v[88:89], off"); a("s_mov_b64 exec, -1")
    if OPT["stamps"]:
        a(f"v_writelane_b32 v{vST}, s{sTM}, 0"); a(f"v_writelane_b32 v{vST}, s100, 40")
    srd(SS, 10, 11, WS_SIZE); srd(SG, 14, 15, 256)
    a(f"s_and_b32 s{sI}, s{sWV}, 3")
    a(f"s_or_b32 s3, s2, s{sWV}"); a("s_cmp_eq_u32 s3, 0"); a(f"s_cbranch_scc0 L_nn0")
    a(f"s_add_u32 s6, s10, {WS_E}"); a("s_addc_u32 s7, s11, 0")
    a(f"s_load_dword s{sN}, s[6:7], 0")
    a.label("L_nn0")
    a(f"s_lshl_b32 s6, s{sHG}, 16"); a(f"s_lshl_b32 s7, s{sI}, 9"); a(f"s_add_u32 s6, s6, s7")
    a(f"s_lshl_b32 s7, s{sC}, 11"); a("s_add_u32 s6, s6, s7")
    a(f"s_add_u32 s{sKVG}, s6, {WS_KV}")
    a(f"s_lshl_b32 s7, s{sRT}, 12"); a(f"s_add_u32 s{sKVP}, s{sKVG}, s7")
    a(f"s_lshl_b32 s6, s{sRT}, 3"); a(f"s_add_u32 s6, s6, s{sHG}"); a(f"s_mul_i32 s6, s6, 6144")
    a(f"s_mul_i32 s7, s{sC}, 3072"); a(f"s_add_u32 s{sHP}, s6, s7"); a(f"s_add_u32 s{sHP}, s{sHP}, {WS_HALO}")
    a(f"s_add_u32 s{sHG2}, s6, {WS_HALO - 8*6144}")
    a(f"v_mov_b32 v76, -1"); a(f"v_mov_b32 v77, -1"); a(f"v_lshlrev_b32 v78, 3, v{vL}")
    a(f"s_cmp_eq_u32 s{sB}, 0"); a(f"s_cbranch_scc0 L_preB")
    a(f"buffer_store_dwordx2 v[76:77], v78, {sr(SS,4)}, s{sKVP} offen sc1", "~pre")
    a(f"s_branch L_pred")
    a.label(f"L_preB")
    a(f"s_cmp_eq_u32 s{sI}, 3"); a(f"s_cbranch_scc0 L_pred")
    for k in range(5): a(f"buffer_store_dwordx2 v[76:77], v78, {sr(SS,4)}, s{sHP} offen offset:{k*512} sc1", "~pre")
    a.label(f"L_pred")
    step_offsets(1)
    for op in dma_chunk(0, 1)[:OPT["p1n"]]: emit_op(op, "ch1")
    stamp("issued")
    a(f"s_lshl_b32 s3, s{sB}, 1"); a(f"s_add_u32 s3, s3, s{sC}")
    a("s_cmp_eq_u32 s3, 1"); a("s_cbranch_scc1 L_path_01")
    a("s_cmp_eq_u32 s3, 2"); a("s_cbranch_scc1 L_path_10")
    a("s_cmp_eq_u32 s3, 3"); a("s_cbranch_scc1 L_path_11")

def prologue2(b, c):
    P = f"{b}{c}"
    if OPT["ea"]: touch_steps(c, 1, 5, 0, f"ea{P}")
    for s in range(2, 10): step_offsets(s)
    srd(SO, 8, 9, 819200); srd(SD, 12, 13, 5242880)
    a(f"s_getreg_b32 s{sXCC}, hwreg(HW_REG_XCC_ID, 0, 3)")
    a(f"s_mul_i32 s{sCUR}, s{sHG}, 160")
    if P == "00":
        a(f"s_or_b32 s3, s2, s{sWV}"); a("s_cmp_eq_u32 s3, 0"); a(f"s_cbranch_scc0 L_nononce")
        a("s_waitcnt lgkmcnt(0)")
        a(f"s_add_u32 s6, s{sN}, 0x9e3779b0"); a("s_or_b32 s6, s6, 8"); a("s_andn2_b32 s6, s6, 7")
        a(f"v_mov_b32 v{vT}, s6"); a(f"v_mov_b32 v{vT+1}, 0"); a(f"s_mov_b32 s3, {WS_E}")
        a("s_mov_b64 exec, 1")
        a(f"buffer_store_dword v{vT}, v{vT+1}, {sr(SG,4)}, 0 offen sc1", "~n")
        a(f"buffer_store_dword v{vT}, v{vT+1}, {sr(SS,4)}, s3 offen sc1", "~n")
        a("s_mov_b64 exec, -1")
        a.label("L_nononce")
    a(f"v_and_b32 v{vT}, 15, v{vL}"); a(f"v_lshrrev_b32 v{vT+1}, 4, v{vL}")
    a(f"v_lshrrev_b32 v{vT+2}, 1, v{vT}"); a(f"v_xor_b32 v{vT+2}, v{vT+2}, v{vT+1}"); a(f"v_lshlrev_b32 v{vT+2}, 4, v{vT+2}")
    a(f"v_lshl_add_u32 v{vT+2}, v{vT}, 7, v{vT+2}")
    a(f"s_lshl_b32 s3, s{sI}, 12")
    a(f"v_add_u32 v{vXA0}, s3, v{vT+2}"); a(f"v_xor_b32 v{vXA1}, 64, v{vXA0}")
    a(f"v_lshrrev_b32 v{vT}, 5, v{vL}"); a(f"v_lshlrev_b32 v{vT}, 4, v{vT}")
    a(f"v_bfe_u32 v{vT+2}, v{vL}, 2, 3"); a(f"v_add_u32 v{vT}, v{vT}, v{vT+2}"); a(f"v_mul_u32_u24 v{vT}, 160, v{vT}")
    a(f"v_and_b32 v{vT+1}, 3, v{vL}")
    a(f"v_lshl_add_u32 v{vWA}, v{vT+1}, 3, v{vT}")
    if c: a(f"v_add_u32 v{vWA}, 80, v{vWA}")
    a(f"v_mad_u32_u24 v{vWE}, v{vT+1}, 40, v{vT}")
    a(f"v_add_u32 v{vWE}, {32 + (UNIT if c else 0)}, v{vWE}")
    a(f"s_lshl_b32 s3, s{sB}, 4"); a(f"s_add_u32 s3, s3, s{sRT}")
    a(f"s_lshl_b32 s4, s3, 3")
    a(f"s_lshl_b32 s5, s{sI}, 1"); a(f"s_add_u32 s4, s4, s5"); a(f"s_mul_i32 s{sOB}, s4, 20480")
    a(f"s_add_u32 s{sOC}, s{sOB}, {c*8192}"); a(f"s_add_u32 s{sOE}, s{sOB}, {16384 + c*2048}")
    a(f"s_and_b32 s4, s4, 127"); a(f"s_add_u32 s4, s4, {c}"); a(f"s_mul_i32 s{sOUT}, s4, 40960")
    a(f"s_lshl_b32 s4, s3, 2")
    a(f"s_add_u32 s5, s4, s{sI}"); a(f"s_lshl_b32 s5, s5, 7"); a(f"s_add_u32 s{sFC}, s5, {WS_FLAG + 32*c}")
    a(f"s_lshl_b32 s6, s{sHG}, 3"); a(f"s_add_u32 s5, s5, s6")
    a(f"s_add_u32 s{sFP}, s5, {WS_FLAG + 4*c}")
    a(f"s_add_u32 s{sOUT}, s{sOUT}, s{sCUR}")
    if b: a(f"s_add_u32 s{sOUT}, s{sOUT}, 1280")
    a(f"s_mov_b32 s{sK}, 0x{f2u(LOG2E):x}"); a(f"s_mov_b32 s{sK+1}, 0x{EPS:x}")
    for i in range(4): a(f"v_mov_b32 v{80+i}, s{sK+1}")
    a("v_mov_b32 v84, 0")
    if OPT["t0"]: touch_qo(c)
    if OPT["worot"]:
        R_ = OPT["worot"]
        a(f"s_and_b32 s3, s{sRT}, 3")
        for u in range(R_):
            a(f"s_add_u32 s4, s3, {u}")
            for _ in range(2): a(f"s_cmp_ge_u32 s4, {R_}"); a(f"s_cselect_b32 s5, {R_}, 0"); a("s_sub_u32 s4, s4, s5")
            a(f"s_mul_i32 s{sWOR+u}, s4, 20480")
    if OPT["st0"] >= 0:
        a(f"s_lshr_b32 s3, s2, 3"); a(f"s_mul_i32 s4, s3, {(65536 + OPT['stn'] - 1) // OPT['stn']}"); a("s_lshr_b32 s4, s4, 16")
        a(f"s_mul_i32 s4, s4, {OPT['stn']}"); a(f"s_sub_u32 s{sDUTY}, s3, s4")
    for q in range(3 if c == 0 else 2): wvoff(vWO + q, q, 1280, False, 64 * 1280)
    a(f"v_and_b32 v{vT}, 7, v{vL}"); a(f"v_lshlrev_b32 v{vT}, 7, v{vT}")
    a(f"s_lshl_b32 s3, s{sHG}, 11"); a(f"s_add_u32 s3, s3, {c*1024}")
    a(f"v_add_u32 v{vT}, s3, v{vT}")
    a(f"v_bfe_u32 v{vT+1}, v{vL}, 3, 1"); a(f"v_mul_u32_u24 v{vT+1}, 20480, v{vT+1}"); a(f"v_add_u32 v{vT}, v{vT}, v{vT+1}")
    a(f"v_and_b32 v{vT+1}, 1, v{vL}"); a(f"v_lshlrev_b32 v{vT+1}, 7, v{vT+1}")
    a(f"s_lshl_b32 s3, s{sHG}, 9"); a(f"s_add_u32 s3, s3, {16384 + c*256}")
    a(f"v_add_u32 v{vT+1}, s3, v{vT+1}")
    a(f"v_bfe_u32 v{vT+2}, v{vL}, 1, 1"); a(f"v_mul_u32_u24 v{vT+2}, 20480, v{vT+2}"); a(f"v_add_u32 v{vT+1}, v{vT+1}, v{vT+2}")
    set_mask("vcc", 0xffff)
    a(f"v_cndmask_b32 v{vPRE}, v{vT+1}, v{vT}, vcc")
    a(f"s_sub_u32 s3, s{sFC}, s{sOB}")
    a(f"v_writelane_b32 v{vPRE}, s3, 20")
    Z = 56; T1 = 57; T2_ = 58
    a(f"v_mov_b32 v{Z}, 0")
    if b == 0:
        a(f"v_and_b32 v{vGAD}, 31, v{vL}"); a(f"v_lshlrev_b32 v{vGAD}, 4, v{vGAD}"); a(f"v_lshrrev_b32 v{vT}, 5, v{vL}"); a(f"v_lshl_add_u32 v{vGAD}, v{vT}, 15, v{vGAD}")
        selm = lambda l: ((l >> 3) & 1) == ((l >> 4) & 1)
        a(f"v_mov_b32 v{T1}, 0x3f80"); a(f"v_mov_b32 v{T2_}, 0x3f800000")
        set_mask("vcc", lanemask(lambda l: l & 1)); a(f"v_cndmask_b32 v{T1}, v{T1}, v{T2_}, vcc")
        for r in range(4):
            set_mask("vcc", lanemask(lambda l: selm(l) and ((l & 7) >> 1) == r)); a(f"v_cndmask_b32 v{16+r}, v{Z}, v{T1}, vcc")
        a(f"v_mov_b32 v20, s{sK+1}"); a(f"v_mov_b32 v21, s{sK+1}"); a("v_mov_b32 v22, 0"); a("v_mov_b32 v23, 0")
        a(f"v_and_b32 v24, 15, v{vL}"); a("v_lshlrev_b32 v24, 1, v24"); a(f"v_and_b32 v25, 32, v{vL}"); a("v_add_u32 v24, v24, v25")
        a(f"v_bfe_u32 v25, v{vL}, 4, 1"); a("v_add_u32 v24, v24, v25"); a("v_lshlrev_b32 v24, 3, v24")
        a(f"v_lshlrev_b32 v25, 3, v{vL}"); a("v_xor_b32 v25, 256, v25"); a("v_mov_b32 v26, 0"); a("v_mov_b32 v27, 0")
        ncst = 3
    else:
        dd = lambda l, j: (l & 15) - 4 * (l >> 4) - j
        own = lambda l, j: dd(l, j) >= 0 and dd(l, j) % 2 == 0
        prv = lambda l, j: dd(l, j) <= -2 and dd(l, j) % 2 == 0
        a(f"v_mov_b32 v{T1}, 0x{f2u(-1e30):x}")
        for j in range(4):
            set_mask("vcc", lanemask(lambda l: own(l, j))); a(f"v_cndmask_b32 v{16+j}, v{T1}, v{Z}, vcc")
            set_mask("vcc", lanemask(lambda l: prv(l, j))); a(f"v_cndmask_b32 v{20+j}, v{T1}, v{Z}, vcc")
            a(f"v_mov_b32 v{24+j}, 0x3f803f80")
        a(f"v_mov_b32 v{T1}, 0xffff"); a(f"v_mov_b32 v{T2_}, 0xffff0000")
        set_mask("vcc", lanemask(lambda l: l & 1)); a(f"v_cndmask_b32 v{T1}, v{T1}, v{T2_}, vcc")
        for k, (fn, pr) in enumerate(((prv, 0), (prv, 1), (own, 0), (own, 1))):
            set_mask("vcc", lanemask(lambda l: fn(l, 2 * pr + (l & 1)))); a(f"v_cndmask_b32 v{28+k}, v{Z}, v{T1}, vcc")
        ncst = 4
    a(f"v_lshlrev_b32 v{vT}, 4, v{vL}"); a(f"v_add_u32 v{vT}, {CST}, v{vT}")
    for k in range(ncst): a(f"ds_write_b128 v{vT}, {vr(16+4*k,4)} offset:{k*1024}")
    a.wait(lg="all")

def path(b, c):
    P = f"{b}{c}"; A_ = (b == 0)
    a.label(f"L_path_{P}")
    a.vm = [("ch0" if (t == "~c0" and c == 0) else t) for t in a.vm]
    prologue2(b, c)
    vN0, vN1 = 84, 85
    def w0_begin(tag): a(f"s_cmp_eq_u32 s{sWV}, 0"); a(f"s_cbranch_scc0 L_{tag}_{P}")
    def w0_end(tag): a.label(f"L_{tag}_{P}")
    def nonce_load():
        w0_begin("nl")
        a(f"v_mov_b32 v{vN0}, 0")
        a(f"buffer_load_dword v{vN1}, v{vN0}, {sr(SG,4)}, 0 offen sc1", "~nonce")
        w0_end("nl")
    def nonce_check():
        w0_begin("nc")
        a.wait(vm="~nonce", keep=True)
        a(f"v_readfirstlane_b32 s{sN}, v{vN1}")
        a(f"s_cmp_lg_u32 s{sN}, 0"); a(f"s_cbranch_scc1 L_nok_{P}")
        spin_begin(f"L_nsp_{P}")
        a(f"buffer_load_dword v{vN1}, v{vN0}, {sr(SG,4)}, 0 offen sc1", "~x"); a("s_waitcnt vmcnt(0)")
        a(f"v_readfirstlane_b32 s{sN}, v{vN1}")
        a(f"s_cmp_lg_u32 s{sN}, 0"); a(f"s_cbranch_scc1 L_nok_{P}")
        spin_check(f"L_nsp_{P}", f"L_nok_{P}")
        a(f"s_lshl_b32 s3, s{sB}, 4"); a(f"s_add_u32 s3, s3, s{sRT}"); a(f"s_lshl_b32 s3, s3, 3"); a(f"s_add_u32 s3, s3, s{sHG}")
        a(f"s_lshl_b32 s3, s3, 7"); a(f"s_add_u32 s3, s3, {WS_RDY}")
        a(f"s_or_b32 s4, s{sN}, s{sXCC}")
        a(f"v_mov_b32 v{vN1}, s4")
        a("s_mov_b64 exec, 1")
        a(f"buffer_store_dword v{vN1}, v{vN0}, {sr(SS,4)}, s3 offen sc1", "~x")
        a("s_mov_b64 exec, -1")
        w0_end("nc")
    def rdy_load():
        w0_begin("rl")
        a(f"s_lshl_b32 s3, s{sB}, 4"); a(f"s_add_u32 s4, s3, s{sRT}"); a(f"s_lshl_b32 s4, s4, 3")
        a(f"v_add_u32 v{vN0}, s4, v{vL}")
        if A_:
            a(f"s_lshl_b32 s5, s3, 3"); a(f"s_add_u32 s5, s5, s{sHG}"); a(f"s_sub_u32 s5, s5, 64")
            a(f"v_lshl_add_u32 v{vN1}, v{vL}, 3, s5")
        else:
            a(f"s_max_u32 s5, s{sRT}, 1"); a(f"s_sub_u32 s5, s5, 1"); a(f"s_add_u32 s5, s5, s3"); a(f"s_lshl_b32 s5, s5, 3"); a(f"s_add_u32 s5, s5, s{sHG}")
            a(f"v_mov_b32 v{vN1}, s5")
        set_mask(sM, 0xff)
        a(f"v_cndmask_b32_e64 v{vN0}, v{vN1}, v{vN0}, {sr(sM,2)}")
        a(f"v_lshlrev_b32 v{vN0}, 7, v{vN0}")
        a(f"s_mov_b32 s3, {WS_RDY}")
        a(f"s_mov_b64 exec, {0xffffff if A_ else 0x1ff}")
        a(f"buffer_load_dword v{vN1}, v{vN0}, {sr(SS,4)}, s3 offen sc1", "~rdy")
        a("s_mov_b64 exec, -1")
        w0_end("rl")
    def rdy_check():
        em = 0xffffff if A_ else 0x1ff
        w0_begin("rc")
        a.wait(vm="~rdy", keep=True)
        def test():
            a(f"v_and_b32 v{vN1+1}, -8, v{vN1}")
            a(f"s_mov_b64 exec, {em}")
            a(f"v_cmp_ne_u32 vcc, s{sN}, v{vN1+1}")
            a("s_mov_b64 exec, -1")
            a(f"s_cbranch_vccz L_rok_{P}")
        test()
        spin_begin(f"L_rsp_{P}")
        a(f"s_mov_b32 s3, {WS_RDY}")
        a(f"s_mov_b64 exec, {em}")
        a(f"buffer_load_dword v{vN1}, v{vN0}, {sr(SS,4)}, s3 offen sc1", "~x"); a("s_waitcnt vmcnt(0)")
        test()
        spin_check(f"L_rsp_{P}", f"L_rok_{P}")
        a(f"s_or_b32 s3, s{sN}, s{sXCC}")
        a("s_mov_b64 exec, 0xff")
        a(f"v_cmp_ne_u32 vcc, s3, v{vN1}")
        a("s_mov_b64 exec, -1")
        a(f"s_cmp_eq_u32 vcc_lo, 0")
        a(f"s_cselect_b32 s3, {0 if OPT['force_slow'] else 1}, 0")
        a(f"s_or_b32 s3, s3, s{sN}")
        a(f"v_mov_b32 v{vN1}, s3"); a(f"v_mov_b32 v{vN0}, {BCAST}")
        sl = list(a.lg)
        a(f"ds_write_b32 v{vN0}, v{vN1}")
        a.lg = sl
        w0_end("rc")
    def bcast_read():
        a(f"v_mov_b32 v{vN0}, {BCAST}")
        a(f"ds_read_b32 v{vN1}, v{vN0}", "bc")
    def bcast_use():
        a.wait(lg="bc")
        a(f"v_readfirstlane_b32 s3, v{vN1}")
        a(f"s_and_b32 s{sFAST}, s3, 1"); a(f"s_andn2_b32 s{sN}, s3, 7")
    def touch():
        a(f"s_mul_i32 s3, s{sI}, 50"); a(f"v_add_u32 v86, s3, v{vL}"); a(f"s_lshr_b32 s4, s2, 3")
        if c == 0:
            a(f"v_mul_u32_u24 v87, 6554, v86"); a(f"v_lshrrev_b32 v87, 16, v87")
            a(f"v_mul_u32_u24 v88, 10, v87"); a(f"v_sub_u32 v86, v86, v88"); a(f"v_lshlrev_b32 v86, 7, v86")
            a(f"v_mul_u32_u24 v87, 3840, v87"); a(f"v_add_u32 v86, v86, v87"); a(f"s_mul_i32 s4, s4, {20*3840}")
        else:
            a(f"v_lshlrev_b32 v86, 7, v86"); a(f"s_mul_i32 s4, s4, 25600")
        a("s_mov_b32 exec_hi, 0x3ffff")
        a(f"buffer_load_dword v87, v86, {sr(SW if c == 0 else SO,4)}, s4 offen")
        a("s_mov_b32 exec_hi, -1")
    def opreload():
        a("s_mov_b64 exec, 0x1fffff")
        a(f"buffer_load_dword v95, v{vPRE}, {sr(SS,4)}, s{sOB} offen{['', ' sc1', ' nt'][OPT['pnt']]}")
        a("s_mov_b64 exec, -1")
    def fix_wd_for_q():
        if c == 0:
            a(f"s_cmp_lt_u32 s{sWV}, 2"); a(f"s_cselect_b32 s3, 0, 1280")
            a(f"v_subrev_u32 v{vWD+1}, s3, v{vWD+1}"); a(f"v_subrev_u32 v{vWD+2}, 1280, v{vWD+2}")
        else:
            a(f"v_subrev_u32 v{vWD+1}, 1280, v{vWD+1}")

    def acc1(t, rt): return ACC1 + (t * 2 + rt) * 4
    Tor = [not A_, not A_, False, False, (not A_) and c == 0]
    eps1 = [A_, A_, False, False, A_ and c == 0]
    items1 = [(sg, t) for sg in range(18) for t in range(5)] + [(18, 0), (18, 4), (18, 1), (19, 0), (19, 4), (19, 1), (18, 2), (18, 3), (19, 2), (19, 3)]
    seenx = set()
    def reads(n, w):
        sg, t = items1[n]; s = sg & 1; tg = []
        if sg not in seenx:
            seenx.add(sg)
            for rt in range(2): tg.append(a(f"ds_read_b128 {vr(X(sg,rt),4)}, v{vXA1 if s else vXA0} offset:{rt*2048}"))
        for h in range(2):
            off = 16384 + s * 5120 + h * 1280
            if t < 4: tg.append(a(f"ds_read_b64_tr_b16 {vr(w+2*h,2)}, v{vWA} offset:{off + (UNIT if t >= 2 else 0) + 40*(t&1)}"))
            else: tg.append(a(f"ds_read_b64_tr_b16 {vr(w+2*h,2)}, v{vWE} offset:{off}"))
        return tg
    def mf(n, w):
        sg, t = items1[n]
        for rt in range(2):
            C = acc1(t, rt) if sg else (80 if eps1[t] else "0")
            if Tor[t]: mfma(acc1(t, rt), w, X(sg, rt), C)
            else: mfma(acc1(t, rt), X(sg, rt), w, C)
    R = OPT["rdy_at"]
    def bnd1(ch):
        if ch > 0:
            d = SLOT if ch % 4 else -3 * SLOT
            for r in (vXA0, vXA1, vWA, vWE): a(f"v_add_u32 v{r}, {d}, v{r}")
        a.wait(vm=f"ch{ch}", lg="all" if (ch and OPT["LA"] == 3) or ch == 9 else None)
        a("s_barrier")
        stamp(f"b{ch}")
        ops = []
        if c == 0:
            if ch == 0: ops.append((nonce_load, None))
            if ch == 1: ops.append((nonce_check, None))
            if ch == R: ops.append((rdy_load, None))
            if ch == R + 2: ops.append((rdy_check, None))
        if ch == R + 3: ops.append((bcast_read, None))
        if OPT["LA"] == 3:
            if ch == 0 and OPT["pro"] < 3: ops += [(op, "ch2") for op in dma_chunk(c, 2)]
            if ch + 3 <= 9: ops += [(op, f"ch{ch+3}") for op in dma_chunk(c, ch + 3)]
        else:
            if ch == 0: ops += [(op, "ch1") for op in dma_chunk(c, 1)[OPT["p1n"]:]]
            if ch + 2 <= 9: ops += [(op, f"ch{ch+2}") for op in dma_chunk(c, ch + 2)]
        if ch == R + 3: ops.append((bcast_use, None))
        if ch == OPT["tq"]: ops.append((touch, None))
        if ch == OPT["eb"]: ops.insert(0, (lambda: touch_steps(c, 6, 4, 1, f"eb{P}"), None))
        if ch == OPT["eb"] + 100 or (OPT["eb"] >= 100 and ch == OPT["eb"] - 100): ops.append((lambda: touch_steps(c, 6, 4, 1, f"eb{P}"), None))
        if ch == OPT["ec"] and not (OPT["st0"] >= 0 and OPT["stq"]): ops.append((lambda: touch_qo(c), None))
        if ch == OPT["prel1"]: ops.append((opreload, None))
        if OPT["st0"] >= 0 and 0 <= ch - OPT["st0"] < OPT["stn"]:
            def duty(k=ch - OPT["st0"]):
                a(f"s_cmp_eq_u32 s{sDUTY}, {k}"); a(f"s_cbranch_scc0 L_nd{k}_{P}")
                n0 = len(a.vm)
                if OPT["stq"]: touch_qo(c)
                if OPT["stp"]: opreload()
                a.vm = a.vm[:n0]
                a.label(f"L_nd{k}_{P}")
            ops.append((duty, None))
        if ch == OPT["pst"]: ops.append((lambda: prestore(c), None))
        if OPT["LA"] == 3:
            if ch == 7: ops += [(fix_wd_for_q, None)] + [(op, "wq0") for op in dma_wq(c, 0)]
            if ch == 8: ops += [(op, f"wq{u}") for u in (1, 2) for op in dma_wq(c, u)]
            if ch == 9: ops += [(op, f"wq{u}") for u in (3, 4) for op in dma_wq(c, u)]
        else:
            if ch == 8: ops += [(fix_wd_for_q, None)] + [(op, "wq0") for op in dma_wq(c, 0)]
            if ch == 9: ops += [(op, f"wq{u}") for u in (1, 2) for op in dma_wq(c, u)]
        return ops
    hA, hB = 2 * c, 2 * c + 1
    gm = lambda h: lanemask(lambda l: (l >> 4) == h)
    half = lanemask(lambda l: (l >> 5) == c)
    pipeline(100, reads, mf, {10 * ch: ch for ch in range(10)}, bnd1, OPT["L"], OPT["Lb"], [WF + 4 * k for k in range(5)])
    stamp("p1end")

    vL16, vL8 = vXA0, vXA1
    a(f"v_lshlrev_b32 v{vL16}, 4, v{vL}"); a(f"v_lshlrev_b32 v{vL8}, 3, v{vL}")
    a(f"v_add_u32 v{vWA}, {WQ_UNIT[0]*UNIT - SLOT}, v{vWA}")
    a(f"v_add_u32 v{vWE}, {WQ_UNIT[0]*UNIT - SLOT - (UNIT if c else 0)}, v{vWE}")
    WD = OPT["wodef"]; assert WD >= 2 and OPT["LA"] == 2
    late_wo = [op for u in range(5) if u + WD > 4 for op in dma_wo(c, u)]
    nq = 3 if c == 0 else 2
    def late(k, last=False):
        for _ in range(k):
            if late_wo and (last or len(late_wo) > nq): emit_op(late_wo.pop(0), "wo")
    if A_:
        KAa, KAb, VBa, VBb, EO = 56, 60, 64, 68, 72
        TMP = 76
        a(f"s_lshl_b32 s3, s{sWV}, 12"); a(f"v_add_u32 v{vT}, s3, v{vL16}")
        a(f"v_add_u32 v{vT+1}, s{sW1K}, v{vL16}"); a(f"v_add_u32 v{vT+1}, {EE_A2}, v{vT+1}")
        phi_pack(acc1(0, 0), 8, [KAa], TMP)
        a(f"ds_write_b128 v{vT}, {vr(KAa,4)} offset:{OPX}")
        if c == 0: phi_pack(acc1(4, 0), 8, [EO], TMP)
        else: pack(acc1(4, 0), EO); pack(acc1(4, 1), EO + 2)
        a(f"ds_write_b128 v{vT+1}, {vr(EO,4)}")
        phi_pack(acc1(1, 0), 8, [KAb], TMP)
        a(f"ds_write_b128 v{vT}, {vr(KAb,4)} offset:{OPX + 1024}")
        for t, d in ((2, VBa), (3, VBb)):
            pack(acc1(t, 0), d); pack(acc1(t, 1), d + 2)
            a(f"ds_write_b128 v{vT}, {vr(d,4)} offset:{OPX + t*1024}")
        a(f"v_add_u32 v{vT}, {OPX + c*16384}, v{vL16}")
        a(f"v_add_u32 v{vT+1}, {EE_A2}, v{vL16}")
        a(f"v_and_b32 v{vT+2}, 0x31, v{vL}"); a(f"v_bfe_u32 v{vT+3}, v{vL}, 2, 2")
        a(f"v_lshl_add_u32 v{vT+2}, v{vT+3}, 1, v{vT+2}"); a(f"v_lshlrev_b32 v{vT+2}, 4, v{vT+2}")
        a(f"v_add_u32 v{vT+2}, {EE_A2 + 4096 + 128*c}, v{vT+2}")
        a(f"v_mov_b32 v89, 0x3f803f80")
        for i in range(4): a(f"v_mov_b32 v{80+i}, s{sK+1}")
    else:
        KA = {("a", 0): 56, ("b", 0): 60, ("a", 1): 64, ("b", 1): 68, ("a", -1): 96, ("b", -1): 100}
        Va, Vb, Ev = 72, 78, 84
        for rt in (1, 0):
            pack(acc1(0, rt), KA[("a", rt)]); pack(acc1(1, rt), KA[("b", rt)])
            if c == 0: pack(acc1(4, rt), KA[("a", rt)] + 2); pack(acc1(4, rt), KA[("b", rt)] + 2)
            else: pack(acc1(4, rt), Ev + 2 + 2 * rt)
            pack(acc1(2, rt), Va + 2 + 2 * rt); pack(acc1(3, rt), Vb + 2 + 2 * rt)
        Eown = [KA[("a", 0)] + 2, KA[("a", 1)] + 2] if c == 0 else [Ev + 2, Ev + 4]
        xs = [KA[("a", 1)], KA[("b", 1)], Va + 4, Vb + 4, Eown[1], Eown[0]]
        a(f"s_mul_i32 s3, s{sWV}, 3072")
        a(f"v_add_u32 v{vT}, s3, v{vL8}")
    a.wait(vm="wq0", lg="all")
    a("s_barrier")
    stamp("E1")
    if A_:
        R0 = 16
        D0, D1, D2 = 84, 72, 76
        def rd(dst, areg, off): return a(f"ds_read_b128 {vr(dst,4)}, v{areg} offset:{off}")
        def evb(dst):
            for j in range(4): a(f"v_cndmask_b32 v{dst+j}, v{dst+j}, v89, vcc")
        a(f"s_cmp_lt_u32 s{sI}, 2"); a(f"s_cbranch_scc0 L_t23_{P}")
        a(f"s_lshl_b32 s3, s{sI}, 10"); a(f"v_add_u32 v{vT}, s3, v{vT}")
        a.lg = []
        tg = []
        for g in range(4): tg.append([rd(R0 + 8 * g, vT, g * 4096), rd(R0 + 8 * g + 4, vT, g * 4096 + 2048)])
        for g in range(4):
            a.wait(lg=tg[g]); mfma(D0, R0 + 8 * g, R0 + 8 * g + 4, D0 if g else "0")
        a("s_nop 7")
        a(f"s_branch L_tdone_{P}")
        a.label(f"L_t23_{P}")
        set_mask("vcc", 0x3333333333333333)
        a(f"s_cmp_eq_u32 s{sI}, 2"); a(f"s_cbranch_scc0 L_t3_{P}")
        a.lg = []
        tg = []
        for g in range(4): tg.append([rd(R0 + 12 * g, vT + 2, g * 1024), rd(R0 + 12 * g + 4, vT, g * 4096), rd(R0 + 12 * g + 8, vT, g * 4096 + 1024)])
        for g in range(4):
            a.wait(lg=tg[g]); evb(R0 + 12 * g)
            mfma(D0, R0 + 12 * g + 4, R0 + 12 * g, D0 if g else "0")
            mfma(D1, R0 + 12 * g + 8, R0 + 12 * g, D1 if g else "0")
        set_mask("vcc", 0x11dd11dd11dd11dd)
        for j in range(4): a(f"v_cndmask_b32 v{D0+j}, v{D1+j}, v{D0+j}, vcc")
        a(f"s_branch L_tdone_{P}")
        a.label(f"L_t3_{P}")
        a.lg = []
        tg = []
        B0 = [16, 32, 48, 16]
        def rd3(g): return [rd(B0[g], vT + 2, g * 1024), rd(B0[g] + 4, vT + 1, g * 1024), rd(B0[g] + 8, vT, g * 4096 + 2048), rd(B0[g] + 12, vT, g * 4096 + 3072)]
        for g in range(3): tg.append(rd3(g))
        for g in range(4):
            a.wait(lg=tg[g]); evb(B0[g])
            mfma(D0, B0[g] + 4, B0[g] + 8, D0 if g else "0")
            mfma(D1, B0[g] + 4, B0[g] + 12, D1 if g else "0")
            mfma(D2, B0[g] + 4, B0[g], D2 if g else "0")
            if g == 0: tg.append(rd3(3))
        set_mask("vcc", gm(hA))
        for j in range(4): a(f"v_cndmask_b32 v{D0+j}, v{D1+j}, v{D0+j}, vcc")
        for j in range(4):
            if c == 0: a(f"v_permlane32_swap_b32 v{D0+j}, v{D2+j}")
            else: a(f"v_permlane32_swap_b32 v{D2+j}, v{D0+j}")
        a.label(f"L_tdone_{P}")
        a.lg = []
        pack(D0, 88)
        a(f"v_min_u32 v{D0}, -2, v88"); a(f"v_min_u32 v{D0+1}, -2, v89")
        a(f"buffer_store_dwordx2 {vr(D0,2)}, v{vL8}, {sr(SS,4)}, s{sKVP} offen sc1")
    else:
        for k in range(6): a(f"ds_write_b64 v{vT}, {vr(xs[k],2)} offset:{EXB + k*512}")
        a(f"s_cmp_eq_u32 s{sI}, 3"); a(f"s_cbranch_scc0 L_nohp_{P}")
        for k in range(5):
            for j in range(2): a(f"v_min_u32 v{xs[k]+j}, -2, v{xs[k]+j}")
            a(f"buffer_store_dwordx2 {vr(xs[k],2)}, v{vL8}, {sr(SS,4)}, s{sHP} offen offset:{k*512} sc1", "~hp")
        a.label(f"L_nohp_{P}")
    stamp("pub1")

    ACC2 = 16; WF2 = 36
    oc = 1 - c
    def acc2(t, rt): return ACC2 + (t * 2 + rt) * 4 if t < 2 else ACC2 + 16
    items2 = [(sg, t) for sg in range(16) for t in range(3)] + [(sg, t) for t in (2, 0, 1) for sg in range(16, 20)]
    def reads2(n, w):
        sg, t = items2[n]; tg = []
        for h in range(2):
            off = ((sg >> 1) & 1) * UNIT + (sg & 1) * 5120 + h * 1280
            if t < 2: tg.append(a(f"ds_read_b64_tr_b16 {vr(w+2*h,2)}, v{vWA} offset:{off + 40*t}"))
            else: tg.append(a(f"ds_read_b64_tr_b16 {vr(w+2*h,2)}, v{vWE} offset:{off}"))
        return tg
    def mf2(n, w):
        sg, t = items2[n]
        for rt in ((0, 1) if t < 2 else (c,)):
            C = acc2(t, rt) if sg else (80 if A_ else "0")
            mfma(acc2(t, rt), w, X(sg, rt), C)
    GA = 56
    def gather(tag="gat"):
        for r in range(8):
            a(f"s_add_u32 s3, s{sKVG}, {r*4096}")
            a(f"buffer_load_dwordx4 {vr(GA+4*r,4)}, v{vGAD}, {sr(SS,4)}, s3 offen sc1", tag)
    def gather_ops():
        return [([f"s_add_u32 s3, s{sKVG}, {r*4096}"], f"buffer_load_dwordx4 {vr(GA+4*r,4)}, v{vGAD}, {sr(SS,4)}, s3 offen sc1") for r in range(8)]
    HL = [KA[("a", -1)], KA[("b", -1)], Va, Vb, KA[("a", -1)] + 2, Ev, KA[("b", -1)] + 2] if not A_ else None
    def halo_loads():
        offs = [c*3072, c*3072 + 512, c*3072 + 1024, c*3072 + 1536, 2048, 3072 + 2048, 2048]
        for d, o in zip(HL, offs):
            a(f"s_add_u32 s3, s{sHG2}, {o}")
            a(f"buffer_load_dwordx2 {vr(d,2)}, v{vL8}, {sr(SS,4)}, s3 offen sc1", "~halo")
    def halo_issue():
        a(f"s_cmp_eq_u32 s{sI}, 0"); a(f"s_cselect_b32 s3, s{sRT}, 0"); a("s_cmp_eq_u32 s3, 0")
        a(f"s_cbranch_scc1 L_nohl_{P}")
        halo_loads()
        a.label(f"L_nohl_{P}")
    def bnd2(u):
        ops = []
        if u > 0:
            d = (WQ_UNIT[u] - WQ_UNIT[u - 1]) * UNIT
            for r in (vWA, vWE): a(f"v_add_u32 v{r}, {d}, v{r}")
            a.wait(vm=f"wq{u}", lg="all")
            a("s_barrier")
            stamp(f"p{u}")
        if u in (1, 2): ops += [(op, f"wq{u+2}") for op in dma_wq(c, u + 2)]
        if u >= WD: ops += [(op, "wo") for op in dma_wo(c, u - WD)]
        if u == OPT["prel_at"] and OPT["prel1"] < 0 and not (OPT["st0"] >= 0 and OPT["stp"]): ops = ops + [(opreload, None)]
        if u == OPT["gat_at"]:
            g = gather_ops()
            if OPT["gspread"]: g = g[:4]
            ops = ([(op, "gat") for op in g] if A_ else [(halo_issue, None)]) + ops
        if u == OPT["gat_at"] + 1 and A_ and OPT["gspread"]:
            ops = [(op, "gat") for op in gather_ops()[4:]] + ops
        return ops
    QB = {("a", 0): 160, ("b", 0): 164, ("a", 1): 168, ("b", 1): 172}
    side = {}
    vEQo, vEQp = 124, 125
    eqaddr = [[f"s_lshl_b32 s4, s{sWV}, 9", f"v_add_u32 v{vEQo}, s4, v{vL8}"], f"v_xor_b32 v{vEQp}, 2048, v{vEQo}"]
    cst = [f"v_add_u32 v126, {CST}, v{vL16}"]
    if A_:
        SEL, C0, CA = 96, 100, 104
        Axb = 104; vOW = 126; vOX = 127
        cst += [f"ds_read_b128 {vr(96+4*k,4)}, v126 offset:{k*1024}" for k in range(3)]
        def cfix():
            a.wait(lg="all")
            a(f"s_lshl_b32 s4, s{sI}, 9"); a(f"v_add_u32 v{vOW}, s4, v{CA}"); a(f"v_mov_b32 v{vOX}, v{CA+1}")
        side[13] = cst + eqaddr
        side[23] = [cfix]
        side[52] = phi_ins(acc2(2, c), 4, [QB[("a", c)] + 2, QB[("b", c)] + 2], 120) + [f"ds_write_b64 v{vEQo}, {vr(QB[('a',c)]+2,2)} offset:{EQX}"]
        side[56] = phi_ins(acc2(0, 0), 8, [], 112) + pack_ins(acc2(0, 0), QB[("a", 0)]) + pack_ins(acc2(0, 1), QB[("a", 1)])
    else:
        BO, BP, ONES, MK, BP0 = 104, 108, 112, 116, 120
        cst += [f"ds_read_b128 {vr(104+4*k,4)}, v126 offset:{k*1024}" for k in range(4)] + [f"ds_read_b128 {vr(BP0,4)}, v126 offset:1024", "v_mov_b32 v127, 0"]
        def foreign():
            a(f"s_xor_b32 s3, s{sWV}, 4"); a(f"s_mul_i32 s3, s3, 3072")
            a(f"v_add_u32 v{vT}, s3, v{vL8}")
            for rt in range(2):
                o = EXB + (4 if rt else 5) * 512
                if c == 0: a(f"ds_read_b64 {vr(Ev+2+2*rt,2)}, v{vT} offset:{o}")
                else:
                    for h in "ab": a(f"ds_read_b64 {vr(KA[(h,rt)]+2,2)}, v{vT} offset:{o}")
        def foreign2():
            a(f"s_cmp_eq_u32 s{sI}, 0"); a(f"s_cbranch_scc1 L_nof2_{P}")
            a("s_waitcnt lgkmcnt(6)")
            a(f"s_sub_u32 s3, s{sI}, 1"); a(f"s_mul_i32 s3, s3, 3072")
            a(f"v_add_u32 v{vT}, s3, v{vL8}")
            cb = EXB + c * 4 * 3072
            sl = list(a.lg); a.lg = []
            a(f"ds_read_b64 {vr(KA[('a',-1)],2)}, v{vT} offset:{cb}")
            a(f"ds_read_b64 {vr(KA[('b',-1)],2)}, v{vT} offset:{cb + 512}")
            a(f"ds_read_b64 {vr(Va,2)}, v{vT} offset:{cb + 1024}")
            a(f"ds_read_b64 {vr(Vb,2)}, v{vT} offset:{cb + 1536}")
            for h in "ab": a(f"ds_read_b64 {vr(KA[(h,-1)]+2,2)}, v{vT} offset:{EXB + 2048}")
            a(f"ds_read_b64 {vr(Ev,2)}, v{vT} offset:{EXB + 4*3072 + 2048}")
            a.lg = sl
            a.label(f"L_nof2_{P}")
        EQ = {c: 156, oc: 158}
        side[13] = cst + eqaddr
        side[17] = [foreign]
        side[27] = [foreign2]
        side[52] = pack_ins(acc2(2, c), EQ[c]) + [f"ds_write_b64 v{vEQo}, {vr(EQ[c],2)} offset:{EQX}"]
        side[56] = pack_ins(acc2(0, 0), QB[("a", 0)]) + pack_ins(acc2(0, 1), QB[("a", 1)])
    pipeline(60, reads2, mf2, {12 * u: u for u in range(5)}, bnd2, OPT["L2"], OPT["Lb2"], [WF2 + 4 * k for k in range(5)],
             newbufs={24: [128 + 4 * k for k in range(7)]}, side=side, side_rate=OPT["srate"])
    stamp("p2end")

    if A_:
        a.wait(vm="gat")
        GS = 128
        def gsum():
            for r in range(8): mfma(GS, SEL, GA + 4 * r, GS if r else "0")
        gsum()
        late(3)
        phi_pack(acc2(1, 0), 8, [], 136)
        pack(acc2(1, 0), QB[("b", 0)]); pack(acc2(1, 1), QB[("b", 1)])
        a(f"v_add_f32 v132, v{GS}, v{GS+1}"); a(f"v_add_f32 v133, v{GS+2}, v{GS+3}"); a(f"v_add_f32 v132, v132, v133")
        a(f"v_cmp_u_f32 vcc, v132, v132")
        a(f"s_cbranch_vccz L_gok_{P}")
        spin_begin(f"L_gsp_{P}")
        a(f"v_max3_u32 v132, v{GA}, v{GA+1}, v{GA+2}")
        for k in range(3, 31, 2): a(f"v_max3_u32 v132, v132, v{GA+k}, v{GA+k+1}")
        a(f"v_max_u32 v132, v132, v{GA+31}")
        a(f"v_cmp_eq_u32 vcc, -1, v132")
        a(f"s_cbranch_vccz L_gre_{P}")
        gather("~x"); a("s_waitcnt vmcnt(0)")
        spin_check(f"L_gsp_{P}", f"L_gre_{P}")
        gsum(); a("s_nop 7")
        a.label(f"L_gok_{P}")
        pack(GS, 132)
        a(f"ds_write_b64 v{vOW}, v[132:133] offset:{OPS + c*2048}")
        late(99)
        a.wait(lg="all")
        a("s_barrier")
        stamp("E2")
        A1a, A1b, Axa, T3, T2 = 128, 132, 136, 140, 142
        ob = OPS + c * 2048
        t3 = a(f"ds_read_b64 {vr(T3,2)}, v{vL8} offset:{ob + 1536}")
        t2 = a(f"ds_read_b64 {vr(T2,2)}, v{vL8} offset:{ob + 1024}")
        t4 = a(f"ds_read_b64 {vr(Axa+2,2)}, v{vOX} offset:{ob + 1536}")
        t0 = a(f"ds_read_b64 {vr(A1a,2)}, v{vL8} offset:{ob}")
        t1 = a(f"ds_read_b64 {vr(A1b,2)}, v{vL8} offset:{ob + 512}")
        tq = [a(f"ds_read_b64 {vr(QB[(h,oc)]+2,2)}, v{vEQp} offset:{EQX}") for h in "ab"]
        late(99, True)
        ma = lambda l: (0x11dd >> (l & 15)) & 1
        Z = Axb + 2
        set_mask("vcc", gm(hA)); a.wait(lg=t3)
        for j in range(2): a(f"v_cndmask_b32 v{A1a+2+j}, v{Z}, v{T3+j}, vcc")
        set_mask("vcc", gm(hB))
        for j in range(2): a(f"v_cndmask_b32 v{A1b+2+j}, v{Z}, v{T3+j}, vcc")
        set_mask("vcc", 0x11dd11dd11dd11dd); a.wait(lg=t4)
        for j in range(2):
            a(f"v_cndmask_b32 v{Axa+j}, v{Z}, v{T2+j}, vcc")
            a(f"v_cndmask_b32 v{Axb+j}, v{T2+j}, v{Z}, vcc")
        set_mask("vcc", lanemask(lambda l: ((l >> 4) == hA and ma(l)) or ((l >> 4) == hB and not ma(l))))
        for j in range(2): a(f"v_cndmask_b32 v{Axa+2+j}, v{Z}, v{Axa+2+j}, vcc")
        O = {(k, rt): 16 + (rt * 3 + i) * 4 for rt in range(2) for i, k in enumerate("xab")}
        a.wait(lg=tq)
        for rt in (c, oc): mfma(O[("x", rt)], Axa, QB[("a", rt)], C0)
        for rt in (c, oc): mfma(O[("a", rt)], A1a, QB[("a", rt)], "0")
        for rt in (c, oc): mfma(O[("x", rt)], Axb, QB[("b", rt)], O[("x", rt)])
        for rt in (c, oc): mfma(O[("b", rt)], A1b, QB[("b", rt)], "0")
        OM = [176, 180]; OX = [184, 186]
        set_mask("vcc", lanemask(lambda l: l < 32))
        for rt in (c, oc):
            x = O[("x", rt)]
            a(f"v_rcp_f32 v{x}, v{x}"); a(f"v_rcp_f32 v{x+1}, v{x+1}")
        for rt in (c, oc):
            x = O[("x", rt)]
            for j in range(4): a(f"v_mul_f32 v{O[('a',rt)]+j}, v{O[('a',rt)]+j}, v{x}")
            for j in range(4): a(f"v_mul_f32 v{O[('b',rt)]+j}, v{O[('b',rt)]+j}, v{x+1}")
            a(f"v_cndmask_b32 v{x}, v{x+1}, v{x}, vcc")
            pack(O[("a", rt)], OM[rt]); pack(O[("b", rt)], OM[rt] + 2)
            for j in (2, 3): a(f"v_mul_f32 v{x+j}, v{x+j}, v{x}")
            a(f"v_cvt_pk_bf16_f32 v{OX[rt]}, v{x+2}, v{x+3}")
    else:
        late(3)
        for rt in range(2): pack(acc2(1, rt), QB[("b", rt)])
        a(f"s_cmp_eq_u32 s{sI}, 0"); a(f"s_cbranch_scc0 L_hdone_{P}")
        a(f"s_cmp_eq_u32 s{sRT}, 0"); a(f"s_cbranch_scc0 L_hwait_{P}")
        for d in HL: a(f"v_mov_b32 v{d}, 0"); a(f"v_mov_b32 v{d+1}, 0")
        for j in range(4): a(f"v_mov_b32 v{BP0+j}, 0x{f2u(-1e30):x}")
        a(f"s_branch L_hok_{P}")
        a.label(f"L_hwait_{P}")
        def htest():
            a(f"v_max3_u32 v228, v{HL[0]}, v{HL[0]+1}, v{HL[1]}")
            a(f"v_max3_u32 v228, v228, v{HL[1]+1}, v{HL[2]}")
            a(f"v_max3_u32 v228, v228, v{HL[2]+1}, v{HL[3]}")
            a(f"v_max3_u32 v228, v228, v{HL[3]+1}, v{HL[4]}")
            a(f"v_max3_u32 v228, v228, v{HL[4]+1}, v{HL[5]}")
            a(f"v_max3_u32 v228, v228, v{HL[5]+1}, v{HL[6]}")
            a(f"v_max_u32 v228, v228, v{HL[6]+1}")
            a(f"v_cmp_eq_u32 vcc, -1, v228")
            a(f"s_cbranch_vccz L_hok_{P}")
        a.wait(vm="~halo", keep=True)
        htest()
        spin_begin(f"L_hsp_{P}")
        halo_loads(); a("s_waitcnt vmcnt(0)"); htest()
        spin_check(f"L_hsp_{P}", f"L_hok_{P}")
        a.label(f"L_hdone_{P}")
        def qmask(rt):
            for h, hh in (("a", hA), ("b", hB)):
                set_mask("vcc", gm(hh))
                for j in range(2): a(f"v_cndmask_b32 v{QB[(h,rt)]+2+j}, v127, v{EQ[rt]+j}, vcc")
        qmask(c)
        a.wait(lg="all")
        a("s_barrier")
        stamp("E2")
        tq = a(f"ds_read_b64 {vr(EQ[oc],2)}, v{vEQp} offset:{EQX}")
        units = [(h, rt) for rt in (c, oc) for h in "ab"]
        S = {u: 176 + 8 * k for k, u in enumerate(units)}
        PB = {u: 208 + 4 * k for k, u in enumerate(units)}
        Om = dict(zip(units, (16, 28, 40, 128)))
        SV = {u: 228 + 2 * k for k, u in enumerate(units)}
        MX = {u: 236 + k for k, u in enumerate(units)}
        def smf(u):
            h, rt = u
            mfma(S[u], KA[(h, rt - 1)], QB[u], BP0 if rt == 0 else BP)
            mfma(S[u] + 4, KA[(h, rt)], QB[u], BO)
        smf(units[0]); smf(units[1])
        a.wait(lg=tq); qmask(oc)
        smf(units[2]); smf(units[3])
        late(2, True)
        for u in units:
            s_, v = S[u], SV[u]
            a(f"v_max3_f32 v{v}, v{s_}, v{s_+1}, v{s_+4}"); a(f"v_max3_f32 v{v+1}, v{s_+2}, v{s_+3}, v{s_+6}")
            a(f"v_max_f32 v{v}, v{v}, v{s_+5}"); a(f"v_max_f32 v{v+1}, v{v+1}, v{s_+7}")
            a(f"v_max_f32 v{MX[u]}, v{v}, v{v+1}")
        m0_, m1_, m2_, m3_ = [MX[u] for u in units]
        a(f"v_permlane32_swap_b32 v{m0_}, v{m1_}"); a(f"v_permlane32_swap_b32 v{m2_}, v{m3_}")
        a(f"v_max_f32 v{m0_}, v{m0_}, v{m1_}"); a(f"v_max_f32 v{m2_}, v{m2_}, v{m3_}")
        a(f"v_permlane16_swap_b32 v{m0_}, v{m2_}")
        a(f"v_max_f32 v{m0_}, v{m0_}, v{m2_}")
        cs = LOG2E * 20 ** -0.5
        a(f"v_mul_f32 v{m0_}, 0x{f2u(-cs):x}, v{m0_}")
        a(f"v_mov_b32 v{m2_}, v{m0_}")
        a(f"v_permlane16_swap_b32 v{m0_}, v{m2_}")
        a(f"v_mov_b32 v{m1_}, v{m0_}"); a(f"v_mov_b32 v{m3_}, v{m2_}")
        a(f"v_permlane32_swap_b32 v{m0_}, v{m1_}"); a(f"v_permlane32_swap_b32 v{m2_}, v{m3_}")
        late(99, True)
        V = {"a": Va, "b": Vb}
        for u in units:
            for j in range(2): a(f"v_fmamk_f32 v{SV[u]+j}, v{SV[u]+j}, 0x{f2u(cs):x}, v{MX[u]}")
        for u in units:
            for j in range(2): a(f"v_exp_f32 v{SV[u]+j}, v{SV[u]+j}")
        for u in units:
            h, rt = u; v = SV[u]
            for j in range(2): a(f"v_cvt_pk_bf16_f32 v{v+j}, v{v+j}, v{v+j}")
            for k in range(4): a(f"v_and_b32 v{PB[u]+k}, v{v+(k&1)}, v{MK+k}")
            mfma(Om[u] + 8, ONES, PB[u], "0")
            mfma(Om[u], V[h] + 2 * rt, PB[u], "0")
            mfma(Om[u] + 4, Ev + 2 * rt, PB[u], "0")
        OM = [176, 180]; OX = [184, 186]
        set_mask("vcc", gm(hA))
        for rt in (c, oc):
            ua, ub = ("a", rt), ("b", rt)
            for u in (ua, ub): a(f"v_rcp_f32 v{Om[u]+8}, v{Om[u]+8}")
            for j in range(4): a(f"v_cndmask_b32 v{Om[ua]+4+j}, v{Om[ub]+4+j}, v{Om[ua]+4+j}, vcc")
            for u in (ua, ub):
                for j in range(4): a(f"v_mul_f32 v{Om[u]+j}, v{Om[u]+j}, v{Om[u]+8}")
            a(f"v_cndmask_b32 v{Om[ua]+8}, v{Om[ub]+8}, v{Om[ua]+8}, vcc")
            pack(Om[ua], OM[rt]); pack(Om[ub], OM[rt] + 2)
            for j in range(4): a(f"v_mul_f32 v{Om[ua]+4+j}, v{Om[ua]+4+j}, v{Om[ua]+8}")
            pack(Om[ua] + 4, OX[rt])
    a(f"s_lshl_b32 s3, s{sHG}, 11"); a(f"s_add_u32 s3, s3, s{sOB}"); a(f"s_add_u32 s3, s3, {c*1024}")
    a(f"s_add_u32 s4, s3, 20480")
    a(f"s_lshr_b32 s5, s{sHG}, 1"); a(f"s_lshl_b32 s5, s5, 10"); a(f"s_and_b32 s6, s{sHG}, 1"); a(f"s_lshl_b32 s6, s6, 3")
    a(f"s_add_u32 s5, s5, s6"); a(f"s_add_u32 s5, s5, s{sOB}"); a(f"s_add_u32 s5, s5, 16384")
    a(f"s_add_u32 s6, s5, 20480")
    a(f"v_mov_b32 v{vT}, s{sN}"); a(f"v_mov_b32 v{vT+2}, 0")
    a(f"s_cmp_eq_u32 s{sFAST}, 1"); a(f"s_cbranch_scc1 L_fast_{P}")
    for fl, end in ((" sc1", f"s_branch L_pubd_{P}"), ((" " + OPT["ofl"]) if OPT["ofl"] else "", None)):
        if not end: a.label(f"L_fast_{P}")
        a(f"buffer_store_dwordx4 {vr(OM[0],4)}, v{vL16}, {sr(SS,4)}, s3 offen{fl}")
        a(f"buffer_store_dwordx4 {vr(OM[1],4)}, v{vL16}, {sr(SS,4)}, s4 offen{fl}")
        if A_:
            a(f"buffer_store_dword v{OX[0]}, v{vL16}, {sr(SS,4)}, s5 offen offset:{4*c}{fl}")
            a(f"buffer_store_dword v{OX[1]}, v{vL16}, {sr(SS,4)}, s6 offen offset:{4*c}{fl}")
        else:
            a(f"s_mov_b32 exec_{'hi' if c == 0 else 'lo'}, 0")
            a(f"buffer_store_dwordx2 {vr(OX[0],2)}, v{vL16}, {sr(SS,4)}, s5 offen{fl}")
            a(f"buffer_store_dwordx2 {vr(OX[1],2)}, v{vL16}, {sr(SS,4)}, s6 offen{fl}")
        if end: a(end)
    a.label(f"L_pubd_{P}")
    a("s_mov_b64 exec, -1")
    stamp("ostore")
    phase2_setup(A_, c)
    a(f"s_cmp_eq_u32 s{sFAST}, 1")
    a("s_mov_b64 exec, 1")
    a("s_waitcnt vmcnt(0)")
    a(f"s_cbranch_scc1 L_fast2_{P}")
    a(f"buffer_store_dword v{vT}, v{vT+2}, {sr(SS,4)}, s{sFP} offen sc1")
    a(f"s_branch L_pubd2_{P}")
    a.label(f"L_fast2_{P}")
    a(f"buffer_store_dword v{vT}, v{vT+2}, {sr(SS,4)}, s{sFP} offen")
    a.label(f"L_pubd2_{P}")
    a("s_mov_b64 exec, -1")
    a.vm = ["flag"]
    stamp("oack")
    a("s_branch L_phase2")

vM0, vE0, vPA, vPD, vSA = 1, 2, 3, 0, 5
RA = [8, 9, 11]; GA_ = [12, 13, 14]
vRW, vRR = 4, 7
RX = 43008
RX = 0
OST2 = 40960
def phase2_setup(A_, c):
    half = WO_BASE + c * 51200
    a(f"v_and_b32 v{vPD}, 3, v{vL}")
    a(f"v_lshrrev_b32 v{vM0}, 2, v{vL}"); a(f"v_mul_u32_u24 v{vM0}, 160, v{vM0}")
    a(f"v_lshl_add_u32 v{vM0}, v{vPD}, 3, v{vM0}"); a(f"v_add_u32 v{vM0}, {half}, v{vM0}")
    if A_:
        a(f"v_bfe_u32 v{vE0}, v{vL}, 3, 1"); a(f"v_mul_u32_u24 v{vE0}, 40, v{vE0}")
        a(f"v_lshrrev_b32 v{vPA}, 5, v{vL}"); a(f"v_mad_u32_u24 v{vE0}, v{vPA}, 20, v{vE0}")
        a(f"v_bfe_u32 v{vPA}, v{vL}, 4, 1"); a(f"v_lshl_add_u32 v{vE0}, v{vPA}, 1, v{vE0}")
        a(f"v_bfe_u32 v{vPA}, v{vL}, 2, 1"); a(f"v_add_u32 v{vE0}, v{vE0}, v{vPA}")
    else:
        a(f"v_lshrrev_b32 v{vE0}, 4, v{vL}"); a(f"v_mul_u32_u24 v{vE0}, 20, v{vE0}")
        a(f"v_bfe_u32 v{vPA}, v{vL}, 2, 2"); a(f"v_add_u32 v{vE0}, v{vE0}, v{vPA}")
    a(f"v_mul_u32_u24 v{vE0}, 160, v{vE0}")
    a(f"v_lshl_add_u32 v{vE0}, v{vPD}, 3, v{vE0}"); a(f"v_add_u32 v{vE0}, {half}, v{vE0}")
    a(f"v_lshlrev_b32 v{vPA}, 2, v{vL}")
    a(f"s_mul_i32 s7, s{sWV}, 5120"); a(f"v_add_u32 v{vRR}, s7, v{vXA0}")
    a(f"s_xor_b32 s7, s{sWV}, 4"); a(f"s_mul_i32 s7, s7, 5120"); a(f"v_add_u32 v{vRW}, s7, v{vXA0}")

def phase2_setup2():
    a(f"s_mul_i32 s7, s{sWV}, 2560"); a(f"s_add_u32 s7, s7, {OST2}")
    for j in range(3):
        a(f"v_add_u32 v{RA[j]}, {64*j}, v{vL}")
        a(f"v_mul_u32_u24 v{GA_[j]}, 6554, v{RA[j]}"); a(f"v_lshrrev_b32 v{GA_[j]}, 16, v{GA_[j]}")
        a(f"v_mul_u32_u24 v{vSA}, 2400, v{GA_[j]}")
        a(f"v_lshlrev_b32 v{RA[j]}, 4, v{RA[j]}")
        a(f"v_add_u32 v{GA_[j]}, v{vSA}, v{RA[j]}")
        a(f"v_add_u32 v{RA[j]}, s7, v{RA[j]}")
    a(f"v_and_b32 v{vSA}, 15, v{vL}"); a(f"v_mul_u32_u24 v{vSA}, 160, v{vSA}")
    a(f"v_lshrrev_b32 v16, 4, v{vL}"); a(f"v_lshlrev_b32 v16, 3, v16"); a(f"v_add3_u32 v{vSA}, v{vSA}, v16, s7")

def phase2():
    a.label("L_phase2")
    a.vm = ["flag"]; a.lg = []
    vL16 = vXA0
    a("s_barrier")
    stamp("E3")
    OF = 176; ACC = 16
    def of(k, rt): return OF + (k * 2 + rt) * 4
    bufs = [56 + 4 * k for k in range(30)][:OPT["npre"]]
    NB = len(bufs)
    def reads(n):
        k, t = divmod(n, 5); w = bufs[n % NB]; tg = []
        for h in range(2):
            if k < 8: row = 40 * k + 20 * h; base = vM0
            else: row = 80 * (2 * (k - 8) + h) + 16; base = vE0
            tg.append(a(f"ds_read_b64_tr_b16 {vr(w+2*h,2)}, v{base} offset:{row * 160 + 32 * t}"))
        return tg
    a(f"s_add_u32 s3, s{sOC}, 20480"); a(f"s_add_u32 s4, s{sOC}, 4096"); a(f"s_add_u32 s5, s3, 4096"); a(f"s_add_u32 s6, s{sOE}, 20480")
    def oload(j):
        k, rt = divmod(j, 2)
        if k < 4: so = (sOC, 3)[rt]; off = k * 1024
        elif k < 8: so = (4, 5)[rt]; off = (k - 4) * 1024
        else: so = (sOE, 6)[rt]; off = (k - 8) * 1024
        a(f"buffer_load_dwordx4 {vr(of(k,rt),4)}, v{vL16}, {sr(SS,4)}, s{so} offen offset:{off} sc1", f"o{k}")
    NP = OPT["npoll"]; per = NB // NP
    batches = [list(range(k * per, (k + 1) * per if k < NP - 1 else NB)) for k in range(NP)]
    tags = {}
    def poll_issue():
        a("s_mov_b64 exec, 0xff"); a(f"buffer_load_dword v{vPD}, v{vPA}, {sr(SS,4)}, s{sFC} offen sc1"); a("s_mov_b64 exec, -1")
    def poll_check(lbl):
        a("s_waitcnt vmcnt(0)")
        a(f"v_cmp_ne_u32 vcc, s{sN}, v{vPD}"); a("s_and_b32 vcc_lo, vcc_lo, 0xff"); a(f"s_cbranch_scc0 {lbl}")
    lgs = []
    for k in range(NP):
        poll_issue()
        for n in batches[k]: tags[n] = reads(n)
        if k == 0: phase2_setup2()
        lgs.append(list(a.lg))
        poll_check(f"L_go{k}")
    spin_begin("L_poll")
    poll_issue(); poll_check(f"L_go{NP-1}")
    spin_check("L_poll", "L_pollx")
    XL = OPT["oburst"] + NP - 1
    full = list(a.lg)
    for k in range(NP - 1, -1, -1):
        a.label(f"L_go{k}")
        a.vm = []; a.lg = list(lgs[k])
        stamp("polled")
        nxt = 0
        for _ in range(OPT["oburst"]): oload(nxt); nxt += 1
        for j in range(k + 1, NP):
            for n in batches[j]: reads(n)
            oload(nxt); nxt += 1
        while nxt < XL: oload(nxt); nxt += 1
        if k > 0: a("s_branch L_conv")
    a.label("L_conv")
    a.lg = full[-12:]
    a("s_waitcnt lgkmcnt(12)")
    rd = NB
    for n in range(50):
        k, t = divmod(n, 5)
        a.wait(vm=f"o{k}" if t == 0 else None, lg=tags[n])
        if n == 0: stamp("ofirst")
        for rt in range(2):
            d = ACC + (rt * 5 + t) * 4
            mfma(d, bufs[n % NB], of(k, rt), d if k else "0")
        if t in (0, 2) and nxt < 20: oload(nxt); nxt += 1
        if OPT["wb"] >= 3 and n == OPT["wbn"]:
            a(f"s_xor_b32 s3, s{sWV}, {OPT['wbw']}")
            if OPT["wb"] == 3: a(f"s_or_b32 s3, s3, s{sHG}")
            else: a(f"s_and_b32 s4, s{sHG}, 3"); a("s_or_b32 s3, s3, s4")
            a(f"s_cmp_eq_u32 s3, 0"); a(f"s_cselect_b32 s3, s{sFAST}, 0"); a("s_cmp_eq_u32 s3, 1")
            a("s_cbranch_scc0 L_nowb")
            a("buffer_wbl2 sc1", "~wb")
            a.label("L_nowb")
        if t == 1 and nxt == 20 and OPT["wb"] in (1, 2):
            nxt = 21
            if OPT["wb"] == 1: a(f"s_or_b32 s3, s{sWV}, s{sHG}")
            else: a(f"s_mov_b32 s3, s{sWV}")
            a(f"s_cmp_eq_u32 s3, 0"); a(f"s_cselect_b32 s3, s{sFAST}, 0"); a("s_cmp_eq_u32 s3, 1")
            a("s_cbranch_scc0 L_nowb")
            a("buffer_wbl2 sc1", "~wb")
            a.label("L_nowb")
        if rd < 50: tags[rd] = reads(rd); rd += 1
    stamp("g2end")
    a("s_nop 2")
    a(f"s_cmp_eq_u32 s{sC}, 0"); a("s_cbranch_scc0 L_red1")
    for c in range(2):
        if c == 1: a.label("L_red1")
        a.lg = []
        give = ACC + (1 - c) * 20; keep = ACC + c * 20
        for t in range(5): a(f"ds_write_b128 v{vRW}, {vr(give+4*t,4)} offset:{RX + t*1024}")
        a.wait(lg="all")
        a("s_barrier")
        tg = [a(f"ds_read_b128 {vr(56+4*t,4)}, v{vRR} offset:{RX + t*1024}") for t in range(5)]
        for t in range(5):
            a.wait(lg=tg[t])
            for j in range(4): a(f"v_add_f32 v{56+4*t+j}, v{56+4*t+j}, v{keep+4*t+j}")
            pack(56 + 4 * t, 80 + 2 * t)
            a(f"ds_write_b64 v{vSA}, {vr(80+2*t,2)} offset:{32*t}")
        if c == 0: a("s_branch L_red2")
    a.label("L_red2")
    a.wait(lg="all")
    tg = []
    for j in range(3):
        if j == 2: a("s_mov_b32 exec_hi, 0")
        tg.append(a(f"ds_read_b128 {vr(96+4*j,4)}, v{RA[j]}"))
    a("s_mov_b64 exec, -1")
    fl = OPT["outflag"].replace("+", " "); fl = "" if fl == "none" else " " + fl
    for j in range(3):
        a.wait(lg=tg[j])
        if j == 2: a("s_mov_b32 exec_hi, 0")
        a(f"buffer_store_dwordx4 {vr(96+4*j,4)}, v{GA_[j]}, {sr(SD,4)}, s{sOUT} offen{fl}")
    if OPT["stamps"]:
        a("s_mov_b64 exec, -1")
        a("s_waitcnt vmcnt(0)")
        stamp("end")
        a(f"s_memrealtime s[100:101]"); a("s_waitcnt lgkmcnt(0)"); a(f"v_writelane_b32 v{vST}, s100, 41")
        a(f"v_writelane_b32 v{vST}, s{sFAST}, 42")
        a(f"s_lshl_b32 s3, s2, 3"); a(f"s_add_u32 s3, s3, s{sWV}"); a("s_lshl_b32 s3, s3, 8"); a(f"s_add_u32 s3, s3, {WS_STAMP}")
        a(f"v_lshlrev_b32 v0, 2, v{vL}")
        a(f"buffer_store_dword v{vST}, v0, {sr(SS,4)}, s3 offen")
    a.label("L_end")
    a("s_endpgm")
    a.label("L_codeend")

prologue()
sv0 = list(a.vm)
for b, c in ((0, 0), (0, 1), (1, 0), (1, 1)):
    a.vm = list(sv0); a.lg = []
    path(b, c)
phase2()
a.raw(f""".section .rodata,"a"
.p2align 6
.amdhsa_kernel {KNAME}
  .amdhsa_next_free_vgpr 256
  .amdhsa_next_free_sgpr 102
  .amdhsa_accum_offset 256
  .amdhsa_group_segment_fixed_size 0
  .amdhsa_kernarg_size 72
  .amdhsa_user_sgpr_count 2
  .amdhsa_user_sgpr_kernarg_segment_ptr 1
  .amdhsa_system_sgpr_workgroup_id_x 1
.end_amdhsa_kernel""")
open(sys.argv[1], "w").write(a.text())
print("nops inserted:", a.nops_inserted, "lines:", len(a.lines), file=sys.stderr)
```

```python
import re

TRANS = ("v_exp_f32", "v_log_f32", "v_rcp_f32", "v_rsq_f32", "v_sqrt_f32", "v_sin_f32", "v_cos_f32")

def regs_of(tok):
    tok = tok.strip()
    tok = re.sub(r"^-", "", tok)
    tok = re.sub(r"^\|(.*)\|$", r"\1", tok)
    m = re.fullmatch(r"abs\((.*)\)", tok)
    if m: tok = m.group(1)
    m = re.fullmatch(r"([vs])\[(\d+):(\d+)\]", tok)
    if m: return [(m.group(1), i) for i in range(int(m.group(2)), int(m.group(3)) + 1)]
    m = re.fullmatch(r"([vs])(\d+)", tok)
    if m: return [(m.group(1), int(m.group(2)))]
    if tok in ("vcc", "vcc_lo", "vcc_hi"): return [("x", "vcc")]
    if tok in ("exec", "exec_lo", "exec_hi"): return [("x", "exec")]
    if tok == "m0": return [("x", "m0")]
    return []

class Ins:
    def __init__(self, text):
        self.text = text
        t = text.split(";")[0].strip()
        parts = t.split(None, 1)
        self.op = parts[0]
        ops = []
        if len(parts) > 1:
            for o in parts[1].split(","):
                o = o.strip()
                ops.append(o.split()[0] if o else o)
        self.ops = ops
        op = self.op
        base = re.sub(r"_(e32|e64|dpp|sdwa)$", "", op)
        self.base = base
        self.is_mfma = op.startswith("v_mfma")
        self.is_valu = op.startswith("v_") and not self.is_mfma
        self.is_salu = op.startswith("s_")
        self.is_ds = op.startswith("ds_")
        self.is_vmem = op.startswith("buffer_") or op.startswith("global_")
        self.is_trans = base in TRANS
        self.is_perm = base.startswith("v_permlane")
        self.is_dpp = "quad_perm" in text or "row_" in text or op.endswith("_dpp")
        self.is_ldsdma = self.is_vmem and re.search(r"\blds\b", t) is not None
        R = [regs_of(o) for o in ops]
        self.w = []; self.r = []
        if self.is_mfma:
            self.w = R[0]; self.ra = R[1] + R[2]; self.rc = R[3]; self.r = self.ra + self.rc
        elif self.is_valu:
            if base.startswith("v_cmp"):
                self.w = R[0]; self.r = sum(R[1:], [])
            elif self.is_perm:
                self.w = R[0] + R[1]; self.r = R[0] + R[1]
            elif base in ("v_add_co_u32", "v_addc_co_u32", "v_sub_co_u32"):
                self.w = R[0] + R[1]; self.r = sum(R[2:], [])
            else:
                self.w = R[0]; self.r = sum(R[1:], [])
                if base in ("v_fmac_f32", "v_dot2c_f32_bf16", "v_writelane_b32"): self.r += R[0]
                if base == "v_cndmask_b32" and len(ops) == 3: self.r += [("x", "vcc")]
        elif self.is_ds:
            if "read" in op or "bpermute" in op or "swizzle" in op:
                self.w = R[0]; self.r = sum(R[1:], [])
            else:
                self.r = sum(R, [])
        elif self.is_vmem:
            if op.startswith("buffer_wbl2") or op.startswith("buffer_inv"):
                pass
            elif "load" in op and not self.is_ldsdma:
                self.w = R[0]; self.r = sum(R[1:], [])
            else:
                self.r = sum(R, [])
                if self.is_ldsdma: self.r += [("x", "m0")]
            self.store_wide = ("store" in op and ("x3" in op or "x4" in op))
            self.sdata = []
            if self.store_wide:
                self.sdata = R[0] if op.startswith("buffer_") else R[1]
        elif self.is_salu:
            if op.startswith("s_cmp") or op.startswith("s_cbranch") or op in ("s_branch", "s_waitcnt", "s_barrier", "s_nop", "s_endpgm", "s_sleep", "s_setprio", "s_bitcmp1_b32", "s_bitcmp0_b32"):
                self.r = sum(R, [])
            else:
                self.w = R[0] if R else []; self.r = sum(R[1:], [])
        self.states = 1
        if op == "s_nop": self.states = int(ops[0], 0) + 1

class Asm:
    def __init__(self):
        self.lines = []
        self.hist = []
        self.vm = []
        self.lg = []
        self.nops_inserted = 0
        self.uid = 0
        self.ghost_cond = {}

    def raw(self, s):
        self.lines.append(s)

    def comment(self, s):
        self.lines.append("    ; " + s)

    def label(self, name, reset=True):
        self.lines.append(name + ":")

    def need(self, ins):
        need = 0; dist = 0
        for p in reversed(self.hist):
            if dist >= 20: break
            req = 0
            pw = set(p.w)
            if p.is_valu:
                vw = {x for x in pw if x[0] == "v"}
                sw = {x for x in pw if x[0] == "s" or x == ("x", "vcc")}
                if ins.is_mfma and vw & set(ins.r): req = max(req, 2)
                if p.is_trans and ins.is_valu and not ins.is_trans and vw & set(ins.r): req = max(req, 1)
                if (ins.is_perm or ins.is_dpp) and vw & set(ins.r): req = max(req, 2)
                if ins.base in ("v_readfirstlane_b32", "v_readlane_b32") and vw & set(ins.r): req = max(req, 1)
                if ins.is_valu and sw & set(ins.r): req = max(req, 4 if ins.base in ("v_readlane_b32", "v_writelane_b32") else 2)
                if ins.is_vmem and sw & set(ins.r): req = max(req, 5)
                if ins.is_salu and sw & set(ins.r) and not ins.op.startswith("s_cbranch"): req = max(req, 1)
                if ("x", "exec") in pw: req = max(req, 5)
            if p.is_mfma:
                if ins.is_mfma:
                    if pw & set(ins.ra): req = max(req, 8)
                    if pw & set(ins.rc) and p.w != ins.rc: req = max(req, 6)
                    if pw & set(ins.w) and p.w != ins.rc: req = max(req, 8)
                elif ins.is_valu or ins.is_ds or ins.is_vmem:
                    if pw & (set(ins.r) | set(ins.w)): req = max(req, 8)
                if ins.is_valu and set(p.rc) & set(ins.w): req = max(req, 3)
            if p.is_salu and ("x", "m0") in pw and ins.is_vmem and ins.is_ldsdma: req = max(req, 1)
            if p.is_vmem and p.store_wide and set(p.sdata) & set(ins.w): req = max(req, 2)
            if req - dist > need: need = req - dist
            dist += p.states
        return need

    def __call__(self, text, tag=None):
        ins = Ins(text)
        if ins.is_ds and len(self.lg) >= 15:
            self.lg = self.lg[-12:]
            self("s_waitcnt lgkmcnt(12)")
        n = self.need(ins)
        while n > 0:
            k = min(n, 16)
            nop = Ins(f"s_nop {k-1}")
            self.lines.append(f"    s_nop {k-1}"); self.hist.append(nop); self.nops_inserted += k
            n -= k
        self.lines.append("    " + text)
        self.hist.append(ins)
        if len(self.hist) > 64: self.hist = self.hist[-40:]
        if tag is None:
            self.uid += 1; tag = f"_{self.uid}"
        if ins.is_vmem: self.vm.append(tag)
        if ins.is_ds: self.lg.append(tag)
        return tag

    def fence(self, n=10):
        self(f"s_nop {n-1}")

    def wait(self, vm=None, lg=None, keep=False):
        parts = []; k_vm = None; after = []
        if vm is not None:
            if vm == "all": k = 0
            else:
                tags = vm if isinstance(vm, (list, tuple)) else [vm]
                idx = [i for i, t in enumerate(self.vm) if t in tags]
                k = sum(1 for t in self.vm[max(idx) + 1:] if not t.startswith("~")) if idx else None
            if k is not None:
                kk = min(k, 63); parts.append(f"vmcnt({kk})"); k_vm = k
                if vm != "all": after = self.vm[max(idx) + 1:]
                if vm == "all": self.vm = []
                elif not keep: self.vm = self.vm[max(idx) + 1:]
        if lg is not None:
            if lg == "all": k = 0
            else:
                tags = lg if isinstance(lg, (list, tuple)) else [lg]
                idx = [i for i, t in enumerate(self.lg) if t in tags]
                k = len(self.lg) - 1 - max(idx) if idx else None
            if k is not None:
                kk = min(k, 15); parts.append(f"lgkmcnt({kk})"); self.lg = self.lg[len(self.lg) - kk:] if kk else []
        if parts and vm not in (None, "all") and k_vm is not None and not keep and self.ghost_cond:
            classes = {}
            for t in after:
                if t.startswith("~"):
                    cl = t[1:3]
                    if cl in self.ghost_cond: classes[cl] = classes.get(cl, 0) + 1
            if classes:
                cl = max(classes, key=classes.get)
                self.uid += 1; u = self.uid
                for i in self.ghost_cond[cl]: self(i)
                self(f"s_cbranch_scc1 L_gw{u}")
                self("s_waitcnt " + " ".join(parts))
                self(f"s_branch L_gx{u}")
                self.label(f"L_gw{u}")
                alt = [f"vmcnt({min(63, k_vm + classes[cl])})" if p.startswith("vmcnt") else p for p in parts]
                self("s_waitcnt " + " ".join(alt))
                self.label(f"L_gx{u}")
                return
        if parts: self("s_waitcnt " + " ".join(parts))

    def text(self):
        return "\n".join(self.lines) + "\n"

def vr(a, n=1):
    return f"v{a}" if n == 1 else f"v[{a}:{a+n-1}]"
def sr(a, n=1):
    return f"s{a}" if n == 1 else f"s[{a}:{a+n-1}]"
```

```python
import sys, os, struct
from collections import deque
from asmlib import Asm, vr, sr

KNAME = "concat_heads__linear_attn_block__sliding_local_dilated__prompt_kernel"
OPT = dict(rts=0, woaft=0, gearly=54, tbal=1, exact=1, hackwo=0, hackgat=0, hackphi=0, hackpoll=0, sched="", tcm="", pr1="", pr2="", pr3="", prep=-1, hackport=0, hackdma=0, tcs=0, tc="", tcw=3, tc0=0, tcpos=0, alias=1, wbe=0, worot=0, wbn=49, wbw=4, tqonly=0, st0=-1, stn=6, stq=1, stp=1, srate=3, prel1=-1, ofl="none", npoll=5, pre1=10, gspread=1, LA=2, p1n=3, win="", ea=0, eb=-1, ec=3, ecg=0, pst=-1, rev0=0, wodef=3, wnt=0, wont=0, pnt=0, xrot=1, prest=0, xnt=0, t0=0, wosched=0, G=10, stamps=0, L=4, Lb=2, L2=8, Lb2=4, force_slow=0, wb=0, codepf=1, outflag="nt", gat_at=3, pro=2, tq=-1,
           oburst=6, npre=29, rdy_at=4, prel_at=1, stampset="all")
for x in sys.argv[2:]:
    k, v = x.split("="); OPT[k] = int(v) if v.lstrip("-").isdigit() else v

def f2u(x): return struct.unpack("<I", struct.pack("<f", x))[0]

SLOT = 36864; UNIT = 10240
SC = 20480
EE_A = SC; RED = SC + 8192; OPS = SC; EQX = SC + 28672; EXB = SC; OST = SC
BCAST = 147456 + 64
WO_BASE = 6 * UNIT
WQ_UNIT = [8, 10, 12, 0, 14]
CST = 148480
EE_A2 = 154624
OPX = 0
WS_KV = 0x600000; WS_HALO = 0x700000; WS_FLAG = 0x800000; WS_RDY = 0x810000; WS_E = 0x820000; WS_STAMP = 0x900000
WS_SIZE = 0x10000000
SPIN_MAX = 200000
EPS = f2u(1e-6)
LOG2E = 1.4426950408889634

SX, SW, SO, SD, SS, SG = 16, 20, 24, 28, 32, 36
sB, sRT, sHG, sWV, sI, sC, sXCC, sN, sFAST = 40, 41, 42, 43, 44, 45, 46, 47, 48
sXO, sWK = 50, 60
sW1K, sX2K = 70, 71
sT0, sT1, sT2, sT3 = 72, 73, 74, 75
sOB, sKVP, sKVG, sHP, sHG2, sFP, sFC = 76, 77, 78, 79, 49, 9, 8
sM = 80
sHV = 87; sTI = 86; sSPIN = 92; sCUR = 93; sDUTY = 90
sK = 94; sTM = 96; sOC = 98; sOUT = 99; sOE = 91; sKH = 85; sDFP = 84; sDFC = 83; sFPL = 82
vXD0, vXD1, vWD = 1, 2, 3
vXA0, vXA1, vWA, vWE, vL = 6, 7, 8, 9, 10
vT = 11; vST = 15
vWO = 90; vPRE = 93; vGAD = 94; vXE = 14
ACC1 = 16; WF = 56; XB = 96
def X(ks, rt): return XB + (ks * 2 + rt) * 4

a = Asm()
if OPT["exact"]:
    a.ghost_cond = {"w0": [f"s_cmp_eq_u32 s{sWV}, 0"], "i3": [f"s_cmp_eq_u32 s{sI}, 3"], "h0": [f"s_cmp_lg_u32 s{sHV}, 0"]}
AL = OPT['alias']
OS = SD if AL else SS
OP_ = 2560 if AL else 1280
OT = 16 * OP_
STAMPS = ["start", "issued", "b0", "b1", "b2", "b3", "b4", "b5", "b6", "b7", "b8", "b9", "p1end", "E1", "pub1", "p1", "p2", "p3", "p4", "p2end", "E2", "ostore", "oack", "E3", "polled", "ofirst", "g2end", "end", "first"]
FEW = {"first", "b0", "b1", "b2", "b4", "b6", "p1end", "pub1", "p2end", "ostore", "ofirst", "g2end", "end"}
def stamp(name):
    if not OPT["stamps"]: return
    if OPT["stampset"] == "few" and name not in FEW: return
    if OPT["stampset"] == "end" and name not in ("end",): return
    a(f"s_memtime {sr(sTM,2)}")
    RT = {"b0": 44, "b1": 45, "b6": 46, "p1end": 47, "pub1": 48, "p2end": 49, "ostore": 50, "ofirst": 51, "g2end": 52}
    if name in RT and OPT["rts"]: a("s_memrealtime s[100:101]")
    a("s_waitcnt lgkmcnt(0)"); a.lg = []
    a(f"v_writelane_b32 v{vST}, s{sTM}, {STAMPS.index(name)}")
    if name in RT and OPT["rts"]: a(f"v_writelane_b32 v{vST}, s100, {RT[name]}")

def srd(d, lo, hi, size):
    a(f"s_mov_b32 s{d}, s{lo}"); a(f"s_mov_b32 s{d+1}, s{hi}")
    a(f"s_mov_b32 s{d+2}, {size}"); a(f"s_mov_b32 s{d+3}, 0x20000")
def mask_ins(s, val):
    if s == "vcc": return [f"s_mov_b32 vcc_lo, 0x{val & 0xffffffff:x}", f"s_mov_b32 vcc_hi, 0x{val >> 32:x}"]
    return [f"s_mov_b32 s{s}, 0x{val & 0xffffffff:x}", f"s_mov_b32 s{s+1}, 0x{val >> 32:x}"]
def set_mask(s, val):
    for i in mask_ins(s, val): a(i)
def lanemask(f):
    m = 0
    for l in range(64):
        if f(l): m |= 1 << l
    return m

def wvoff_ins(dst, q, pitch, swap, second):
    r = [f"s_add_u32 s{sT0}, s{sWV}, {8*q}", f"s_cmp_ge_u32 s{sT0}, 10", f"s_cselect_b32 s{sT1}, {second}, 0", f"s_cselect_b32 s{sT2}, 10, 0",
         f"s_sub_u32 s{sT0}, s{sT0}, s{sT2}", f"s_lshl_b32 s{sT0}, s{sT0}, 6",
         f"v_add_u32 v{vT}, s{sT0}, v{vL}", f"v_mul_u32_u24 v{vT+1}, 6554, v{vT}", f"v_lshrrev_b32 v{vT+1}, 16, v{vT+1}",
         f"v_mul_u32_u24 v{vT+2}, 10, v{vT+1}", f"v_sub_u32 v{vT}, v{vT}, v{vT+2}"]
    if swap:
        r += [f"v_lshrrev_b32 v{vT+2}, 1, v{vT+1}", f"v_xor_b32 v{vT+2}, v{vT+2}, v{vT+1}", f"v_and_b32 v{vT+2}, 4, v{vT+2}",
              f"v_mul_u32_u24 v{vT+2}, 3, v{vT+2}", f"v_xor_b32 v{vT+1}, v{vT+1}, v{vT+2}"]
    r += [f"v_mul_u32_u24 v{vT+1}, {pitch}, v{vT+1}", f"v_lshlrev_b32 v{vT}, 4, v{vT}", f"v_add3_u32 v{dst}, v{vT}, v{vT+1}, s{sT1}"]
    return r
def wvoff(*args):
    for i in wvoff_ins(*args): a(i)

XF = " nt" if OPT["xnt"] else ""
WFL = " nt" if OPT["wnt"] else ""
WOFL = " nt" if OPT["wont"] else ""
def dma_chunk(c, step):
    base = (step % 4) * SLOT
    ops = [([f"s_add_u32 m0, s{sX2K}, {base}"], f"buffer_load_dwordx4 v{vXD0}, {sr(SX,4)}, s{sXO+step} offen{XF} lds"),
           ([f"s_add_u32 m0, s{sX2K}, {base + 1024}"], f"buffer_load_dwordx4 v{vXD1}, {sr(SX,4)}, s{sXO+step} offen{XF} lds")]
    for q in range(3 if c == 0 else 2):
        if OPT["hackdma"] and q >= 1 and step >= 2: continue
        ops.append(([f"s_add_u32 m0, s{sW1K}, {base + 16384 + q*8192}"], f"buffer_load_dwordx4 v{vWD+q}, {sr(SW,4)}, s{sWK+step} offen{WFL} lds"))
    return ops
def dma_wq(c, u):
    base = WQ_UNIT[u] * UNIT
    ops = []
    for q in range(3 if c == 0 else 2):
        pre = []
        if q == 0: pre.append(f"s_sub_u32 s{sT3}, s{sWK+2*u}, 1280")
        elif q == 2 or c == 1: pre.append(f"s_sub_u32 s{sT3}, s{sWK+2*u+1}, 1280")
        else: pre += [f"s_cmp_lt_u32 s{sWV}, 2", f"s_cselect_b32 s{sT3}, s{sWK+2*u}, s{sWK+2*u+1}", f"s_sub_u32 s{sT3}, s{sT3}, 1280"]
        pre.append(f"s_add_u32 m0, s{sW1K}, {base + q*8192}")
        ops.append((pre, f"buffer_load_dwordx4 v{vWD+q}, {sr(SW,4)}, s{sT3} offen{WFL} lds"))
    return ops
sWOR = 86
def dma_wo(c, u):
    base = WO_BASE + u * 2 * UNIT
    ops = []
    if OPT["hackwo"]: return ops
    if u < OPT["worot"]:
        for q in range(3 if c == 0 else 2):
            pre = [f"s_lshl_b32 s{sT3}, s{sWOR+u}, 3", f"s_add_u32 s{sT3}, s{sT3}, s{sCUR}", f"s_add_u32 s{sT2}, s{sW1K}, s{sWOR+u}", f"s_add_u32 m0, s{sT2}, {WO_BASE + q*8192}"]
            ops.append((pre, f"buffer_load_dwordx4 v{vWO+q}, {sr(SO,4)}, s{sT3} offen{WOFL} lds"))
        return ops
    for q in range(3 if c == 0 else 2):
        pre = [f"s_add_u32 s{sT3}, s{sCUR}, {u*128*1280}", f"s_add_u32 m0, s{sW1K}, {base + q*8192}"]
        ops.append((pre, f"buffer_load_dwordx4 v{vWO+q}, {sr(SO,4)}, s{sT3} offen{WOFL} lds"))
    return ops
def emit_op(op, tag):
    if callable(op): return op()
    for p in op[0]: a(p)
    a(op[1], tag)

def spin_begin(name):
    a(f"s_mov_b32 s{sSPIN}, 0"); a.label(name)
def spin_check(name, done):
    a.vm = [t for t in a.vm if t != "~x"]
    a(f"s_add_u32 s{sSPIN}, s{sSPIN}, 1"); a(f"s_cmp_lt_u32 s{sSPIN}, {SPIN_MAX}"); a(f"s_cbranch_scc1 {name}")
    a.label(done)

def phi_ins(src, n, dst_list, tmp):
    r = []
    if OPT["hackphi"]:
        for d in dst_list:
            for i in range(0, n, 2): r.append(f"v_cvt_pk_bf16_f32 v{d+i//2}, v{src+i}, v{src+i+1}")
        return r
    for i in range(n): r.append(f"v_mul_f32 v{tmp+i}, s{sK}, v{src+i}")
    for i in range(n):
        r.append(f"v_exp_f32_e64 v{tmp+i}, v{tmp+i} clamp")
        r.append(f"v_max_f32 v{src+i}, s{sK+1}, v{src+i}")
    for i in range(n): r.append(f"v_add_f32 v{src+i}, v{src+i}, v{tmp+i}")
    for d in dst_list:
        for i in range(0, n, 2): r.append(f"v_cvt_pk_bf16_f32 v{d+i//2}, v{src+i}, v{src+i+1}")
    return r
def phi_pack(*args):
    for i in phi_ins(*args): a(i)
def pack_ins(src, dst):
    return [f"v_cvt_pk_bf16_f32 v{dst}, v{src}, v{src+1}", f"v_cvt_pk_bf16_f32 v{dst+1}, v{src+2}, v{src+3}"]
def pack(src, dst):
    for i in pack_ins(src, dst): a(i)
def mfma(d, A, B, C):
    c = C if isinstance(C, str) else vr(C, 4)
    a(f"v_mfma_f32_16x16x32_bf16 {vr(d,4)}, {vr(A,4)}, {vr(B,4)}, {c}")

def emit_side(x):
    if callable(x): x(); return 4
    if isinstance(x, list):
        for y in x: a(y)
        return max(1, sum(1 for y in x if y.startswith("v_")))
    a(x); return 1

def parse_pr(x):
    return {int(e.split(':')[0]): int(e.split(':')[1]) for e in str(x).split(',') if e}

def pipeline(N, reads, mf, bounds, boundary, L, Lb, bufs, newbufs={}, side={}, side_rate=3, prio=None):
    rd = 0; m = 0; tags = {}; bufof = {}; pend = []; every = 1; cnt = 0
    free = deque(bufs); bl = sorted(bounds); sq = deque()
    while m < N:
        can_read = rd < N and rd - m < L + 1 and len(free) > 0
        if can_read and rd in bounds and rd - m > Lb: can_read = False
        if can_read:
            if rd in bounds:
                for op in pend: emit_op(op[0], op[1])
                pend = list(boundary(bounds[rd]))
                nxt = [x for x in bl if x > rd]
                span = (nxt[0] if nxt else N) - rd
                every = max(1, (span - 1) // max(1, len(pend))); cnt = 0
            bufof[rd] = free.popleft()
            tags[rd] = reads(rd, bufof[rd]); rd += 1
        else:
            if prio and (m % prio[0]) in prio[1]: a(f"s_setprio {prio[1][m % prio[0]]}")
            a.wait(lg=tags[m])
            cnt += 1; op = None
            if pend and cnt % every == 0:
                op = pend.pop(0)
                if not callable(op[0]):
                    for p in op[0][0]: a(p)
            mf(m, bufof[m])
            free.append(bufof[m])
            for b_ in newbufs.get(m, []): free.append(b_)
            if op is not None:
                if callable(op[0]): op[0]()
                else: a(op[0][1], op[1])
            for x in side.get(m, []): sq.append(x)
            k = 0
            while sq and k < side_rate:
                k += emit_side(sq.popleft())
            m += 1
    for op in pend: emit_op(op[0], op[1])
    while sq: emit_side(sq.popleft())

def step_offsets_win(s):
    sizes = [int(x) for x in str(OPT["win"]).split(",")]
    w0 = 0
    for sz in sizes:
        if s < w0 + sz: break
        w0 += sz
    if sz == 1:
        a(f"s_add_u32 s{sWK+s}, s5, {s*245760}"); a(f"s_add_u32 s{sXO+s}, s4, {s*128}")
        return
    a(f"s_add_u32 s{sT3}, s{sCUR}, {s - w0}"); a(f"s_and_b32 s{sT3}, s{sT3}, {sz-1}"); a(f"s_add_u32 s{sT3}, s{sT3}, {w0}")
    a(f"s_mul_i32 s{sWK+s}, s{sT3}, 245760"); a(f"s_add_u32 s{sWK+s}, s{sWK+s}, s5")
    a(f"s_lshl_b32 s{sXO+s}, s{sT3}, 7"); a(f"s_add_u32 s{sXO+s}, s{sXO+s}, s4")

def touch_steps(c, s0, n, par, tag):
    a(f"s_lshr_b32 s3, s2, 3"); a(f"s_and_b32 s6, s3, 1"); a(f"s_cmp_eq_u32 s6, {par}"); a(f"s_cbranch_scc0 L_nt_{tag}")
    a(f"s_lshr_b32 s3, s3, 1")
    a(f"s_and_b32 s6, s2, 3")
    if c == 1:
        a(f"s_cmp_eq_u32 s{sWV}, 4"); a(f"s_cbranch_scc0 L_tw_{tag}")
    if n < 5 and c == 1: a(f"s_branch L_nt_{tag}")
    else:
        a(f"s_lshl_b32 s6, s6, 4"); a(f"s_add_u32 s6, s6, s3"); a(f"s_mul_i32 s6, s6, {32*1280}")
        a(f"s_lshl_b32 s7, s{sWV}, 7"); a(f"s_add_u32 s6, s6, s7"); a(f"s_add_u32 s6, s6, {s0*128}")
        a(f"v_mul_u32_u24 v86, 1280, v{vL}")
        a("s_mov_b32 exec_hi, 0")
        a(f"buffer_load_dword v87, v86, {sr(SX,4)}, s6 offen nt", "~t")
        a("s_mov_b32 exec_hi, -1")
        if c == 1: a(f"s_branch L_nt_{tag}")
    if c == 1:
        a.label(f"L_tw_{tag}")
        a(f"s_lshl_b32 s6, s6, 4"); a(f"s_add_u32 s6, s6, s3"); a(f"s_mul_i32 s6, s6, 3840"); a(f"s_add_u32 s6, s6, {s0*245760 + 1280}")
        a(f"s_sub_u32 s7, s{sWV}, 5"); a(f"s_mul_i32 s7, s7, 34")
        a(f"v_add_u32 v86, s7, v{vL}"); a(f"v_min_u32 v86, {20*n-1}, v86")
        a(f"v_mul_u32_u24 v87, 3277, v86"); a(f"v_lshrrev_b32 v87, 16, v87")
        a(f"v_mul_u32_u24 v88, 20, v87"); a(f"v_sub_u32 v86, v86, v88"); a(f"v_lshlrev_b32 v86, 7, v86")
        a(f"v_mul_u32_u24 v87, 245760, v87"); a(f"v_add_u32 v86, v86, v87")
        a("s_mov_b32 exec_hi, 3")
        a(f"buffer_load_dword v87, v86, {sr(SW,4)}, s6 offen", "~t")
        a("s_mov_b32 exec_hi, -1")
    a.label(f"L_nt_{tag}")

vTX, vTW, vTD = 79, 89, 95
sTXB, sTWB = 12, 13
def tc_setup(sx, sw):
    a(f"v_lshrrev_b32 v{vTX}, 1, v{vL}"); a(f"v_mul_u32_u24 v{vTX}, 1280, v{vTX}"); a(f"v_and_b32 v{vTW}, 1, v{vL}"); a(f"v_lshl_add_u32 v{vTX}, v{vTW}, 7, v{vTX}")
    a(f"v_mul_u32_u24 v{vTW}, 3277, v{vL}"); a(f"v_lshrrev_b32 v{vTW}, 16, v{vTW}"); a(f"v_mul_u32_u24 v{vTW}, {3840 - 2560}, v{vTW}")
    a(f"v_lshl_add_u32 v{vTW}, v{vL}, 7, v{vTW}")
    a(f"s_lshr_b32 s6, s2, 3"); a(f"s_and_b32 s7, s2, 3"); a("s_lshl_b32 s7, s7, 5"); a("s_add_u32 s7, s7, s6"); a(f"s_mul_i32 s{sx}, s7, 20480")
    a(f"s_mul_i32 s{sw}, s6, 15360"); a(f"s_add_u32 s{sw}, s{sw}, 1280")
def tc_issue(s0, sx, sw, tag="~t"):
    a(f"s_add_u32 s6, s{sx}, {s0*128}"); a(f"s_add_u32 s7, s{sw}, {s0*245760}")
    a("s_mov_b32 exec_hi, 0")
    a(f"buffer_load_dword v{vTD}, v{vTX}, {sr(SX,4)}, s6 offen", tag)
    a("s_mov_b32 exec_hi, 0xff")
    a(f"buffer_load_dword v{vTD}, v{vTW}, {sr(SW,4)}, s7 offen", tag)
    a("s_add_u32 s7, s7, 7680")
    a(f"buffer_load_dword v{vTD}, v{vTW}, {sr(SW,4)}, s7 offen", tag)
    a("s_mov_b32 exec_hi, -1")

def touch_qo(c):
    if OPT["tqonly"] and c == 1: return
    a(f"s_lshl_b32 s3, s{sRT}, 3"); a(f"s_add_u32 s3, s3, s{sHG}"); a(f"s_mul_i32 s3, s3, 50"); a(f"s_mul_i32 s6, s{sI}, 13"); a("s_add_u32 s3, s3, s6")
    a(f"v_add_u32 v86, s3, v{vL}")
    if c == 0:
        a(f"v_mul_u32_u24 v87, 52429, v86"); a(f"v_lshrrev_b32 v87, 19, v87")
        a(f"v_mul_u32_u24 v88, 10, v87"); a(f"v_sub_u32 v86, v86, v88"); a(f"v_lshlrev_b32 v86, 7, v86")
        a(f"v_mul_u32_u24 v87, 3840, v87"); a(f"v_add_u32 v86, v86, v87")
    else:
        a(f"v_lshlrev_b32 v86, 7, v86")
    a("s_mov_b64 exec, 0x1fff")
    a(f"buffer_load_dword v95, v86, {sr(SW if c == 0 else SO,4)}, 0 offen")
    a("s_mov_b64 exec, -1")

def prestore(c):
    a(f"s_lshl_b32 s3, s{sHG}, 11"); a(f"s_add_u32 s3, s3, s{sOB}"); a(f"s_add_u32 s3, s3, {c*1024}"); a("s_add_u32 s4, s3, 20480")
    a(f"s_lshl_b32 s5, s{sHG}, 9"); a(f"s_add_u32 s5, s5, s{sOB}"); a(f"s_add_u32 s5, s5, {16384 + c*256}"); a("s_add_u32 s6, s5, 20480")
    a(f"v_lshlrev_b32 v79, 4, v{vL}")
    a(f"buffer_store_dwordx4 v[80:83], v79, {sr(SS,4)}, s3 offen sc1")
    a(f"buffer_store_dwordx4 v[80:83], v79, {sr(SS,4)}, s4 offen sc1")
    a("s_mov_b64 exec, 0xffff")
    a(f"buffer_store_dwordx4 v[80:83], v79, {sr(SS,4)}, s5 offen sc1")
    a(f"buffer_store_dwordx4 v[80:83], v79, {sr(SS,4)}, s6 offen sc1")
    a("s_mov_b64 exec, -1")

def step_offsets(s):
    if OPT["win"]: return step_offsets_win(s)
    G = OPT["G"]; w0 = (s // G) * G
    if w0: a(f"s_add_u32 s{sT3}, s{sCUR}, {w0}"); src = sT3
    else: src = sCUR
    a(f"s_mul_i32 s{sWK+s}, s{src}, 245760"); a(f"s_add_u32 s{sWK+s}, s{sWK+s}, s5")
    a(f"s_lshl_b32 s{sXO+s}, s{src}, 7"); a(f"s_add_u32 s{sXO+s}, s{sXO+s}, s4")
    if G > 1 and s < 9:
        a(f"s_add_u32 s{sCUR}, s{sCUR}, 1"); a(f"s_cmp_eq_u32 s{sCUR}, {G}"); a(f"s_cselect_b32 s{sCUR}, 0, s{sCUR}")

sTCX, sTCW = 88, 89
def tc_start():
    f0 = OPT["tcpos"]
    a(f"s_cmp_lt_u32 s{sWV}, {OPT['tc0']}"); a("s_cbranch_scc0 L_notc0")
    a(f"s_mul_i32 s6, s{sWV}, 256"); a(f"s_add_u32 s{sT0}, s{sTCX}, s6"); a(f"s_mul_i32 s6, s{sWV}, {2*245760}"); a(f"s_add_u32 s{sT1}, s{sTCW}, s6")
    tc_issue(OPT["tcs"], sT0, sT1)
    a.label("L_notc0")

SCHED = {}
for ent in str(OPT["sched"]).split(","):
    if ent:
        p_, ks = ent.split(":"); SCHED[int(p_)] = [int(x) for x in ks.split(".")]
for p_, ks in SCHED.items():
    for k in ks: assert k - p_ <= 3 and k - p_ >= 1

def prologue():
    a.raw(f"; @launch grid=(256,1,1) block=(512,1,1) lds=163840")
    a.raw('.amdgcn_target "amdgcn-amd-amdhsa--gfx950"')
    a.raw(".text"); a.raw(f".globl {KNAME}"); a.raw(".p2align 8"); a.raw(f".type {KNAME},@function")
    a.label(KNAME)
    a("s_cmp_ge_u32 s2, 256")
    a("s_cbranch_scc1 L_end")
    a(f"s_bfe_u32 s{sB}, s2, 0x10002")
    a(f"s_mul_i32 s3, s{sB}, 24")
    a("s_add_u32 s76, s0, s3"); a("s_addc_u32 s77, s1, 0")
    a(f"s_load_dwordx4 s[{sM}:{sM+3}], s[76:77], 0")
    a("s_load_dwordx2 s[8:9], s[76:77], 16")
    a("s_load_dwordx4 s[12:15], s[0:1], 48")
    a("s_load_dwordx2 s[10:11], s[0:1], 64")
    a(f"v_lshrrev_b32 v{vT}, 6, v0")
    a(f"v_and_b32 v{vL}, 63, v0")
    a(f"v_readfirstlane_b32 s{sWV}, v{vT}")
    if OPT["stamps"]:
        a(f"v_mov_b32 v{vST}, 0"); a(f"s_memtime {sr(sTM,2)}"); a("s_memrealtime s[100:101]")
    a(f"v_lshrrev_b32 v{vT}, 3, v{vL}")
    a(f"v_lshrrev_b32 v{vT+1}, 4, v{vL}")
    a(f"v_xor_b32 v{vT+1}, v{vT+1}, v{vL}")
    a(f"v_and_b32 v{vT+1}, 7, v{vT+1}")
    a(f"v_mul_u32_u24 v{vT}, 1280, v{vT}")
    a(f"v_lshl_add_u32 v{vXD0}, v{vT+1}, 4, v{vT}")
    a(f"v_xor_b32 v{vXD1}, 64, v{vXD0}")
    a(f"v_add_u32 v{vXD1}, 10240, v{vXD1}")
    a(f"s_and_b32 s{sRT}, s2, 3"); a(f"s_lshl_b32 s{sRT}, s{sRT}, 2")
    a(f"s_bfe_u32 s3, s2, 0x20003"); a(f"s_add_u32 s{sRT}, s{sRT}, s3")
    a(f"s_lshr_b32 s{sHG}, s2, 5")
    a(f"s_lshr_b32 s{sC}, s{sWV}, 2")
    a(f"s_lshl_b32 s{sW1K}, s{sWV}, 10"); a(f"s_lshl_b32 s{sX2K}, s{sWV}, 11")
    G = OPT["G"]
    if OPT["win"]: a(f"s_mov_b32 s{sCUR}, s3")
    elif G == 1: a(f"s_mov_b32 s{sCUR}, 0")
    elif G == 2: a(f"s_add_u32 s{sCUR}, s3, s{sHG}"); a(f"s_and_b32 s{sCUR}, s{sCUR}, 1")
    else:
        a(f"s_lshl_b32 s{sCUR}, s3, 1"); a(f"s_add_u32 s{sCUR}, s{sCUR}, s{sHG}")
        if OPT["xrot"]: a(f"s_and_b32 s{sT1}, s2, 3"); a(f"s_add_u32 s{sCUR}, s{sCUR}, s{sT1}")
        for _ in range(3 if G == 5 else 1):
            a(f"s_cmp_ge_u32 s{sCUR}, {G}"); a(f"s_cselect_b32 s{sT1}, {G}, 0"); a(f"s_sub_u32 s{sCUR}, s{sCUR}, s{sT1}")
    a(f"s_lshl_b32 s4, s{sRT}, 3"); a(f"s_add_u32 s4, s4, s{sWV}"); a(f"s_mul_i32 s4, s4, 20480")
    a(f"s_mul_i32 s5, s{sHG}, 160"); a(f"s_add_u32 s5, s5, 1280")
    step_offsets(0)
    for q in range(2): wvoff(vWD + q, q, 3840, True, 1280)
    a(f"s_mov_b32 s{SX+2}, 2621440"); a(f"s_mov_b32 s{SX+3}, 0x20000"); a(f"s_mov_b32 s{SW+2}, 2457600"); a(f"s_mov_b32 s{SW+3}, 0x20000")
    if OPT["codepf"]:
        a("s_getpc_b64 s[6:7]")
        a.label(f"L_pc")
        a(f"s_sub_u32 s6, s6, L_pc-{KNAME}"); a("s_subb_u32 s7, s7, 0")
        a(f"s_lshr_b32 s3, s2, 3"); a(f"s_lshl_b32 s3, s3, 3"); a(f"s_add_u32 s3, s3, s{sWV}"); a("s_lshl_b32 s3, s3, 8")
        a(f"v_lshl_add_u32 v88, v{vL}, 7, s3")
        a(f"v_min_u32 v88, L_codeend-{KNAME}-4, v88")
        a(f"v_mov_b32 v87, s7")
        a(f"v_add_co_u32 v86, vcc, s6, v88")
        a(f"v_addc_co_u32 v87, vcc, 0, v87, vcc")
    if OPT["tc0"]: tc_setup(sTCX, sTCW)
    a("s_waitcnt lgkmcnt(0)")
    a(f"s_mov_b32 s{SX}, s{sM}"); a(f"s_mov_b32 s{SX+1}, s{sM+1}"); a(f"s_mov_b32 s{SW}, s{sM+2}"); a(f"s_mov_b32 s{SW+1}, s{sM+3}")
    if OPT["codepf"] == 1:
        a("s_mov_b64 exec, 3"); a(f"global_load_dword v95, v[86:87], off"); a("s_mov_b64 exec, -1")
    if OPT["stamps"]:
        a(f"v_writelane_b32 v{vST}, s{sTM}, 0"); stamp("first")
    if OPT["tc0"] and OPT["tcpos"] == 0: tc_start()
    ops = dma_chunk(0, 0)
    for op in ops[:4]: emit_op(op, "ch0")
    wvoff(vWD + 2, 2, 3840, True, 1280)
    a(f"s_cmp_eq_u32 s{sC}, 0"); a("s_cbranch_scc0 L_no5")
    emit_op(ops[4], "~c0")
    a.label("L_no5")
    if OPT["tc0"] and OPT["tcpos"] == 1: tc_start()
    if OPT["codepf"] == 2:
        a("s_mov_b64 exec, 3"); a(f"global_load_dword v95, v[86:87], off"); a("s_mov_b64 exec, -1")
    if OPT["stamps"]:
        a(f"v_writelane_b32 v{vST}, s100, 40")
    srd(SS, 10, 11, WS_SIZE); srd(SG, 14, 15, 256)
    a(f"s_and_b32 s{sI}, s{sWV}, 3")
    a(f"s_or_b32 s3, s2, s{sWV}"); a("s_cmp_eq_u32 s3, 0"); a(f"s_cbranch_scc0 L_nn0")
    a(f"s_add_u32 s6, s10, {WS_E}"); a("s_addc_u32 s7, s11, 0")
    a(f"s_load_dword s{sN}, s[6:7], 0")
    a.label("L_nn0")
    if OPT["tbal"]: a(f"s_mul_i32 s7, s{sC}, 3"); a(f"s_xor_b32 s{sTI}, s{sI}, s7")
    else: a(f"s_mov_b32 s{sTI}, s{sI}")
    a(f"s_lshl_b32 s6, s{sHG}, 16"); a(f"s_lshl_b32 s7, s{sTI}, 9"); a(f"s_add_u32 s6, s6, s7")
    a(f"s_lshl_b32 s7, s{sC}, 11"); a("s_add_u32 s6, s6, s7")
    a(f"s_add_u32 s{sKVG}, s6, {WS_KV}")
    a(f"s_lshl_b32 s7, s{sRT}, 12"); a(f"s_add_u32 s{sKVP}, s{sKVG}, s7")
    a(f"s_lshl_b32 s6, s{sRT}, 3"); a(f"s_add_u32 s6, s6, s{sHG}"); a(f"s_mul_i32 s6, s6, 6144")
    a(f"s_mul_i32 s7, s{sC}, 3072"); a(f"s_add_u32 s{sHP}, s6, s7"); a(f"s_add_u32 s{sHP}, s{sHP}, {WS_HALO}")
    a(f"s_add_u32 s{sHG2}, s6, {WS_HALO - 8*6144}")
    a(f"v_mov_b32 v76, -1"); a(f"v_mov_b32 v77, -1"); a(f"v_lshlrev_b32 v78, 3, v{vL}")
    a(f"s_cmp_eq_u32 s{sB}, 0"); a(f"s_cbranch_scc0 L_preB")
    a(f"buffer_store_dwordx2 v[76:77], v78, {sr(SS,4)}, s{sKVP} offen sc1", "~preA")
    a(f"s_branch L_pred")
    a.label(f"L_preB")
    a(f"s_cmp_eq_u32 s{sI}, 3"); a(f"s_cbranch_scc0 L_pred")
    for k in range(5): a(f"buffer_store_dwordx2 v[76:77], v78, {sr(SS,4)}, s{sHP} offen offset:{k*512} sc1", "~preB")
    a.label(f"L_pred")
    step_offsets(1)
    for op in dma_chunk(0, 1)[:OPT["p1n"]]: emit_op(op, "ch1")
    stamp("issued")
    a(f"s_lshl_b32 s3, s{sB}, 1"); a(f"s_add_u32 s3, s3, s{sC}")
    a("s_cmp_eq_u32 s3, 1"); a("s_cbranch_scc1 L_path_01")
    a("s_cmp_eq_u32 s3, 2"); a("s_cbranch_scc1 L_path_10")
    a("s_cmp_eq_u32 s3, 3"); a("s_cbranch_scc1 L_path_11")

def prologue2(b, c):
    P = f"{b}{c}"
    if OPT["ea"]: touch_steps(c, 1, 5, 0, f"ea{P}")
    for s in range(2, 10): step_offsets(s)
    srd(SO, 8, 9, 819200); srd(SD, 12, 13, 5242880)
    a(f"s_getreg_b32 s{sXCC}, hwreg(HW_REG_XCC_ID, 0, 3)")
    a(f"s_mul_i32 s{sCUR}, s{sHG}, 160")
    if P == "00":
        a(f"s_or_b32 s3, s2, s{sWV}"); a("s_cmp_eq_u32 s3, 0"); a(f"s_cbranch_scc0 L_nononce")
        a("s_waitcnt lgkmcnt(0)")
        a(f"s_add_u32 s6, s{sN}, 0x9e3779b0"); a("s_or_b32 s6, s6, 8"); a("s_andn2_b32 s6, s6, 7")
        a(f"v_mov_b32 v{vT}, s6"); a(f"v_mov_b32 v{vT+1}, 0"); a(f"s_mov_b32 s3, {WS_E}")
        a("s_mov_b64 exec, 1")
        a(f"buffer_store_dword v{vT}, v{vT+1}, {sr(SG,4)}, 0 offen sc1", "~n")
        a(f"buffer_store_dword v{vT}, v{vT+1}, {sr(SS,4)}, s3 offen sc1", "~n")
        a("s_mov_b64 exec, -1")
        a.label("L_nononce")
    a(f"v_and_b32 v{vT}, 15, v{vL}"); a(f"v_lshrrev_b32 v{vT+1}, 4, v{vL}")
    a(f"v_lshrrev_b32 v{vT+2}, 1, v{vT}"); a(f"v_xor_b32 v{vT+2}, v{vT+2}, v{vT+1}"); a(f"v_lshlrev_b32 v{vT+2}, 4, v{vT+2}")
    a(f"v_lshl_add_u32 v{vT+2}, v{vT}, 7, v{vT+2}")
    a(f"s_lshl_b32 s3, s{sI}, 12")
    a(f"v_add_u32 v{vXA0}, s3, v{vT+2}"); a(f"v_xor_b32 v{vXA1}, 64, v{vXA0}")
    a(f"v_lshrrev_b32 v{vT}, 5, v{vL}"); a(f"v_lshlrev_b32 v{vT}, 4, v{vT}")
    a(f"v_bfe_u32 v{vT+2}, v{vL}, 2, 3"); a(f"v_add_u32 v{vT}, v{vT}, v{vT+2}"); a(f"v_mul_u32_u24 v{vT}, 160, v{vT}")
    a(f"v_and_b32 v{vT+1}, 3, v{vL}")
    a(f"v_lshl_add_u32 v{vWA}, v{vT+1}, 3, v{vT}")
    if c: a(f"v_add_u32 v{vWA}, 80, v{vWA}")
    a(f"v_mad_u32_u24 v{vWE}, v{vT+1}, 40, v{vT}")
    a(f"v_add_u32 v{vWE}, {32 + (UNIT if c else 0)}, v{vWE}")
    a(f"s_lshl_b32 s3, s{sB}, 4"); a(f"s_add_u32 s3, s3, s{sRT}")
    a(f"s_lshl_b32 s4, s{sRT}, 3")
    boff = (1280 if AL else 128 * OT) * b
    a(f"s_lshl_b32 s5, s{sI}, 1"); a(f"s_add_u32 s5, s5, s4"); a(f"s_mul_i32 s{sOB}, s5, {OT}")
    if b: a(f"s_add_u32 s{sOB}, s{sOB}, {boff}")
    a(f"s_and_b32 s{sKH}, s{sWV}, 1")
    a(f"s_add_u32 s5, s4, s{sWV}"); a(f"s_mul_i32 s{sOUT}, s5, 40960")
    if b: a(f"s_add_u32 s{sOUT}, s{sOUT}, 1280")
    a(f"s_sub_u32 s5, s5, s{sKH}"); a(f"s_mul_i32 s{sOC}, s5, {OT}")
    a(f"s_mul_i32 s5, s{sKH}, {8*OP_}"); a(f"s_add_u32 s{sOC}, s{sOC}, s5")
    if b: a(f"s_add_u32 s{sOC}, s{sOC}, {boff}")
    a(f"s_mov_b32 s{sOE}, s{sOC}")
    a(f"s_add_u32 s{sOUT}, s{sOUT}, s{sCUR}")
    a(f"s_lshl_b32 s4, s3, 2")
    a(f"s_add_u32 s5, s4, s{sI}"); a(f"s_lshl_b32 s5, s5, 7"); a(f"s_lshl_b32 s6, s{sHG}, 3"); a(f"s_add_u32 s5, s5, s6")
    a(f"s_add_u32 s{sFP}, s5, {WS_FLAG + 4*c}")
    a(f"s_lshr_b32 s5, s{sWV}, 1"); a(f"s_add_u32 s5, s5, s4"); a(f"s_lshl_b32 s5, s5, 7"); a(f"s_add_u32 s5, s5, {WS_FLAG}")
    a(f"s_add_u32 s{sDFC}, s5, 64")
    a(f"s_lshl_b32 s7, s{sKH}, 2"); a(f"s_add_u32 s{sDFP}, s{sDFC}, s6"); a(f"s_add_u32 s{sDFP}, s{sDFP}, s7")
    a(f"s_lshl_b32 s7, s{sKH}, 5"); a(f"s_add_u32 s{sFC}, s5, s7")
    a(f"s_mov_b32 s{sK}, 0x{f2u(LOG2E):x}"); a(f"s_mov_b32 s{sK+1}, 0x{EPS:x}")
    for i in range(4): a(f"v_mov_b32 v{80+i}, s{sK+1}")
    a("v_mov_b32 v84, 0")
    if OPT["t0"]: touch_qo(c)
    if OPT["worot"]:
        R_ = OPT["worot"]
        a(f"s_and_b32 s3, s{sRT}, 3")
        for u in range(R_):
            a(f"s_add_u32 s4, s3, {u}")
            for _ in range(2): a(f"s_cmp_ge_u32 s4, {R_}"); a(f"s_cselect_b32 s5, {R_}, 0"); a("s_sub_u32 s4, s4, s5")
            a(f"s_mul_i32 s{sWOR+u}, s4, 20480")
    if OPT["st0"] >= 0:
        a(f"s_lshr_b32 s3, s2, 3"); a(f"s_mul_i32 s4, s3, {(65536 + OPT['stn'] - 1) // OPT['stn']}"); a("s_lshr_b32 s4, s4, 16")
        a(f"s_mul_i32 s4, s4, {OPT['stn']}"); a(f"s_sub_u32 s{sDUTY}, s3, s4")
    if (OPT["tc"] or OPT["tcm"]) and not OPT["tc0"]: tc_setup(sTCX, sTCW)
    for q in range(3 if c == 0 else 2): wvoff(vWO + q, q, 1280, False, 64 * 1280)
    a(f"v_and_b32 v{vT}, 7, v{vL}"); a(f"v_lshlrev_b32 v{vT}, 7, v{vT}")
    a(f"s_mul_i32 s3, s{sHG}, {2*OP_}"); a(f"s_add_u32 s3, s3, {c*OP_}")
    a(f"v_add_u32 v{vT}, s3, v{vT}")
    a(f"v_bfe_u32 v{vT+1}, v{vL}, 3, 1"); a(f"v_mul_u32_u24 v{vT+1}, {OT}, v{vT+1}"); a(f"v_add_u32 v{vT}, v{vT}, v{vT+1}")
    a(f"v_and_b32 v{vT+1}, 1, v{vL}"); a(f"v_lshlrev_b32 v{vT+1}, 7, v{vT+1}")
    a(f"s_add_u32 s3, s3, 1024")
    a(f"v_add_u32 v{vT+1}, s3, v{vT+1}")
    a(f"v_bfe_u32 v{vT+2}, v{vL}, 1, 1"); a(f"v_mul_u32_u24 v{vT+2}, {OT}, v{vT+2}"); a(f"v_add_u32 v{vT+1}, v{vT+1}, v{vT+2}")
    set_mask("vcc", 0xffff)
    a(f"v_cndmask_b32 v{vPRE}, v{vT+1}, v{vT}, vcc")
    Z = 56; T1 = 57; T2_ = 58
    a(f"v_mov_b32 v{Z}, 0")
    if b == 0:
        a(f"v_and_b32 v{vGAD}, 31, v{vL}"); a(f"v_lshlrev_b32 v{vGAD}, 4, v{vGAD}"); a(f"v_lshrrev_b32 v{vT}, 5, v{vL}"); a(f"v_lshl_add_u32 v{vGAD}, v{vT}, 15, v{vGAD}")
        selm = lambda l: ((l >> 3) & 1) == ((l >> 4) & 1)
        a(f"v_mov_b32 v{T1}, 0x3f80"); a(f"v_mov_b32 v{T2_}, 0x3f800000")
        set_mask("vcc", lanemask(lambda l: l & 1)); a(f"v_cndmask_b32 v{T1}, v{T1}, v{T2_}, vcc")
        for r in range(4):
            set_mask("vcc", lanemask(lambda l: selm(l) and ((l & 7) >> 1) == r)); a(f"v_cndmask_b32 v{16+r}, v{Z}, v{T1}, vcc")
        a(f"v_mov_b32 v20, s{sK+1}"); a(f"v_mov_b32 v21, s{sK+1}"); a("v_mov_b32 v22, 0"); a("v_mov_b32 v23, 0")
        a(f"v_and_b32 v24, 15, v{vL}"); a("v_lshlrev_b32 v24, 1, v24"); a(f"v_and_b32 v25, 32, v{vL}"); a("v_add_u32 v24, v24, v25")
        a(f"v_bfe_u32 v25, v{vL}, 4, 1"); a("v_add_u32 v24, v24, v25"); a("v_lshlrev_b32 v24, 3, v24")
        a(f"v_lshlrev_b32 v25, 3, v{vL}"); a("v_xor_b32 v25, 256, v25"); a("v_mov_b32 v26, 0"); a("v_mov_b32 v27, 0")
        ncst = 3
    else:
        dd = lambda l, j: (l & 15) - 4 * (l >> 4) - j
        own = lambda l, j: dd(l, j) >= 0 and dd(l, j) % 2 == 0
        prv = lambda l, j: dd(l, j) <= -2 and dd(l, j) % 2 == 0
        a(f"v_mov_b32 v{T1}, 0x{f2u(-1e30):x}")
        for j in range(4):
            set_mask("vcc", lanemask(lambda l: own(l, j))); a(f"v_cndmask_b32 v{16+j}, v{T1}, v{Z}, vcc")
            set_mask("vcc", lanemask(lambda l: prv(l, j))); a(f"v_cndmask_b32 v{20+j}, v{T1}, v{Z}, vcc")
            a(f"v_mov_b32 v{24+j}, 0x3f803f80")
        a(f"v_mov_b32 v{T1}, 0xffff"); a(f"v_mov_b32 v{T2_}, 0xffff0000")
        set_mask("vcc", lanemask(lambda l: l & 1)); a(f"v_cndmask_b32 v{T1}, v{T1}, v{T2_}, vcc")
        for k, (fn, pr) in enumerate(((prv, 0), (prv, 1), (own, 0), (own, 1))):
            set_mask("vcc", lanemask(lambda l: fn(l, 2 * pr + (l & 1)))); a(f"v_cndmask_b32 v{28+k}, v{Z}, v{T1}, vcc")
        ncst = 4
    a(f"v_lshlrev_b32 v{vT}, 4, v{vL}"); a(f"v_add_u32 v{vT}, {CST}, v{vT}")
    for k in range(ncst): a(f"ds_write_b128 v{vT}, {vr(16+4*k,4)} offset:{k*1024}")
    a.wait(lg="all")

def path(b, c):
    P = f"{b}{c}"; A_ = (b == 0)
    a.label(f"L_path_{P}")
    a.vm = [("ch0" if (t == "~c0" and c == 0) else t) for t in a.vm]
    a.vm = [t for t in a.vm if not (t == "~preA" and b == 1) and not (t == "~preB" and b == 0) and not (t == "~c0")]
    a.vm = [{"~preA": "preA", "~preB": "~i3pre"}.get(t, t) for t in a.vm]
    a(f"s_cmp_eq_u32 s{sI}, 0"); a(f"s_cselect_b32 s{sHV}, s{sRT}, 0")
    prologue2(b, c)
    vN0, vN1 = 84, 85
    def w0_begin(tag): a(f"s_cmp_eq_u32 s{sWV}, 0"); a(f"s_cbranch_scc0 L_{tag}_{P}")
    def w0_end(tag): a.label(f"L_{tag}_{P}")
    def nonce_load():
        w0_begin("nl")
        a(f"v_mov_b32 v{vN0}, 0")
        a(f"buffer_load_dword v{vN1}, v{vN0}, {sr(SG,4)}, 0 offen sc1", "~w0nonce")
        w0_end("nl")
    def nonce_check():
        w0_begin("nc")
        a.wait(vm="~w0nonce", keep=True)
        a(f"v_readfirstlane_b32 s{sN}, v{vN1}")
        a(f"s_cmp_lg_u32 s{sN}, 0"); a(f"s_cbranch_scc1 L_nok_{P}")
        spin_begin(f"L_nsp_{P}")
        a(f"buffer_load_dword v{vN1}, v{vN0}, {sr(SG,4)}, 0 offen sc1", "~x"); a("s_waitcnt vmcnt(0)")
        a(f"v_readfirstlane_b32 s{sN}, v{vN1}")
        a(f"s_cmp_lg_u32 s{sN}, 0"); a(f"s_cbranch_scc1 L_nok_{P}")
        spin_check(f"L_nsp_{P}", f"L_nok_{P}")
        a(f"s_lshl_b32 s3, s{sB}, 4"); a(f"s_add_u32 s3, s3, s{sRT}"); a(f"s_lshl_b32 s3, s3, 3"); a(f"s_add_u32 s3, s3, s{sHG}")
        a(f"s_lshl_b32 s3, s3, 7"); a(f"s_add_u32 s3, s3, {WS_RDY}")
        a(f"s_or_b32 s4, s{sN}, s{sXCC}")
        a(f"v_mov_b32 v{vN1}, s4")
        a("s_mov_b64 exec, 1")
        a(f"buffer_store_dword v{vN1}, v{vN0}, {sr(SS,4)}, s3 offen sc1", "~w0st")
        a("s_mov_b64 exec, -1")
        w0_end("nc")
    def rdy_load():
        w0_begin("rl")
        a(f"s_lshl_b32 s3, s{sB}, 4"); a(f"s_add_u32 s4, s3, s{sRT}"); a(f"s_lshl_b32 s4, s4, 3")
        a(f"v_add_u32 v{vN0}, s4, v{vL}")
        if A_:
            a(f"s_lshl_b32 s5, s3, 3"); a(f"s_add_u32 s5, s5, s{sHG}"); a(f"s_sub_u32 s5, s5, 64")
            a(f"v_lshl_add_u32 v{vN1}, v{vL}, 3, s5")
        else:
            a(f"s_max_u32 s5, s{sRT}, 1"); a(f"s_sub_u32 s5, s5, 1"); a(f"s_add_u32 s5, s5, s3"); a(f"s_lshl_b32 s5, s5, 3"); a(f"s_add_u32 s5, s5, s{sHG}")
            a(f"v_mov_b32 v{vN1}, s5")
        set_mask(sM, 0xff)
        a(f"v_cndmask_b32_e64 v{vN0}, v{vN1}, v{vN0}, {sr(sM,2)}")
        a(f"v_lshlrev_b32 v{vN0}, 7, v{vN0}")
        a(f"s_mov_b32 s3, {WS_RDY}")
        a(f"s_mov_b64 exec, {0xffffff if A_ else 0x1ff}")
        a(f"buffer_load_dword v{vN1}, v{vN0}, {sr(SS,4)}, s3 offen sc1", "~w0rdy")
        a("s_mov_b64 exec, -1")
        w0_end("rl")
    def rdy_check():
        em = 0xffffff if A_ else 0x1ff
        w0_begin("rc")
        a.wait(vm="~w0rdy", keep=True)
        def test():
            a(f"v_and_b32 v{vN1+1}, -8, v{vN1}")
            a(f"s_mov_b64 exec, {em}")
            a(f"v_cmp_ne_u32 vcc, s{sN}, v{vN1+1}")
            a("s_mov_b64 exec, -1")
            a(f"s_cbranch_vccz L_rok_{P}")
        test()
        spin_begin(f"L_rsp_{P}")
        a(f"s_mov_b32 s3, {WS_RDY}")
        a(f"s_mov_b64 exec, {em}")
        a(f"buffer_load_dword v{vN1}, v{vN0}, {sr(SS,4)}, s3 offen sc1", "~x"); a("s_waitcnt vmcnt(0)")
        test()
        spin_check(f"L_rsp_{P}", f"L_rok_{P}")
        a(f"s_or_b32 s3, s{sN}, s{sXCC}")
        a("s_mov_b64 exec, 0xff")
        a(f"v_cmp_ne_u32 vcc, s3, v{vN1}")
        a("s_mov_b64 exec, -1")
        a(f"s_cmp_eq_u32 vcc_lo, 0")
        a(f"s_cselect_b32 s3, {0 if OPT['force_slow'] else 1}, 0")
        a(f"s_or_b32 s3, s3, s{sN}")
        a(f"v_mov_b32 v{vN1}, s3"); a(f"v_mov_b32 v{vN0}, {BCAST}")
        sl = list(a.lg)
        a(f"ds_write_b32 v{vN0}, v{vN1}")
        a.lg = sl
        w0_end("rc")
    def bcast_read():
        a(f"v_mov_b32 v{vN0}, {BCAST}")
        a(f"ds_read_b32 v{vN1}, v{vN0}", "bc")
    def bcast_use():
        a.wait(lg="bc")
        a(f"v_readfirstlane_b32 s3, v{vN1}")
        a(f"s_and_b32 s{sFAST}, s3, 1"); a(f"s_andn2_b32 s{sN}, s3, 7")
    def touch():
        a(f"s_mul_i32 s3, s{sI}, 50"); a(f"v_add_u32 v86, s3, v{vL}"); a(f"s_lshr_b32 s4, s2, 3")
        if c == 0:
            a(f"v_mul_u32_u24 v87, 6554, v86"); a(f"v_lshrrev_b32 v87, 16, v87")
            a(f"v_mul_u32_u24 v88, 10, v87"); a(f"v_sub_u32 v86, v86, v88"); a(f"v_lshlrev_b32 v86, 7, v86")
            a(f"v_mul_u32_u24 v87, 3840, v87"); a(f"v_add_u32 v86, v86, v87"); a(f"s_mul_i32 s4, s4, {20*3840}")
        else:
            a(f"v_lshlrev_b32 v86, 7, v86"); a(f"s_mul_i32 s4, s4, 25600")
        a("s_mov_b32 exec_hi, 0x3ffff")
        a(f"buffer_load_dword v87, v86, {sr(SW if c == 0 else SO,4)}, s4 offen")
        a("s_mov_b32 exec_hi, -1")
    def opreload():
        a("s_mov_b64 exec, 0xfffff")
        a(f"buffer_load_dword v95, v{vPRE}, {sr(OS,4)}, s{sOB} offen{['', ' sc1', ' nt'][OPT['pnt']]}")
        a("s_mov_b64 exec, 1")
        a(f"buffer_load_dword v95, off, {sr(SS,4)}, s{sFC}")
        a("s_mov_b64 exec, -1")

    def fix_wd_for_q():
        if c == 0:
            a(f"s_cmp_lt_u32 s{sWV}, 2"); a(f"s_cselect_b32 s3, 0, 1280")
            a(f"v_subrev_u32 v{vWD+1}, s3, v{vWD+1}"); a(f"v_subrev_u32 v{vWD+2}, 1280, v{vWD+2}")
        else:
            a(f"v_subrev_u32 v{vWD+1}, 1280, v{vWD+1}")

    def acc1(t, rt): return ACC1 + (t * 2 + rt) * 4
    Tor = [not A_, not A_, False, False, (not A_) and c == 0]
    eps1 = [A_, A_, False, False, A_ and c == 0]
    items1 = [(sg, t) for sg in range(18) for t in range(5)] + [(18, 0), (18, 4), (18, 1), (19, 0), (19, 4), (19, 1), (18, 2), (18, 3), (19, 2), (19, 3)]
    seenx = set()
    def reads(n, w):
        sg, t = items1[n]; s = sg & 1; tg = []
        if sg not in seenx:
            seenx.add(sg)
            for rt in range(2): tg.append(a(f"ds_read_b128 {vr(X(sg,rt),4)}, v{vXA1 if s else vXA0} offset:{rt*2048}"))
        for h in range(2):
            if OPT["hackport"] in (1, 2) and t == 4 and sg > 0: continue
            if OPT["hackport"] == 4 and t in (1, 3, 4) and sg > 0: continue
            off = 16384 + s * 5120 + h * 1280
            if t < 4: tg.append(a(f"ds_read_b64_tr_b16 {vr(w+2*h,2)}, v{vWA} offset:{off + (UNIT if t >= 2 else 0) + 40*(t&1)}"))
            else: tg.append(a(f"ds_read_b64_tr_b16 {vr(w+2*h,2)}, v{vWE} offset:{off}"))
        return tg
    def mf(n, w):
        sg, t = items1[n]
        if OPT["hackport"] in (1, 3) and t == 4 and sg > 0: return
        for rt in range(2):
            C = acc1(t, rt) if sg else (80 if eps1[t] else "0")
            if Tor[t]: mfma(acc1(t, rt), w, X(sg, rt), C)
            else: mfma(acc1(t, rt), X(sg, rt), w, C)
    R = OPT["rdy_at"]
    def bnd1(ch):
        if ch > 0:
            d = SLOT if ch % 4 else -3 * SLOT
            for r in (vXA0, vXA1, vWA, vWE): a(f"v_add_u32 v{r}, {d}, v{r}")
        a.wait(vm=f"ch{ch}", lg="all" if (ch and OPT["LA"] == 3) or ch == 9 or any(k - ch >= 3 for k in SCHED.get(ch, [])) and ch else None)
        a("s_barrier")
        stamp(f"b{ch}")
        ops = []
        if c == 0:
            if ch == 0: ops.append((nonce_load, None))
            if ch == 1: ops.append((nonce_check, None))
            if ch == R: ops.append((rdy_load, None))
            if ch == R + 2: ops.append((rdy_check, None))
        if ch == R + 3: ops.append((bcast_read, None))
        if OPT["LA"] == 3:
            if ch == 0 and OPT["pro"] < 3: ops += [(op, "ch2") for op in dma_chunk(c, 2)]
            if ch + 3 <= 9: ops += [(op, f"ch{ch+3}") for op in dma_chunk(c, ch + 3)]
        elif OPT["sched"]:
            if ch == 0: ops += [(op, "ch1") for op in dma_chunk(c, 1)[OPT["p1n"]:]]
            for k in SCHED.get(ch, []): ops += [(op, f"ch{k}") for op in dma_chunk(c, k)]
        else:
            if ch == 0: ops += [(op, "ch1") for op in dma_chunk(c, 1)[OPT["p1n"]:]]
            if ch + 2 <= 9: ops += [(op, f"ch{ch+2}") for op in dma_chunk(c, ch + 2)]
        if ch == R + 3: ops.append((bcast_use, None))
        if ch == OPT["tq"]: ops.append((touch, None))
        if ch == OPT["eb"]: ops.insert(0, (lambda: touch_steps(c, 6, 4, 1, f"eb{P}"), None))
        if ch == OPT["eb"] + 100 or (OPT["eb"] >= 100 and ch == OPT["eb"] - 100): ops.append((lambda: touch_steps(c, 6, 4, 1, f"eb{P}"), None))
        if ch == OPT["ec"] and not (OPT["st0"] >= 0 and OPT["stq"]): ops.append((lambda: touch_qo(c), None))
        if OPT["tc"]:
            for ent in str(OPT["tc"]).split(","):
                per, st = (int(x) for x in ent.split(":"))
                if per == ch and c == OPT["tcw"] >> 2:
                    def tcl(st=st):
                        a(f"s_cmp_eq_u32 s{sWV}, {OPT['tcw']}"); a(f"s_cbranch_scc0 L_ntc{st}_{P}")
                        tc_issue(st, sTCX, sTCW)
                        a.label(f"L_ntc{st}_{P}")
                    ops.append((tcl, None))
        if OPT["tcm"] and c == 0:
            per, sts = str(OPT["tcm"]).split(":")
            if int(per) == ch:
                def tcm():
                    for w_, st in enumerate(int(x) for x in sts.split(".")):
                        a(f"s_cmp_eq_u32 s{sWV}, {w_ + 1}"); a(f"s_cbranch_scc0 L_tcm{w_}_{P}")
                        tc_issue(st, sTCX, sTCW)
                        a.label(f"L_tcm{w_}_{P}")
                ops.append((tcm, None))
        if ch == OPT["prel1"]: ops.append((opreload, None))
        if OPT["st0"] >= 0 and 0 <= ch - OPT["st0"] < OPT["stn"]:
            def duty(k=ch - OPT["st0"]):
                a(f"s_cmp_eq_u32 s{sDUTY}, {k}"); a(f"s_cbranch_scc0 L_nd{k}_{P}")
                n0 = len(a.vm)
                if OPT["stq"]: touch_qo(c)
                if OPT["stp"]: opreload()
                a.vm = a.vm[:n0]
                a.label(f"L_nd{k}_{P}")
            ops.append((duty, None))
        if ch == OPT["pst"]: ops.append((lambda: prestore(c), None))
        if OPT["LA"] == 3:
            if ch == 7: ops += [(fix_wd_for_q, None)] + [(op, "wq0") for op in dma_wq(c, 0)]
            if ch == 8: ops += [(op, f"wq{u}") for u in (1, 2) for op in dma_wq(c, u)]
            if ch == 9: ops += [(op, f"wq{u}") for u in (3, 4) for op in dma_wq(c, u)]
        else:
            if ch == 8: ops += [(fix_wd_for_q, None)] + [(op, "wq0") for op in dma_wq(c, 0)]
            if ch == 9: ops += [(op, f"wq{u}") for u in (1, 2) for op in dma_wq(c, u)]
        return ops
    hA, hB = 2 * c, 2 * c + 1
    gm = lambda h: lanemask(lambda l: (l >> 4) == h)
    half = lanemask(lambda l: (l >> 5) == c)
    pipeline(100, reads, mf, {10 * ch: ch for ch in range(10)}, bnd1, OPT["L"], OPT["Lb"], [WF + 4 * k for k in range(5)], prio=(10, parse_pr(OPT["pr1"])) if c == 1 else None)
    if c == 1 and OPT["prep"] >= 0: a(f"s_setprio {OPT['prep']}")
    stamp("p1end")

    vL16, vL8 = vXA0, vXA1
    a(f"v_lshlrev_b32 v{vL16}, 4, v{vL}"); a(f"v_lshlrev_b32 v{vL8}, 3, v{vL}")
    a(f"v_add_u32 v{vWA}, {WQ_UNIT[0]*UNIT - SLOT}, v{vWA}")
    a(f"v_add_u32 v{vWE}, {WQ_UNIT[0]*UNIT - SLOT - (UNIT if c else 0)}, v{vWE}")
    WD = OPT["wodef"]; assert WD >= 2 and OPT["LA"] == 2
    late_wo = [op for u in range(5) if u + WD > 4 for op in dma_wo(c, u)]
    nq = 3 if c == 0 else 2
    def late(k, last=False):
        for _ in range(k):
            keep_ = nq * OPT["woaft"] if last else nq * max(1, OPT["woaft"])
            if last == 2: keep_ = 0
            if len(late_wo) > keep_: emit_op(late_wo.pop(0), "wo")
    if A_:
        KAa, KAb, VBa, VBb, EO = 56, 60, 64, 68, 72
        TMP = 76
        a(f"s_lshl_b32 s3, s{sWV}, 12"); a(f"v_add_u32 v{vT}, s3, v{vL16}")
        a(f"v_add_u32 v{vT+1}, s{sW1K}, v{vL16}"); a(f"v_add_u32 v{vT+1}, {EE_A2}, v{vT+1}")
        phi_pack(acc1(0, 0), 8, [KAa], TMP)
        a(f"ds_write_b128 v{vT}, {vr(KAa,4)} offset:{OPX}")
        if c == 0: phi_pack(acc1(4, 0), 8, [EO], TMP)
        else: pack(acc1(4, 0), EO); pack(acc1(4, 1), EO + 2)
        a(f"ds_write_b128 v{vT+1}, {vr(EO,4)}")
        phi_pack(acc1(1, 0), 8, [KAb], TMP)
        a(f"ds_write_b128 v{vT}, {vr(KAb,4)} offset:{OPX + 1024}")
        for t, d in ((2, VBa), (3, VBb)):
            pack(acc1(t, 0), d); pack(acc1(t, 1), d + 2)
            a(f"ds_write_b128 v{vT}, {vr(d,4)} offset:{OPX + t*1024}")
        a(f"v_add_u32 v{vT}, {OPX + c*16384}, v{vL16}")
        a(f"v_add_u32 v{vT+1}, {EE_A2}, v{vL16}")
        a(f"v_and_b32 v{vT+2}, 0x31, v{vL}"); a(f"v_bfe_u32 v{vT+3}, v{vL}, 2, 2")
        a(f"v_lshl_add_u32 v{vT+2}, v{vT+3}, 1, v{vT+2}"); a(f"v_lshlrev_b32 v{vT+2}, 4, v{vT+2}")
        a(f"v_add_u32 v{vT+2}, {EE_A2 + 4096 + 128*c}, v{vT+2}")
        a(f"v_mov_b32 v89, 0x3f803f80")
        for i in range(4): a(f"v_mov_b32 v{80+i}, s{sK+1}")
    else:
        KA = {("a", 0): 56, ("b", 0): 60, ("a", 1): 64, ("b", 1): 68, ("a", -1): 96, ("b", -1): 100}
        Va, Vb, Ev = 72, 78, 84
        for rt in (1, 0):
            pack(acc1(0, rt), KA[("a", rt)]); pack(acc1(1, rt), KA[("b", rt)])
            if c == 0: pack(acc1(4, rt), KA[("a", rt)] + 2); pack(acc1(4, rt), KA[("b", rt)] + 2)
            else: pack(acc1(4, rt), Ev + 2 + 2 * rt)
            pack(acc1(2, rt), Va + 2 + 2 * rt); pack(acc1(3, rt), Vb + 2 + 2 * rt)
        Eown = [KA[("a", 0)] + 2, KA[("a", 1)] + 2] if c == 0 else [Ev + 2, Ev + 4]
        xs = [KA[("a", 1)], KA[("b", 1)], Va + 4, Vb + 4, Eown[1], Eown[0]]
        a(f"s_mul_i32 s3, s{sWV}, 3072")
        a(f"v_add_u32 v{vT}, s3, v{vL8}")
    a.wait(vm="wq0", lg="all")
    a("s_barrier")
    stamp("E1")
    if A_:
        R0 = 16
        D0, D1, D2 = 84, 72, 76
        def rd(dst, areg, off): return a(f"ds_read_b128 {vr(dst,4)}, v{areg} offset:{off}")
        def evb(dst):
            for j in range(4): a(f"v_cndmask_b32 v{dst+j}, v{dst+j}, v89, vcc")
        a(f"s_cmp_lt_u32 s{sTI}, 2"); a(f"s_cbranch_scc0 L_t23_{P}")
        a(f"s_lshl_b32 s3, s{sTI}, 10"); a(f"v_add_u32 v{vT}, s3, v{vT}")
        a.lg = []
        tg = []
        for g in range(4): tg.append([rd(R0 + 8 * g, vT, g * 4096), rd(R0 + 8 * g + 4, vT, g * 4096 + 2048)])
        for g in range(4):
            a.wait(lg=tg[g]); mfma(D0, R0 + 8 * g, R0 + 8 * g + 4, D0 if g else "0")
        a("s_nop 7")
        a(f"s_branch L_tdone_{P}")
        a.label(f"L_t23_{P}")
        set_mask("vcc", 0x3333333333333333)
        a(f"s_cmp_eq_u32 s{sTI}, 2"); a(f"s_cbranch_scc0 L_t3_{P}")
        a.lg = []
        tg = []
        for g in range(4): tg.append([rd(R0 + 12 * g, vT + 2, g * 1024), rd(R0 + 12 * g + 4, vT, g * 4096), rd(R0 + 12 * g + 8, vT, g * 4096 + 1024)])
        for g in range(4):
            a.wait(lg=tg[g]); evb(R0 + 12 * g)
            mfma(D0, R0 + 12 * g + 4, R0 + 12 * g, D0 if g else "0")
            mfma(D1, R0 + 12 * g + 8, R0 + 12 * g, D1 if g else "0")
        set_mask("vcc", 0x11dd11dd11dd11dd)
        for j in range(4): a(f"v_cndmask_b32 v{D0+j}, v{D1+j}, v{D0+j}, vcc")
        a(f"s_branch L_tdone_{P}")
        a.label(f"L_t3_{P}")
        a.lg = []
        tg = []
        B0 = [16, 32, 48, 16]
        def rd3(g): return [rd(B0[g], vT + 2, g * 1024), rd(B0[g] + 4, vT + 1, g * 1024), rd(B0[g] + 8, vT, g * 4096 + 2048), rd(B0[g] + 12, vT, g * 4096 + 3072)]
        for g in range(3): tg.append(rd3(g))
        for g in range(4):
            a.wait(lg=tg[g]); evb(B0[g])
            mfma(D0, B0[g] + 4, B0[g] + 8, D0 if g else "0")
            mfma(D1, B0[g] + 4, B0[g] + 12, D1 if g else "0")
            mfma(D2, B0[g] + 4, B0[g], D2 if g else "0")
            if g == 0: tg.append(rd3(3))
        set_mask("vcc", gm(hA))
        for j in range(4): a(f"v_cndmask_b32 v{D0+j}, v{D1+j}, v{D0+j}, vcc")
        for j in range(4):
            if c == 0: a(f"v_permlane32_swap_b32 v{D0+j}, v{D2+j}")
            else: a(f"v_permlane32_swap_b32 v{D2+j}, v{D0+j}")
        a.label(f"L_tdone_{P}")
        a.lg = []
        pack(D0, 88)
        a(f"v_min_u32 v{D0}, -2, v88"); a(f"v_min_u32 v{D0+1}, -2, v89")
        a(f"buffer_store_dwordx2 {vr(D0,2)}, v{vL8}, {sr(SS,4)}, s{sKVP} offen sc1")
    else:
        for k in range(6): a(f"ds_write_b64 v{vT}, {vr(xs[k],2)} offset:{EXB + k*512}")
        a(f"s_cmp_eq_u32 s{sI}, 3"); a(f"s_cbranch_scc0 L_nohp_{P}")
        for k in range(5):
            for j in range(2): a(f"v_min_u32 v{xs[k]+j}, -2, v{xs[k]+j}")
            a(f"buffer_store_dwordx2 {vr(xs[k],2)}, v{vL8}, {sr(SS,4)}, s{sHP} offen offset:{k*512} sc1", "~i3hp")
        a.label(f"L_nohp_{P}")
    stamp("pub1")

    ACC2 = 16; WF2 = 36
    oc = 1 - c
    def acc2(t, rt): return ACC2 + (t * 2 + rt) * 4 if t < 2 else ACC2 + 16
    items2 = [(sg, t) for sg in range(16) for t in range(3)] + [(sg, t) for t in (2, 0, 1) for sg in range(16, 20)]
    def reads2(n, w):
        sg, t = items2[n]; tg = []
        for h in range(2):
            off = ((sg >> 1) & 1) * UNIT + (sg & 1) * 5120 + h * 1280
            if t < 2: tg.append(a(f"ds_read_b64_tr_b16 {vr(w+2*h,2)}, v{vWA} offset:{off + 40*t}"))
            else: tg.append(a(f"ds_read_b64_tr_b16 {vr(w+2*h,2)}, v{vWE} offset:{off}"))
        return tg
    def mf2(n, w):
        sg, t = items2[n]
        for rt in ((0, 1) if t < 2 else (c,)):
            C = acc2(t, rt) if sg else (80 if A_ else "0")
            mfma(acc2(t, rt), w, X(sg, rt), C)
    GA = 56
    def gather(tag="gat"):
        for r in range(8):
            a(f"s_add_u32 s3, s{sKVG}, {r*4096}")
            a(f"buffer_load_dwordx4 {vr(GA+4*r,4)}, v{vGAD}, {sr(SS,4)}, s3 offen sc1", tag)
    def gather_ops():
        if OPT["hackgat"]: return []
        return [([f"s_add_u32 s3, s{sKVG}, {r*4096}"], f"buffer_load_dwordx4 {vr(GA+4*r,4)}, v{vGAD}, {sr(SS,4)}, s3 offen sc1") for r in range(8)]
    HL = [KA[("a", -1)], KA[("b", -1)], Va, Vb, KA[("a", -1)] + 2, Ev, KA[("b", -1)] + 2] if not A_ else None
    def halo_loads(tag="~h0halo"):
        offs = [c*3072, c*3072 + 512, c*3072 + 1024, c*3072 + 1536, 2048, 3072 + 2048, 2048]
        for d, o in zip(HL, offs):
            a(f"s_add_u32 s3, s{sHG2}, {o}")
            a(f"buffer_load_dwordx2 {vr(d,2)}, v{vL8}, {sr(SS,4)}, s3 offen sc1", tag)
    def halo_issue():
        a(f"s_cmp_eq_u32 s{sHV}, 0")
        a(f"s_cbranch_scc1 L_nohl_{P}")
        halo_loads()
        a.label(f"L_nohl_{P}")
    def bnd2(u):
        ops = []
        if u > 0:
            d = (WQ_UNIT[u] - WQ_UNIT[u - 1]) * UNIT
            for r in (vWA, vWE): a(f"v_add_u32 v{r}, {d}, v{r}")
            a.wait(vm=f"wq{u}", lg="all")
            a("s_barrier")
            stamp(f"p{u}")
        if u in (1, 2): ops += [(op, f"wq{u+2}") for op in dma_wq(c, u + 2)]
        if u >= WD: ops += [(op, "wo") for op in dma_wo(c, u - WD)]
        if u == OPT["prel_at"] and OPT["prel1"] < 0 and not (OPT["st0"] >= 0 and OPT["stp"]): ops = ops + [(opreload, None)]
        if u == OPT["gat_at"]:
            g = gather_ops()
            if OPT["gspread"]: g = g[:4]
            ops = ([(op, "gat") for op in g] if A_ else [(halo_issue, None)]) + ops
        if u == OPT["gat_at"] + 1 and A_ and OPT["gspread"]:
            ops = [(op, "gat") for op in gather_ops()[4:]] + ops
        return ops
    QB = {("a", 0): 160, ("b", 0): 164, ("a", 1): 168, ("b", 1): 172}
    side = {}
    vEQo, vEQp = 124, 125
    eqaddr = [[f"s_lshl_b32 s4, s{sWV}, 9", f"v_add_u32 v{vEQo}, s4, v{vL8}"], f"v_xor_b32 v{vEQp}, 2048, v{vEQo}"]
    cst = [f"v_add_u32 v126, {CST}, v{vL16}"]
    if A_:
        SEL, C0, CA = 96, 100, 104
        Axb = 104; vOW = 126; vOX = 127
        cst += [f"ds_read_b128 {vr(96+4*k,4)}, v126 offset:{k*1024}" for k in range(3)]
        def cfix():
            a.wait(lg="all")
            a(f"s_lshl_b32 s4, s{sTI}, 9"); a(f"v_add_u32 v{vOW}, s4, v{CA}"); a(f"v_mov_b32 v{vOX}, v{CA+1}")
        GS = 108; GT = 88
        def gsum():
            for r in range(8): mfma(GS, SEL, GA + 4 * r, GS if r else "0")
        def gpart1():
            a.wait(vm="gat"); gsum()
        def gpart2():
            a(f"v_add_f32 v{GT}, v{GS}, v{GS+1}"); a(f"v_add_f32 v{GT+1}, v{GS+2}, v{GS+3}"); a(f"v_add_f32 v{GT}, v{GT}, v{GT+1}")
            a(f"v_cmp_u_f32 vcc, v{GT}, v{GT}")
            a(f"s_cbranch_vccz L_gok_{P}" if not OPT["hackgat"] else f"s_branch L_gok_{P}")
            spin_begin(f"L_gsp_{P}")
            a(f"v_max3_u32 v{GT}, v{GA}, v{GA+1}, v{GA+2}")
            for k in range(3, 31, 2): a(f"v_max3_u32 v{GT}, v{GT}, v{GA+k}, v{GA+k+1}")
            a(f"v_max_u32 v{GT}, v{GT}, v{GA+31}")
            a(f"v_cmp_eq_u32 vcc, -1, v{GT}")
            a(f"s_cbranch_vccz L_gre_{P}")
            gather("~x"); a("s_waitcnt vmcnt(0)")
            spin_check(f"L_gsp_{P}", f"L_gre_{P}")
            gsum(); a("s_nop 7")
            a.label(f"L_gok_{P}")
            pack(GS, GT)
            a(f"ds_write_b64 v{vOW}, {vr(GT,2)} offset:{OPS + c*2048}")
        side[13] = cst + eqaddr
        side[23] = [cfix]
        side[52] = phi_ins(acc2(2, c), 4, [QB[("a", c)] + 2, QB[("b", c)] + 2], 120) + [f"ds_write_b64 v{vEQo}, {vr(QB[('a',c)]+2,2)} offset:{EQX}"]
        side[56] = phi_ins(acc2(0, 0), 8, [], 112) + pack_ins(acc2(0, 0), QB[("a", 0)]) + pack_ins(acc2(0, 1), QB[("a", 1)])
        if OPT["gearly"] >= 0:
            side[OPT["gearly"]] = side.get(OPT["gearly"], []) + [gpart1]
            side[59] = side.get(59, []) + [gpart2]
    else:
        BO, BP, ONES, MK, BP0 = 104, 108, 112, 116, 120
        cst += [f"ds_read_b128 {vr(104+4*k,4)}, v126 offset:{k*1024}" for k in range(4)] + [f"ds_read_b128 {vr(BP0,4)}, v126 offset:1024", "v_mov_b32 v127, 0"]
        def foreign():
            a(f"s_xor_b32 s3, s{sWV}, 4"); a(f"s_mul_i32 s3, s3, 3072")
            a(f"v_add_u32 v{vT}, s3, v{vL8}")
            for rt in range(2):
                o = EXB + (4 if rt else 5) * 512
                if c == 0: a(f"ds_read_b64 {vr(Ev+2+2*rt,2)}, v{vT} offset:{o}")
                else:
                    for h in "ab": a(f"ds_read_b64 {vr(KA[(h,rt)]+2,2)}, v{vT} offset:{o}")
        def foreign2():
            a(f"s_cmp_eq_u32 s{sI}, 0"); a(f"s_cbranch_scc1 L_nof2_{P}")
            a("s_waitcnt lgkmcnt(6)")
            a(f"s_sub_u32 s3, s{sI}, 1"); a(f"s_mul_i32 s3, s3, 3072")
            a(f"v_add_u32 v{vT}, s3, v{vL8}")
            cb = EXB + c * 4 * 3072
            sl = list(a.lg); a.lg = []
            a(f"ds_read_b64 {vr(KA[('a',-1)],2)}, v{vT} offset:{cb}")
            a(f"ds_read_b64 {vr(KA[('b',-1)],2)}, v{vT} offset:{cb + 512}")
            a(f"ds_read_b64 {vr(Va,2)}, v{vT} offset:{cb + 1024}")
            a(f"ds_read_b64 {vr(Vb,2)}, v{vT} offset:{cb + 1536}")
            for h in "ab": a(f"ds_read_b64 {vr(KA[(h,-1)]+2,2)}, v{vT} offset:{EXB + 2048}")
            a(f"ds_read_b64 {vr(Ev,2)}, v{vT} offset:{EXB + 4*3072 + 2048}")
            a.lg = sl
            a.label(f"L_nof2_{P}")
        EQ = {c: 156, oc: 158}
        side[13] = cst + eqaddr
        side[17] = [foreign]
        side[27] = [foreign2]
        side[52] = pack_ins(acc2(2, c), EQ[c]) + [f"ds_write_b64 v{vEQo}, {vr(EQ[c],2)} offset:{EQX}"]
        side[56] = pack_ins(acc2(0, 0), QB[("a", 0)]) + pack_ins(acc2(0, 1), QB[("a", 1)])
    pipeline(60, reads2, mf2, {12 * u: u for u in range(5)}, bnd2, OPT["L2"], OPT["Lb2"], [WF2 + 4 * k for k in range(5)],
             newbufs={24: [128 + 4 * k for k in range(7)]}, side=side, side_rate=OPT["srate"], prio=(12, parse_pr(OPT["pr2"])) if c == 1 else None)
    if c == 1 and OPT["prep"] >= 0: a(f"s_setprio {OPT['prep']}")
    stamp("p2end")

    if A_:
        if OPT["gearly"] < 0: gpart1()
        late(3)
        phi_pack(acc2(1, 0), 8, [], 136)
        pack(acc2(1, 0), QB[("b", 0)]); pack(acc2(1, 1), QB[("b", 1)])
        if OPT["gearly"] < 0: gpart2()
        late(99)
        a.wait(lg="all")
        a("s_barrier")
        stamp("E2")
        A1a, A1b, Axa, T3, T2 = 128, 132, 136, 140, 142
        ob = OPS + c * 2048
        t3 = a(f"ds_read_b64 {vr(T3,2)}, v{vL8} offset:{ob + 1536}")
        t2 = a(f"ds_read_b64 {vr(T2,2)}, v{vL8} offset:{ob + 1024}")
        t4 = a(f"ds_read_b64 {vr(Axa+2,2)}, v{vOX} offset:{ob + 1536}")
        t0 = a(f"ds_read_b64 {vr(A1a,2)}, v{vL8} offset:{ob}")
        t1 = a(f"ds_read_b64 {vr(A1b,2)}, v{vL8} offset:{ob + 512}")
        tq = [a(f"ds_read_b64 {vr(QB[(h,oc)]+2,2)}, v{vEQp} offset:{EQX}") for h in "ab"]
        late(99, True)
        if OPT["prel_at"] == 5: opreload()
        ma = lambda l: (0x11dd >> (l & 15)) & 1
        Z = Axb + 2
        set_mask("vcc", gm(hA)); a.wait(lg=t3)
        for j in range(2): a(f"v_cndmask_b32 v{A1a+2+j}, v{Z}, v{T3+j}, vcc")
        set_mask("vcc", gm(hB))
        for j in range(2): a(f"v_cndmask_b32 v{A1b+2+j}, v{Z}, v{T3+j}, vcc")
        set_mask("vcc", 0x11dd11dd11dd11dd); a.wait(lg=t4)
        for j in range(2):
            a(f"v_cndmask_b32 v{Axa+j}, v{Z}, v{T2+j}, vcc")
            a(f"v_cndmask_b32 v{Axb+j}, v{T2+j}, v{Z}, vcc")
        set_mask("vcc", lanemask(lambda l: ((l >> 4) == hA and ma(l)) or ((l >> 4) == hB and not ma(l))))
        for j in range(2): a(f"v_cndmask_b32 v{Axa+2+j}, v{Z}, v{Axa+2+j}, vcc")
        O = {(k, rt): 16 + (rt * 3 + i) * 4 for rt in range(2) for i, k in enumerate("xab")}
        a.wait(lg=tq)
        for rt in (c, oc): mfma(O[("x", rt)], Axa, QB[("a", rt)], C0)
        for rt in (c, oc): mfma(O[("a", rt)], A1a, QB[("a", rt)], "0")
        for rt in (c, oc): mfma(O[("x", rt)], Axb, QB[("b", rt)], O[("x", rt)])
        for rt in (c, oc): mfma(O[("b", rt)], A1b, QB[("b", rt)], "0")
        OM = [176, 180]; OX = [184, 186]
        set_mask("vcc", lanemask(lambda l: l < 32))
        for rt in (c, oc):
            x = O[("x", rt)]
            a(f"v_rcp_f32 v{x}, v{x}"); a(f"v_rcp_f32 v{x+1}, v{x+1}")
        for rt in (c, oc):
            x = O[("x", rt)]
            for j in range(4): a(f"v_mul_f32 v{O[('a',rt)]+j}, v{O[('a',rt)]+j}, v{x}")
            for j in range(4): a(f"v_mul_f32 v{O[('b',rt)]+j}, v{O[('b',rt)]+j}, v{x+1}")
            a(f"v_cndmask_b32 v{x}, v{x+1}, v{x}, vcc")
            pack(O[("a", rt)], OM[rt]); pack(O[("b", rt)], OM[rt] + 2)
            for j in (2, 3): a(f"v_mul_f32 v{x+j}, v{x+j}, v{x}")
            a(f"v_cvt_pk_bf16_f32 v{OX[rt]}, v{x+2}, v{x+3}")
    else:
        late(3)
        for rt in range(2): pack(acc2(1, rt), QB[("b", rt)])
        a(f"s_cmp_eq_u32 s{sI}, 0"); a(f"s_cbranch_scc0 L_hdone_{P}")
        a(f"s_cmp_eq_u32 s{sRT}, 0"); a(f"s_cbranch_scc0 L_hwait_{P}")
        for d in HL: a(f"v_mov_b32 v{d}, 0"); a(f"v_mov_b32 v{d+1}, 0")
        for j in range(4): a(f"v_mov_b32 v{BP0+j}, 0x{f2u(-1e30):x}")
        a(f"s_branch L_hok_{P}")
        a.label(f"L_hwait_{P}")
        def htest():
            a(f"v_max3_u32 v228, v{HL[0]}, v{HL[0]+1}, v{HL[1]}")
            a(f"v_max3_u32 v228, v228, v{HL[1]+1}, v{HL[2]}")
            a(f"v_max3_u32 v228, v228, v{HL[2]+1}, v{HL[3]}")
            a(f"v_max3_u32 v228, v228, v{HL[3]+1}, v{HL[4]}")
            a(f"v_max3_u32 v228, v228, v{HL[4]+1}, v{HL[5]}")
            a(f"v_max3_u32 v228, v228, v{HL[5]+1}, v{HL[6]}")
            a(f"v_max_u32 v228, v228, v{HL[6]+1}")
            a(f"v_cmp_eq_u32 vcc, -1, v228")
            a(f"s_cbranch_vccz L_hok_{P}")
        a.wait(vm="~h0halo", keep=True)
        htest()
        spin_begin(f"L_hsp_{P}")
        halo_loads("~x"); a("s_waitcnt vmcnt(0)"); htest()
        spin_check(f"L_hsp_{P}", f"L_hok_{P}")
        a.label(f"L_hdone_{P}")
        def qmask(rt):
            for h, hh in (("a", hA), ("b", hB)):
                set_mask("vcc", gm(hh))
                for j in range(2): a(f"v_cndmask_b32 v{QB[(h,rt)]+2+j}, v127, v{EQ[rt]+j}, vcc")
        qmask(c)
        a.wait(lg="all")
        a("s_barrier")
        stamp("E2")
        tq = a(f"ds_read_b64 {vr(EQ[oc],2)}, v{vEQp} offset:{EQX}")
        units = [(h, rt) for rt in (c, oc) for h in "ab"]
        S = {u: 176 + 8 * k for k, u in enumerate(units)}
        PB = {u: 208 + 4 * k for k, u in enumerate(units)}
        Om = dict(zip(units, (16, 28, 40, 128)))
        SV = {u: 228 + 2 * k for k, u in enumerate(units)}
        MX = {u: 236 + k for k, u in enumerate(units)}
        def smf(u):
            h, rt = u
            mfma(S[u], KA[(h, rt - 1)], QB[u], BP0 if rt == 0 else BP)
            mfma(S[u] + 4, KA[(h, rt)], QB[u], BO)
        smf(units[0]); smf(units[1])
        a.wait(lg=tq); qmask(oc)
        smf(units[2]); smf(units[3])
        late(99 if OPT["prel_at"] == 5 else 2, True)
        if OPT["prel_at"] == 5: opreload()
        for u in units:
            s_, v = S[u], SV[u]
            a(f"v_max3_f32 v{v}, v{s_}, v{s_+1}, v{s_+4}"); a(f"v_max3_f32 v{v+1}, v{s_+2}, v{s_+3}, v{s_+6}")
            a(f"v_max_f32 v{v}, v{v}, v{s_+5}"); a(f"v_max_f32 v{v+1}, v{v+1}, v{s_+7}")
            a(f"v_max_f32 v{MX[u]}, v{v}, v{v+1}")
        m0_, m1_, m2_, m3_ = [MX[u] for u in units]
        a(f"v_permlane32_swap_b32 v{m0_}, v{m1_}"); a(f"v_permlane32_swap_b32 v{m2_}, v{m3_}")
        a(f"v_max_f32 v{m0_}, v{m0_}, v{m1_}"); a(f"v_max_f32 v{m2_}, v{m2_}, v{m3_}")
        a(f"v_permlane16_swap_b32 v{m0_}, v{m2_}")
        a(f"v_max_f32 v{m0_}, v{m0_}, v{m2_}")
        cs = LOG2E * 20 ** -0.5
        a(f"v_mul_f32 v{m0_}, 0x{f2u(-cs):x}, v{m0_}")
        a(f"v_mov_b32 v{m2_}, v{m0_}")
        a(f"v_permlane16_swap_b32 v{m0_}, v{m2_}")
        a(f"v_mov_b32 v{m1_}, v{m0_}"); a(f"v_mov_b32 v{m3_}, v{m2_}")
        a(f"v_permlane32_swap_b32 v{m0_}, v{m1_}"); a(f"v_permlane32_swap_b32 v{m2_}, v{m3_}")
        late(99, True)
        V = {"a": Va, "b": Vb}
        for u in units:
            for j in range(2): a(f"v_fmamk_f32 v{SV[u]+j}, v{SV[u]+j}, 0x{f2u(cs):x}, v{MX[u]}")
        for u in units:
            for j in range(2): a(f"v_exp_f32 v{SV[u]+j}, v{SV[u]+j}")
        for u in units:
            h, rt = u; v = SV[u]
            for j in range(2): a(f"v_cvt_pk_bf16_f32 v{v+j}, v{v+j}, v{v+j}")
            for k in range(4): a(f"v_and_b32 v{PB[u]+k}, v{v+(k&1)}, v{MK+k}")
            mfma(Om[u] + 8, ONES, PB[u], "0")
            mfma(Om[u], V[h] + 2 * rt, PB[u], "0")
            mfma(Om[u] + 4, Ev + 2 * rt, PB[u], "0")
        OM = [176, 180]; OX = [184, 186]
        set_mask("vcc", gm(hA))
        for rt in (c, oc):
            ua, ub = ("a", rt), ("b", rt)
            for u in (ua, ub): a(f"v_rcp_f32 v{Om[u]+8}, v{Om[u]+8}")
            for j in range(4): a(f"v_cndmask_b32 v{Om[ua]+4+j}, v{Om[ub]+4+j}, v{Om[ua]+4+j}, vcc")
            for u in (ua, ub):
                for j in range(4): a(f"v_mul_f32 v{Om[u]+j}, v{Om[u]+j}, v{Om[u]+8}")
            a(f"v_cndmask_b32 v{Om[ua]+8}, v{Om[ub]+8}, v{Om[ua]+8}, vcc")
            pack(Om[ua], OM[rt]); pack(Om[ub], OM[rt] + 2)
            for j in range(4): a(f"v_mul_f32 v{Om[ua]+4+j}, v{Om[ua]+4+j}, v{Om[ua]+8}")
            pack(Om[ua] + 4, OX[rt])
    a(f"s_mul_i32 s3, s{sHG}, {2*OP_}"); a(f"s_add_u32 s3, s3, s{sOB}"); a(f"s_add_u32 s3, s3, {c*OP_}")
    a(f"s_add_u32 s4, s3, {OT}")
    a(f"s_lshr_b32 s5, s{sHG}, 1"); a(f"s_mul_i32 s5, s5, {4*OP_}"); a(f"s_and_b32 s6, s{sHG}, 1"); a(f"s_lshl_b32 s6, s6, 3")
    a(f"s_add_u32 s5, s5, s6"); a(f"s_add_u32 s5, s5, s{sOB}")
    a(f"s_add_u32 s6, s5, {OT}")
    a(f"v_lshrrev_b32 v{vXE}, 4, v{vL}"); a(f"v_mul_u32_u24 v{vXE}, {OP_ - 256}, v{vXE}"); a(f"v_add_u32 v{vXE}, v{vXE}, v{vL16}")
    a(f"v_mov_b32 v{vT}, s{sN}")
    a(f"s_cmp_eq_u32 s{sFAST}, 1"); a(f"s_cbranch_scc1 L_fast_{P}")
    for fl, end in ((" sc1", f"s_branch L_pubd_{P}"), ((" " + OPT["ofl"]) if OPT["ofl"] != "none" else "", None)):
        if not end: a.label(f"L_fast_{P}")
        a(f"buffer_store_dwordx4 {vr(OM[0],4)}, v{vL16}, {sr(OS,4)}, s3 offen{fl}")
        a(f"buffer_store_dwordx4 {vr(OM[1],4)}, v{vL16}, {sr(OS,4)}, s4 offen{fl}")
        if A_:
            a(f"buffer_store_dword v{OX[0]}, v{vXE}, {sr(OS,4)}, s5 offen offset:{1024 + 4*c}{fl}")
            a(f"buffer_store_dword v{OX[1]}, v{vXE}, {sr(OS,4)}, s6 offen offset:{1024 + 4*c}{fl}")
        else:
            a(f"s_mov_b32 exec_{'hi' if c == 0 else 'lo'}, 0")
            a(f"buffer_store_dwordx2 {vr(OX[0],2)}, v{vXE}, {sr(OS,4)}, s5 offen offset:1024{fl}")
            a(f"buffer_store_dwordx2 {vr(OX[1],2)}, v{vXE}, {sr(OS,4)}, s6 offen offset:1024{fl}")
        if end: a(end)
    a.label(f"L_pubd_{P}")
    a("s_mov_b64 exec, -1")
    stamp("ostore")
    phase2_setup(A_, c)
    a(f"s_cmp_eq_u32 s{sFAST}, 1")
    a("s_mov_b64 exec, 1")
    a("s_waitcnt vmcnt(0) lgkmcnt(0)")
    a(f"s_cbranch_scc1 L_fast2_{P}")
    a(f"buffer_store_dword v{vT}, off, {sr(SS,4)}, s{sFP} sc1")
    a(f"s_branch L_pubd2_{P}")
    a.label(f"L_fast2_{P}")
    a(f"buffer_store_dword v{vT}, off, {sr(SS,4)}, s{sFP}")
    a.label(f"L_pubd2_{P}")
    a("s_mov_b64 exec, -1")
    if late_wo:
        late(99, 2)
        phase2_setup2()
        a("s_waitcnt vmcnt(0)")
    a.vm = ["flag"]
    stamp("oack")
    a("s_branch L_phase2")

vM0, vE0, vPA, vPD, vSA = 1, 2, 3, 0, 5
RA = [8, 9, 11]; GA_ = [12, 13, 95]
vRW, vRR = 4, 7
RX = 43008
RX = 0
OST2 = 40960
def phase2_setup(A_, c):
    a(f"s_mul_i32 s7, s{sKH}, 51200"); a(f"s_add_u32 s7, s7, {WO_BASE}")
    half = "s7"
    a(f"v_and_b32 v{vPD}, 3, v{vL}")
    a(f"v_lshrrev_b32 v{vM0}, 2, v{vL}"); a(f"v_mul_u32_u24 v{vM0}, 160, v{vM0}")
    a(f"v_lshl_add_u32 v{vM0}, v{vPD}, 3, v{vM0}"); a(f"v_add_u32 v{vM0}, {half}, v{vM0}")
    if A_:
        a(f"v_bfe_u32 v{vE0}, v{vL}, 3, 1"); a(f"v_mul_u32_u24 v{vE0}, 40, v{vE0}")
        a(f"v_lshrrev_b32 v{vPA}, 5, v{vL}"); a(f"v_mad_u32_u24 v{vE0}, v{vPA}, 20, v{vE0}")
        a(f"v_bfe_u32 v{vPA}, v{vL}, 4, 1"); a(f"v_lshl_add_u32 v{vE0}, v{vPA}, 1, v{vE0}")
        a(f"v_bfe_u32 v{vPA}, v{vL}, 2, 1"); a(f"v_add_u32 v{vE0}, v{vE0}, v{vPA}")
    else:
        a(f"v_lshrrev_b32 v{vE0}, 4, v{vL}"); a(f"v_mul_u32_u24 v{vE0}, 20, v{vE0}")
        a(f"v_bfe_u32 v{vPA}, v{vL}, 2, 2"); a(f"v_add_u32 v{vE0}, v{vE0}, v{vPA}")
    a(f"v_mul_u32_u24 v{vE0}, 160, v{vE0}")
    a(f"v_lshl_add_u32 v{vE0}, v{vPD}, 3, v{vE0}"); a(f"v_add_u32 v{vE0}, {half}, v{vE0}")
    a(f"v_lshlrev_b32 v{vPA}, 2, v{vL}")
    a(f"s_mul_i32 s7, s{sWV}, 5120"); a(f"v_add_u32 v{vRR}, s7, v{vXA0}")
    a(f"s_xor_b32 s7, s{sWV}, 1"); a(f"s_mul_i32 s7, s7, 5120"); a(f"v_add_u32 v{vRW}, s7, v{vXA0}")
    a(f"s_mul_i32 s7, s{sWV}, 2560"); a(f"s_add_u32 s7, s7, {OST2}")
    a(f"v_mov_b32 v16, s7"); a("v_mov_b32 v17, 0"); a("ds_write_b32 v16, v17")

def phase2_setup2():
    a(f"s_mul_i32 s7, s{sWV}, 2560"); a(f"s_add_u32 s7, s7, {OST2}")
    for j in range(3):
        a(f"v_add_u32 v{RA[j]}, {64*j}, v{vL}")
        a(f"v_mul_u32_u24 v{GA_[j]}, 6554, v{RA[j]}"); a(f"v_lshrrev_b32 v{GA_[j]}, 16, v{GA_[j]}")
        a(f"v_mul_u32_u24 v{vSA}, 2400, v{GA_[j]}")
        a(f"v_lshlrev_b32 v{RA[j]}, 4, v{RA[j]}")
        a(f"v_add_u32 v{GA_[j]}, v{vSA}, v{RA[j]}")
        a(f"v_add_u32 v{RA[j]}, s7, v{RA[j]}")
    a(f"v_and_b32 v{vSA}, 15, v{vL}"); a(f"v_mul_u32_u24 v{vSA}, 160, v{vSA}")
    a(f"v_lshrrev_b32 v16, 4, v{vL}"); a(f"v_lshlrev_b32 v16, 3, v16"); a(f"v_add3_u32 v{vSA}, v{vSA}, v16, s7")

def phase2():
    a.label("L_phase2")
    a.vm = ["flag"]; a.lg = []
    vL16 = vXA0
    a("s_barrier")
    stamp("E3")
    OF = 176; ACC = 16
    def of(k, rt): return OF + (k * 2 + rt) * 4
    bufs = ([56 + 4 * k for k in range(9)] + [96 + 4 * k for k in range(20)])[:OPT["npre"]]
    NB = len(bufs)
    def reads(n):
        k, t = divmod(n, 5); w = bufs[n % NB]; tg = []
        for h in range(2):
            if k < 8: row = 40 * k + 20 * h; base = vM0
            else: row = 80 * (2 * (k - 8) + h) + 16; base = vE0
            tg.append(a(f"ds_read_b64_tr_b16 {vr(w+2*h,2)}, v{base} offset:{row * 160 + 32 * t}"))
        return tg
    def oload(j):
        k, rt = divmod(j, 2)
        if k < 8:
            if k % 2 == 0: a(f"s_add_u32 s{3+rt}, s{sOC}, {rt*OT + k*OP_}")
            a(f"buffer_load_dwordx4 {vr(of(k,rt),4)}, v{vL16}, {sr(OS,4)}, s{3+rt} offen offset:{(k%2)*OP_} sc1", f"o{k}")
        else:
            a(f"s_add_u32 s{3+rt}, s{sOE}, {rt*OT + (k-8)*4*OP_}")
            a(f"buffer_load_dwordx4 {vr(of(k,rt),4)}, v{vXE}, {sr(OS,4)}, s{3+rt} offen offset:1024 sc1", f"o{k}")
    NP = OPT["npoll"]; per = NB // NP
    batches = [list(range(k * per, (k + 1) * per if k < NP - 1 else NB)) for k in range(NP)]
    tags = {}
    def poll_issue():
        a("s_mov_b64 exec, 0xff"); a(f"buffer_load_dword v{vPD}, v{vPA}, {sr(SS,4)}, s{sFC} offen sc1"); a("s_mov_b64 exec, -1")
    def poll_check(lbl):
        a("s_waitcnt vmcnt(0)")
        a(f"v_cmp_ne_u32 vcc, s{sN}, v{vPD}"); a("s_and_b32 vcc_lo, vcc_lo, 0xff"); a(f"s_cbranch_scc0 {lbl}" if not OPT["hackpoll"] else f"s_branch {lbl}")
    lgs = []
    for k in range(NP):
        poll_issue()
        for n in batches[k]: tags[n] = reads(n)
        if k == 0 and not OPT['woaft']: phase2_setup2()
        lgs.append(list(a.lg))
        poll_check(f"L_go{k}")
    spin_begin("L_poll")
    poll_issue(); poll_check(f"L_go{NP-1}")
    spin_check("L_poll", "L_pollx")
    XL = OPT["oburst"] + NP - 1
    full = list(a.lg)
    for k in range(NP - 1, -1, -1):
        a.label(f"L_go{k}")
        a.vm = []; a.lg = list(lgs[k])
        stamp("polled")
        nxt = 0
        for _ in range(OPT["oburst"]): oload(nxt); nxt += 1
        for j in range(k + 1, NP):
            for n in batches[j]: reads(n)
            oload(nxt); nxt += 1
        while nxt < XL: oload(nxt); nxt += 1
        if k > 0: a("s_branch L_conv")
    a.label("L_conv")
    a.lg = full[-12:]
    a("s_waitcnt lgkmcnt(12)")
    rd = NB
    for n in range(50):
        k, t = divmod(n, 5)
        p3 = parse_pr(OPT["pr3"])
        if (n % 10) in p3:
            a(f"s_bitcmp1_b32 s{sWV}, 2"); a(f"s_cbranch_scc0 L_np{n}"); a(f"s_setprio {p3[n % 10]}"); a.label(f"L_np{n}")
        a.wait(vm=f"o{k}" if t == 0 else None, lg=tags[n])
        if n == 0: stamp("ofirst")
        if n == 45 and AL:
            a(f"v_mov_b32 v{vPD}, s{sN}"); a("s_mov_b64 exec, 1")
            a(f"s_cmp_eq_u32 s{sFAST}, 1"); a("s_cbranch_scc1 L_df1")
            a(f"buffer_store_dword v{vPD}, off, {sr(SS,4)}, s{sDFP} sc1"); a("s_branch L_df2")
            a.label("L_df1"); a(f"buffer_store_dword v{vPD}, off, {sr(SS,4)}, s{sDFP}"); a.label("L_df2")
            a("s_mov_b64 exec, -1")
        for rt in range(2):
            d = ACC + (rt * 5 + t) * 4
            mfma(d, bufs[n % NB], of(k, rt), d if k else "0")
        if t in (0, 2) and nxt < 20: oload(nxt); nxt += 1
        if OPT["wb"] >= 3 and n == OPT["wbn"]:
            a(f"s_xor_b32 s3, s{sWV}, {OPT['wbw']}")
            if OPT["wb"] == 3: a(f"s_or_b32 s3, s3, s{sHG}")
            else: a(f"s_and_b32 s4, s{sHG}, 3"); a("s_or_b32 s3, s3, s4")
            a(f"s_cmp_eq_u32 s3, 0"); a(f"s_cselect_b32 s3, s{sFAST}, 0"); a("s_cmp_eq_u32 s3, 1")
            a("s_cbranch_scc0 L_nowb")
            a("buffer_wbl2 sc1", "~wb")
            a.label("L_nowb")
        if t == 1 and nxt == 20 and OPT["wb"] in (1, 2):
            nxt = 21
            if OPT["wb"] == 1: a(f"s_or_b32 s3, s{sWV}, s{sHG}")
            else: a(f"s_mov_b32 s3, s{sWV}")
            a(f"s_cmp_eq_u32 s3, 0"); a(f"s_cselect_b32 s3, s{sFAST}, 0"); a("s_cmp_eq_u32 s3, 1")
            a("s_cbranch_scc0 L_nowb")
            a("buffer_wbl2 sc1", "~wb")
            a.label("L_nowb")
        if rd < 50: tags[rd] = reads(rd); rd += 1
    stamp("g2end")
    if AL: a("s_mov_b64 exec, 0xffff"); a(f"buffer_load_dword v{vPD}, v{vPA}, {sr(SS,4)}, s{sDFC} offen sc1"); a("s_mov_b64 exec, -1")
    else: a("s_nop 2")
    a(f"s_xor_b32 s7, s{sWV}, 1"); a(f"s_mul_i32 s7, s7, 2560"); a(f"s_add_u32 s7, s7, {OST2}")
    a(f"v_mov_b32 v92, s7"); a(f"s_mul_i32 s7, s{sWV}, 2560"); a(f"s_add_u32 s7, s7, {OST2}"); a(f"v_mov_b32 v93, s7")
    a(f"s_cmp_eq_u32 s{sKH}, 0"); a("s_cbranch_scc0 L_red1")
    for c in range(2):
        if c == 1: a.label("L_red1")
        a.lg = []
        give = ACC + (1 - c) * 20; keep = ACC + c * 20
        for t in range(5): a(f"ds_write_b128 v{vRW}, {vr(give+4*t,4)} offset:{RX + t*1024}")
        a.wait(lg="all")
        a("ds_write_b32 v92, v92")
        spin_begin(f"L_pw{c}")
        a("ds_read_b32 v94, v93"); a("s_waitcnt lgkmcnt(0)")
        a("v_cmp_ne_u32 vcc, 0, v94"); a(f"s_cbranch_vccnz L_pwok{c}")
        spin_check(f"L_pw{c}", f"L_pwok{c}")
        a.lg = []
        tg = [a(f"ds_read_b128 {vr(56+4*t,4)}, v{vRR} offset:{RX + t*1024}") for t in range(5)]
        for t in range(5):
            a.wait(lg=tg[t])
            for j in range(4): a(f"v_add_f32 v{56+4*t+j}, v{56+4*t+j}, v{keep+4*t+j}")
            pack(56 + 4 * t, 80 + 2 * t)
            a(f"ds_write_b64 v{vSA}, {vr(80+2*t,2)} offset:{32*t}")
        if c == 0: a("s_branch L_red2")
    a.label("L_red2")
    a.wait(lg="all")
    tg = []
    for j in range(3):
        if j == 2: a("s_mov_b32 exec_hi, 0")
        tg.append(a(f"ds_read_b128 {vr(96+4*j,4)}, v{RA[j]}"))
    a("s_mov_b64 exec, -1")
    def dfcheck():
        a("s_waitcnt vmcnt(0)")
        a(f"v_cmp_ne_u32 vcc, s{sN}, v{vPD}"); a("s_and_b32 vcc_lo, vcc_lo, 0xffff"); a("s_cbranch_scc0 L_dfok")
    if AL:
        dfcheck()
        spin_begin("L_dfs")
        a("s_mov_b64 exec, 0xffff"); a(f"buffer_load_dword v{vPD}, v{vPA}, {sr(SS,4)}, s{sDFC} offen sc1"); a("s_mov_b64 exec, -1")
        dfcheck()
        spin_check("L_dfs", "L_dfok")
    fl = OPT["outflag"].replace("+", " "); fl = "" if fl == "none" else " " + fl
    for j in range(3):
        a.wait(lg=tg[j])
        if j == 2: a("s_mov_b32 exec_hi, 0")
        a(f"buffer_store_dwordx4 {vr(96+4*j,4)}, v{GA_[j]}, {sr(SD,4)}, s{sOUT} offen{fl}")
    if OPT["wbe"]:
        a(f"s_xor_b32 s3, s{sWV}, {OPT['wbw']}"); a(f"s_and_b32 s4, s{sHG}, {OPT['wbe']-1 if OPT['wbe'] > 1 else 7}"); a("s_or_b32 s3, s3, s4")
        a("s_cmp_eq_u32 s3, 0"); a("s_cbranch_scc0 L_nowbe")
        a("s_waitcnt vmcnt(0)"); a("buffer_wbl2 sc1")
        a.label("L_nowbe")
    if OPT["stamps"]:
        a("s_mov_b64 exec, -1")
        a("s_waitcnt vmcnt(0)")
        stamp("end")
        a(f"s_memrealtime s[100:101]"); a("s_waitcnt lgkmcnt(0)"); a(f"v_writelane_b32 v{vST}, s100, 41")
        a(f"v_writelane_b32 v{vST}, s{sFAST}, 42")
        a(f"s_lshl_b32 s3, s2, 3"); a(f"s_add_u32 s3, s3, s{sWV}"); a("s_lshl_b32 s3, s3, 8"); a(f"s_add_u32 s3, s3, {WS_STAMP}")
        a(f"v_lshlrev_b32 v0, 2, v{vL}")
        a(f"buffer_store_dword v{vST}, v0, {sr(SS,4)}, s3 offen")
    a.label("L_end")
    a("s_endpgm")
    a.label("L_codeend")

prologue()
sv0 = list(a.vm)
for b, c in ((0, 0), (0, 1), (1, 0), (1, 1)):
    a.vm = list(sv0); a.lg = []
    path(b, c)
phase2()
a.raw(f""".section .rodata,"a"
.p2align 6
.amdhsa_kernel {KNAME}
  .amdhsa_next_free_vgpr 256
  .amdhsa_next_free_sgpr 102
  .amdhsa_accum_offset 256
  .amdhsa_group_segment_fixed_size 0
  .amdhsa_kernarg_size 72
  .amdhsa_user_sgpr_count 2
  .amdhsa_user_sgpr_kernarg_segment_ptr 1
  .amdhsa_system_sgpr_workgroup_id_x 1
.end_amdhsa_kernel""")
open(sys.argv[1], "w").write(a.text())
print("nops inserted:", a.nops_inserted, "lines:", len(a.lines), file=sys.stderr)
```

```python
import sys, os, struct
from collections import deque
from asmlib import Asm, vr, sr

KNAME = "concat_heads__linear_attn_block__sliding_local_dilated__prompt_kernel"
OPT = dict(lean2=1, lean=1, lastk=0, rot2=0, hal_at=3, fewb=1, woA="2:0,4:1", esk=0, rts=0, woaft=0, gearly=54, tbal=1, exact=1, hackwo=0, hackgat=0, hackphi=0, hackpoll=0, sched="", tcm="", pr1="", pr2="", pr3="", prep=-1, hackport=0, hackdma=0, tcs=0, tc="", tcw=3, tc0=0, tcpos=0, alias=0, wbe=0, worot=0, wbn=49, wbw=4, tqonly=0, st0=-1, stn=6, stq=1, stp=1, srate=3, prel1=-1, ofl="nt", npoll=3, pre1=10, gspread=1, LA=2, p1n=3, win="", ea=0, eb=-1, ec=3, ecg=0, pst=-1, rev0=0, wodef=3, wnt=0, wont=0, pnt=0, xrot=1, prest=0, xnt=0, t0=0, wosched=0, G=10, stamps=0, L=4, Lb=2, L2=8, Lb2=4, force_slow=0, wb=0, codepf=1, outflag="nt", gat_at=3, pro=2, tq=-1,
           oburst=8, npre=27, rdy_at=4, prel_at=1, stampset="all")
for x in sys.argv[2:]:
    k, v = x.split("="); OPT[k] = int(v) if v.lstrip("-").isdigit() else v

def f2u(x): return struct.unpack("<I", struct.pack("<f", x))[0]

SLOT = 36864; UNIT = 10240
SC = 20480
EE_A = SC; RED = SC + 8192; OPS = 40960; EQX = SC + 28672; EXB = SC; OST = SC
BCAST = 147456 + 64
WO_BASE = 6 * UNIT
WQ_UNIT = [8, 10, 12, 0, 14]
CST = 148480
EE_A2 = 154624
OPX = 0
WS_KV = 0x600000; WS_HALO = 0x700000; WS_FLAG = 0x800000; WS_RDY = 0x810000; WS_E = 0x820000; WS_STAMP = 0x900000
WS_SIZE = 0x10000000
SPIN_MAX = 200000
EPS = f2u(1e-6)
LOG2E = 1.4426950408889634

SX, SW, SO, SD, SS, SG = 16, 20, 24, 28, 32, 36
sB, sRT, sHG, sWV, sI, sC, sXCC, sN, sFAST = 40, 41, 42, 43, 44, 45, 46, 47, 48
sXO, sWK = 50, 60
sW1K, sX2K = 70, 71
sT0, sT1, sT2, sT3 = 72, 73, 74, 75
sOB, sKVP, sKVG, sHP, sHG2, sFP, sFC = 76, 77, 78, 79, 49, 9, 8
sM = 80
sHV = 87; sTI = 86; sSPIN = 92; sCUR = 93; sDUTY = 90
sK = 94; sTM = 96; sOC = 98; sOUT = 99; sOE = 91; sKH = 85; sDFP = 84; sDFC = 83; sFPL = 82
vXD0, vXD1, vWD = 1, 2, 3
vXA0, vXA1, vWA, vWE, vL = 6, 7, 8, 9, 10
vT = 11; vST = 15
vWO = 90; vPRE = 93; vGAD = 94; vXE = 14
ACC1 = 16; WF = 56; XB = 96
def X(ks, rt): return XB + (ks * 2 + rt) * 4

a = Asm()
if OPT["exact"]:
    a.ghost_cond = {"w0": [f"s_cmp_eq_u32 s{sWV}, 0"], "i3": [f"s_cmp_eq_u32 s{sI}, 3"], "h0": [f"s_cmp_lg_u32 s{sHV}, 0"]}
AL = OPT['alias']
OS = SD if AL else SS
OP_ = 2560 if AL else 1280
OT = 16 * OP_
STAMPS = ["start", "issued", "b0", "b1", "b2", "b3", "b4", "b5", "b6", "b7", "b8", "b9", "p1end", "E1", "pub1", "p1", "p2", "p3", "p4", "p2end", "E2", "ostore", "oack", "E3", "polled", "ofirst", "g2end", "end", "first"]
FEW = {"first", "b0", "b1", "b2", "b4", "b6", "p1end", "pub1", "p2end", "ostore", "ofirst", "g2end", "end"}
def stamp(name):
    if not OPT["stamps"]: return
    if OPT["stampset"] == "few" and name not in FEW: return
    if OPT["stampset"] == "end" and name not in ("end",): return
    a(f"s_memtime {sr(sTM,2)}")
    RT = {"b0": 44, "b1": 45, "b6": 46, "p1end": 47, "pub1": 48, "p2end": 49, "ostore": 50, "ofirst": 51, "g2end": 52}
    if name in RT and OPT["rts"]: a("s_memrealtime s[100:101]")
    a("s_waitcnt lgkmcnt(0)"); a.lg = []
    a(f"v_writelane_b32 v{vST}, s{sTM}, {STAMPS.index(name)}")
    if name in RT and OPT["rts"]: a(f"v_writelane_b32 v{vST}, s100, {RT[name]}")

def srd(d, lo, hi, size):
    a(f"s_mov_b32 s{d}, s{lo}"); a(f"s_mov_b32 s{d+1}, s{hi}")
    a(f"s_mov_b32 s{d+2}, {size}"); a(f"s_mov_b32 s{d+3}, 0x20000")
def mask_ins(s, val):
    if s == "vcc": return [f"s_mov_b32 vcc_lo, 0x{val & 0xffffffff:x}", f"s_mov_b32 vcc_hi, 0x{val >> 32:x}"]
    return [f"s_mov_b32 s{s}, 0x{val & 0xffffffff:x}", f"s_mov_b32 s{s+1}, 0x{val >> 32:x}"]
def set_mask(s, val):
    for i in mask_ins(s, val): a(i)
def lanemask(f):
    m = 0
    for l in range(64):
        if f(l): m |= 1 << l
    return m

V0OK = [True]
def wvoff_ins(dst, q, pitch, swap, second):
    if q == 0: r = [f"v_and_b32 v{vT}, 0x1ff, v0" if V0OK[0] else f"v_lshl_add_u32 v{vT}, s{sWV}, 6, v{vL}"]
    elif q == 2: r = [f"s_lshl_b32 s{sT0}, s{sWV}, 6", f"s_add_u32 s{sT0}, s{sT0}, 384", f"s_mov_b32 s{sT1}, {second}", f"v_add_u32 v{vT}, s{sT0}, v{vL}"]
    else: r = [f"s_add_u32 s{sT0}, s{sWV}, {8*q}", f"s_cmp_ge_u32 s{sT0}, 10", f"s_cselect_b32 s{sT1}, {second}, 0", f"s_cselect_b32 s{sT2}, 10, 0",
         f"s_sub_u32 s{sT0}, s{sT0}, s{sT2}", f"s_lshl_b32 s{sT0}, s{sT0}, 6", f"v_add_u32 v{vT}, s{sT0}, v{vL}"]
    r += [ f"v_mul_u32_u24 v{vT+1}, 6554, v{vT}", f"v_lshrrev_b32 v{vT+1}, 16, v{vT+1}",
         f"v_mul_u32_u24 v{vT+2}, 10, v{vT+1}", f"v_sub_u32 v{vT}, v{vT}, v{vT+2}"]
    if swap:
        r += [f"v_lshrrev_b32 v{vT+2}, 1, v{vT+1}", f"v_xor_b32 v{vT+2}, v{vT+2}, v{vT+1}", f"v_and_b32 v{vT+2}, 4, v{vT+2}",
              f"v_mul_u32_u24 v{vT+2}, 3, v{vT+2}", f"v_xor_b32 v{vT+1}, v{vT+1}, v{vT+2}"]
    r += [f"v_mul_u32_u24 v{vT+1}, {pitch}, v{vT+1}", f"v_lshlrev_b32 v{vT}, 4, v{vT}", f"v_add3_u32 v{dst}, v{vT}, v{vT+1}, s{sT1}" if q else f"v_add_u32 v{dst}, v{vT}, v{vT+1}"]
    return r
def wvoff(*args):
    for i in wvoff_ins(*args): a(i)

XF = " nt" if OPT["xnt"] else ""
WFL = " nt" if OPT["wnt"] else ""
WOFL = " nt" if OPT["wont"] else ""
def dma_chunk(c, step):
    base = (step % 4) * SLOT
    ops = [([f"s_add_u32 m0, s{sX2K}, {base}"], f"buffer_load_dwordx4 v{vXD0}, {sr(SX,4)}, s{sXO+step} offen{XF} lds"),
           ([f"s_add_u32 m0, s{sX2K}, {base + 1024}"], f"buffer_load_dwordx4 v{vXD1}, {sr(SX,4)}, s{sXO+step} offen{XF} lds")]
    for q in range(3 if c == 0 else 2):
        if OPT["hackdma"] and q >= 1 and step >= 2: continue
        ops.append(([f"s_add_u32 m0, s{sW1K}, {base + 16384 + q*8192}"], f"buffer_load_dwordx4 v{vWD+q}, {sr(SW,4)}, s{sWK+step} offen{WFL} lds"))
    return ops
def dma_wq(c, u):
    base = WQ_UNIT[u] * UNIT
    ops = []
    for q in range(3 if c == 0 else 2):
        pre = []
        if q == 0: pre.append(f"s_sub_u32 s{sT3}, s{sWK+2*u}, 1280")
        elif q == 2 or c == 1: pre.append(f"s_sub_u32 s{sT3}, s{sWK+2*u+1}, 1280")
        else: pre += [f"s_cmp_lt_u32 s{sWV}, 2", f"s_cselect_b32 s{sT3}, s{sWK+2*u}, s{sWK+2*u+1}", f"s_sub_u32 s{sT3}, s{sT3}, 1280"]
        pre.append(f"s_add_u32 m0, s{sW1K}, {base + q*8192}")
        ops.append((pre, f"buffer_load_dwordx4 v{vWD+q}, {sr(SW,4)}, s{sT3} offen{WFL} lds"))
    return ops
sWOR = 86
def dma_wo(c, u):
    base = WO_BASE + u * 2 * UNIT
    ops = []
    if OPT["hackwo"]: return ops
    if u < OPT["worot"]:
        for q in range(3 if c == 0 else 2):
            pre = [f"s_lshl_b32 s{sT3}, s{sWOR+u}, 3", f"s_add_u32 s{sT3}, s{sT3}, s{sCUR}", f"s_add_u32 s{sT2}, s{sW1K}, s{sWOR+u}", f"s_add_u32 m0, s{sT2}, {WO_BASE + q*8192}"]
            ops.append((pre, f"buffer_load_dwordx4 v{vWO+q}, {sr(SO,4)}, s{sT3} offen{WOFL} lds"))
        return ops
    for q in range(3 if c == 0 else 2):
        pre = [f"s_add_u32 s{sT3}, s{sCUR}, {u*128*1280}", f"s_add_u32 m0, s{sW1K}, {base + q*8192}"]
        ops.append((pre, f"buffer_load_dwordx4 v{vWO+q}, {sr(SO,4)}, s{sT3} offen{WOFL} lds"))
    return ops
def emit_op(op, tag):
    if callable(op): return op()
    for p in op[0]: a(p)
    a(op[1], tag)

def spin_begin(name):
    a(f"s_mov_b32 s{sSPIN}, 0"); a.label(name)
def spin_check(name, done):
    a.vm = [t for t in a.vm if t != "~x"]
    a(f"s_add_u32 s{sSPIN}, s{sSPIN}, 1"); a(f"s_cmp_lt_u32 s{sSPIN}, {SPIN_MAX}"); a(f"s_cbranch_scc1 {name}")
    a.label(done)

def phi_ins(src, n, dst_list, tmp):
    r = []
    if OPT["hackphi"]:
        for d in dst_list:
            for i in range(0, n, 2): r.append(f"v_cvt_pk_bf16_f32 v{d+i//2}, v{src+i}, v{src+i+1}")
        return r
    for i in range(n): r.append(f"v_mul_f32 v{tmp+i}, s{sK}, v{src+i}")
    for i in range(n):
        r.append(f"v_exp_f32_e64 v{tmp+i}, v{tmp+i} clamp")
        r.append(f"v_max_f32 v{src+i}, s{sK+1}, v{src+i}")
    for i in range(n): r.append(f"v_add_f32 v{src+i}, v{src+i}, v{tmp+i}")
    for d in dst_list:
        for i in range(0, n, 2): r.append(f"v_cvt_pk_bf16_f32 v{d+i//2}, v{src+i}, v{src+i+1}")
    return r
def phi_pack(*args):
    for i in phi_ins(*args): a(i)
def pack_ins(src, dst):
    return [f"v_cvt_pk_bf16_f32 v{dst}, v{src}, v{src+1}", f"v_cvt_pk_bf16_f32 v{dst+1}, v{src+2}, v{src+3}"]
def pack(src, dst):
    for i in pack_ins(src, dst): a(i)
def mfma(d, A, B, C):
    c = C if isinstance(C, str) else vr(C, 4)
    a(f"v_mfma_f32_16x16x32_bf16 {vr(d,4)}, {vr(A,4)}, {vr(B,4)}, {c}")

def emit_side(x):
    if callable(x): x(); return 4
    if isinstance(x, list):
        for y in x: a(y)
        return max(1, sum(1 for y in x if y.startswith("v_")))
    a(x); return 1

def parse_pr(x):
    return {int(e.split(':')[0]): int(e.split(':')[1]) for e in str(x).split(',') if e}

def pipeline(N, reads, mf, bounds, boundary, L, Lb, bufs, newbufs={}, side={}, side_rate=3, prio=None):
    rd = 0; m = 0; tags = {}; bufof = {}; pend = []; every = 1; cnt = 0
    free = deque(bufs); bl = sorted(bounds); sq = deque()
    while m < N:
        can_read = rd < N and rd - m < L + 1 and len(free) > 0
        if can_read and rd in bounds and rd - m > Lb: can_read = False
        if can_read:
            if rd in bounds:
                for op in pend: emit_op(op[0], op[1])
                pend = list(boundary(bounds[rd]))
                nxt = [x for x in bl if x > rd]
                span = (nxt[0] if nxt else N) - rd
                every = max(1, (span - 1) // max(1, len(pend))); cnt = 0
            bufof[rd] = free.popleft()
            tags[rd] = reads(rd, bufof[rd]); rd += 1
        else:
            if prio and (m % prio[0]) in prio[1]: a(f"s_setprio {prio[1][m % prio[0]]}")
            a.wait(lg=tags[m])
            cnt += 1; op = None
            if pend and cnt % every == 0:
                op = pend.pop(0)
                if not callable(op[0]):
                    for p in op[0][0]: a(p)
            mf(m, bufof[m])
            free.append(bufof[m])
            for b_ in newbufs.get(m, []): free.append(b_)
            if op is not None:
                if callable(op[0]): op[0]()
                else: a(op[0][1], op[1])
            for x in side.get(m, []): sq.append(x)
            k = 0
            while sq and k < side_rate:
                k += emit_side(sq.popleft())
            m += 1
    for op in pend: emit_op(op[0], op[1])
    while sq: emit_side(sq.popleft())

def step_offsets_win(s):
    sizes = [int(x) for x in str(OPT["win"]).split(",")]
    w0 = 0
    for sz in sizes:
        if s < w0 + sz: break
        w0 += sz
    if sz == 1:
        a(f"s_add_u32 s{sWK+s}, s5, {s*245760}"); a(f"s_add_u32 s{sXO+s}, s4, {s*128}")
        return
    a(f"s_add_u32 s{sT3}, s{sCUR}, {s - w0}"); a(f"s_and_b32 s{sT3}, s{sT3}, {sz-1}"); a(f"s_add_u32 s{sT3}, s{sT3}, {w0}")
    a(f"s_mul_i32 s{sWK+s}, s{sT3}, 245760"); a(f"s_add_u32 s{sWK+s}, s{sWK+s}, s5")
    a(f"s_lshl_b32 s{sXO+s}, s{sT3}, 7"); a(f"s_add_u32 s{sXO+s}, s{sXO+s}, s4")

def touch_steps(c, s0, n, par, tag):
    a(f"s_lshr_b32 s3, s2, 3"); a(f"s_and_b32 s6, s3, 1"); a(f"s_cmp_eq_u32 s6, {par}"); a(f"s_cbranch_scc0 L_nt_{tag}")
    a(f"s_lshr_b32 s3, s3, 1")
    a(f"s_and_b32 s6, s2, 3")
    if c == 1:
        a(f"s_cmp_eq_u32 s{sWV}, 4"); a(f"s_cbranch_scc0 L_tw_{tag}")
    if n < 5 and c == 1: a(f"s_branch L_nt_{tag}")
    else:
        a(f"s_lshl_b32 s6, s6, 4"); a(f"s_add_u32 s6, s6, s3"); a(f"s_mul_i32 s6, s6, {32*1280}")
        a(f"s_lshl_b32 s7, s{sWV}, 7"); a(f"s_add_u32 s6, s6, s7"); a(f"s_add_u32 s6, s6, {s0*128}")
        a(f"v_mul_u32_u24 v86, 1280, v{vL}")
        a("s_mov_b32 exec_hi, 0")
        a(f"buffer_load_dword v87, v86, {sr(SX,4)}, s6 offen nt", "~t")
        a("s_mov_b32 exec_hi, -1")
        if c == 1: a(f"s_branch L_nt_{tag}")
    if c == 1:
        a.label(f"L_tw_{tag}")
        a(f"s_lshl_b32 s6, s6, 4"); a(f"s_add_u32 s6, s6, s3"); a(f"s_mul_i32 s6, s6, 3840"); a(f"s_add_u32 s6, s6, {s0*245760 + 1280}")
        a(f"s_sub_u32 s7, s{sWV}, 5"); a(f"s_mul_i32 s7, s7, 34")
        a(f"v_add_u32 v86, s7, v{vL}"); a(f"v_min_u32 v86, {20*n-1}, v86")
        a(f"v_mul_u32_u24 v87, 3277, v86"); a(f"v_lshrrev_b32 v87, 16, v87")
        a(f"v_mul_u32_u24 v88, 20, v87"); a(f"v_sub_u32 v86, v86, v88"); a(f"v_lshlrev_b32 v86, 7, v86")
        a(f"v_mul_u32_u24 v87, 245760, v87"); a(f"v_add_u32 v86, v86, v87")
        a("s_mov_b32 exec_hi, 3")
        a(f"buffer_load_dword v87, v86, {sr(SW,4)}, s6 offen", "~t")
        a("s_mov_b32 exec_hi, -1")
    a.label(f"L_nt_{tag}")

vTX, vTW, vTD = 79, 89, 95
sTXB, sTWB = 12, 13
def tc_setup(sx, sw):
    a(f"v_lshrrev_b32 v{vTX}, 1, v{vL}"); a(f"v_mul_u32_u24 v{vTX}, 1280, v{vTX}"); a(f"v_and_b32 v{vTW}, 1, v{vL}"); a(f"v_lshl_add_u32 v{vTX}, v{vTW}, 7, v{vTX}")
    a(f"v_mul_u32_u24 v{vTW}, 3277, v{vL}"); a(f"v_lshrrev_b32 v{vTW}, 16, v{vTW}"); a(f"v_mul_u32_u24 v{vTW}, {3840 - 2560}, v{vTW}")
    a(f"v_lshl_add_u32 v{vTW}, v{vL}, 7, v{vTW}")
    a(f"s_lshr_b32 s6, s2, 3"); a(f"s_and_b32 s7, s2, 3"); a("s_lshl_b32 s7, s7, 5"); a("s_add_u32 s7, s7, s6"); a(f"s_mul_i32 s{sx}, s7, 20480")
    a(f"s_mul_i32 s{sw}, s6, 15360"); a(f"s_add_u32 s{sw}, s{sw}, 1280")
def tc_issue(s0, sx, sw, tag="~t"):
    a(f"s_add_u32 s6, s{sx}, {s0*128}"); a(f"s_add_u32 s7, s{sw}, {s0*245760}")
    a("s_mov_b32 exec_hi, 0")
    a(f"buffer_load_dword v{vTD}, v{vTX}, {sr(SX,4)}, s6 offen", tag)
    a("s_mov_b32 exec_hi, 0xff")
    a(f"buffer_load_dword v{vTD}, v{vTW}, {sr(SW,4)}, s7 offen", tag)
    a("s_add_u32 s7, s7, 7680")
    a(f"buffer_load_dword v{vTD}, v{vTW}, {sr(SW,4)}, s7 offen", tag)
    a("s_mov_b32 exec_hi, -1")

def touch_qo(c):
    if OPT["tqonly"] and c == 1: return
    a(f"s_lshl_b32 s3, s{sRT}, 3"); a(f"s_add_u32 s3, s3, s{sHG}"); a(f"s_mul_i32 s3, s3, 50"); a(f"s_mul_i32 s6, s{sI}, 13"); a("s_add_u32 s3, s3, s6")
    a(f"v_add_u32 v86, s3, v{vL}")
    if c == 0:
        a(f"v_mul_u32_u24 v87, 52429, v86"); a(f"v_lshrrev_b32 v87, 19, v87")
        a(f"v_mul_u32_u24 v88, 10, v87"); a(f"v_sub_u32 v86, v86, v88"); a(f"v_lshlrev_b32 v86, 7, v86")
        a(f"v_mul_u32_u24 v87, 3840, v87"); a(f"v_add_u32 v86, v86, v87")
    else:
        a(f"v_lshlrev_b32 v86, 7, v86")
    a("s_mov_b64 exec, 0x1fff")
    a(f"buffer_load_dword v95, v86, {sr(SW if c == 0 else SO,4)}, 0 offen")
    a("s_mov_b64 exec, -1")

def prestore(c):
    a(f"s_lshl_b32 s3, s{sHG}, 11"); a(f"s_add_u32 s3, s3, s{sOB}"); a(f"s_add_u32 s3, s3, {c*1024}"); a("s_add_u32 s4, s3, 20480")
    a(f"s_lshl_b32 s5, s{sHG}, 9"); a(f"s_add_u32 s5, s5, s{sOB}"); a(f"s_add_u32 s5, s5, {16384 + c*256}"); a("s_add_u32 s6, s5, 20480")
    a(f"v_lshlrev_b32 v79, 4, v{vL}")
    a(f"buffer_store_dwordx4 v[80:83], v79, {sr(SS,4)}, s3 offen sc1")
    a(f"buffer_store_dwordx4 v[80:83], v79, {sr(SS,4)}, s4 offen sc1")
    a("s_mov_b64 exec, 0xffff")
    a(f"buffer_store_dwordx4 v[80:83], v79, {sr(SS,4)}, s5 offen sc1")
    a(f"buffer_store_dwordx4 v[80:83], v79, {sr(SS,4)}, s6 offen sc1")
    a("s_mov_b64 exec, -1")

def step_offsets(s):
    if OPT["win"]: return step_offsets_win(s)
    G = OPT["G"]; w0 = (s // G) * G
    if w0: a(f"s_add_u32 s{sT3}, s{sCUR}, {w0}"); src = sT3
    else: src = sCUR
    a(f"s_mul_i32 s{sWK+s}, s{src}, 245760"); a(f"s_add_u32 s{sWK+s}, s{sWK+s}, s5")
    a(f"s_lshl_b32 s{sXO+s}, s{src}, 7"); a(f"s_add_u32 s{sXO+s}, s{sXO+s}, s4")
    if G > 1 and s < 9:
        a(f"s_add_u32 s{sCUR}, s{sCUR}, 1"); a(f"s_cmp_eq_u32 s{sCUR}, {G}"); a(f"s_cselect_b32 s{sCUR}, 0, s{sCUR}")

sTCX, sTCW = 88, 89
def tc_start():
    f0 = OPT["tcpos"]
    a(f"s_cmp_lt_u32 s{sWV}, {OPT['tc0']}"); a("s_cbranch_scc0 L_notc0")
    a(f"s_mul_i32 s6, s{sWV}, 256"); a(f"s_add_u32 s{sT0}, s{sTCX}, s6"); a(f"s_mul_i32 s6, s{sWV}, {2*245760}"); a(f"s_add_u32 s{sT1}, s{sTCW}, s6")
    tc_issue(OPT["tcs"], sT0, sT1)
    a.label("L_notc0")

SCHED = {}
for ent in str(OPT["sched"]).split(","):
    if ent:
        p_, ks = ent.split(":"); SCHED[int(p_)] = [int(x) for x in ks.split(".")]
for p_, ks in SCHED.items():
    for k in ks: assert k - p_ <= 3 and k - p_ >= 1

def prologue():
    a.raw(f"; @launch grid=(256,1,1) block=(512,1,1) lds=163840")
    a.raw('.amdgcn_target "amdgcn-amd-amdhsa--gfx950"')
    a.raw(".text"); a.raw(f".globl {KNAME}"); a.raw(".p2align 8"); a.raw(f".type {KNAME},@function")
    a.label(KNAME)
    a("s_cmp_ge_u32 s2, 256")
    a("s_cbranch_scc1 L_end")
    a(f"s_bfe_u32 s{sB}, s2, 0x10002")
    a(f"s_mul_i32 s3, s{sB}, 24")
    a("s_add_u32 s76, s0, s3"); a("s_addc_u32 s77, s1, 0")
    if OPT["lean2"]:
        a(f"s_load_dwordx2 s[{SX}:{SX+1}], s[76:77], 0"); a(f"s_load_dwordx2 s[{SW}:{SW+1}], s[76:77], 8")
    else:
        a(f"s_load_dwordx4 s[{sM}:{sM+3}], s[76:77], 0")
        a("s_load_dwordx2 s[8:9], s[76:77], 16")
        a("s_load_dwordx4 s[12:15], s[0:1], 48")
        a("s_load_dwordx2 s[10:11], s[0:1], 64")
    a(f"v_lshrrev_b32 v{vT}, 6, v0")
    a(f"v_and_b32 v{vL}, 63, v0")
    a(f"v_readfirstlane_b32 s{sWV}, v{vT}")
    if OPT["stamps"]:
        a(f"v_mov_b32 v{vST}, 0"); a(f"s_memtime {sr(sTM,2)}"); a("s_memrealtime s[100:101]")
    a(f"v_lshrrev_b32 v{vT}, 3, v{vL}")
    a(f"v_lshrrev_b32 v{vT+1}, 4, v{vL}")
    a(f"v_xor_b32 v{vT+1}, v{vT+1}, v{vL}")
    a(f"v_and_b32 v{vT+1}, 7, v{vT+1}")
    a(f"v_mul_u32_u24 v{vT}, 1280, v{vT}")
    a(f"v_lshl_add_u32 v{vXD0}, v{vT+1}, 4, v{vT}")
    a(f"v_xor_b32 v{vXD1}, 64, v{vXD0}")
    a(f"v_add_u32 v{vXD1}, 10240, v{vXD1}")
    a(f"s_and_b32 s{sRT}, s2, 3"); a(f"s_lshl_b32 s{sRT}, s{sRT}, 2")
    a(f"s_bfe_u32 s3, s2, 0x20003"); a(f"s_add_u32 s{sRT}, s{sRT}, s3")
    a(f"s_lshr_b32 s{sHG}, s2, 5")
    a(f"s_lshr_b32 s{sC}, s{sWV}, 2")
    a(f"s_lshl_b32 s{sW1K}, s{sWV}, 10"); a(f"s_lshl_b32 s{sX2K}, s{sWV}, 11")
    G = OPT["G"]
    if OPT["win"]: a(f"s_mov_b32 s{sCUR}, s3")
    elif G == 1: a(f"s_mov_b32 s{sCUR}, 0")
    elif G == 2: a(f"s_add_u32 s{sCUR}, s3, s{sHG}"); a(f"s_and_b32 s{sCUR}, s{sCUR}, 1")
    else:
        if OPT["rot2"]:
            a(f"s_mul_i32 s{sCUR}, s3, 5"); a(f"s_add_u32 s{sCUR}, s{sCUR}, 1"); a(f"s_lshr_b32 s{sCUR}, s{sCUR}, 1")
            a(f"s_add_u32 s{sCUR}, s{sCUR}, s{sHG}")
            if OPT["rot2"] == 1: a(f"s_lshr_b32 s{sT1}, s{sHG}, 2"); a(f"s_add_u32 s{sCUR}, s{sCUR}, s{sT1}")
            if OPT["rot2"] == 3: a(f"s_add_u32 s{sCUR}, s{sCUR}, s{sHG}"); a(f"s_add_u32 s{sCUR}, s{sCUR}, s{sHG}")
        else:
            a(f"s_lshl_b32 s{sCUR}, s3, 1"); a(f"s_add_u32 s{sCUR}, s{sCUR}, s{sHG}")
        if OPT["xrot"]: a(f"s_and_b32 s{sT1}, s2, 3"); a(f"s_add_u32 s{sCUR}, s{sCUR}, s{sT1}")
        for _ in range(3 if G == 5 or OPT['rot2'] == 3 else 1):
            a(f"s_cmp_ge_u32 s{sCUR}, {G}"); a(f"s_cselect_b32 s{sT1}, {G}, 0"); a(f"s_sub_u32 s{sCUR}, s{sCUR}, s{sT1}")
    a(f"s_lshl_b32 s4, s{sRT}, 3"); a(f"s_add_u32 s4, s4, s{sWV}"); a(f"s_mul_i32 s4, s4, 20480")
    a(f"s_mul_i32 s5, s{sHG}, 160"); a(f"s_add_u32 s5, s5, 1280")
    step_offsets(0)
    def cpf_addr():
        a("s_getpc_b64 s[6:7]")
        a.label(f"L_pc")
        a(f"s_sub_u32 s6, s6, L_pc-{KNAME}"); a("s_subb_u32 s7, s7, 0")
        a(f"s_lshr_b32 s3, s2, 3"); a(f"s_lshl_b32 s3, s3, 3"); a(f"s_add_u32 s3, s3, s{sWV}"); a("s_lshl_b32 s3, s3, 8")
        a(f"v_lshl_add_u32 v88, v{vL}, 7, s3")
        a(f"v_min_u32 v88, L_codeend-{KNAME}-4, v88")
        a(f"v_mov_b32 v87, s7")
        a(f"v_add_co_u32 v86, vcc, s6, v88")
        a(f"v_addc_co_u32 v87, vcc, 0, v87, vcc")
    def cpf_go():
        a("s_mov_b64 exec, 3"); a(f"global_load_dword v95, v[86:87], off"); a("s_mov_b64 exec, -1")
    LEAN = OPT["lean"]
    if not OPT["lean2"]:
        for q in range(1 if LEAN else 2): wvoff(vWD + q, q, 3840, True, 1280)
    a(f"s_mov_b32 s{SX+2}, 2621440"); a(f"s_mov_b32 s{SX+3}, 0x20000"); a(f"s_mov_b32 s{SW+2}, 2457600"); a(f"s_mov_b32 s{SW+3}, 0x20000")
    if OPT["codepf"] and not LEAN: cpf_addr()
    if OPT["tc0"]: tc_setup(sTCX, sTCW)
    a("s_waitcnt lgkmcnt(0)")
    if not OPT["lean2"]:
        a(f"s_mov_b32 s{SX}, s{sM}"); a(f"s_mov_b32 s{SX+1}, s{sM+1}"); a(f"s_mov_b32 s{SW}, s{sM+2}"); a(f"s_mov_b32 s{SW+1}, s{sM+3}")
    if OPT["codepf"] == 1 and not LEAN: cpf_go()
    if OPT["stamps"]:
        a(f"v_writelane_b32 v{vST}, s{sTM}, 0"); stamp("first")
    if OPT["tc0"] and OPT["tcpos"] == 0: tc_start()
    ops = dma_chunk(0, 0)
    if OPT["lean2"]:
        for op in ops[:2]: emit_op(op, "ch0")
        a("s_load_dwordx2 s[8:9], s[76:77], 16"); a("s_load_dwordx4 s[12:15], s[0:1], 48"); a("s_load_dwordx2 s[10:11], s[0:1], 64")
        wvoff(vWD, 0, 3840, True, 1280)
        emit_op(ops[2], "ch0")
    else:
        for op in ops[:3]: emit_op(op, "ch0")
    if LEAN:
        if OPT["codepf"] == 1: cpf_addr(); cpf_go()
        wvoff(vWD + 1, 1, 3840, True, 1280)
    emit_op(ops[3], "ch0")
    wvoff(vWD + 2, 2, 3840, True, 1280)
    a(f"s_cmp_eq_u32 s{sC}, 0"); a("s_cbranch_scc0 L_no5")
    emit_op(ops[4], "~c0")
    a.label("L_no5")
    if OPT["tc0"] and OPT["tcpos"] == 1: tc_start()
    if OPT["codepf"] == 2:
        if LEAN: cpf_addr()
        cpf_go()
    if OPT["stamps"]:
        a(f"v_writelane_b32 v{vST}, s100, 40")
    if OPT["lean2"]: a("s_waitcnt lgkmcnt(0)")
    srd(SS, 10, 11, WS_SIZE); srd(SG, 14, 15, 256)
    a(f"s_and_b32 s{sI}, s{sWV}, 3")
    a(f"s_or_b32 s3, s2, s{sWV}"); a("s_cmp_eq_u32 s3, 0"); a(f"s_cbranch_scc0 L_nn0")
    a(f"s_add_u32 s6, s10, {WS_E}"); a("s_addc_u32 s7, s11, 0")
    a(f"s_load_dword s{sN}, s[6:7], 0")
    a.label("L_nn0")
    if OPT["tbal"]: a(f"s_mul_i32 s7, s{sC}, 3"); a(f"s_xor_b32 s{sTI}, s{sI}, s7")
    else: a(f"s_mov_b32 s{sTI}, s{sI}")
    a(f"s_lshl_b32 s6, s{sHG}, 16"); a(f"s_lshl_b32 s7, s{sTI}, 9"); a(f"s_add_u32 s6, s6, s7")
    a(f"s_lshl_b32 s7, s{sC}, 11"); a("s_add_u32 s6, s6, s7")
    a(f"s_add_u32 s{sKVG}, s6, {WS_KV}")
    a(f"s_lshl_b32 s7, s{sRT}, 12"); a(f"s_add_u32 s{sKVP}, s{sKVG}, s7")
    a(f"s_lshl_b32 s6, s{sRT}, 3"); a(f"s_add_u32 s6, s6, s{sHG}"); a(f"s_mul_i32 s6, s6, 6144")
    a(f"s_mul_i32 s7, s{sC}, 3072"); a(f"s_add_u32 s{sHP}, s6, s7"); a(f"s_add_u32 s{sHP}, s{sHP}, {WS_HALO}")
    a(f"s_add_u32 s{sHG2}, s6, {WS_HALO - 8*6144}")
    a(f"v_mov_b32 v76, -1"); a(f"v_mov_b32 v77, -1"); a(f"v_lshlrev_b32 v78, 3, v{vL}")
    a(f"s_cmp_eq_u32 s{sB}, 0"); a(f"s_cbranch_scc0 L_preB")
    a(f"buffer_store_dwordx2 v[76:77], v78, {sr(SS,4)}, s{sKVP} offen sc1", "~preA")
    a(f"s_branch L_pred")
    a.label(f"L_preB")
    a(f"s_cmp_eq_u32 s{sI}, 3"); a(f"s_cbranch_scc0 L_pred")
    for k in range(5): a(f"buffer_store_dwordx2 v[76:77], v78, {sr(SS,4)}, s{sHP} offen offset:{k*512} sc1", "~preB")
    a.label(f"L_pred")
    step_offsets(1)
    for op in dma_chunk(0, 1)[:OPT["p1n"]]: emit_op(op, "ch1")
    stamp("issued")
    a(f"s_lshl_b32 s3, s{sB}, 1"); a(f"s_add_u32 s3, s3, s{sC}")
    a("s_cmp_eq_u32 s3, 1"); a("s_cbranch_scc1 L_path_01")
    a("s_cmp_eq_u32 s3, 2"); a("s_cbranch_scc1 L_path_10")
    a("s_cmp_eq_u32 s3, 3"); a("s_cbranch_scc1 L_path_11")

def prologue2(b, c):
    P = f"{b}{c}"
    if OPT["ea"]: touch_steps(c, 1, 5, 0, f"ea{P}")
    for s in range(2, 10): step_offsets(s)
    srd(SO, 8, 9, 819200); srd(SD, 12, 13, 5242880)
    a(f"s_getreg_b32 s{sXCC}, hwreg(HW_REG_XCC_ID, 0, 3)")
    a(f"s_mul_i32 s{sCUR}, s{sHG}, 160")
    if P == "00":
        a(f"s_or_b32 s3, s2, s{sWV}"); a("s_cmp_eq_u32 s3, 0"); a(f"s_cbranch_scc0 L_nononce")
        a("s_waitcnt lgkmcnt(0)")
        a(f"s_add_u32 s6, s{sN}, 0x9e3779b0"); a("s_or_b32 s6, s6, 8"); a("s_andn2_b32 s6, s6, 7")
        a(f"v_mov_b32 v{vT}, s6"); a(f"v_mov_b32 v{vT+1}, 0"); a(f"s_mov_b32 s3, {WS_E}")
        a("s_mov_b64 exec, 1")
        a(f"buffer_store_dword v{vT}, v{vT+1}, {sr(SG,4)}, 0 offen sc1", "~n")
        a(f"buffer_store_dword v{vT}, v{vT+1}, {sr(SS,4)}, s3 offen sc1", "~n")
        a("s_mov_b64 exec, -1")
        a.label("L_nononce")
    a(f"v_and_b32 v{vT}, 15, v{vL}"); a(f"v_lshrrev_b32 v{vT+1}, 4, v{vL}")
    a(f"v_lshrrev_b32 v{vT+2}, 1, v{vT}"); a(f"v_xor_b32 v{vT+2}, v{vT+2}, v{vT+1}"); a(f"v_lshlrev_b32 v{vT+2}, 4, v{vT+2}")
    a(f"v_lshl_add_u32 v{vT+2}, v{vT}, 7, v{vT+2}")
    a(f"s_lshl_b32 s3, s{sI}, 12")
    a(f"v_add_u32 v{vXA0}, s3, v{vT+2}"); a(f"v_xor_b32 v{vXA1}, 64, v{vXA0}")
    a(f"v_lshrrev_b32 v{vT}, 5, v{vL}"); a(f"v_lshlrev_b32 v{vT}, 4, v{vT}")
    a(f"v_bfe_u32 v{vT+2}, v{vL}, 2, 3"); a(f"v_add_u32 v{vT}, v{vT}, v{vT+2}"); a(f"v_mul_u32_u24 v{vT}, 160, v{vT}")
    a(f"v_and_b32 v{vT+1}, 3, v{vL}")
    a(f"v_lshl_add_u32 v{vWA}, v{vT+1}, 3, v{vT}")
    if c: a(f"v_add_u32 v{vWA}, 80, v{vWA}")
    a(f"v_mad_u32_u24 v{vWE}, v{vT+1}, 40, v{vT}")
    a(f"v_add_u32 v{vWE}, {32 + (UNIT if c else 0)}, v{vWE}")
    a(f"s_lshl_b32 s3, s{sB}, 4"); a(f"s_add_u32 s3, s3, s{sRT}")
    a(f"s_lshl_b32 s4, s{sRT}, 3")
    boff = (1280 if AL else 128 * OT) * b
    a(f"s_lshl_b32 s5, s{sI}, 1"); a(f"s_add_u32 s5, s5, s4"); a(f"s_mul_i32 s{sOB}, s5, {OT}")
    if b: a(f"s_add_u32 s{sOB}, s{sOB}, {boff}")
    a(f"s_and_b32 s{sKH}, s{sWV}, 1")
    a(f"s_add_u32 s5, s4, s{sWV}"); a(f"s_mul_i32 s{sOUT}, s5, 40960")
    if b: a(f"s_add_u32 s{sOUT}, s{sOUT}, 1280")
    a(f"s_sub_u32 s5, s5, s{sKH}"); a(f"s_mul_i32 s{sOC}, s5, {OT}")
    a(f"s_mul_i32 s5, s{sKH}, {8*OP_}"); a(f"s_add_u32 s{sOC}, s{sOC}, s5")
    if b: a(f"s_add_u32 s{sOC}, s{sOC}, {boff}")
    a(f"s_mov_b32 s{sOE}, s{sOC}")
    a(f"s_add_u32 s{sOUT}, s{sOUT}, s{sCUR}")
    a(f"s_lshl_b32 s4, s3, 2")
    a(f"s_add_u32 s5, s4, s{sI}"); a(f"s_lshl_b32 s5, s5, 7"); a(f"s_lshl_b32 s6, s{sHG}, 3"); a(f"s_add_u32 s5, s5, s6")
    a(f"s_add_u32 s{sFP}, s5, {WS_FLAG + 4*c}")
    a(f"s_lshr_b32 s5, s{sWV}, 1"); a(f"s_add_u32 s5, s5, s4"); a(f"s_lshl_b32 s5, s5, 7"); a(f"s_add_u32 s5, s5, {WS_FLAG}")
    a(f"s_add_u32 s{sDFC}, s5, 64")
    a(f"s_lshl_b32 s7, s{sKH}, 2"); a(f"s_add_u32 s{sDFP}, s{sDFC}, s6"); a(f"s_add_u32 s{sDFP}, s{sDFP}, s7")
    a(f"s_lshl_b32 s7, s{sKH}, 5"); a(f"s_add_u32 s{sFC}, s5, s7")
    a(f"s_mov_b32 s{sK}, 0x{f2u(LOG2E):x}"); a(f"s_mov_b32 s{sK+1}, 0x{EPS:x}")
    for i in range(4): a(f"v_mov_b32 v{80+i}, s{sK+1}")
    a("v_mov_b32 v84, 0")
    if OPT["t0"]: touch_qo(c)
    if OPT["worot"]:
        R_ = OPT["worot"]
        a(f"s_and_b32 s3, s{sRT}, 3")
        for u in range(R_):
            a(f"s_add_u32 s4, s3, {u}")
            for _ in range(2): a(f"s_cmp_ge_u32 s4, {R_}"); a(f"s_cselect_b32 s5, {R_}, 0"); a("s_sub_u32 s4, s4, s5")
            a(f"s_mul_i32 s{sWOR+u}, s4, 20480")
    if OPT["st0"] >= 0:
        a(f"s_lshr_b32 s3, s2, 3"); a(f"s_mul_i32 s4, s3, {(65536 + OPT['stn'] - 1) // OPT['stn']}"); a("s_lshr_b32 s4, s4, 16")
        a(f"s_mul_i32 s4, s4, {OPT['stn']}"); a(f"s_sub_u32 s{sDUTY}, s3, s4")
    if (OPT["tc"] or OPT["tcm"]) and not OPT["tc0"]: tc_setup(sTCX, sTCW)
    for q in range(3 if c == 0 else 2): wvoff(vWO + q, q, 1280, False, 64 * 1280)
    a(f"v_and_b32 v{vT}, 7, v{vL}"); a(f"v_lshlrev_b32 v{vT}, 7, v{vT}")
    a(f"s_mul_i32 s3, s{sHG}, {2*OP_}"); a(f"s_add_u32 s3, s3, {c*OP_}")
    a(f"v_add_u32 v{vT}, s3, v{vT}")
    a(f"v_bfe_u32 v{vT+1}, v{vL}, 3, 1"); a(f"v_mul_u32_u24 v{vT+1}, {OT}, v{vT+1}"); a(f"v_add_u32 v{vT}, v{vT}, v{vT+1}")
    a(f"v_and_b32 v{vT+1}, 1, v{vL}"); a(f"v_lshlrev_b32 v{vT+1}, 7, v{vT+1}")
    a(f"s_add_u32 s3, s3, 1024")
    a(f"v_add_u32 v{vT+1}, s3, v{vT+1}")
    a(f"v_bfe_u32 v{vT+2}, v{vL}, 1, 1"); a(f"v_mul_u32_u24 v{vT+2}, {OT}, v{vT+2}"); a(f"v_add_u32 v{vT+1}, v{vT+1}, v{vT+2}")
    set_mask("vcc", 0xffff)
    a(f"v_cndmask_b32 v{vPRE}, v{vT+1}, v{vT}, vcc")
    Z = 56; T1 = 57; T2_ = 58
    a(f"v_mov_b32 v{Z}, 0")
    if b == 0:
        a(f"v_and_b32 v{vGAD}, 31, v{vL}"); a(f"v_lshlrev_b32 v{vGAD}, 4, v{vGAD}"); a(f"v_lshrrev_b32 v{vT}, 5, v{vL}"); a(f"v_lshl_add_u32 v{vGAD}, v{vT}, 15, v{vGAD}")
        selm = lambda l: ((l >> 3) & 1) == ((l >> 4) & 1)
        a(f"v_mov_b32 v{T1}, 0x3f80"); a(f"v_mov_b32 v{T2_}, 0x3f800000")
        set_mask("vcc", lanemask(lambda l: l & 1)); a(f"v_cndmask_b32 v{T1}, v{T1}, v{T2_}, vcc")
        for r in range(4):
            set_mask("vcc", lanemask(lambda l: selm(l) and ((l & 7) >> 1) == r)); a(f"v_cndmask_b32 v{16+r}, v{Z}, v{T1}, vcc")
        a(f"v_mov_b32 v20, s{sK+1}"); a(f"v_mov_b32 v21, s{sK+1}"); a("v_mov_b32 v22, 0"); a("v_mov_b32 v23, 0")
        a(f"v_and_b32 v24, 15, v{vL}"); a("v_lshlrev_b32 v24, 1, v24"); a(f"v_and_b32 v25, 32, v{vL}"); a("v_add_u32 v24, v24, v25")
        a(f"v_bfe_u32 v25, v{vL}, 4, 1"); a("v_add_u32 v24, v24, v25"); a("v_lshlrev_b32 v24, 3, v24")
        a(f"v_lshlrev_b32 v25, 3, v{vL}"); a("v_xor_b32 v25, 256, v25"); a("v_mov_b32 v26, 0"); a("v_mov_b32 v27, 0")
        ncst = 3
    else:
        dd = lambda l, j: (l & 15) - 4 * (l >> 4) - j
        own = lambda l, j: dd(l, j) >= 0 and dd(l, j) % 2 == 0
        prv = lambda l, j: dd(l, j) <= -2 and dd(l, j) % 2 == 0
        a(f"v_mov_b32 v{T1}, 0x{f2u(-1e30):x}")
        for j in range(4):
            set_mask("vcc", lanemask(lambda l: own(l, j))); a(f"v_cndmask_b32 v{16+j}, v{T1}, v{Z}, vcc")
            set_mask("vcc", lanemask(lambda l: prv(l, j))); a(f"v_cndmask_b32 v{20+j}, v{T1}, v{Z}, vcc")
            a(f"v_mov_b32 v{24+j}, 0x3f803f80")
        a(f"v_mov_b32 v{T1}, 0xffff"); a(f"v_mov_b32 v{T2_}, 0xffff0000")
        set_mask("vcc", lanemask(lambda l: l & 1)); a(f"v_cndmask_b32 v{T1}, v{T1}, v{T2_}, vcc")
        for k, (fn, pr) in enumerate(((prv, 0), (prv, 1), (own, 0), (own, 1))):
            set_mask("vcc", lanemask(lambda l: fn(l, 2 * pr + (l & 1)))); a(f"v_cndmask_b32 v{28+k}, v{Z}, v{T1}, vcc")
        ncst = 4
    a(f"v_lshlrev_b32 v{vT}, 4, v{vL}"); a(f"v_add_u32 v{vT}, {CST}, v{vT}")
    for k in range(ncst): a(f"ds_write_b128 v{vT}, {vr(16+4*k,4)} offset:{k*1024}")
    a.wait(lg="all")

def path(b, c):
    P = f"{b}{c}"; A_ = (b == 0)
    FB = A_ and OPT["fewb"]
    WQ_UNIT[:] = [8, 10, 12, 0, 2] if FB else [8, 10, 12, 0, 14]
    a.label(f"L_path_{P}")
    pstart = len(a.lines)
    a.vm = [("ch0" if (t == "~c0" and c == 0) else t) for t in a.vm]
    a.vm = [t for t in a.vm if not (t == "~preA" and b == 1) and not (t == "~preB" and b == 0) and not (t == "~c0")]
    a.vm = [{"~preA": "preA", "~preB": "~i3pre"}.get(t, t) for t in a.vm]
    a(f"s_cmp_eq_u32 s{sI}, 0"); a(f"s_cselect_b32 s{sHV}, s{sRT}, 0")
    prologue2(b, c)
    vN0, vN1 = 84, 85
    def w0_begin(tag): a(f"s_cmp_eq_u32 s{sWV}, 0"); a(f"s_cbranch_scc0 L_{tag}_{P}")
    def w0_end(tag): a.label(f"L_{tag}_{P}")
    def nonce_load():
        w0_begin("nl")
        a(f"v_mov_b32 v{vN0}, 0")
        a(f"buffer_load_dword v{vN1}, v{vN0}, {sr(SG,4)}, 0 offen sc1", "~w0nonce")
        w0_end("nl")
    def nonce_check():
        w0_begin("nc")
        a.wait(vm="~w0nonce", keep=True)
        a(f"v_readfirstlane_b32 s{sN}, v{vN1}")
        a(f"s_cmp_lg_u32 s{sN}, 0"); a(f"s_cbranch_scc1 L_nok_{P}")
        spin_begin(f"L_nsp_{P}")
        a(f"buffer_load_dword v{vN1}, v{vN0}, {sr(SG,4)}, 0 offen sc1", "~x"); a("s_waitcnt vmcnt(0)")
        a(f"v_readfirstlane_b32 s{sN}, v{vN1}")
        a(f"s_cmp_lg_u32 s{sN}, 0"); a(f"s_cbranch_scc1 L_nok_{P}")
        spin_check(f"L_nsp_{P}", f"L_nok_{P}")
        a(f"s_lshl_b32 s3, s{sB}, 4"); a(f"s_add_u32 s3, s3, s{sRT}"); a(f"s_lshl_b32 s3, s3, 3"); a(f"s_add_u32 s3, s3, s{sHG}")
        a(f"s_lshl_b32 s3, s3, 7"); a(f"s_add_u32 s3, s3, {WS_RDY}")
        a(f"s_or_b32 s4, s{sN}, s{sXCC}")
        a(f"v_mov_b32 v{vN1}, s4")
        a("s_mov_b64 exec, 1")
        a(f"buffer_store_dword v{vN1}, v{vN0}, {sr(SS,4)}, s3 offen sc1", "~w0st")
        a("s_mov_b64 exec, -1")
        w0_end("nc")
    def rdy_load():
        w0_begin("rl")
        a(f"s_lshl_b32 s3, s{sB}, 4"); a(f"s_add_u32 s4, s3, s{sRT}"); a(f"s_lshl_b32 s4, s4, 3")
        a(f"v_add_u32 v{vN0}, s4, v{vL}")
        if A_:
            a(f"s_lshl_b32 s5, s3, 3"); a(f"s_add_u32 s5, s5, s{sHG}"); a(f"s_sub_u32 s5, s5, 64")
            a(f"v_lshl_add_u32 v{vN1}, v{vL}, 3, s5")
        else:
            a(f"s_max_u32 s5, s{sRT}, 1"); a(f"s_sub_u32 s5, s5, 1"); a(f"s_add_u32 s5, s5, s3"); a(f"s_lshl_b32 s5, s5, 3"); a(f"s_add_u32 s5, s5, s{sHG}")
            a(f"v_mov_b32 v{vN1}, s5")
        set_mask(sM, 0xff)
        a(f"v_cndmask_b32_e64 v{vN0}, v{vN1}, v{vN0}, {sr(sM,2)}")
        a(f"v_lshlrev_b32 v{vN0}, 7, v{vN0}")
        a(f"s_mov_b32 s3, {WS_RDY}")
        a(f"s_mov_b64 exec, {0xffffff if A_ else 0x1ff}")
        a(f"buffer_load_dword v{vN1}, v{vN0}, {sr(SS,4)}, s3 offen sc1", "~w0rdy")
        a("s_mov_b64 exec, -1")
        w0_end("rl")
    def rdy_check():
        em = 0xffffff if A_ else 0x1ff
        w0_begin("rc")
        a.wait(vm="~w0rdy", keep=True)
        def test():
            a(f"v_and_b32 v{vN1+1}, -8, v{vN1}")
            a(f"s_mov_b64 exec, {em}")
            a(f"v_cmp_ne_u32 vcc, s{sN}, v{vN1+1}")
            a("s_mov_b64 exec, -1")
            a(f"s_cbranch_vccz L_rok_{P}")
        test()
        spin_begin(f"L_rsp_{P}")
        a(f"s_mov_b32 s3, {WS_RDY}")
        a(f"s_mov_b64 exec, {em}")
        a(f"buffer_load_dword v{vN1}, v{vN0}, {sr(SS,4)}, s3 offen sc1", "~x"); a("s_waitcnt vmcnt(0)")
        test()
        spin_check(f"L_rsp_{P}", f"L_rok_{P}")
        a(f"s_or_b32 s3, s{sN}, s{sXCC}")
        a("s_mov_b64 exec, 0xff")
        a(f"v_cmp_ne_u32 vcc, s3, v{vN1}")
        a("s_mov_b64 exec, -1")
        a(f"s_cmp_eq_u32 vcc_lo, 0")
        a(f"s_cselect_b32 s3, {0 if OPT['force_slow'] else 1}, 0")
        a(f"s_or_b32 s3, s3, s{sN}")
        a(f"v_mov_b32 v{vN1}, s3"); a(f"v_mov_b32 v{vN0}, {BCAST}")
        sl = list(a.lg)
        a(f"ds_write_b32 v{vN0}, v{vN1}")
        a.lg = sl
        w0_end("rc")
    def bcast_read():
        a(f"v_mov_b32 v{vN0}, {BCAST}")
        a(f"ds_read_b32 v{vN1}, v{vN0}", "bc")
    def bcast_use():
        a.wait(lg="bc")
        a(f"v_readfirstlane_b32 s3, v{vN1}")
        a(f"s_and_b32 s{sFAST}, s3, 1"); a(f"s_andn2_b32 s{sN}, s3, 7")
    def touch():
        a(f"s_mul_i32 s3, s{sI}, 50"); a(f"v_add_u32 v86, s3, v{vL}"); a(f"s_lshr_b32 s4, s2, 3")
        if c == 0:
            a(f"v_mul_u32_u24 v87, 6554, v86"); a(f"v_lshrrev_b32 v87, 16, v87")
            a(f"v_mul_u32_u24 v88, 10, v87"); a(f"v_sub_u32 v86, v86, v88"); a(f"v_lshlrev_b32 v86, 7, v86")
            a(f"v_mul_u32_u24 v87, 3840, v87"); a(f"v_add_u32 v86, v86, v87"); a(f"s_mul_i32 s4, s4, {20*3840}")
        else:
            a(f"v_lshlrev_b32 v86, 7, v86"); a(f"s_mul_i32 s4, s4, 25600")
        a("s_mov_b32 exec_hi, 0x3ffff")
        a(f"buffer_load_dword v87, v86, {sr(SW if c == 0 else SO,4)}, s4 offen")
        a("s_mov_b32 exec_hi, -1")
    def opreload():
        a("s_mov_b64 exec, 0xfffff")
        a(f"buffer_load_dword v95, v{vPRE}, {sr(OS,4)}, s{sOB} offen{['', ' sc1', ' nt'][OPT['pnt']]}")
        a("s_mov_b64 exec, 1")
        a(f"buffer_load_dword v95, off, {sr(SS,4)}, s{sFC}")
        a("s_mov_b64 exec, -1")

    def fix_wd_for_q():
        if c == 0:
            a(f"s_cmp_lt_u32 s{sWV}, 2"); a(f"s_cselect_b32 s3, 0, 1280")
            a(f"v_subrev_u32 v{vWD+1}, s3, v{vWD+1}"); a(f"v_subrev_u32 v{vWD+2}, 1280, v{vWD+2}")
        else:
            a(f"v_subrev_u32 v{vWD+1}, 1280, v{vWD+1}")

    def acc1(t, rt): return ACC1 + (t * 2 + rt) * 4
    Tor = [not A_, not A_, False, False, (not A_) and c == 0]
    eps1 = [A_, A_, False, False, A_ and c == 0]
    items1 = [(sg, t) for sg in range(18) for t in range(5)] + [(18, 0), (18, 4), (18, 1), (19, 0), (19, 4), (19, 1), (18, 2), (18, 3), (19, 2), (19, 3)]
    seenx = set()
    def reads(n, w):
        sg, t = items1[n]; s = sg & 1; tg = []
        if sg not in seenx:
            seenx.add(sg)
            for rt in range(2): tg.append(a(f"ds_read_b128 {vr(X(sg,rt),4)}, v{vXA1 if s else vXA0} offset:{rt*2048}"))
        for h in range(2):
            if OPT["hackport"] in (1, 2) and t == 4 and sg > 0: continue
            if OPT["hackport"] == 4 and t in (1, 3, 4) and sg > 0: continue
            off = 16384 + s * 5120 + h * 1280
            if t < 4: tg.append(a(f"ds_read_b64_tr_b16 {vr(w+2*h,2)}, v{vWA} offset:{off + (UNIT if t >= 2 else 0) + 40*(t&1)}"))
            else: tg.append(a(f"ds_read_b64_tr_b16 {vr(w+2*h,2)}, v{vWE} offset:{off}"))
        return tg
    def mf(n, w):
        sg, t = items1[n]
        if OPT["hackport"] in (1, 3) and t == 4 and sg > 0: return
        for rt in range(2):
            C = acc1(t, rt) if sg else (80 if eps1[t] else "0")
            if Tor[t]: mfma(acc1(t, rt), w, X(sg, rt), C)
            else: mfma(acc1(t, rt), X(sg, rt), w, C)
    R = OPT["rdy_at"]
    def bnd1(ch):
        if ch > 0:
            d = SLOT if ch % 4 else -3 * SLOT
            for r in (vXA0, vXA1, vWA, vWE): a(f"v_add_u32 v{r}, {d}, v{r}")
        a.wait(vm=f"ch{ch}", lg="all" if (ch and OPT["LA"] == 3) or ch == 9 or any(k - ch >= 3 for k in SCHED.get(ch, [])) and ch else None)
        a("s_barrier")
        stamp(f"b{ch}")
        ops = []
        if c == 0:
            if ch == 0: ops.append((nonce_load, None))
            if ch == 1: ops.append((nonce_check, None))
            if ch == R: ops.append((rdy_load, None))
            if ch == R + 2: ops.append((rdy_check, None))
        if ch == R + 3: ops.append((bcast_read, None))
        if OPT["LA"] == 3:
            if ch == 0 and OPT["pro"] < 3: ops += [(op, "ch2") for op in dma_chunk(c, 2)]
            if ch + 3 <= 9: ops += [(op, f"ch{ch+3}") for op in dma_chunk(c, ch + 3)]
        elif OPT["sched"]:
            if ch == 0: ops += [(op, "ch1") for op in dma_chunk(c, 1)[OPT["p1n"]:]]
            for k in SCHED.get(ch, []): ops += [(op, f"ch{k}") for op in dma_chunk(c, k)]
        else:
            if ch == 0: ops += [(op, "ch1") for op in dma_chunk(c, 1)[OPT["p1n"]:]]
            if ch + 2 <= 9: ops += [(op, f"ch{ch+2}") for op in dma_chunk(c, ch + 2)]
        if ch == R + 3: ops.append((bcast_use, None))
        if ch == OPT["tq"]: ops.append((touch, None))
        if ch == OPT["eb"]: ops.insert(0, (lambda: touch_steps(c, 6, 4, 1, f"eb{P}"), None))
        if ch == OPT["eb"] + 100 or (OPT["eb"] >= 100 and ch == OPT["eb"] - 100): ops.append((lambda: touch_steps(c, 6, 4, 1, f"eb{P}"), None))
        if ch == OPT["ec"] and not (OPT["st0"] >= 0 and OPT["stq"]): ops.append((lambda: touch_qo(c), None))
        if OPT["tc"]:
            for ent in str(OPT["tc"]).split(","):
                per, st = (int(x) for x in ent.split(":"))
                if per == ch and c == OPT["tcw"] >> 2:
                    def tcl(st=st):
                        a(f"s_cmp_eq_u32 s{sWV}, {OPT['tcw']}"); a(f"s_cbranch_scc0 L_ntc{st}_{P}")
                        tc_issue(st, sTCX, sTCW)
                        a.label(f"L_ntc{st}_{P}")
                    ops.append((tcl, None))
        if OPT["tcm"] and c == 0:
            per, sts = str(OPT["tcm"]).split(":")
            if int(per) == ch:
                def tcm():
                    for w_, st in enumerate(int(x) for x in sts.split(".")):
                        a(f"s_cmp_eq_u32 s{sWV}, {w_ + 1}"); a(f"s_cbranch_scc0 L_tcm{w_}_{P}")
                        tc_issue(st, sTCX, sTCW)
                        a.label(f"L_tcm{w_}_{P}")
                ops.append((tcm, None))
        if ch == OPT["prel1"]: ops.append((opreload, None))
        if OPT["st0"] >= 0 and 0 <= ch - OPT["st0"] < OPT["stn"]:
            def duty(k=ch - OPT["st0"]):
                a(f"s_cmp_eq_u32 s{sDUTY}, {k}"); a(f"s_cbranch_scc0 L_nd{k}_{P}")
                n0 = len(a.vm)
                if OPT["stq"]: touch_qo(c)
                if OPT["stp"]: opreload()
                a.vm = a.vm[:n0]
                a.label(f"L_nd{k}_{P}")
            ops.append((duty, None))
        if ch == OPT["pst"]: ops.append((lambda: prestore(c), None))
        if OPT["LA"] == 3:
            if ch == 7: ops += [(fix_wd_for_q, None)] + [(op, "wq0") for op in dma_wq(c, 0)]
            if ch == 8: ops += [(op, f"wq{u}") for u in (1, 2) for op in dma_wq(c, u)]
            if ch == 9: ops += [(op, f"wq{u}") for u in (3, 4) for op in dma_wq(c, u)]
        else:
            if ch == 8: ops += [(fix_wd_for_q, None)] + [(op, "wq0") for op in dma_wq(c, 0)]
            if ch == 9: ops += [(op, f"wq{u}") for u in (1, 2) for op in dma_wq(c, u)]
        return ops
    hA, hB = 2 * c, 2 * c + 1
    gm = lambda h: lanemask(lambda l: (l >> 4) == h)
    half = lanemask(lambda l: (l >> 5) == c)
    pipeline(100, reads, mf, {10 * ch: ch for ch in range(10)}, bnd1, OPT["L"], OPT["Lb"], [WF + 4 * k for k in range(5)], prio=(10, parse_pr(OPT["pr1"])) if c == 1 else None)
    if c == 1 and OPT["prep"] >= 0: a(f"s_setprio {OPT['prep']}")
    stamp("p1end")

    vL16, vL8 = vXA0, vXA1
    a(f"v_lshlrev_b32 v{vL16}, 4, v{vL}"); a(f"v_lshlrev_b32 v{vL8}, 3, v{vL}")
    a(f"v_add_u32 v{vWA}, {WQ_UNIT[0]*UNIT - SLOT}, v{vWA}")
    a(f"v_add_u32 v{vWE}, {WQ_UNIT[0]*UNIT - SLOT - (UNIT if c else 0)}, v{vWE}")
    WD = OPT["wodef"]; assert WD >= 2 and OPT["LA"] == 2
    WOA = {u + WD: [u] for u in range(5) if u + WD <= 4}
    if OPT["woA"]:
        WOA = {int(e.split(":")[0]): [int(x) for x in e.split(":")[1].split(".")] for e in OPT["woA"].split(",")}
        for u_, ks in WOA.items():
            for k in ks: assert u_ >= (0, 1, 3, 3, 3)[k]
    if FB: late_wo = [op for u in range(5) if not any(u in v for v in WOA.values()) for op in dma_wo(c, u)]
    else: late_wo = [op for u in range(5) if u + WD > 4 for op in dma_wo(c, u)]
    nq = 3 if c == 0 else 2
    def late(k, last=False):
        for _ in range(k):
            keep_ = nq * OPT["woaft"] if (last or FB) else nq * max(1, OPT["woaft"])
            if last == 2: keep_ = 0
            if len(late_wo) > keep_: emit_op(late_wo.pop(0), "wo")
    if A_:
        KAa, KAb, VBa, VBb, EO = 56, 60, 64, 68, 72
        TMP = 76
        a(f"s_lshl_b32 s3, s{sWV}, 12"); a(f"v_add_u32 v{vT}, s3, v{vL16}")
        a(f"v_add_u32 v{vT+1}, s{sW1K}, v{vL16}"); a(f"v_add_u32 v{vT+1}, {EE_A2}, v{vT+1}")
        phi_pack(acc1(0, 0), 8, [KAa], TMP)
        a(f"ds_write_b128 v{vT}, {vr(KAa,4)} offset:{OPX}")
        if c == 0: phi_pack(acc1(4, 0), 8, [EO], TMP)
        else: pack(acc1(4, 0), EO); pack(acc1(4, 1), EO + 2)
        a(f"ds_write_b128 v{vT+1}, {vr(EO,4)}")
        phi_pack(acc1(1, 0), 8, [KAb], TMP)
        a(f"ds_write_b128 v{vT}, {vr(KAb,4)} offset:{OPX + 1024}")
        for t, d in ((2, VBa), (3, VBb)):
            pack(acc1(t, 0), d); pack(acc1(t, 1), d + 2)
            a(f"ds_write_b128 v{vT}, {vr(d,4)} offset:{OPX + t*1024}")
        a(f"v_add_u32 v{vT}, {OPX + c*16384}, v{vL16}")
        a(f"v_add_u32 v{vT+1}, {EE_A2}, v{vL16}")
        a(f"v_and_b32 v{vT+2}, 0x31, v{vL}"); a(f"v_bfe_u32 v{vT+3}, v{vL}, 2, 2")
        a(f"v_lshl_add_u32 v{vT+2}, v{vT+3}, 1, v{vT+2}"); a(f"v_lshlrev_b32 v{vT+2}, 4, v{vT+2}")
        a(f"v_add_u32 v{vT+2}, {EE_A2 + 4096 + 128*c}, v{vT+2}")
        a(f"v_mov_b32 v89, 0x3f803f80")
        for i in range(4): a(f"v_mov_b32 v{80+i}, s{sK+1}")
    else:
        KA = {("a", 0): 56, ("b", 0): 60, ("a", 1): 64, ("b", 1): 68, ("a", -1): 96, ("b", -1): 100}
        Va, Vb, Ev = 72, 78, 84
        for rt in (1, 0):
            pack(acc1(0, rt), KA[("a", rt)]); pack(acc1(1, rt), KA[("b", rt)])
            if c == 0: pack(acc1(4, rt), KA[("a", rt)] + 2); pack(acc1(4, rt), KA[("b", rt)] + 2)
            else: pack(acc1(4, rt), Ev + 2 + 2 * rt)
            pack(acc1(2, rt), Va + 2 + 2 * rt); pack(acc1(3, rt), Vb + 2 + 2 * rt)
        Eown = [KA[("a", 0)] + 2, KA[("a", 1)] + 2] if c == 0 else [Ev + 2, Ev + 4]
        xs = [KA[("a", 1)], KA[("b", 1)], Va + 4, Vb + 4, Eown[1], Eown[0]]
        a(f"s_mul_i32 s3, s{sWV}, 3072")
        a(f"v_add_u32 v{vT}, s3, v{vL8}")
    a.wait(vm="wq0", lg="all")
    a("s_barrier")
    stamp("E1")
    if A_:
        R0 = 16
        D0, D1, D2 = 84, 72, 76
        def rd(dst, areg, off): return a(f"ds_read_b128 {vr(dst,4)}, v{areg} offset:{off}")
        def evb(dst):
            for j in range(4): a(f"v_cndmask_b32 v{dst+j}, v{dst+j}, v89, vcc")
        a(f"s_cmp_lt_u32 s{sTI}, 2"); a(f"s_cbranch_scc0 L_t23_{P}")
        a(f"s_lshl_b32 s3, s{sTI}, 10"); a(f"v_add_u32 v{vT}, s3, v{vT}")
        a.lg = []
        tg = []
        for g in range(4): tg.append([rd(R0 + 8 * g, vT, g * 4096), rd(R0 + 8 * g + 4, vT, g * 4096 + 2048)])
        for g in range(4):
            a.wait(lg=tg[g]); mfma(D0, R0 + 8 * g, R0 + 8 * g + 4, D0 if g else "0")
        a("s_nop 7")
        a(f"s_branch L_tdone_{P}")
        a.label(f"L_t23_{P}")
        set_mask("vcc", 0x3333333333333333)
        a(f"s_cmp_eq_u32 s{sTI}, 2"); a(f"s_cbranch_scc0 L_t3_{P}")
        a.lg = []
        tg = []
        for g in range(4): tg.append([rd(R0 + 12 * g, vT + 2, g * 1024), rd(R0 + 12 * g + 4, vT, g * 4096), rd(R0 + 12 * g + 8, vT, g * 4096 + 1024)])
        for g in range(4):
            a.wait(lg=tg[g]); evb(R0 + 12 * g)
            mfma(D0, R0 + 12 * g + 4, R0 + 12 * g, D0 if g else "0")
            mfma(D1, R0 + 12 * g + 8, R0 + 12 * g, D1 if g else "0")
        set_mask("vcc", 0x11dd11dd11dd11dd)
        for j in range(4): a(f"v_cndmask_b32 v{D0+j}, v{D1+j}, v{D0+j}, vcc")
        a(f"s_branch L_tdone_{P}")
        a.label(f"L_t3_{P}")
        a.lg = []
        tg = []
        B0 = [16, 32, 48, 16]
        def rd3(g): return [rd(B0[g], vT + 2, g * 1024), rd(B0[g] + 4, vT + 1, g * 1024), rd(B0[g] + 8, vT, g * 4096 + 2048), rd(B0[g] + 12, vT, g * 4096 + 3072)]
        for g in range(3): tg.append(rd3(g))
        for g in range(4):
            a.wait(lg=tg[g]); evb(B0[g])
            mfma(D0, B0[g] + 4, B0[g] + 8, D0 if g else "0")
            mfma(D1, B0[g] + 4, B0[g] + 12, D1 if g else "0")
            mfma(D2, B0[g] + 4, B0[g], D2 if g else "0")
            if g == 0: tg.append(rd3(3))
        set_mask("vcc", gm(hA))
        for j in range(4): a(f"v_cndmask_b32 v{D0+j}, v{D1+j}, v{D0+j}, vcc")
        for j in range(4):
            if c == 0: a(f"v_permlane32_swap_b32 v{D0+j}, v{D2+j}")
            else: a(f"v_permlane32_swap_b32 v{D2+j}, v{D0+j}")
        a.label(f"L_tdone_{P}")
        a.lg = []
        pack(D0, 88)
        a(f"v_min_u32 v{D0}, -2, v88"); a(f"v_min_u32 v{D0+1}, -2, v89")
        a(f"buffer_store_dwordx2 {vr(D0,2)}, v{vL8}, {sr(SS,4)}, s{sKVP} offen sc1")
    else:
        for k in range(6): a(f"ds_write_b64 v{vT}, {vr(xs[k],2)} offset:{EXB + k*512}")
        a(f"s_cmp_eq_u32 s{sI}, 3"); a(f"s_cbranch_scc0 L_nohp_{P}")
        for k in range(5):
            for j in range(2): a(f"v_min_u32 v{xs[k]+j}, -2, v{xs[k]+j}")
            a(f"buffer_store_dwordx2 {vr(xs[k],2)}, v{vL8}, {sr(SS,4)}, s{sHP} offen offset:{k*512} sc1", "~i3hp")
        a.label(f"L_nohp_{P}")
    stamp("pub1")

    ACC2 = 16; WF2 = 40
    oc = 1 - c
    NT2 = 3 if c == 0 else 2
    def acc2(t, rt): return ACC2 + (t * 2 + rt) * 4
    items2 = [(sg, t) for sg in range(16) for t in range(NT2)] + [(sg, t) for t in ((2, 0, 1) if c == 0 else (0, 1)) for sg in range(16, 20)]
    N2 = len(items2)
    def ix(sg): return NT2 * sg
    iEQ = N2 - 8; iQA = N2 - 4
    def reads2(n, w):
        sg, t = items2[n]; tg = []
        for h in range(2):
            off = ((sg >> 1) & 1) * UNIT + (sg & 1) * 5120 + h * 1280
            if t < 2: tg.append(a(f"ds_read_b64_tr_b16 {vr(w+2*h,2)}, v{vWA} offset:{off + 40*t}"))
            else: tg.append(a(f"ds_read_b64_tr_b16 {vr(w+2*h,2)}, v{vWE} offset:{off}"))
        return tg
    def mf2(n, w):
        sg, t = items2[n]
        for rt in (0, 1):
            C = acc2(t, rt) if sg else (80 if A_ else "0")
            mfma(acc2(t, rt), w, X(sg, rt), C)
    GA = 56
    def gather(tag="gat"):
        for r in range(8):
            a(f"s_add_u32 s3, s{sKVG}, {r*4096}")
            a(f"buffer_load_dwordx4 {vr(GA+4*r,4)}, v{vGAD}, {sr(SS,4)}, s3 offen sc1", tag)
    def gather_ops():
        if OPT["hackgat"]: return []
        return [([f"s_add_u32 s3, s{sKVG}, {r*4096}"], f"buffer_load_dwordx4 {vr(GA+4*r,4)}, v{vGAD}, {sr(SS,4)}, s3 offen sc1") for r in range(8)]
    HL = [KA[("a", -1)], KA[("b", -1)], Va, Vb, KA[("a", -1)] + 2, Ev, KA[("b", -1)] + 2] if not A_ else None
    def halo_loads(tag="~h0halo"):
        offs = [c*3072, c*3072 + 512, c*3072 + 1024, c*3072 + 1536, 2048, 3072 + 2048, 2048]
        for d, o in zip(HL, offs):
            a(f"s_add_u32 s3, s{sHG2}, {o}")
            a(f"buffer_load_dwordx2 {vr(d,2)}, v{vL8}, {sr(SS,4)}, s3 offen sc1", tag)
    def halo_issue():
        a(f"s_cmp_eq_u32 s{sHV}, 0")
        a(f"s_cbranch_scc1 L_nohl_{P}")
        halo_loads()
        a.label(f"L_nohl_{P}")
    def bnd2(u):
        ops = []
        if u > 0:
            d = (WQ_UNIT[u] - WQ_UNIT[u - 1]) * UNIT
            for r in (vWA, vWE): a(f"v_add_u32 v{r}, {d}, v{r}")
            if not FB or u in (1, 3):
                a.wait(vm=f"wq{u + 1 if FB else u}", lg="all")
                a("s_barrier")
            stamp(f"p{u}")
        if FB:
            if u == 1: ops += [(op, f"wq{k}") for k in (3, 4) for op in dma_wq(c, k)]
            ops += [(op, "wo") for k in WOA.get(u, []) for op in dma_wo(c, k)]
        else:
            if u in (1, 2): ops += [(op, f"wq{u+2}") for op in dma_wq(c, u + 2)]
            if u >= WD: ops += [(op, "wo") for op in dma_wo(c, u - WD)]
        if u == OPT["prel_at"] and OPT["prel1"] < 0 and not (OPT["st0"] >= 0 and OPT["stp"]): ops = ops + [(opreload, None)]
        if u == (OPT["gat_at"] if A_ else OPT["hal_at"]):
            g = gather_ops()
            if OPT["gspread"]: g = g[:4]
            ops = ([(op, "gat") for op in g] if A_ else [(halo_issue, None)]) + ops
        if u == OPT["gat_at"] + 1 and A_ and OPT["gspread"]:
            ops = [(op, "gat") for op in gather_ops()[4:]] + ops
        return ops
    QB = {("a", 0): 160, ("b", 0): 164, ("a", 1): 168, ("b", 1): 172}
    side = {}
    vEQo, vEQp = 124, 125
    eqaddr = [[f"s_lshl_b32 s4, s{sI}, 10", f"v_add_u32 v{vEQo}, s4, v{vL8}"]]
    cst = [f"v_add_u32 v126, {CST}, v{vL16}"]
    if A_:
        SEL, C0, CA = 96, 100, 104
        Axb = 104; vOW = 126; vOX = 127
        cst += [f"ds_read_b128 {vr(96+4*k,4)}, v126 offset:{k*1024}" for k in range(3)]
        def cfix():
            a.wait(lg="all")
            a(f"s_lshl_b32 s4, s{sTI}, 9"); a(f"v_add_u32 v{vOW}, s4, v{CA}"); a(f"v_mov_b32 v{vOX}, v{CA+1}")
        GS = 108; GT = 88
        def gsum():
            for r in range(8): mfma(GS, SEL, GA + 4 * r, GS if r else "0")
        def gpart1():
            assert OPT["hackgat"] or sum(1 for l in a.lines[pstart:] if f"v{vGAD}, s[32:35]" in l) == 8, "gather not fully issued"
            a.wait(vm="gat"); gsum()
        def gpart2():
            a(f"v_add_f32 v{GT}, v{GS}, v{GS+1}"); a(f"v_add_f32 v{GT+1}, v{GS+2}, v{GS+3}"); a(f"v_add_f32 v{GT}, v{GT}, v{GT+1}")
            a(f"v_cmp_u_f32 vcc, v{GT}, v{GT}")
            a(f"s_cbranch_vccz L_gok_{P}" if not OPT["hackgat"] else f"s_branch L_gok_{P}")
            spin_begin(f"L_gsp_{P}")
            a(f"v_max3_u32 v{GT}, v{GA}, v{GA+1}, v{GA+2}")
            for k in range(3, 31, 2): a(f"v_max3_u32 v{GT}, v{GT}, v{GA+k}, v{GA+k+1}")
            a(f"v_max_u32 v{GT}, v{GT}, v{GA+31}")
            a(f"v_cmp_eq_u32 vcc, -1, v{GT}")
            a(f"s_cbranch_vccz L_gre_{P}")
            gather("~x"); a("s_waitcnt vmcnt(0)")
            spin_check(f"L_gsp_{P}", f"L_gre_{P}")
            gsum(); a("s_nop 7")
            if OPT["stamps"]:
                a(f"s_add_u32 s3, s{sSPIN}, 1"); a(f"v_writelane_b32 v{vST}, s3, 43")
            a.label(f"L_gok_{P}")
            pack(GS, GT)
            a(f"ds_write_b64 v{vOW}, {vr(GT,2)} offset:{OPS + c*2048}")
        side[ix(4) + 1] = cst + eqaddr
        side[ix(8) - 1] = [cfix]
        if c == 0:
            e = phi_ins(acc2(2, 0), 8, [], 112)
            for rt in range(2):
                e += pack_ins(acc2(2, rt), QB[("a", rt)] + 2) + [f"ds_write_b64 v{vEQo}, {vr(QB[('a',rt)]+2,2)} offset:{EQX + rt*512}"]
                e += [f"v_mov_b32 v{QB[('b',rt)]+2+j}, v{QB[('a',rt)]+2+j}" for j in range(2)]
            side[iEQ] = e
        side[iQA] = phi_ins(acc2(0, 0), 8, [], 112) + pack_ins(acc2(0, 0), QB[("a", 0)]) + pack_ins(acc2(0, 1), QB[("a", 1)])
        if OPT["gearly"] >= 0:
            side[N2 - 6] = side.get(N2 - 6, []) + [gpart1]
            side[N2 - 1] = side.get(N2 - 1, []) + [gpart2]
    else:
        BO, BP, ONES, MK, BP0 = 104, 108, 112, 116, 120
        cst += [f"ds_read_b128 {vr(104+4*k,4)}, v126 offset:{k*1024}" for k in range(4)] + [f"ds_read_b128 {vr(BP0,4)}, v126 offset:1024", "v_mov_b32 v127, 0"]
        def foreign():
            a(f"s_xor_b32 s3, s{sWV}, 4"); a(f"s_mul_i32 s3, s3, 3072")
            a(f"v_add_u32 v{vT}, s3, v{vL8}")
            for rt in range(2):
                o = EXB + (4 if rt else 5) * 512
                if c == 0: a(f"ds_read_b64 {vr(Ev+2+2*rt,2)}, v{vT} offset:{o}")
                else:
                    for h in "ab": a(f"ds_read_b64 {vr(KA[(h,rt)]+2,2)}, v{vT} offset:{o}")
        def foreign2():
            a(f"s_cmp_eq_u32 s{sI}, 0"); a(f"s_cbranch_scc1 L_nof2_{P}")
            a("s_waitcnt lgkmcnt(6)")
            a(f"s_sub_u32 s3, s{sI}, 1"); a(f"s_mul_i32 s3, s3, 3072")
            a(f"v_add_u32 v{vT}, s3, v{vL8}")
            cb = EXB + c * 4 * 3072
            sl = list(a.lg); a.lg = []
            a(f"ds_read_b64 {vr(KA[('a',-1)],2)}, v{vT} offset:{cb}")
            a(f"ds_read_b64 {vr(KA[('b',-1)],2)}, v{vT} offset:{cb + 512}")
            a(f"ds_read_b64 {vr(Va,2)}, v{vT} offset:{cb + 1024}")
            a(f"ds_read_b64 {vr(Vb,2)}, v{vT} offset:{cb + 1536}")
            for h in "ab": a(f"ds_read_b64 {vr(KA[(h,-1)]+2,2)}, v{vT} offset:{EXB + 2048}")
            a(f"ds_read_b64 {vr(Ev,2)}, v{vT} offset:{EXB + 4*3072 + 2048}")
            a.lg = sl
            a.label(f"L_nof2_{P}")
        EQ = {0: 156, 1: 158}
        side[ix(4) + 1] = cst + eqaddr
        side[ix(6)] = [foreign]
        side[ix(9)] = [foreign2]
        if c == 0:
            side[iEQ] = pack_ins(acc2(2, 0), EQ[0]) + pack_ins(acc2(2, 1), EQ[1]) + [f"ds_write_b64 v{vEQo}, {vr(EQ[rt],2)} offset:{EQX + rt*512}" for rt in range(2)]
        side[iQA] = pack_ins(acc2(0, 0), QB[("a", 0)]) + pack_ins(acc2(0, 1), QB[("a", 1)])
    wf2 = [WF2 + 4 * k for k in range(4)] + ([32, 36] if c == 1 else [])
    pipeline(N2, reads2, mf2, {ix(4 * u): u for u in range(5)}, bnd2, OPT["L2"], OPT["Lb2"] if c == 0 else OPT["Lb2"] - 1, wf2,
             newbufs={ix(8): [128 + 4 * k for k in range(7)]}, side=side, side_rate=OPT["srate"] + (0 if c == 0 else 1), prio=None)
    if c == 1 and OPT["prep"] >= 0: a(f"s_setprio {OPT['prep']}")
    stamp("p2end")

    if A_:
        if OPT["gearly"] < 0: gpart1()
        late(3)
        phi_pack(acc2(1, 0), 8, [], 136)
        pack(acc2(1, 0), QB[("b", 0)]); pack(acc2(1, 1), QB[("b", 1)])
        if OPT["gearly"] < 0: gpart2()
        late(99)
        a.wait(lg="all")
        a("s_barrier")
        stamp("E2")
        A1a, A1b, Axa, T3, T2 = 128, 132, 136, 140, 142
        ob = OPS + c * 2048
        t3 = a(f"ds_read_b64 {vr(T3,2)}, v{vL8} offset:{ob + 1536}")
        t2 = a(f"ds_read_b64 {vr(T2,2)}, v{vL8} offset:{ob + 1024}")
        t4 = a(f"ds_read_b64 {vr(Axa+2,2)}, v{vOX} offset:{ob + 1536}")
        t0 = a(f"ds_read_b64 {vr(A1a,2)}, v{vL8} offset:{ob}")
        t1 = a(f"ds_read_b64 {vr(A1b,2)}, v{vL8} offset:{ob + 512}")
        tq = [a(f"ds_read_b64 {vr(QB[(h,rt)]+2,2)}, v{vEQo} offset:{EQX + rt*512}") for rt in range(2) for h in "ab"] if c == 1 else [t1]
        late(99, True)
        if OPT["prel_at"] == 5: opreload()
        ma = lambda l: (0x11dd >> (l & 15)) & 1
        Z = Axb + 2
        set_mask("vcc", gm(hA)); a.wait(lg=t3)
        for j in range(2): a(f"v_cndmask_b32 v{A1a+2+j}, v{Z}, v{T3+j}, vcc")
        set_mask("vcc", gm(hB))
        for j in range(2): a(f"v_cndmask_b32 v{A1b+2+j}, v{Z}, v{T3+j}, vcc")
        set_mask("vcc", 0x11dd11dd11dd11dd); a.wait(lg=t4)
        for j in range(2):
            a(f"v_cndmask_b32 v{Axa+j}, v{Z}, v{T2+j}, vcc")
            a(f"v_cndmask_b32 v{Axb+j}, v{T2+j}, v{Z}, vcc")
        set_mask("vcc", lanemask(lambda l: ((l >> 4) == hA and ma(l)) or ((l >> 4) == hB and not ma(l))))
        for j in range(2): a(f"v_cndmask_b32 v{Axa+2+j}, v{Z}, v{Axa+2+j}, vcc")
        O = {(k, rt): 16 + (rt * 3 + i) * 4 for rt in range(2) for i, k in enumerate("xab")}
        a.wait(lg=tq)
        for rt in (c, oc): mfma(O[("x", rt)], Axa, QB[("a", rt)], C0)
        for rt in (c, oc): mfma(O[("a", rt)], A1a, QB[("a", rt)], "0")
        for rt in (c, oc): mfma(O[("x", rt)], Axb, QB[("b", rt)], O[("x", rt)])
        for rt in (c, oc): mfma(O[("b", rt)], A1b, QB[("b", rt)], "0")
        OM = [176, 180]; OX = [184, 186]
        set_mask("vcc", lanemask(lambda l: l < 32))
        for rt in (c, oc):
            x = O[("x", rt)]
            a(f"v_rcp_f32 v{x}, v{x}"); a(f"v_rcp_f32 v{x+1}, v{x+1}")
        for rt in (c, oc):
            x = O[("x", rt)]
            for j in range(4): a(f"v_mul_f32 v{O[('a',rt)]+j}, v{O[('a',rt)]+j}, v{x}")
            for j in range(4): a(f"v_mul_f32 v{O[('b',rt)]+j}, v{O[('b',rt)]+j}, v{x+1}")
            a(f"v_cndmask_b32 v{x}, v{x+1}, v{x}, vcc")
            pack(O[("a", rt)], OM[rt]); pack(O[("b", rt)], OM[rt] + 2)
            for j in (2, 3): a(f"v_mul_f32 v{x+j}, v{x+j}, v{x}")
            a(f"v_cvt_pk_bf16_f32 v{OX[rt]}, v{x+2}, v{x+3}")
    else:
        late(3)
        for rt in range(2): pack(acc2(1, rt), QB[("b", rt)])
        a(f"s_cmp_eq_u32 s{sI}, 0"); a(f"s_cbranch_scc0 L_hdone_{P}")
        a(f"s_cmp_eq_u32 s{sRT}, 0"); a(f"s_cbranch_scc0 L_hwait_{P}")
        for d in HL: a(f"v_mov_b32 v{d}, 0"); a(f"v_mov_b32 v{d+1}, 0")
        for j in range(4): a(f"v_mov_b32 v{BP0+j}, 0x{f2u(-1e30):x}")
        a(f"s_branch L_hok_{P}")
        a.label(f"L_hwait_{P}")
        def htest():
            a(f"v_max3_u32 v228, v{HL[0]}, v{HL[0]+1}, v{HL[1]}")
            a(f"v_max3_u32 v228, v228, v{HL[1]+1}, v{HL[2]}")
            a(f"v_max3_u32 v228, v228, v{HL[2]+1}, v{HL[3]}")
            a(f"v_max3_u32 v228, v228, v{HL[3]+1}, v{HL[4]}")
            a(f"v_max3_u32 v228, v228, v{HL[4]+1}, v{HL[5]}")
            a(f"v_max3_u32 v228, v228, v{HL[5]+1}, v{HL[6]}")
            a(f"v_max_u32 v228, v228, v{HL[6]+1}")
            a(f"v_cmp_eq_u32 vcc, -1, v228")
            a(f"s_cbranch_vccz L_hok_{P}")
        a.wait(vm="~h0halo", keep=True)
        htest()
        spin_begin(f"L_hsp_{P}")
        if OPT["stamps"]: a(f"v_writelane_b32 v{vST}, s{sHV}, 43")
        halo_loads("~x"); a("s_waitcnt vmcnt(0)"); htest()
        spin_check(f"L_hsp_{P}", f"L_hok_{P}")
        a.label(f"L_hdone_{P}")
        def qmask(rt):
            for h, hh in (("a", hA), ("b", hB)):
                set_mask("vcc", gm(hh))
                for j in range(2): a(f"v_cndmask_b32 v{QB[(h,rt)]+2+j}, v127, v{EQ[rt]+j}, vcc")
        if c == 0: qmask(0); qmask(1)
        a.wait(lg="all")
        if c == 1 or not OPT["esk"]:
            a("s_barrier")
            stamp("E2")
        if c == 1: tq = [a(f"ds_read_b64 {vr(EQ[rt],2)}, v{vEQo} offset:{EQX + rt*512}") for rt in range(2)]
        units = [(h, rt) for rt in (0, 1) for h in "ab"]
        S = {u: 176 + 8 * k for k, u in enumerate(units)}
        PB = {u: 208 + 4 * k for k, u in enumerate(units)}
        Om = dict(zip(units, (16, 28, 40, 128)))
        SV = {u: 228 + 2 * k for k, u in enumerate(units)}
        MX = {u: 236 + k for k, u in enumerate(units)}
        def smf(u):
            h, rt = u
            mfma(S[u], KA[(h, rt - 1)], QB[u], BP0 if rt == 0 else BP)
            mfma(S[u] + 4, KA[(h, rt)], QB[u], BO)
        if c == 1:
            a.wait(lg=tq[0]); qmask(0); smf(units[0]); smf(units[1])
            a.wait(lg=tq[1]); qmask(1); smf(units[2]); smf(units[3])
        else:
            for u in units: smf(u)
            if OPT["esk"]:
                a("s_barrier")
                stamp("E2")
        late(99 if OPT["prel_at"] == 5 else 2, True)
        if OPT["prel_at"] == 5: opreload()
        for u in units:
            s_, v = S[u], SV[u]
            a(f"v_max3_f32 v{v}, v{s_}, v{s_+1}, v{s_+4}"); a(f"v_max3_f32 v{v+1}, v{s_+2}, v{s_+3}, v{s_+6}")
            a(f"v_max_f32 v{v}, v{v}, v{s_+5}"); a(f"v_max_f32 v{v+1}, v{v+1}, v{s_+7}")
            a(f"v_max_f32 v{MX[u]}, v{v}, v{v+1}")
        m0_, m1_, m2_, m3_ = [MX[u] for u in units]
        a(f"v_permlane32_swap_b32 v{m0_}, v{m1_}"); a(f"v_permlane32_swap_b32 v{m2_}, v{m3_}")
        a(f"v_max_f32 v{m0_}, v{m0_}, v{m1_}"); a(f"v_max_f32 v{m2_}, v{m2_}, v{m3_}")
        a(f"v_permlane16_swap_b32 v{m0_}, v{m2_}")
        a(f"v_max_f32 v{m0_}, v{m0_}, v{m2_}")
        cs = LOG2E * 20 ** -0.5
        a(f"v_mul_f32 v{m0_}, 0x{f2u(-cs):x}, v{m0_}")
        a(f"v_mov_b32 v{m2_}, v{m0_}")
        a(f"v_permlane16_swap_b32 v{m0_}, v{m2_}")
        a(f"v_mov_b32 v{m1_}, v{m0_}"); a(f"v_mov_b32 v{m3_}, v{m2_}")
        a(f"v_permlane32_swap_b32 v{m0_}, v{m1_}"); a(f"v_permlane32_swap_b32 v{m2_}, v{m3_}")
        late(99, True)
        V = {"a": Va, "b": Vb}
        for u in units:
            for j in range(2): a(f"v_fmamk_f32 v{SV[u]+j}, v{SV[u]+j}, 0x{f2u(cs):x}, v{MX[u]}")
        for u in units:
            for j in range(2): a(f"v_exp_f32 v{SV[u]+j}, v{SV[u]+j}")
        for u in units:
            h, rt = u; v = SV[u]
            for j in range(2): a(f"v_cvt_pk_bf16_f32 v{v+j}, v{v+j}, v{v+j}")
            for k in range(4): a(f"v_and_b32 v{PB[u]+k}, v{v+(k&1)}, v{MK+k}")
            mfma(Om[u] + 8, ONES, PB[u], "0")
            mfma(Om[u], V[h] + 2 * rt, PB[u], "0")
            mfma(Om[u] + 4, Ev + 2 * rt, PB[u], "0")
        OM = [176, 180]; OX = [184, 186]
        set_mask("vcc", gm(hA))
        for rt in (c, oc):
            ua, ub = ("a", rt), ("b", rt)
            for u in (ua, ub): a(f"v_rcp_f32 v{Om[u]+8}, v{Om[u]+8}")
            for j in range(4): a(f"v_cndmask_b32 v{Om[ua]+4+j}, v{Om[ub]+4+j}, v{Om[ua]+4+j}, vcc")
            for u in (ua, ub):
                for j in range(4): a(f"v_mul_f32 v{Om[u]+j}, v{Om[u]+j}, v{Om[u]+8}")
            a(f"v_cndmask_b32 v{Om[ua]+8}, v{Om[ub]+8}, v{Om[ua]+8}, vcc")
            pack(Om[ua], OM[rt]); pack(Om[ub], OM[rt] + 2)
            for j in range(4): a(f"v_mul_f32 v{Om[ua]+4+j}, v{Om[ua]+4+j}, v{Om[ua]+8}")
            pack(Om[ua] + 4, OX[rt])
    a(f"s_mul_i32 s3, s{sHG}, {2*OP_}"); a(f"s_add_u32 s3, s3, s{sOB}"); a(f"s_add_u32 s3, s3, {c*OP_}")
    a(f"s_add_u32 s4, s3, {OT}")
    a(f"s_lshr_b32 s5, s{sHG}, 1"); a(f"s_mul_i32 s5, s5, {4*OP_}"); a(f"s_and_b32 s6, s{sHG}, 1"); a(f"s_lshl_b32 s6, s6, 3")
    a(f"s_add_u32 s5, s5, s6"); a(f"s_add_u32 s5, s5, s{sOB}")
    a(f"s_add_u32 s6, s5, {OT}")
    a(f"v_lshrrev_b32 v{vXE}, 4, v{vL}"); a(f"v_mul_u32_u24 v{vXE}, {OP_ - 256}, v{vXE}"); a(f"v_add_u32 v{vXE}, v{vXE}, v{vL16}")
    a(f"v_mov_b32 v{vT}, s{sN}")
    a(f"s_cmp_eq_u32 s{sFAST}, 1"); a(f"s_cbranch_scc1 L_fast_{P}")
    for fl, end in ((" sc1", f"s_branch L_pubd_{P}"), ((" " + OPT["ofl"]) if OPT["ofl"] != "none" else "", None)):
        if not end: a.label(f"L_fast_{P}")
        a(f"buffer_store_dwordx4 {vr(OM[0],4)}, v{vL16}, {sr(OS,4)}, s3 offen{fl}")
        a(f"buffer_store_dwordx4 {vr(OM[1],4)}, v{vL16}, {sr(OS,4)}, s4 offen{fl}")
        if A_:
            a(f"buffer_store_dword v{OX[0]}, v{vXE}, {sr(OS,4)}, s5 offen offset:{1024 + 4*c}{fl}")
            a(f"buffer_store_dword v{OX[1]}, v{vXE}, {sr(OS,4)}, s6 offen offset:{1024 + 4*c}{fl}")
        else:
            a(f"s_mov_b32 exec_{'hi' if c == 0 else 'lo'}, 0")
            a(f"buffer_store_dwordx2 {vr(OX[0],2)}, v{vXE}, {sr(OS,4)}, s5 offen offset:1024{fl}")
            a(f"buffer_store_dwordx2 {vr(OX[1],2)}, v{vXE}, {sr(OS,4)}, s6 offen offset:1024{fl}")
        if end: a(end)
    a.label(f"L_pubd_{P}")
    a("s_mov_b64 exec, -1")
    stamp("ostore")
    phase2_setup(A_, c)
    a(f"s_cmp_eq_u32 s{sFAST}, 1")
    a("s_mov_b64 exec, 1")
    a("s_waitcnt vmcnt(0) lgkmcnt(0)")
    a(f"s_cbranch_scc1 L_fast2_{P}")
    a(f"buffer_store_dword v{vT}, off, {sr(SS,4)}, s{sFP} sc1")
    a(f"s_branch L_pubd2_{P}")
    a.label(f"L_fast2_{P}")
    a(f"buffer_store_dword v{vT}, off, {sr(SS,4)}, s{sFP}")
    a.label(f"L_pubd2_{P}")
    a("s_mov_b64 exec, -1")
    if late_wo:
        late(99, 2)
        phase2_setup2()
        a("s_waitcnt vmcnt(0)")
    a.vm = ["flag"]
    stamp("oack")
    a("s_branch L_phase2")

vM0, vE0, vPA, vPD, vSA = 1, 2, 3, 0, 5
RA = [8, 9, 11]; GA_ = [12, 13, 95]
vRW, vRR = 4, 7
RX = 43008
RX = 0
OST2 = 40960
def phase2_setup(A_, c):
    a(f"s_mul_i32 s7, s{sKH}, 51200"); a(f"s_add_u32 s7, s7, {WO_BASE}")
    half = "s7"
    a(f"v_and_b32 v{vPD}, 3, v{vL}")
    a(f"v_lshrrev_b32 v{vM0}, 2, v{vL}"); a(f"v_mul_u32_u24 v{vM0}, 160, v{vM0}")
    a(f"v_lshl_add_u32 v{vM0}, v{vPD}, 3, v{vM0}"); a(f"v_add_u32 v{vM0}, {half}, v{vM0}")
    if A_:
        a(f"v_bfe_u32 v{vE0}, v{vL}, 3, 1"); a(f"v_mul_u32_u24 v{vE0}, 40, v{vE0}")
        a(f"v_lshrrev_b32 v{vPA}, 5, v{vL}"); a(f"v_mad_u32_u24 v{vE0}, v{vPA}, 20, v{vE0}")
        a(f"v_bfe_u32 v{vPA}, v{vL}, 4, 1"); a(f"v_lshl_add_u32 v{vE0}, v{vPA}, 1, v{vE0}")
        a(f"v_bfe_u32 v{vPA}, v{vL}, 2, 1"); a(f"v_add_u32 v{vE0}, v{vE0}, v{vPA}")
    else:
        a(f"v_lshrrev_b32 v{vE0}, 4, v{vL}"); a(f"v_mul_u32_u24 v{vE0}, 20, v{vE0}")
        a(f"v_bfe_u32 v{vPA}, v{vL}, 2, 2"); a(f"v_add_u32 v{vE0}, v{vE0}, v{vPA}")
    a(f"v_mul_u32_u24 v{vE0}, 160, v{vE0}")
    a(f"v_lshl_add_u32 v{vE0}, v{vPD}, 3, v{vE0}"); a(f"v_add_u32 v{vE0}, {half}, v{vE0}")
    a(f"v_lshlrev_b32 v{vPA}, 2, v{vL}")
    a(f"s_mul_i32 s7, s{sWV}, 5120"); a(f"v_add_u32 v{vRR}, s7, v{vXA0}")
    a(f"s_xor_b32 s7, s{sWV}, 1"); a(f"s_mul_i32 s7, s7, 5120"); a(f"v_add_u32 v{vRW}, s7, v{vXA0}")
    a(f"s_mul_i32 s7, s{sWV}, 2560"); a(f"s_add_u32 s7, s7, {OST2}")
    a(f"v_mov_b32 v16, s7"); a("v_mov_b32 v17, 0"); a("ds_write_b32 v16, v17")

def phase2_setup2():
    a(f"s_mul_i32 s7, s{sWV}, 2560"); a(f"s_add_u32 s7, s7, {OST2}")
    for j in range(3):
        a(f"v_add_u32 v{RA[j]}, {64*j}, v{vL}")
        a(f"v_mul_u32_u24 v{GA_[j]}, 6554, v{RA[j]}"); a(f"v_lshrrev_b32 v{GA_[j]}, 16, v{GA_[j]}")
        a(f"v_mul_u32_u24 v{vSA}, 2400, v{GA_[j]}")
        a(f"v_lshlrev_b32 v{RA[j]}, 4, v{RA[j]}")
        a(f"v_add_u32 v{GA_[j]}, v{vSA}, v{RA[j]}")
        a(f"v_add_u32 v{RA[j]}, s7, v{RA[j]}")
    a(f"v_and_b32 v{vSA}, 15, v{vL}"); a(f"v_mul_u32_u24 v{vSA}, 160, v{vSA}")
    a(f"v_lshrrev_b32 v16, 4, v{vL}"); a(f"v_lshlrev_b32 v16, 3, v16"); a(f"v_add3_u32 v{vSA}, v{vSA}, v16, s7")

def phase2():
    a.label("L_phase2")
    a.vm = ["flag"]; a.lg = []
    vL16 = vXA0
    a("s_barrier")
    stamp("E3")
    OF = 176; ACC = 16
    def of(k, rt): return OF + (k * 2 + rt) * 4
    bufs = ([56 + 4 * k for k in range(9)] + [96 + 4 * k for k in range(20)])[:OPT["npre"]]
    NB = len(bufs)
    def reads(n):
        k, t = divmod(n, 5); w = bufs[n % NB]; tg = []
        for h in range(2):
            if k < 8: row = 40 * k + 20 * h; base = vM0
            else: row = 80 * (2 * (k - 8) + h) + 16; base = vE0
            tg.append(a(f"ds_read_b64_tr_b16 {vr(w+2*h,2)}, v{base} offset:{row * 160 + 32 * t}"))
        return tg
    def oload(j):
        k, rt = divmod(j, 2)
        if k < 8:
            if k % 2 == 0: a(f"s_add_u32 s{3+rt}, s{sOC}, {rt*OT + k*OP_}")
            a(f"buffer_load_dwordx4 {vr(of(k,rt),4)}, v{vL16}, {sr(OS,4)}, s{3+rt} offen offset:{(k%2)*OP_} sc1", f"o{k}")
        else:
            a(f"s_add_u32 s{3+rt}, s{sOE}, {rt*OT + (k-8)*4*OP_}")
            a(f"buffer_load_dwordx4 {vr(of(k,rt),4)}, v{vXE}, {sr(OS,4)}, s{3+rt} offen offset:1024 sc1", f"o{k}")
    NP = OPT["npoll"]; per = NB // NP
    batches = [list(range(k * per, (k + 1) * per if k < NP - 1 else NB)) for k in range(NP)]
    tags = {}
    def poll_issue():
        a("s_mov_b64 exec, 0xff"); a(f"buffer_load_dword v{vPD}, v{vPA}, {sr(SS,4)}, s{sFC} offen sc1"); a("s_mov_b64 exec, -1")
    def poll_check(lbl):
        a("s_waitcnt vmcnt(0)")
        a(f"v_cmp_ne_u32 vcc, s{sN}, v{vPD}"); a("s_and_b32 vcc_lo, vcc_lo, 0xff"); a(f"s_cbranch_scc0 {lbl}" if not OPT["hackpoll"] else f"s_branch {lbl}")
    lgs = []
    for k in range(NP):
        poll_issue()
        for n in batches[k]: tags[n] = reads(n)
        if k == 0 and not OPT['woaft']: phase2_setup2()
        lgs.append(list(a.lg))
        poll_check(f"L_go{k}")
    spin_begin("L_poll")
    poll_issue(); poll_check(f"L_go{NP-1}")
    spin_check("L_poll", "L_pollx")
    XL = OPT["oburst"] + NP - 1
    full = list(a.lg)
    for k in range(NP - 1, -1, -1):
        a.label(f"L_go{k}")
        a.vm = []; a.lg = list(lgs[k])
        stamp("polled")
        nxt = 0
        for _ in range(OPT["oburst"]): oload(nxt); nxt += 1
        for j in range(k + 1, NP):
            for n in batches[j]: reads(n)
            oload(nxt); nxt += 1
        while nxt < XL: oload(nxt); nxt += 1
        if k > 0: a("s_branch L_conv")
    a.label("L_conv")
    a.lg = full[-12:]
    a("s_waitcnt lgkmcnt(12)")
    rd = NB
    NLOOP = 45 if OPT["lastk"] else 50
    for n in range(NLOOP):
        k, t = divmod(n, 5)
        p3 = parse_pr(OPT["pr3"])
        if (n % 10) in p3:
            a(f"s_bitcmp1_b32 s{sWV}, 2"); a(f"s_cbranch_scc0 L_np{n}"); a(f"s_setprio {p3[n % 10]}"); a.label(f"L_np{n}")
        a.wait(vm=f"o{k}" if t == 0 else None, lg=tags[n])
        if n == 0: stamp("ofirst")
        if n == 45 and AL:
            a(f"v_mov_b32 v{vPD}, s{sN}"); a("s_mov_b64 exec, 1")
            a(f"s_cmp_eq_u32 s{sFAST}, 1"); a("s_cbranch_scc1 L_df1")
            a(f"buffer_store_dword v{vPD}, off, {sr(SS,4)}, s{sDFP} sc1"); a("s_branch L_df2")
            a.label("L_df1"); a(f"buffer_store_dword v{vPD}, off, {sr(SS,4)}, s{sDFP}"); a.label("L_df2")
            a("s_mov_b64 exec, -1")
        for rt in range(2):
            d = ACC + (rt * 5 + t) * 4
            mfma(d, bufs[n % NB], of(k, rt), d if k else "0")
        if t in (0, 2) and nxt < 20: oload(nxt); nxt += 1
        if OPT["wb"] >= 3 and n == OPT["wbn"]:
            a(f"s_xor_b32 s3, s{sWV}, {OPT['wbw']}")
            if OPT["wb"] == 3: a(f"s_or_b32 s3, s3, s{sHG}")
            else: a(f"s_and_b32 s4, s{sHG}, 3"); a("s_or_b32 s3, s3, s4")
            a(f"s_cmp_eq_u32 s3, 0"); a(f"s_cselect_b32 s3, s{sFAST}, 0"); a("s_cmp_eq_u32 s3, 1")
            a("s_cbranch_scc0 L_nowb")
            a("buffer_wbl2 sc1", "~wb")
            a.label("L_nowb")
        if t == 1 and nxt == 20 and OPT["wb"] in (1, 2):
            nxt = 21
            if OPT["wb"] == 1: a(f"s_or_b32 s3, s{sWV}, s{sHG}")
            else: a(f"s_mov_b32 s3, s{sWV}")
            a(f"s_cmp_eq_u32 s3, 0"); a(f"s_cselect_b32 s3, s{sFAST}, 0"); a("s_cmp_eq_u32 s3, 1")
            a("s_cbranch_scc0 L_nowb")
            a("buffer_wbl2 sc1", "~wb")
            a.label("L_nowb")
        if rd < 50: tags[rd] = reads(rd); rd += 1
    if not OPT["lastk"]: stamp("g2end")
    assert not (AL and OPT["lastk"])
    if AL: a("s_mov_b64 exec, 0xffff"); a(f"buffer_load_dword v{vPD}, v{vPA}, {sr(SS,4)}, s{sDFC} offen sc1"); a("s_mov_b64 exec, -1")
    else: a("s_nop 2")
    a(f"s_xor_b32 s7, s{sWV}, 1"); a(f"s_mul_i32 s7, s7, 2560"); a(f"s_add_u32 s7, s7, {OST2}")
    a(f"v_mov_b32 v92, s7"); a(f"s_mul_i32 s7, s{sWV}, 2560"); a(f"s_add_u32 s7, s7, {OST2}"); a(f"v_mov_b32 v93, s7")
    if OPT["lastk"]: a.wait(vm="o9", lg="all")
    a(f"s_cmp_eq_u32 s{sKH}, 0"); a("s_cbranch_scc0 L_red1")
    for c in range(2):
        if c == 1: a.label("L_red1")
        a.lg = []
        give = ACC + (1 - c) * 20; keep = ACC + c * 20
        if OPT["lastk"]:
            for t in range(5): mfma(give + 4 * t, bufs[(45 + t) % NB], of(9, 1 - c), give + 4 * t)
            for t in range(5):
                mfma(keep + 4 * t, bufs[(45 + t) % NB], of(9, c), keep + 4 * t)
                if t >= 2: a(f"ds_write_b128 v{vRW}, {vr(give+4*(t-2),4)} offset:{RX + (t-2)*1024}")
            for t in (3, 4): a(f"ds_write_b128 v{vRW}, {vr(give+4*t,4)} offset:{RX + t*1024}")
            stamp("g2end")
        else:
            for t in range(5): a(f"ds_write_b128 v{vRW}, {vr(give+4*t,4)} offset:{RX + t*1024}")
        a.wait(lg="all")
        a("ds_write_b32 v92, v92")
        spin_begin(f"L_pw{c}")
        a("ds_read_b32 v94, v93"); a("s_waitcnt lgkmcnt(0)")
        a("v_cmp_ne_u32 vcc, 0, v94"); a(f"s_cbranch_vccnz L_pwok{c}")
        spin_check(f"L_pw{c}", f"L_pwok{c}")
        a.lg = []
        tg = [a(f"ds_read_b128 {vr(56+4*t,4)}, v{vRR} offset:{RX + t*1024}") for t in range(5)]
        for t in range(5):
            a.wait(lg=tg[t])
            for j in range(4): a(f"v_add_f32 v{56+4*t+j}, v{56+4*t+j}, v{keep+4*t+j}")
            pack(56 + 4 * t, 80 + 2 * t)
            a(f"ds_write_b64 v{vSA}, {vr(80+2*t,2)} offset:{32*t}")
        if c == 0: a("s_branch L_red2")
    a.label("L_red2")
    a.wait(lg="all")
    tg = []
    for j in range(3):
        if j == 2: a("s_mov_b32 exec_hi, 0")
        tg.append(a(f"ds_read_b128 {vr(96+4*j,4)}, v{RA[j]}"))
    a("s_mov_b64 exec, -1")
    def dfcheck():
        a("s_waitcnt vmcnt(0)")
        a(f"v_cmp_ne_u32 vcc, s{sN}, v{vPD}"); a("s_and_b32 vcc_lo, vcc_lo, 0xffff"); a("s_cbranch_scc0 L_dfok")
    if AL:
        dfcheck()
        spin_begin("L_dfs")
        a("s_mov_b64 exec, 0xffff"); a(f"buffer_load_dword v{vPD}, v{vPA}, {sr(SS,4)}, s{sDFC} offen sc1"); a("s_mov_b64 exec, -1")
        dfcheck()
        spin_check("L_dfs", "L_dfok")
    fl = OPT["outflag"].replace("+", " "); fl = "" if fl == "none" else " " + fl
    for j in range(3):
        a.wait(lg=tg[j])
        if j == 2: a("s_mov_b32 exec_hi, 0")
        a(f"buffer_store_dwordx4 {vr(96+4*j,4)}, v{GA_[j]}, {sr(SD,4)}, s{sOUT} offen{fl}")
    if OPT["wbe"]:
        a(f"s_xor_b32 s3, s{sWV}, {OPT['wbw']}"); a(f"s_and_b32 s4, s{sHG}, {OPT['wbe']-1 if OPT['wbe'] > 1 else 7}"); a("s_or_b32 s3, s3, s4")
        a("s_cmp_eq_u32 s3, 0"); a("s_cbranch_scc0 L_nowbe")
        a("s_waitcnt vmcnt(0)"); a("buffer_wbl2 sc1")
        a.label("L_nowbe")
    if OPT["stamps"]:
        a("s_mov_b64 exec, -1")
        a("s_waitcnt vmcnt(0)")
        stamp("end")
        a(f"s_memrealtime s[100:101]"); a("s_waitcnt lgkmcnt(0)"); a(f"v_writelane_b32 v{vST}, s100, 41")
        a(f"v_writelane_b32 v{vST}, s{sFAST}, 42")
        a(f"s_lshl_b32 s3, s2, 3"); a(f"s_add_u32 s3, s3, s{sWV}"); a("s_lshl_b32 s3, s3, 8"); a(f"s_add_u32 s3, s3, {WS_STAMP}")
        a(f"v_lshlrev_b32 v0, 2, v{vL}")
        a(f"buffer_store_dword v{vST}, v0, {sr(SS,4)}, s3 offen")
    a.label("L_end")
    a("s_endpgm")
    a.label("L_codeend")

prologue()
sv0 = list(a.vm)
for b, c in ((0, 0), (0, 1), (1, 0), (1, 1)):
    a.vm = list(sv0); a.lg = []
    path(b, c)
phase2()
a.raw(f""".section .rodata,"a"
.p2align 6
.amdhsa_kernel {KNAME}
  .amdhsa_next_free_vgpr 256
  .amdhsa_next_free_sgpr 102
  .amdhsa_accum_offset 256
  .amdhsa_group_segment_fixed_size 0
  .amdhsa_kernarg_size 72
  .amdhsa_user_sgpr_count 2
  .amdhsa_user_sgpr_kernarg_segment_ptr 1
  .amdhsa_system_sgpr_workgroup_id_x 1
.end_amdhsa_kernel""")
open(sys.argv[1], "w").write(a.text())
print("nops inserted:", a.nops_inserted, "lines:", len(a.lines), file=sys.stderr)
```

```python
import sys, os, struct
from collections import deque
from asmlib import Asm, vr, sr

KNAME = "concat_heads__linear_attn_block__sliding_local_dilated__prompt_kernel"
OPT = dict(ecpar=-1, rv=0, dmap="", ord="n", ordoff=1, lean2=1, lean=1, lastk=0, rot2=0, hal_at=3, fewb=1, woA="2:0,4:1", esk=0, rts=0, woaft=0, gearly=54, tbal=1, exact=1, hackwo=0, hackgat=0, hackphi=0, hackpoll=0, sched="", tcm="", pr1="", pr2="", pr3="", prep=-1, hackport=0, hackdma=0, tcs=0, tc="", tcw=3, tc0=0, tcpos=0, alias=0, wbe=0, worot=0, wbn=49, wbw=4, tqonly=0, st0=-1, stn=6, stq=1, stp=1, srate=3, prel1=-1, ofl="nt", npoll=3, pre1=10, gspread=1, LA=2, p1n=3, win="", ea=0, eb=-1, ec=3, ecg=0, pst=-1, rev0=0, wodef=3, wnt=0, wont=0, pnt=0, xrot=1, prest=0, xnt=0, t0=0, wosched=0, G=10, stamps=0, L=4, Lb=2, L2=8, Lb2=4, force_slow=0, wb=0, codepf=1, outflag="nt", gat_at=3, pro=2, tq=-1,
           oburst=8, npre=27, rdy_at=4, prel_at=1, stampset="all")
for x in sys.argv[2:]:
    k, v = x.split("="); OPT[k] = int(v) if v.lstrip("-").isdigit() else v

def f2u(x): return struct.unpack("<I", struct.pack("<f", x))[0]

SLOT = 36864; UNIT = 10240
SC = 20480
EE_A = SC; RED = SC + 8192; OPS = 40960; EQX = SC + 28672; EXB = SC; OST = SC
BCAST = 147456 + 64
WO_BASE = 6 * UNIT
WQ_UNIT = [8, 10, 12, 0, 14]
CST = 148480
EE_A2 = 154624
OPX = 0
WS_KV = 0x600000; WS_HALO = 0x700000; WS_FLAG = 0x800000; WS_RDY = 0x810000; WS_E = 0x820000; WS_STAMP = 0x900000
WS_SIZE = 0x10000000
SPIN_MAX = 200000
EPS = f2u(1e-6)
LOG2E = 1.4426950408889634

SX, SW, SO, SD, SS, SG = 16, 20, 24, 28, 32, 36
sB, sRT, sHG, sWV, sI, sC, sXCC, sN, sFAST = 40, 41, 42, 43, 44, 45, 46, 47, 48
sXO, sWK = 50, 60
sW1K, sX2K = 70, 71
sT0, sT1, sT2, sT3 = 72, 73, 74, 75
sOB, sKVP, sKVG, sHP, sHG2, sFP, sFC = 76, 77, 78, 79, 49, 9, 8
sM = 80
sHV = 87; sTI = 86; sSPIN = 92; sCUR = 93; sDUTY = 90
sK = 94; sTM = 96; sOC = 98; sOUT = 99; sOE = 91; sKH = 85; sDFP = 84; sDFC = 83; sFPL = 82
vXD0, vXD1, vWD = 1, 2, 3
vXA0, vXA1, vWA, vWE, vL = 6, 7, 8, 9, 10
vT = 11; vST = 15
vWO = 90; vPRE = 93; vGAD = 94; vXE = 14
ACC1 = 16; WF = 56; XB = 96
def X(ks, rt): return XB + (ks * 2 + rt) * 4

a = Asm()
if OPT["exact"]:
    a.ghost_cond = {"w0": [f"s_cmp_eq_u32 s{sWV}, 0"], "i3": [f"s_cmp_eq_u32 s{sI}, 3"], "h0": [f"s_cmp_lg_u32 s{sHV}, 0"]}
AL = OPT['alias']
OS = SD if AL else SS
OP_ = 2560 if AL else 1280
OT = 16 * OP_
STAMPS = ["start", "issued", "b0", "b1", "b2", "b3", "b4", "b5", "b6", "b7", "b8", "b9", "p1end", "E1", "pub1", "p1", "p2", "p3", "p4", "p2end", "E2", "ostore", "oack", "E3", "polled", "ofirst", "g2end", "end", "first"]
FEW = {"first", "b0", "b1", "b2", "b4", "b6", "p1end", "pub1", "p2end", "ostore", "ofirst", "g2end", "end"}
def stamp(name):
    if not OPT["stamps"]: return
    if OPT["stampset"] == "few" and name not in FEW: return
    if OPT["stampset"] == "end" and name not in ("end",): return
    a(f"s_memtime {sr(sTM,2)}")
    RT = {"b0": 44, "b1": 45, "b6": 46, "p1end": 47, "pub1": 48, "p2end": 49, "ostore": 50, "ofirst": 51, "g2end": 52}
    if name in RT and OPT["rts"]: a("s_memrealtime s[100:101]")
    a("s_waitcnt lgkmcnt(0)"); a.lg = []
    a(f"v_writelane_b32 v{vST}, s{sTM}, {STAMPS.index(name)}")
    if name in RT and OPT["rts"]: a(f"v_writelane_b32 v{vST}, s100, {RT[name]}")

def srd(d, lo, hi, size):
    a(f"s_mov_b32 s{d}, s{lo}"); a(f"s_mov_b32 s{d+1}, s{hi}")
    a(f"s_mov_b32 s{d+2}, {size}"); a(f"s_mov_b32 s{d+3}, 0x20000")
def mask_ins(s, val):
    if s == "vcc": return [f"s_mov_b32 vcc_lo, 0x{val & 0xffffffff:x}", f"s_mov_b32 vcc_hi, 0x{val >> 32:x}"]
    return [f"s_mov_b32 s{s}, 0x{val & 0xffffffff:x}", f"s_mov_b32 s{s+1}, 0x{val >> 32:x}"]
def set_mask(s, val):
    for i in mask_ins(s, val): a(i)
def lanemask(f):
    m = 0
    for l in range(64):
        if f(l): m |= 1 << l
    return m

V0OK = [True]
def wvoff_ins(dst, q, pitch, swap, second):
    if q == 0: r = [f"v_and_b32 v{vT}, 0x1ff, v0" if V0OK[0] else f"v_lshl_add_u32 v{vT}, s{sWV}, 6, v{vL}"]
    elif q == 2: r = [f"s_lshl_b32 s{sT0}, s{sWV}, 6", f"s_add_u32 s{sT0}, s{sT0}, 384", f"s_mov_b32 s{sT1}, {second}", f"v_add_u32 v{vT}, s{sT0}, v{vL}"]
    else: r = [f"s_add_u32 s{sT0}, s{sWV}, {8*q}", f"s_cmp_ge_u32 s{sT0}, 10", f"s_cselect_b32 s{sT1}, {second}, 0", f"s_cselect_b32 s{sT2}, 10, 0",
         f"s_sub_u32 s{sT0}, s{sT0}, s{sT2}", f"s_lshl_b32 s{sT0}, s{sT0}, 6", f"v_add_u32 v{vT}, s{sT0}, v{vL}"]
    r += [ f"v_mul_u32_u24 v{vT+1}, 6554, v{vT}", f"v_lshrrev_b32 v{vT+1}, 16, v{vT+1}",
         f"v_mul_u32_u24 v{vT+2}, 10, v{vT+1}", f"v_sub_u32 v{vT}, v{vT}, v{vT+2}"]
    if swap:
        r += [f"v_lshrrev_b32 v{vT+2}, 1, v{vT+1}", f"v_xor_b32 v{vT+2}, v{vT+2}, v{vT+1}", f"v_and_b32 v{vT+2}, 4, v{vT+2}",
              f"v_mul_u32_u24 v{vT+2}, 3, v{vT+2}", f"v_xor_b32 v{vT+1}, v{vT+1}, v{vT+2}"]
    r += [f"v_mul_u32_u24 v{vT+1}, {pitch}, v{vT+1}", f"v_lshlrev_b32 v{vT}, 4, v{vT}", f"v_add3_u32 v{dst}, v{vT}, v{vT+1}, s{sT1}" if q else f"v_add_u32 v{dst}, v{vT}, v{vT+1}"]
    return r
def wvoff(*args):
    for i in wvoff_ins(*args): a(i)

XF = " nt" if OPT["xnt"] else ""
WFL = " nt" if OPT["wnt"] else ""
WOFL = " nt" if OPT["wont"] else ""
def dma_chunk(c, step):
    base = (step % 4) * SLOT
    ops = [([f"s_add_u32 m0, s{sX2K}, {base}"], f"buffer_load_dwordx4 v{vXD0}, {sr(SX,4)}, s{sXO+step} offen{XF} lds"),
           ([f"s_add_u32 m0, s{sX2K}, {base + 1024}"], f"buffer_load_dwordx4 v{vXD1}, {sr(SX,4)}, s{sXO+step} offen{XF} lds")]
    for q in range(3 if c == 0 else 2):
        if OPT["hackdma"] and q >= 1 and step >= 2: continue
        ops.append(([f"s_add_u32 m0, s{sW1K}, {base + 16384 + q*8192}"], f"buffer_load_dwordx4 v{vWD+q}, {sr(SW,4)}, s{sWK+step} offen{WFL} lds"))
    return ops
def dma_wq(c, u):
    base = WQ_UNIT[u] * UNIT
    ops = []
    for q in range(3 if c == 0 else 2):
        pre = []
        if q == 0: pre.append(f"s_sub_u32 s{sT3}, s{sWK+2*u}, 1280")
        elif q == 2 or c == 1: pre.append(f"s_sub_u32 s{sT3}, s{sWK+2*u+1}, 1280")
        else: pre += [f"s_cmp_lt_u32 s{sWV}, 2", f"s_cselect_b32 s{sT3}, s{sWK+2*u}, s{sWK+2*u+1}", f"s_sub_u32 s{sT3}, s{sT3}, 1280"]
        pre.append(f"s_add_u32 m0, s{sW1K}, {base + q*8192}")
        ops.append((pre, f"buffer_load_dwordx4 v{vWD+q}, {sr(SW,4)}, s{sT3} offen{WFL} lds"))
    return ops
sWOR = 86
def dma_wo(c, u):
    base = WO_BASE + u * 2 * UNIT
    ops = []
    if OPT["hackwo"]: return ops
    if u < OPT["worot"]:
        for q in range(3 if c == 0 else 2):
            pre = [f"s_lshl_b32 s{sT3}, s{sWOR+u}, 3", f"s_add_u32 s{sT3}, s{sT3}, s{sCUR}", f"s_add_u32 s{sT2}, s{sW1K}, s{sWOR+u}", f"s_add_u32 m0, s{sT2}, {WO_BASE + q*8192}"]
            ops.append((pre, f"buffer_load_dwordx4 v{vWO+q}, {sr(SO,4)}, s{sT3} offen{WOFL} lds"))
        return ops
    for q in range(3 if c == 0 else 2):
        pre = [f"s_add_u32 s{sT3}, s{sCUR}, {u*128*1280}", f"s_add_u32 m0, s{sW1K}, {base + q*8192}"]
        ops.append((pre, f"buffer_load_dwordx4 v{vWO+q}, {sr(SO,4)}, s{sT3} offen{WOFL} lds"))
    return ops
def emit_op(op, tag):
    if callable(op): return op()
    for p in op[0]: a(p)
    a(op[1], tag)

def spin_begin(name):
    a(f"s_mov_b32 s{sSPIN}, 0"); a.label(name)
def spin_check(name, done):
    a.vm = [t for t in a.vm if t != "~x"]
    a(f"s_add_u32 s{sSPIN}, s{sSPIN}, 1"); a(f"s_cmp_lt_u32 s{sSPIN}, {SPIN_MAX}"); a(f"s_cbranch_scc1 {name}")
    a.label(done)

def phi_ins(src, n, dst_list, tmp):
    r = []
    if OPT["hackphi"]:
        for d in dst_list:
            for i in range(0, n, 2): r.append(f"v_cvt_pk_bf16_f32 v{d+i//2}, v{src+i}, v{src+i+1}")
        return r
    for i in range(n): r.append(f"v_mul_f32 v{tmp+i}, s{sK}, v{src+i}")
    for i in range(n):
        r.append(f"v_exp_f32_e64 v{tmp+i}, v{tmp+i} clamp")
        r.append(f"v_max_f32 v{src+i}, s{sK+1}, v{src+i}")
    for i in range(n): r.append(f"v_add_f32 v{src+i}, v{src+i}, v{tmp+i}")
    for d in dst_list:
        for i in range(0, n, 2): r.append(f"v_cvt_pk_bf16_f32 v{d+i//2}, v{src+i}, v{src+i+1}")
    return r
def phi_pack(*args):
    for i in phi_ins(*args): a(i)
def pack_ins(src, dst):
    return [f"v_cvt_pk_bf16_f32 v{dst}, v{src}, v{src+1}", f"v_cvt_pk_bf16_f32 v{dst+1}, v{src+2}, v{src+3}"]
def pack(src, dst):
    for i in pack_ins(src, dst): a(i)
def mfma(d, A, B, C):
    c = C if isinstance(C, str) else vr(C, 4)
    a(f"v_mfma_f32_16x16x32_bf16 {vr(d,4)}, {vr(A,4)}, {vr(B,4)}, {c}")

def emit_side(x):
    if callable(x): x(); return 4
    if isinstance(x, list):
        for y in x: a(y)
        return max(1, sum(1 for y in x if y.startswith("v_")))
    a(x); return 1

def parse_pr(x):
    return {int(e.split(':')[0]): int(e.split(':')[1]) for e in str(x).split(',') if e}

def pipeline(N, reads, mf, bounds, boundary, L, Lb, bufs, newbufs={}, side={}, side_rate=3, prio=None):
    rd = 0; m = 0; tags = {}; bufof = {}; pend = []; every = 1; cnt = 0
    free = deque(bufs); bl = sorted(bounds); sq = deque()
    while m < N:
        can_read = rd < N and rd - m < L + 1 and len(free) > 0
        if can_read and rd in bounds and rd - m > Lb: can_read = False
        if can_read:
            if rd in bounds:
                for op in pend: emit_op(op[0], op[1])
                pend = list(boundary(bounds[rd]))
                nxt = [x for x in bl if x > rd]
                span = (nxt[0] if nxt else N) - rd
                every = max(1, (span - 1) // max(1, len(pend))); cnt = 0
            bufof[rd] = free.popleft()
            tags[rd] = reads(rd, bufof[rd]); rd += 1
        else:
            if prio and (m % prio[0]) in prio[1]: a(f"s_setprio {prio[1][m % prio[0]]}")
            a.wait(lg=tags[m])
            cnt += 1; op = None
            if pend and cnt % every == 0:
                op = pend.pop(0)
                if not callable(op[0]):
                    for p in op[0][0]: a(p)
            mf(m, bufof[m])
            free.append(bufof[m])
            for b_ in newbufs.get(m, []): free.append(b_)
            if op is not None:
                if callable(op[0]): op[0]()
                else: a(op[0][1], op[1])
            for x in side.get(m, []): sq.append(x)
            k = 0
            while sq and k < side_rate:
                k += emit_side(sq.popleft())
            m += 1
    for op in pend: emit_op(op[0], op[1])
    while sq: emit_side(sq.popleft())

def step_offsets_win(s):
    sizes = [int(x) for x in str(OPT["win"]).split(",")]
    w0 = 0
    for sz in sizes:
        if s < w0 + sz: break
        w0 += sz
    if sz == 1:
        a(f"s_add_u32 s{sWK+s}, s5, {s*245760}"); a(f"s_add_u32 s{sXO+s}, s4, {s*128}")
        return
    a(f"s_add_u32 s{sT3}, s{sCUR}, {s - w0}"); a(f"s_and_b32 s{sT3}, s{sT3}, {sz-1}"); a(f"s_add_u32 s{sT3}, s{sT3}, {w0}")
    a(f"s_mul_i32 s{sWK+s}, s{sT3}, 245760"); a(f"s_add_u32 s{sWK+s}, s{sWK+s}, s5")
    a(f"s_lshl_b32 s{sXO+s}, s{sT3}, 7"); a(f"s_add_u32 s{sXO+s}, s{sXO+s}, s4")

def touch_steps(c, s0, n, par, tag):
    a(f"s_lshr_b32 s3, s2, 3"); a(f"s_and_b32 s6, s3, 1"); a(f"s_cmp_eq_u32 s6, {par}"); a(f"s_cbranch_scc0 L_nt_{tag}")
    a(f"s_lshr_b32 s3, s3, 1")
    a(f"s_and_b32 s6, s2, 3")
    if c == 1:
        a(f"s_cmp_eq_u32 s{sWV}, 4"); a(f"s_cbranch_scc0 L_tw_{tag}")
    if n < 5 and c == 1: a(f"s_branch L_nt_{tag}")
    else:
        a(f"s_lshl_b32 s6, s6, 4"); a(f"s_add_u32 s6, s6, s3"); a(f"s_mul_i32 s6, s6, {32*1280}")
        a(f"s_lshl_b32 s7, s{sWV}, 7"); a(f"s_add_u32 s6, s6, s7"); a(f"s_add_u32 s6, s6, {s0*128}")
        a(f"v_mul_u32_u24 v86, 1280, v{vL}")
        a("s_mov_b32 exec_hi, 0")
        a(f"buffer_load_dword v87, v86, {sr(SX,4)}, s6 offen nt", "~t")
        a("s_mov_b32 exec_hi, -1")
        if c == 1: a(f"s_branch L_nt_{tag}")
    if c == 1:
        a.label(f"L_tw_{tag}")
        a(f"s_lshl_b32 s6, s6, 4"); a(f"s_add_u32 s6, s6, s3"); a(f"s_mul_i32 s6, s6, 3840"); a(f"s_add_u32 s6, s6, {s0*245760 + 1280}")
        a(f"s_sub_u32 s7, s{sWV}, 5"); a(f"s_mul_i32 s7, s7, 34")
        a(f"v_add_u32 v86, s7, v{vL}"); a(f"v_min_u32 v86, {20*n-1}, v86")
        a(f"v_mul_u32_u24 v87, 3277, v86"); a(f"v_lshrrev_b32 v87, 16, v87")
        a(f"v_mul_u32_u24 v88, 20, v87"); a(f"v_sub_u32 v86, v86, v88"); a(f"v_lshlrev_b32 v86, 7, v86")
        a(f"v_mul_u32_u24 v87, 245760, v87"); a(f"v_add_u32 v86, v86, v87")
        a("s_mov_b32 exec_hi, 3")
        a(f"buffer_load_dword v87, v86, {sr(SW,4)}, s6 offen", "~t")
        a("s_mov_b32 exec_hi, -1")
    a.label(f"L_nt_{tag}")

vTX, vTW, vTD = 79, 89, 95
sTXB, sTWB = 12, 13
def tc_setup(sx, sw):
    a(f"v_lshrrev_b32 v{vTX}, 1, v{vL}"); a(f"v_mul_u32_u24 v{vTX}, 1280, v{vTX}"); a(f"v_and_b32 v{vTW}, 1, v{vL}"); a(f"v_lshl_add_u32 v{vTX}, v{vTW}, 7, v{vTX}")
    a(f"v_mul_u32_u24 v{vTW}, 3277, v{vL}"); a(f"v_lshrrev_b32 v{vTW}, 16, v{vTW}"); a(f"v_mul_u32_u24 v{vTW}, {3840 - 2560}, v{vTW}")
    a(f"v_lshl_add_u32 v{vTW}, v{vL}, 7, v{vTW}")
    a(f"s_lshr_b32 s6, s2, 3"); a(f"s_and_b32 s7, s2, 3"); a("s_lshl_b32 s7, s7, 5"); a("s_add_u32 s7, s7, s6"); a(f"s_mul_i32 s{sx}, s7, 20480")
    a(f"s_mul_i32 s{sw}, s6, 15360"); a(f"s_add_u32 s{sw}, s{sw}, 1280")
def tc_issue(s0, sx, sw, tag="~t"):
    a(f"s_add_u32 s6, s{sx}, {s0*128}"); a(f"s_add_u32 s7, s{sw}, {s0*245760}")
    a("s_mov_b32 exec_hi, 0")
    a(f"buffer_load_dword v{vTD}, v{vTX}, {sr(SX,4)}, s6 offen", tag)
    a("s_mov_b32 exec_hi, 0xff")
    a(f"buffer_load_dword v{vTD}, v{vTW}, {sr(SW,4)}, s7 offen", tag)
    a("s_add_u32 s7, s7, 7680")
    a(f"buffer_load_dword v{vTD}, v{vTW}, {sr(SW,4)}, s7 offen", tag)
    a("s_mov_b32 exec_hi, -1")

TQN = [0]
def touch_qo(c):
    if OPT["tqonly"] and c == 1: return
    if OPT["ecpar"] >= 0:
        TQN[0] += 1
        a(f"s_add_u32 s3, s{sRT}, s{sHG}"); a(f"s_bitcmp1_b32 s3, 0"); a(f"s_cbranch_scc{1 - OPT['ecpar']} L_noq{TQN[0]}")
        a(f"s_lshl_b32 s3, s{sRT}, 2"); a(f"s_lshr_b32 s6, s{sHG}, 1"); a("s_add_u32 s3, s3, s6"); a(f"s_mul_i32 s3, s3, 100"); a(f"s_mul_i32 s6, s{sI}, 25"); a("s_add_u32 s3, s3, s6")
    else:
        a(f"s_lshl_b32 s3, s{sRT}, 3"); a(f"s_add_u32 s3, s3, s{sHG}"); a(f"s_mul_i32 s3, s3, 50"); a(f"s_mul_i32 s6, s{sI}, 13"); a("s_add_u32 s3, s3, s6")
    a(f"v_add_u32 v86, s3, v{vL}")
    if c == 0:
        a(f"v_mul_u32_u24 v87, 52429, v86"); a(f"v_lshrrev_b32 v87, 19, v87")
        a(f"v_mul_u32_u24 v88, 10, v87"); a(f"v_sub_u32 v86, v86, v88"); a(f"v_lshlrev_b32 v86, 7, v86")
        a(f"v_mul_u32_u24 v87, 3840, v87"); a(f"v_add_u32 v86, v86, v87")
    else:
        a(f"v_lshlrev_b32 v86, 7, v86")
    a(f"s_mov_b64 exec, {0x1fff if OPT['ecpar'] < 0 else 0x1ffffff}")
    if OPT["ecpar"] >= 0:
        a.ghost_cond["eq"] = [f"s_add_u32 s3, s{sRT}, s{sHG}", "s_and_b32 s3, s3, 1", f"s_cmp_eq_u32 s3, {OPT['ecpar']}"]
    a(f"buffer_load_dword v95, v86, {sr(SW if c == 0 else SO,4)}, 0 offen", "~eq" if OPT["ecpar"] >= 0 else None)
    a("s_mov_b64 exec, -1")
    if OPT["ecpar"] >= 0: a.label(f"L_noq{TQN[0]}")

def prestore(c):
    a(f"s_lshl_b32 s3, s{sHG}, 11"); a(f"s_add_u32 s3, s3, s{sOB}"); a(f"s_add_u32 s3, s3, {c*1024}"); a("s_add_u32 s4, s3, 20480")
    a(f"s_lshl_b32 s5, s{sHG}, 9"); a(f"s_add_u32 s5, s5, s{sOB}"); a(f"s_add_u32 s5, s5, {16384 + c*256}"); a("s_add_u32 s6, s5, 20480")
    a(f"v_lshlrev_b32 v79, 4, v{vL}")
    a(f"buffer_store_dwordx4 v[80:83], v79, {sr(SS,4)}, s3 offen sc1")
    a(f"buffer_store_dwordx4 v[80:83], v79, {sr(SS,4)}, s4 offen sc1")
    a("s_mov_b64 exec, 0xffff")
    a(f"buffer_store_dwordx4 v[80:83], v79, {sr(SS,4)}, s5 offen sc1")
    a(f"buffer_store_dwordx4 v[80:83], v79, {sr(SS,4)}, s6 offen sc1")
    a("s_mov_b64 exec, -1")

ORDS = {
 "a": ["0213645789", "0142358679", "1302475689", "1053246978"],
 "b": ["0412385679", "1253049678", "2306145789", "3012745689"],
 "c": ["0123456789"] * 4,
 "d": ["0246135789", "0357124689", "1024683579", "1035792468"],
 "g": ["0213465789", "0132457689", "1024356879", "1023546798"],
 "h": ["0216345789", "0142835679", "1307245689", "1052934678"],
 "i": ["0213645789", "0142358679", "1302475689", "1053249678"],
 "j": ["0214365879", "0132547698", "1302456789", "1023456789"],
 "k": ["0321645789", "0145238679", "1203475689", "1054326978"],
 "l": ["0261345789", "0148235679", "1370245689", "1059234678"],
 "m": ["0316425789", "1047235689", "2150834679", "0125934678"],
 "n": ["0246135789", "0135724689", "1380245679", "1029345678"],
 "o": ["0213645789", "0142835679", "1302745689", "1053294678"],
 "p": ["0246135789", "0158234679", "1370245689", "1029345678"],
 "q": ["0245136789", "0136782459", "1302456789", "1023945678"],
 "r": ["0247135689", "0135824679", "1369024578", "1023456789"],
 "s": ["0241635789", "0135274689", "1308245679", "1023945678"],
 "t": ["0357124689", "1046235789", "2180345679", "0129345678"],
 "u": ["0234561789", "0167823459", "1023945678", "1023456789"],
 "v": ["0241356789", "0126834579", "1350246789", "1037924568"],
 "w": ["0241356789", "0126348579", "1350246789", "1037294568"],
 "x": ["0241635789", "0126345789".replace("6345", "7345").replace("789", "689"), "1350824679", "1032945678"],
 "y": ["0241356789", "0162834579", "1350246789", "1073924568"],
 "e": ["0231645789", "0145238679", "1320475689", "1054326978"],
}
sORD = 84
def step_offsets_ord(s):
    tabs = ORDS[OPT["ord"]]
    for t in tabs: assert sorted(t) == list("0123456789")
    if s == 0:
        a(f"s_add_u32 s{sCUR}, s3, s{sHG}"); a(f"s_and_b32 s{sCUR}, s{sCUR}, 3")
        f0 = sum(int(t[0]) << (4 * k) for k, t in enumerate(tabs))
        a(f"s_lshl_b32 s{sT1}, s{sCUR}, 2"); a(f"s_lshr_b32 s{sT3}, 0x{f0:x}, s{sT1}"); a(f"s_and_b32 s{sT3}, s{sT3}, 15")
        if OPT["ordoff"]:
            a(f"s_and_b32 s83, s2, 3"); a("s_mul_i32 s83, s83, 5"); a("s_add_u32 s83, s83, 1"); a("s_lshr_b32 s83, s83, 1")
    else:
        if s == 1:
            pk = [sum(int(ch) << (4 * k) for k, ch in enumerate(t[1:9])) for t in tabs]
            p9 = sum(int(t[9]) << (4 * k) for k, t in enumerate(tabs))
            a(f"s_mov_b32 s{sORD}, 0x{pk[0]:x}")
            for k in (1, 2, 3): a(f"s_cmp_eq_u32 s{sCUR}, {k}"); a(f"s_cselect_b32 s{sORD}, 0x{pk[k]:x}, s{sORD}")
            a(f"s_lshl_b32 s{sT1}, s{sCUR}, 2"); a(f"s_lshr_b32 s{sORD+1}, 0x{p9:x}, s{sT1}"); a(f"s_and_b32 s{sORD+1}, s{sORD+1}, 15")
        if s < 9: a(f"s_bfe_u32 s{sT3}, s{sORD}, 0x{(4 << 16) | (4 * (s - 1)):x}")
        else: a(f"s_mov_b32 s{sT3}, s{sORD+1}")
    if OPT["ordoff"]:
        a(f"s_add_u32 s{sT3}, s{sT3}, s83"); a(f"s_cmp_ge_u32 s{sT3}, 10"); a(f"s_cselect_b32 s{sT1}, 10, 0"); a(f"s_sub_u32 s{sT3}, s{sT3}, s{sT1}")
    a(f"s_mul_i32 s{sWK+s}, s{sT3}, 245760"); a(f"s_add_u32 s{sWK+s}, s{sWK+s}, s5")
    a(f"s_lshl_b32 s{sXO+s}, s{sT3}, 7"); a(f"s_add_u32 s{sXO+s}, s{sXO+s}, s4")

def step_offsets(s):
    if OPT["ord"]: return step_offsets_ord(s)
    if OPT["win"]: return step_offsets_win(s)
    G = OPT["G"]; w0 = (s // G) * G
    if w0: a(f"s_add_u32 s{sT3}, s{sCUR}, {w0}"); src = sT3
    else: src = sCUR
    a(f"s_mul_i32 s{sWK+s}, s{src}, 245760"); a(f"s_add_u32 s{sWK+s}, s{sWK+s}, s5")
    a(f"s_lshl_b32 s{sXO+s}, s{src}, 7"); a(f"s_add_u32 s{sXO+s}, s{sXO+s}, s4")
    if G > 1 and s < 9:
        a(f"s_add_u32 s{sCUR}, s{sCUR}, 1"); a(f"s_cmp_eq_u32 s{sCUR}, {G}"); a(f"s_cselect_b32 s{sCUR}, 0, s{sCUR}")

sTCX, sTCW = 88, 89
def tc_start():
    f0 = OPT["tcpos"]
    a(f"s_cmp_lt_u32 s{sWV}, {OPT['tc0']}"); a("s_cbranch_scc0 L_notc0")
    a(f"s_mul_i32 s6, s{sWV}, 256"); a(f"s_add_u32 s{sT0}, s{sTCX}, s6"); a(f"s_mul_i32 s6, s{sWV}, {2*245760}"); a(f"s_add_u32 s{sT1}, s{sTCW}, s6")
    tc_issue(OPT["tcs"], sT0, sT1)
    a.label("L_notc0")

SCHED = {}
for ent in str(OPT["sched"]).split(","):
    if ent:
        p_, ks = ent.split(":"); SCHED[int(p_)] = [int(x) for x in ks.split(".")]
for p_, ks in SCHED.items():
    for k in ks: assert k - p_ <= 3 and k - p_ >= 1

def prologue():
    a.raw(f"; @launch grid=(256,1,1) block=(512,1,1) lds=163840")
    a.raw('.amdgcn_target "amdgcn-amd-amdhsa--gfx950"')
    a.raw(".text"); a.raw(f".globl {KNAME}"); a.raw(".p2align 8"); a.raw(f".type {KNAME},@function")
    a.label(KNAME)
    a("s_cmp_ge_u32 s2, 256")
    a("s_cbranch_scc1 L_end")
    a(f"s_bfe_u32 s{sB}, s2, 0x10002")
    a(f"s_mul_i32 s3, s{sB}, 24")
    a("s_add_u32 s76, s0, s3"); a("s_addc_u32 s77, s1, 0")
    if OPT["lean2"]:
        a(f"s_load_dwordx2 s[{SX}:{SX+1}], s[76:77], 0"); a(f"s_load_dwordx2 s[{SW}:{SW+1}], s[76:77], 8")
    else:
        a(f"s_load_dwordx4 s[{sM}:{sM+3}], s[76:77], 0")
        a("s_load_dwordx2 s[8:9], s[76:77], 16")
        a("s_load_dwordx4 s[12:15], s[0:1], 48")
        a("s_load_dwordx2 s[10:11], s[0:1], 64")
    a(f"v_lshrrev_b32 v{vT}, 6, v0")
    a(f"v_and_b32 v{vL}, 63, v0")
    a(f"v_readfirstlane_b32 s{sWV}, v{vT}")
    if OPT["stamps"]:
        a(f"v_mov_b32 v{vST}, 0"); a(f"s_memtime {sr(sTM,2)}"); a("s_memrealtime s[100:101]")
    a(f"v_lshrrev_b32 v{vT}, 3, v{vL}")
    a(f"v_lshrrev_b32 v{vT+1}, 4, v{vL}")
    a(f"v_xor_b32 v{vT+1}, v{vT+1}, v{vL}")
    a(f"v_and_b32 v{vT+1}, 7, v{vT+1}")
    a(f"v_mul_u32_u24 v{vT}, 1280, v{vT}")
    a(f"v_lshl_add_u32 v{vXD0}, v{vT+1}, 4, v{vT}")
    a(f"v_xor_b32 v{vXD1}, 64, v{vXD0}")
    a(f"v_add_u32 v{vXD1}, 10240, v{vXD1}")
    a(f"s_and_b32 s{sRT}, s2, 3"); a(f"s_lshl_b32 s{sRT}, s{sRT}, 2")
    a(f"s_bfe_u32 s3, s2, 0x20003"); a(f"s_add_u32 s{sRT}, s{sRT}, s3")
    a(f"s_lshr_b32 s{sHG}, s2, 5")
    a(f"s_lshr_b32 s{sC}, s{sWV}, 2")
    a(f"s_lshl_b32 s{sW1K}, s{sWV}, 10"); a(f"s_lshl_b32 s{sX2K}, s{sWV}, 11")
    G = OPT["G"]
    if OPT["ord"]: pass
    elif OPT["win"]: a(f"s_mov_b32 s{sCUR}, s3")
    elif G == 1: a(f"s_mov_b32 s{sCUR}, 0")
    elif G == 2: a(f"s_add_u32 s{sCUR}, s3, s{sHG}"); a(f"s_and_b32 s{sCUR}, s{sCUR}, 1")
    else:
        if OPT["rot2"]:
            a(f"s_mul_i32 s{sCUR}, s3, 5"); a(f"s_add_u32 s{sCUR}, s{sCUR}, 1"); a(f"s_lshr_b32 s{sCUR}, s{sCUR}, 1")
            a(f"s_add_u32 s{sCUR}, s{sCUR}, s{sHG}")
            if OPT["rot2"] == 1: a(f"s_lshr_b32 s{sT1}, s{sHG}, 2"); a(f"s_add_u32 s{sCUR}, s{sCUR}, s{sT1}")
            if OPT["rot2"] == 3: a(f"s_add_u32 s{sCUR}, s{sCUR}, s{sHG}"); a(f"s_add_u32 s{sCUR}, s{sCUR}, s{sHG}")
        else:
            a(f"s_lshl_b32 s{sCUR}, s3, 1"); a(f"s_add_u32 s{sCUR}, s{sCUR}, s{sHG}")
        if OPT["xrot"]: a(f"s_and_b32 s{sT1}, s2, 3"); a(f"s_add_u32 s{sCUR}, s{sCUR}, s{sT1}")
        for _ in range(3 if G == 5 or OPT['rot2'] == 3 else 1):
            a(f"s_cmp_ge_u32 s{sCUR}, {G}"); a(f"s_cselect_b32 s{sT1}, {G}, 0"); a(f"s_sub_u32 s{sCUR}, s{sCUR}, s{sT1}")
    a(f"s_lshl_b32 s4, s{sRT}, 3"); a(f"s_add_u32 s4, s4, s{sWV}"); a(f"s_mul_i32 s4, s4, 20480")
    a(f"s_mul_i32 s5, s{sHG}, 160"); a(f"s_add_u32 s5, s5, 1280")
    step_offsets(0)
    def cpf_addr():
        a("s_getpc_b64 s[6:7]")
        a.label(f"L_pc")
        a(f"s_sub_u32 s6, s6, L_pc-{KNAME}"); a("s_subb_u32 s7, s7, 0")
        a(f"s_lshr_b32 s3, s2, 3"); a(f"s_lshl_b32 s3, s3, 3"); a(f"s_add_u32 s3, s3, s{sWV}"); a("s_lshl_b32 s3, s3, 8")
        a(f"v_lshl_add_u32 v88, v{vL}, 7, s3")
        a(f"v_min_u32 v88, L_codeend-{KNAME}-4, v88")
        a(f"v_mov_b32 v87, s7")
        a(f"v_add_co_u32 v86, vcc, s6, v88")
        a(f"v_addc_co_u32 v87, vcc, 0, v87, vcc")
    def cpf_go():
        a("s_mov_b64 exec, 3"); a(f"global_load_dword v95, v[86:87], off"); a("s_mov_b64 exec, -1")
    LEAN = OPT["lean"]
    if not OPT["lean2"]:
        for q in range(1 if LEAN else 2): wvoff(vWD + q, q, 3840, True, 1280)
    a(f"s_mov_b32 s{SX+2}, 2621440"); a(f"s_mov_b32 s{SX+3}, 0x20000"); a(f"s_mov_b32 s{SW+2}, 2457600"); a(f"s_mov_b32 s{SW+3}, 0x20000")
    if OPT["codepf"] and not LEAN: cpf_addr()
    if OPT["tc0"]: tc_setup(sTCX, sTCW)
    a("s_waitcnt lgkmcnt(0)")
    if not OPT["lean2"]:
        a(f"s_mov_b32 s{SX}, s{sM}"); a(f"s_mov_b32 s{SX+1}, s{sM+1}"); a(f"s_mov_b32 s{SW}, s{sM+2}"); a(f"s_mov_b32 s{SW+1}, s{sM+3}")
    if OPT["codepf"] == 1 and not LEAN: cpf_go()
    if OPT["stamps"]:
        a(f"v_writelane_b32 v{vST}, s{sTM}, 0"); stamp("first")
    if OPT["tc0"] and OPT["tcpos"] == 0: tc_start()
    ops = dma_chunk(0, 0)
    if OPT["rv"]:
        def rvop(q):
            pre = []
            if q == 0:
                pre += [f"s_bitcmp1_b32 s{sCUR}, 0", f"s_cselect_b32 s6, 1280, 0", f"s_cselect_b32 s7, 10240, 0"]
                pre += [f"s_add_u32 s{sT3}, s{sWK}, s6", f"s_add_u32 s{sT2}, s{sW1K}, s7"]
            elif q == 1:
                pre += [f"s_bitcmp1_b32 s{sCUR}, 0", f"s_cselect_b32 s6, 1280, 0", f"s_cselect_b32 s7, 10240, 0"]
                pre += [f"s_add_u32 s{sT3}, s{sWK}, s6", f"s_add_u32 s{sT2}, s{sW1K}, s7", f"s_sub_u32 s{sT0}, s{sWK}, s6", f"s_sub_u32 s{sT1}, s{sW1K}, s7",
                        f"s_cmp_lt_u32 s{sWV}, 2", f"s_cselect_b32 s{sT3}, s{sT3}, s{sT0}", f"s_cselect_b32 s{sT2}, s{sT2}, s{sT1}"]
            else:
                pre += [f"s_sub_u32 s{sT3}, s{sWK}, s6", f"s_sub_u32 s{sT2}, s{sW1K}, s7"]
            pre.append(f"s_add_u32 m0, s{sT2}, {16384 + q*8192}")
            return (pre, f"buffer_load_dwordx4 v{vWD+q}, {sr(SW,4)}, s{sT3} offen lds")
        ops = ops[:2] + [rvop(q) for q in range(3)]
    if OPT["lean2"]:
        for op in ops[:2]: emit_op(op, "ch0")
        a("s_load_dwordx2 s[8:9], s[76:77], 16"); a("s_load_dwordx4 s[12:15], s[0:1], 48"); a("s_load_dwordx2 s[10:11], s[0:1], 64")
        wvoff(vWD, 0, 3840, True, 1280)
        emit_op(ops[2], "ch0")
    else:
        for op in ops[:3]: emit_op(op, "ch0")
    if LEAN:
        if OPT["codepf"] == 1: cpf_addr(); cpf_go()
        wvoff(vWD + 1, 1, 3840, True, 1280)
    emit_op(ops[3], "ch0")
    wvoff(vWD + 2, 2, 3840, True, 1280)
    a(f"s_cmp_eq_u32 s{sC}, 0"); a("s_cbranch_scc0 L_no5")
    emit_op(ops[4], "~c0")
    a.label("L_no5")
    if OPT["tc0"] and OPT["tcpos"] == 1: tc_start()
    if OPT["codepf"] == 2:
        if LEAN: cpf_addr()
        cpf_go()
    if OPT["stamps"]:
        a(f"v_writelane_b32 v{vST}, s100, 40")
    if OPT["lean2"]: a("s_waitcnt lgkmcnt(0)")
    srd(SS, 10, 11, WS_SIZE); srd(SG, 14, 15, 256)
    a(f"s_and_b32 s{sI}, s{sWV}, 3")
    a(f"s_or_b32 s3, s2, s{sWV}"); a("s_cmp_eq_u32 s3, 0"); a(f"s_cbranch_scc0 L_nn0")
    a(f"s_add_u32 s6, s10, {WS_E}"); a("s_addc_u32 s7, s11, 0")
    a(f"s_load_dword s{sN}, s[6:7], 0")
    a.label("L_nn0")
    if OPT["tbal"]: a(f"s_mul_i32 s7, s{sC}, 3"); a(f"s_xor_b32 s{sTI}, s{sI}, s7")
    else: a(f"s_mov_b32 s{sTI}, s{sI}")
    a(f"s_lshl_b32 s6, s{sHG}, 16"); a(f"s_lshl_b32 s7, s{sTI}, 9"); a(f"s_add_u32 s6, s6, s7")
    a(f"s_lshl_b32 s7, s{sC}, 11"); a("s_add_u32 s6, s6, s7")
    a(f"s_add_u32 s{sKVG}, s6, {WS_KV}")
    a(f"s_lshl_b32 s7, s{sRT}, 12"); a(f"s_add_u32 s{sKVP}, s{sKVG}, s7")
    a(f"s_lshl_b32 s6, s{sRT}, 3"); a(f"s_add_u32 s6, s6, s{sHG}"); a(f"s_mul_i32 s6, s6, 6144")
    a(f"s_mul_i32 s7, s{sC}, 3072"); a(f"s_add_u32 s{sHP}, s6, s7"); a(f"s_add_u32 s{sHP}, s{sHP}, {WS_HALO}")
    a(f"s_add_u32 s{sHG2}, s6, {WS_HALO - 8*6144}")
    a(f"v_mov_b32 v76, -1"); a(f"v_mov_b32 v77, -1"); a(f"v_lshlrev_b32 v78, 3, v{vL}")
    a(f"s_cmp_eq_u32 s{sB}, 0"); a(f"s_cbranch_scc0 L_preB")
    a(f"buffer_store_dwordx2 v[76:77], v78, {sr(SS,4)}, s{sKVP} offen sc1", "~preA")
    a(f"s_branch L_pred")
    a.label(f"L_preB")
    a(f"s_cmp_eq_u32 s{sI}, 3"); a(f"s_cbranch_scc0 L_pred")
    for k in range(5): a(f"buffer_store_dwordx2 v[76:77], v78, {sr(SS,4)}, s{sHP} offen offset:{k*512} sc1", "~preB")
    a.label(f"L_pred")
    step_offsets(1)
    for op in dma_chunk(0, 1)[:OPT["p1n"]]: emit_op(op, "ch1")
    stamp("issued")
    a(f"s_lshl_b32 s3, s{sB}, 1"); a(f"s_add_u32 s3, s3, s{sC}")
    a("s_cmp_eq_u32 s3, 1"); a("s_cbranch_scc1 L_path_01")
    a("s_cmp_eq_u32 s3, 2"); a("s_cbranch_scc1 L_path_10")
    a("s_cmp_eq_u32 s3, 3"); a("s_cbranch_scc1 L_path_11")

def prologue2(b, c):
    P = f"{b}{c}"
    if OPT["ea"]: touch_steps(c, 1, 5, 0, f"ea{P}")
    for s in range(2, 10): step_offsets(s)
    srd(SO, 8, 9, 819200); srd(SD, 12, 13, 5242880)
    a(f"s_getreg_b32 s{sXCC}, hwreg(HW_REG_XCC_ID, 0, 3)")
    a(f"s_mul_i32 s{sCUR}, s{sHG}, 160")
    if P == "00":
        a(f"s_or_b32 s3, s2, s{sWV}"); a("s_cmp_eq_u32 s3, 0"); a(f"s_cbranch_scc0 L_nononce")
        a("s_waitcnt lgkmcnt(0)")
        a(f"s_add_u32 s6, s{sN}, 0x9e3779b0"); a("s_or_b32 s6, s6, 8"); a("s_andn2_b32 s6, s6, 7")
        a(f"v_mov_b32 v{vT}, s6"); a(f"v_mov_b32 v{vT+1}, 0"); a(f"s_mov_b32 s3, {WS_E}")
        a("s_mov_b64 exec, 1")
        a(f"buffer_store_dword v{vT}, v{vT+1}, {sr(SG,4)}, 0 offen sc1", "~n")
        a(f"buffer_store_dword v{vT}, v{vT+1}, {sr(SS,4)}, s3 offen sc1", "~n")
        a("s_mov_b64 exec, -1")
        a.label("L_nononce")
    a(f"v_and_b32 v{vT}, 15, v{vL}"); a(f"v_lshrrev_b32 v{vT+1}, 4, v{vL}")
    a(f"v_lshrrev_b32 v{vT+2}, 1, v{vT}"); a(f"v_xor_b32 v{vT+2}, v{vT+2}, v{vT+1}"); a(f"v_lshlrev_b32 v{vT+2}, 4, v{vT+2}")
    a(f"v_lshl_add_u32 v{vT+2}, v{vT}, 7, v{vT+2}")
    a(f"s_lshl_b32 s3, s{sI}, 12")
    a(f"v_add_u32 v{vXA0}, s3, v{vT+2}"); a(f"v_xor_b32 v{vXA1}, 64, v{vXA0}")
    a(f"v_lshrrev_b32 v{vT}, 5, v{vL}"); a(f"v_lshlrev_b32 v{vT}, 4, v{vT}")
    a(f"v_bfe_u32 v{vT+2}, v{vL}, 2, 3"); a(f"v_add_u32 v{vT}, v{vT}, v{vT+2}"); a(f"v_mul_u32_u24 v{vT}, 160, v{vT}")
    a(f"v_and_b32 v{vT+1}, 3, v{vL}")
    a(f"v_lshl_add_u32 v{vWA}, v{vT+1}, 3, v{vT}")
    if c: a(f"v_add_u32 v{vWA}, 80, v{vWA}")
    a(f"v_mad_u32_u24 v{vWE}, v{vT+1}, 40, v{vT}")
    a(f"v_add_u32 v{vWE}, {32 + (UNIT if c else 0)}, v{vWE}")
    a(f"s_lshl_b32 s3, s{sB}, 4"); a(f"s_add_u32 s3, s3, s{sRT}")
    a(f"s_lshl_b32 s4, s{sRT}, 3")
    boff = (1280 if AL else 128 * OT) * b
    a(f"s_lshl_b32 s5, s{sI}, 1"); a(f"s_add_u32 s5, s5, s4"); a(f"s_mul_i32 s{sOB}, s5, {OT}")
    if b: a(f"s_add_u32 s{sOB}, s{sOB}, {boff}")
    a(f"s_and_b32 s{sKH}, s{sWV}, 1")
    a(f"s_add_u32 s5, s4, s{sWV}"); a(f"s_mul_i32 s{sOUT}, s5, 40960")
    if b: a(f"s_add_u32 s{sOUT}, s{sOUT}, 1280")
    a(f"s_sub_u32 s5, s5, s{sKH}"); a(f"s_mul_i32 s{sOC}, s5, {OT}")
    a(f"s_mul_i32 s5, s{sKH}, {8*OP_}"); a(f"s_add_u32 s{sOC}, s{sOC}, s5")
    if b: a(f"s_add_u32 s{sOC}, s{sOC}, {boff}")
    a(f"s_mov_b32 s{sOE}, s{sOC}")
    a(f"s_add_u32 s{sOUT}, s{sOUT}, s{sCUR}")
    a(f"s_lshl_b32 s4, s3, 2")
    a(f"s_add_u32 s5, s4, s{sI}"); a(f"s_lshl_b32 s5, s5, 7"); a(f"s_lshl_b32 s6, s{sHG}, 3"); a(f"s_add_u32 s5, s5, s6")
    a(f"s_add_u32 s{sFP}, s5, {WS_FLAG + 4*c}")
    a(f"s_lshr_b32 s5, s{sWV}, 1"); a(f"s_add_u32 s5, s5, s4"); a(f"s_lshl_b32 s5, s5, 7"); a(f"s_add_u32 s5, s5, {WS_FLAG}")
    a(f"s_add_u32 s{sDFC}, s5, 64")
    a(f"s_lshl_b32 s7, s{sKH}, 2"); a(f"s_add_u32 s{sDFP}, s{sDFC}, s6"); a(f"s_add_u32 s{sDFP}, s{sDFP}, s7")
    a(f"s_lshl_b32 s7, s{sKH}, 5"); a(f"s_add_u32 s{sFC}, s5, s7")
    a(f"s_mov_b32 s{sK}, 0x{f2u(LOG2E):x}"); a(f"s_mov_b32 s{sK+1}, 0x{EPS:x}")
    for i in range(4): a(f"v_mov_b32 v{80+i}, s{sK+1}")
    a("v_mov_b32 v84, 0")
    if OPT["t0"]: touch_qo(c)
    if OPT["worot"]:
        R_ = OPT["worot"]
        a(f"s_and_b32 s3, s{sRT}, 3")
        for u in range(R_):
            a(f"s_add_u32 s4, s3, {u}")
            for _ in range(2): a(f"s_cmp_ge_u32 s4, {R_}"); a(f"s_cselect_b32 s5, {R_}, 0"); a("s_sub_u32 s4, s4, s5")
            a(f"s_mul_i32 s{sWOR+u}, s4, 20480")
    if OPT["dmap"]:
        dm = sum(int(ch) << (4 * k) for k, ch in enumerate(str(OPT["dmap"])[-4:]))
        a(f"s_and_b32 s3, s{sRT}, 3"); a(f"s_add_u32 s3, s3, s{sHG}"); a("s_and_b32 s3, s3, 3"); a("s_lshl_b32 s3, s3, 2")
        a(f"s_lshr_b32 s{sDUTY}, 0x{dm:x}, s3"); a(f"s_and_b32 s{sDUTY}, s{sDUTY}, 15")
    elif OPT["st0"] >= 0:
        a(f"s_lshr_b32 s3, s2, 3"); a(f"s_mul_i32 s4, s3, {(65536 + OPT['stn'] - 1) // OPT['stn']}"); a("s_lshr_b32 s4, s4, 16")
        a(f"s_mul_i32 s4, s4, {OPT['stn']}"); a(f"s_sub_u32 s{sDUTY}, s3, s4")
    if (OPT["tc"] or OPT["tcm"]) and not OPT["tc0"]: tc_setup(sTCX, sTCW)
    for q in range(3 if c == 0 else 2): wvoff(vWO + q, q, 1280, False, 64 * 1280)
    a(f"v_and_b32 v{vT}, 7, v{vL}"); a(f"v_lshlrev_b32 v{vT}, 7, v{vT}")
    a(f"s_mul_i32 s3, s{sHG}, {2*OP_}"); a(f"s_add_u32 s3, s3, {c*OP_}")
    a(f"v_add_u32 v{vT}, s3, v{vT}")
    a(f"v_bfe_u32 v{vT+1}, v{vL}, 3, 1"); a(f"v_mul_u32_u24 v{vT+1}, {OT}, v{vT+1}"); a(f"v_add_u32 v{vT}, v{vT}, v{vT+1}")
    a(f"v_and_b32 v{vT+1}, 1, v{vL}"); a(f"v_lshlrev_b32 v{vT+1}, 7, v{vT+1}")
    a(f"s_add_u32 s3, s3, 1024")
    a(f"v_add_u32 v{vT+1}, s3, v{vT+1}")
    a(f"v_bfe_u32 v{vT+2}, v{vL}, 1, 1"); a(f"v_mul_u32_u24 v{vT+2}, {OT}, v{vT+2}"); a(f"v_add_u32 v{vT+1}, v{vT+1}, v{vT+2}")
    set_mask("vcc", 0xffff)
    a(f"v_cndmask_b32 v{vPRE}, v{vT+1}, v{vT}, vcc")
    Z = 56; T1 = 57; T2_ = 58
    a(f"v_mov_b32 v{Z}, 0")
    if b == 0:
        a(f"v_and_b32 v{vGAD}, 31, v{vL}"); a(f"v_lshlrev_b32 v{vGAD}, 4, v{vGAD}"); a(f"v_lshrrev_b32 v{vT}, 5, v{vL}"); a(f"v_lshl_add_u32 v{vGAD}, v{vT}, 15, v{vGAD}")
        selm = lambda l: ((l >> 3) & 1) == ((l >> 4) & 1)
        a(f"v_mov_b32 v{T1}, 0x3f80"); a(f"v_mov_b32 v{T2_}, 0x3f800000")
        set_mask("vcc", lanemask(lambda l: l & 1)); a(f"v_cndmask_b32 v{T1}, v{T1}, v{T2_}, vcc")
        for r in range(4):
            set_mask("vcc", lanemask(lambda l: selm(l) and ((l & 7) >> 1) == r)); a(f"v_cndmask_b32 v{16+r}, v{Z}, v{T1}, vcc")
        a(f"v_mov_b32 v20, s{sK+1}"); a(f"v_mov_b32 v21, s{sK+1}"); a("v_mov_b32 v22, 0"); a("v_mov_b32 v23, 0")
        a(f"v_and_b32 v24, 15, v{vL}"); a("v_lshlrev_b32 v24, 1, v24"); a(f"v_and_b32 v25, 32, v{vL}"); a("v_add_u32 v24, v24, v25")
        a(f"v_bfe_u32 v25, v{vL}, 4, 1"); a("v_add_u32 v24, v24, v25"); a("v_lshlrev_b32 v24, 3, v24")
        a(f"v_lshlrev_b32 v25, 3, v{vL}"); a("v_xor_b32 v25, 256, v25"); a("v_mov_b32 v26, 0"); a("v_mov_b32 v27, 0")
        ncst = 3
    else:
        dd = lambda l, j: (l & 15) - 4 * (l >> 4) - j
        own = lambda l, j: dd(l, j) >= 0 and dd(l, j) % 2 == 0
        prv = lambda l, j: dd(l, j) <= -2 and dd(l, j) % 2 == 0
        a(f"v_mov_b32 v{T1}, 0x{f2u(-1e30):x}")
        for j in range(4):
            set_mask("vcc", lanemask(lambda l: own(l, j))); a(f"v_cndmask_b32 v{16+j}, v{T1}, v{Z}, vcc")
            set_mask("vcc", lanemask(lambda l: prv(l, j))); a(f"v_cndmask_b32 v{20+j}, v{T1}, v{Z}, vcc")
            a(f"v_mov_b32 v{24+j}, 0x3f803f80")
        a(f"v_mov_b32 v{T1}, 0xffff"); a(f"v_mov_b32 v{T2_}, 0xffff0000")
        set_mask("vcc", lanemask(lambda l: l & 1)); a(f"v_cndmask_b32 v{T1}, v{T1}, v{T2_}, vcc")
        for k, (fn, pr) in enumerate(((prv, 0), (prv, 1), (own, 0), (own, 1))):
            set_mask("vcc", lanemask(lambda l: fn(l, 2 * pr + (l & 1)))); a(f"v_cndmask_b32 v{28+k}, v{Z}, v{T1}, vcc")
        ncst = 4
    a(f"v_lshlrev_b32 v{vT}, 4, v{vL}"); a(f"v_add_u32 v{vT}, {CST}, v{vT}")
    for k in range(ncst): a(f"ds_write_b128 v{vT}, {vr(16+4*k,4)} offset:{k*1024}")
    a.wait(lg="all")

def path(b, c):
    P = f"{b}{c}"; A_ = (b == 0)
    FB = A_ and OPT["fewb"]
    WQ_UNIT[:] = [8, 10, 12, 0, 2] if FB else [8, 10, 12, 0, 14]
    a.label(f"L_path_{P}")
    pstart = len(a.lines)
    a.vm = [("ch0" if (t == "~c0" and c == 0) else t) for t in a.vm]
    a.vm = [t for t in a.vm if not (t == "~preA" and b == 1) and not (t == "~preB" and b == 0) and not (t == "~c0")]
    a.vm = [{"~preA": "preA", "~preB": "~i3pre"}.get(t, t) for t in a.vm]
    a(f"s_cmp_eq_u32 s{sI}, 0"); a(f"s_cselect_b32 s{sHV}, s{sRT}, 0")
    prologue2(b, c)
    vN0, vN1 = 84, 85
    def w0_begin(tag): a(f"s_cmp_eq_u32 s{sWV}, 0"); a(f"s_cbranch_scc0 L_{tag}_{P}")
    def w0_end(tag): a.label(f"L_{tag}_{P}")
    def nonce_load():
        w0_begin("nl")
        a(f"v_mov_b32 v{vN0}, 0")
        a(f"buffer_load_dword v{vN1}, v{vN0}, {sr(SG,4)}, 0 offen sc1", "~w0nonce")
        w0_end("nl")
    def nonce_check():
        w0_begin("nc")
        a.wait(vm="~w0nonce", keep=True)
        a(f"v_readfirstlane_b32 s{sN}, v{vN1}")
        a(f"s_cmp_lg_u32 s{sN}, 0"); a(f"s_cbranch_scc1 L_nok_{P}")
        spin_begin(f"L_nsp_{P}")
        a(f"buffer_load_dword v{vN1}, v{vN0}, {sr(SG,4)}, 0 offen sc1", "~x"); a("s_waitcnt vmcnt(0)")
        a(f"v_readfirstlane_b32 s{sN}, v{vN1}")
        a(f"s_cmp_lg_u32 s{sN}, 0"); a(f"s_cbranch_scc1 L_nok_{P}")
        spin_check(f"L_nsp_{P}", f"L_nok_{P}")
        a(f"s_lshl_b32 s3, s{sB}, 4"); a(f"s_add_u32 s3, s3, s{sRT}"); a(f"s_lshl_b32 s3, s3, 3"); a(f"s_add_u32 s3, s3, s{sHG}")
        a(f"s_lshl_b32 s3, s3, 7"); a(f"s_add_u32 s3, s3, {WS_RDY}")
        a(f"s_or_b32 s4, s{sN}, s{sXCC}")
        a(f"v_mov_b32 v{vN1}, s4")
        a("s_mov_b64 exec, 1")
        a(f"buffer_store_dword v{vN1}, v{vN0}, {sr(SS,4)}, s3 offen sc1", "~w0st")
        a("s_mov_b64 exec, -1")
        w0_end("nc")
    def rdy_load():
        w0_begin("rl")
        a(f"s_lshl_b32 s3, s{sB}, 4"); a(f"s_add_u32 s4, s3, s{sRT}"); a(f"s_lshl_b32 s4, s4, 3")
        a(f"v_add_u32 v{vN0}, s4, v{vL}")
        if A_:
            a(f"s_lshl_b32 s5, s3, 3"); a(f"s_add_u32 s5, s5, s{sHG}"); a(f"s_sub_u32 s5, s5, 64")
            a(f"v_lshl_add_u32 v{vN1}, v{vL}, 3, s5")
        else:
            a(f"s_max_u32 s5, s{sRT}, 1"); a(f"s_sub_u32 s5, s5, 1"); a(f"s_add_u32 s5, s5, s3"); a(f"s_lshl_b32 s5, s5, 3"); a(f"s_add_u32 s5, s5, s{sHG}")
            a(f"v_mov_b32 v{vN1}, s5")
        set_mask(sM, 0xff)
        a(f"v_cndmask_b32_e64 v{vN0}, v{vN1}, v{vN0}, {sr(sM,2)}")
        a(f"v_lshlrev_b32 v{vN0}, 7, v{vN0}")
        a(f"s_mov_b32 s3, {WS_RDY}")
        a(f"s_mov_b64 exec, {0xffffff if A_ else 0x1ff}")
        a(f"buffer_load_dword v{vN1}, v{vN0}, {sr(SS,4)}, s3 offen sc1", "~w0rdy")
        a("s_mov_b64 exec, -1")
        w0_end("rl")
    def rdy_check():
        em = 0xffffff if A_ else 0x1ff
        w0_begin("rc")
        a.wait(vm="~w0rdy", keep=True)
        def test():
            a(f"v_and_b32 v{vN1+1}, -8, v{vN1}")
            a(f"s_mov_b64 exec, {em}")
            a(f"v_cmp_ne_u32 vcc, s{sN}, v{vN1+1}")
            a("s_mov_b64 exec, -1")
            a(f"s_cbranch_vccz L_rok_{P}")
        test()
        spin_begin(f"L_rsp_{P}")
        a(f"s_mov_b32 s3, {WS_RDY}")
        a(f"s_mov_b64 exec, {em}")
        a(f"buffer_load_dword v{vN1}, v{vN0}, {sr(SS,4)}, s3 offen sc1", "~x"); a("s_waitcnt vmcnt(0)")
        test()
        spin_check(f"L_rsp_{P}", f"L_rok_{P}")
        a(f"s_or_b32 s3, s{sN}, s{sXCC}")
        a("s_mov_b64 exec, 0xff")
        a(f"v_cmp_ne_u32 vcc, s3, v{vN1}")
        a("s_mov_b64 exec, -1")
        a(f"s_cmp_eq_u32 vcc_lo, 0")
        a(f"s_cselect_b32 s3, {0 if OPT['force_slow'] else 1}, 0")
        a(f"s_or_b32 s3, s3, s{sN}")
        a(f"v_mov_b32 v{vN1}, s3"); a(f"v_mov_b32 v{vN0}, {BCAST}")
        sl = list(a.lg)
        a(f"ds_write_b32 v{vN0}, v{vN1}")
        a.lg = sl
        w0_end("rc")
    def bcast_read():
        a(f"v_mov_b32 v{vN0}, {BCAST}")
        a(f"ds_read_b32 v{vN1}, v{vN0}", "bc")
    def bcast_use():
        a.wait(lg="bc")
        a(f"v_readfirstlane_b32 s3, v{vN1}")
        a(f"s_and_b32 s{sFAST}, s3, 1"); a(f"s_andn2_b32 s{sN}, s3, 7")
    def touch():
        a(f"s_mul_i32 s3, s{sI}, 50"); a(f"v_add_u32 v86, s3, v{vL}"); a(f"s_lshr_b32 s4, s2, 3")
        if c == 0:
            a(f"v_mul_u32_u24 v87, 6554, v86"); a(f"v_lshrrev_b32 v87, 16, v87")
            a(f"v_mul_u32_u24 v88, 10, v87"); a(f"v_sub_u32 v86, v86, v88"); a(f"v_lshlrev_b32 v86, 7, v86")
            a(f"v_mul_u32_u24 v87, 3840, v87"); a(f"v_add_u32 v86, v86, v87"); a(f"s_mul_i32 s4, s4, {20*3840}")
        else:
            a(f"v_lshlrev_b32 v86, 7, v86"); a(f"s_mul_i32 s4, s4, 25600")
        a("s_mov_b32 exec_hi, 0x3ffff")
        a(f"buffer_load_dword v87, v86, {sr(SW if c == 0 else SO,4)}, s4 offen")
        a("s_mov_b32 exec_hi, -1")
    def opreload():
        a("s_mov_b64 exec, 0xfffff")
        a(f"buffer_load_dword v95, v{vPRE}, {sr(OS,4)}, s{sOB} offen{['', ' sc1', ' nt'][OPT['pnt']]}")
        a("s_mov_b64 exec, 1")
        a(f"buffer_load_dword v95, off, {sr(SS,4)}, s{sFC}")
        a("s_mov_b64 exec, -1")

    def fix_wd_for_q():
        if c == 0:
            a(f"s_cmp_lt_u32 s{sWV}, 2"); a(f"s_cselect_b32 s3, 0, 1280")
            a(f"v_subrev_u32 v{vWD+1}, s3, v{vWD+1}"); a(f"v_subrev_u32 v{vWD+2}, 1280, v{vWD+2}")
        else:
            a(f"v_subrev_u32 v{vWD+1}, 1280, v{vWD+1}")

    def acc1(t, rt): return ACC1 + (t * 2 + rt) * 4
    Tor = [not A_, not A_, False, False, (not A_) and c == 0]
    eps1 = [A_, A_, False, False, A_ and c == 0]
    items1 = [(sg, t) for sg in range(18) for t in range(5)] + [(18, 0), (18, 4), (18, 1), (19, 0), (19, 4), (19, 1), (18, 2), (18, 3), (19, 2), (19, 3)]
    seenx = set()
    def reads(n, w):
        sg, t = items1[n]; s = sg & 1; tg = []
        if sg not in seenx:
            seenx.add(sg)
            for rt in range(2): tg.append(a(f"ds_read_b128 {vr(X(sg,rt),4)}, v{vXA1 if s else vXA0} offset:{rt*2048}"))
        for h in range(2):
            if OPT["hackport"] in (1, 2) and t == 4 and sg > 0: continue
            if OPT["hackport"] == 4 and t in (1, 3, 4) and sg > 0: continue
            off = 16384 + s * 5120 + h * 1280
            if t < 4: tg.append(a(f"ds_read_b64_tr_b16 {vr(w+2*h,2)}, v{vWA} offset:{off + (UNIT if t >= 2 else 0) + 40*(t&1)}"))
            else: tg.append(a(f"ds_read_b64_tr_b16 {vr(w+2*h,2)}, v{vWE} offset:{off}"))
        return tg
    def mf(n, w):
        sg, t = items1[n]
        if OPT["hackport"] in (1, 3) and t == 4 and sg > 0: return
        for rt in range(2):
            C = acc1(t, rt) if sg else (80 if eps1[t] else "0")
            if Tor[t]: mfma(acc1(t, rt), w, X(sg, rt), C)
            else: mfma(acc1(t, rt), X(sg, rt), w, C)
    R = OPT["rdy_at"]
    def bnd1(ch):
        if ch > 0:
            d = SLOT if ch % 4 else -3 * SLOT
            for r in (vXA0, vXA1, vWA, vWE): a(f"v_add_u32 v{r}, {d}, v{r}")
        a.wait(vm=f"ch{ch}", lg="all" if (ch and OPT["LA"] == 3) or ch == 9 or any(k - ch >= 3 for k in SCHED.get(ch, [])) and ch else None)
        a("s_barrier")
        stamp(f"b{ch}")
        ops = []
        if c == 0:
            if ch == 0: ops.append((nonce_load, None))
            if ch == 1: ops.append((nonce_check, None))
            if ch == R: ops.append((rdy_load, None))
            if ch == R + 2: ops.append((rdy_check, None))
        if ch == R + 3: ops.append((bcast_read, None))
        if OPT["LA"] == 3:
            if ch == 0 and OPT["pro"] < 3: ops += [(op, "ch2") for op in dma_chunk(c, 2)]
            if ch + 3 <= 9: ops += [(op, f"ch{ch+3}") for op in dma_chunk(c, ch + 3)]
        elif OPT["sched"]:
            if ch == 0: ops += [(op, "ch1") for op in dma_chunk(c, 1)[OPT["p1n"]:]]
            for k in SCHED.get(ch, []): ops += [(op, f"ch{k}") for op in dma_chunk(c, k)]
        else:
            if ch == 0: ops += [(op, "ch1") for op in dma_chunk(c, 1)[OPT["p1n"]:]]
            if ch + 2 <= 9: ops += [(op, f"ch{ch+2}") for op in dma_chunk(c, ch + 2)]
        if ch == R + 3: ops.append((bcast_use, None))
        if ch == OPT["tq"]: ops.append((touch, None))
        if ch == OPT["eb"]: ops.insert(0, (lambda: touch_steps(c, 6, 4, 1, f"eb{P}"), None))
        if ch == OPT["eb"] + 100 or (OPT["eb"] >= 100 and ch == OPT["eb"] - 100): ops.append((lambda: touch_steps(c, 6, 4, 1, f"eb{P}"), None))
        if ch == OPT["ec"] and not (OPT["st0"] >= 0 and OPT["stq"]): ops.append((lambda: touch_qo(c), None))
        if OPT["tc"]:
            for ent in str(OPT["tc"]).split(","):
                per, st = (int(x) for x in ent.split(":"))
                if per == ch and c == OPT["tcw"] >> 2:
                    def tcl(st=st):
                        a(f"s_cmp_eq_u32 s{sWV}, {OPT['tcw']}"); a(f"s_cbranch_scc0 L_ntc{st}_{P}")
                        tc_issue(st, sTCX, sTCW)
                        a.label(f"L_ntc{st}_{P}")
                    ops.append((tcl, None))
        if OPT["tcm"] and c == 0:
            per, sts = str(OPT["tcm"]).split(":")
            if int(per) == ch:
                def tcm():
                    for w_, st in enumerate(int(x) for x in sts.split(".")):
                        a(f"s_cmp_eq_u32 s{sWV}, {w_ + 1}"); a(f"s_cbranch_scc0 L_tcm{w_}_{P}")
                        tc_issue(st, sTCX, sTCW)
                        a.label(f"L_tcm{w_}_{P}")
                ops.append((tcm, None))
        if ch == OPT["prel1"]: ops.append((opreload, None))
        if OPT["st0"] >= 0 and 0 <= ch - OPT["st0"] < OPT["stn"]:
            def duty(k=ch - OPT["st0"]):
                a(f"s_cmp_eq_u32 s{sDUTY}, {k}"); a(f"s_cbranch_scc0 L_nd{k}_{P}")
                n0 = len(a.vm)
                if OPT["stq"]: touch_qo(c)
                if OPT["stp"]: opreload()
                a.vm = a.vm[:n0] + [f"~d{k}" for _ in a.vm[n0:]]
                a.ghost_cond[f"d{k}"] = [f"s_cmp_eq_u32 s{sDUTY}, {k}"]
                a.label(f"L_nd{k}_{P}")
            ops.append((duty, None))
        if ch == OPT["pst"]: ops.append((lambda: prestore(c), None))
        if OPT["LA"] == 3:
            if ch == 7: ops += [(fix_wd_for_q, None)] + [(op, "wq0") for op in dma_wq(c, 0)]
            if ch == 8: ops += [(op, f"wq{u}") for u in (1, 2) for op in dma_wq(c, u)]
            if ch == 9: ops += [(op, f"wq{u}") for u in (3, 4) for op in dma_wq(c, u)]
        else:
            if ch == 8: ops += [(fix_wd_for_q, None)] + [(op, "wq0") for op in dma_wq(c, 0)]
            if ch == 9: ops += [(op, f"wq{u}") for u in (1, 2) for op in dma_wq(c, u)]
        return ops
    hA, hB = 2 * c, 2 * c + 1
    gm = lambda h: lanemask(lambda l: (l >> 4) == h)
    half = lanemask(lambda l: (l >> 5) == c)
    pipeline(100, reads, mf, {10 * ch: ch for ch in range(10)}, bnd1, OPT["L"], OPT["Lb"], [WF + 4 * k for k in range(5)], prio=(10, parse_pr(OPT["pr1"])) if c == 1 else None)
    if c == 1 and OPT["prep"] >= 0: a(f"s_setprio {OPT['prep']}")
    stamp("p1end")

    vL16, vL8 = vXA0, vXA1
    a(f"v_lshlrev_b32 v{vL16}, 4, v{vL}"); a(f"v_lshlrev_b32 v{vL8}, 3, v{vL}")
    a(f"v_add_u32 v{vWA}, {WQ_UNIT[0]*UNIT - SLOT}, v{vWA}")
    a(f"v_add_u32 v{vWE}, {WQ_UNIT[0]*UNIT - SLOT - (UNIT if c else 0)}, v{vWE}")
    WD = OPT["wodef"]; assert WD >= 2 and OPT["LA"] == 2
    WOA = {u + WD: [u] for u in range(5) if u + WD <= 4}
    if OPT["woA"]:
        WOA = {int(e.split(":")[0]): [int(x) for x in e.split(":")[1].split(".")] for e in OPT["woA"].split(",")}
        for u_, ks in WOA.items():
            for k in ks: assert u_ >= (0, 1, 3, 3, 3)[k]
    if FB: late_wo = [op for u in range(5) if not any(u in v for v in WOA.values()) for op in dma_wo(c, u)]
    else: late_wo = [op for u in range(5) if u + WD > 4 for op in dma_wo(c, u)]
    nq = 3 if c == 0 else 2
    def late(k, last=False):
        for _ in range(k):
            keep_ = nq * OPT["woaft"] if (last or FB) else nq * max(1, OPT["woaft"])
            if last == 2: keep_ = 0
            if len(late_wo) > keep_: emit_op(late_wo.pop(0), "wo")
    if A_:
        KAa, KAb, VBa, VBb, EO = 56, 60, 64, 68, 72
        TMP = 76
        a(f"s_lshl_b32 s3, s{sWV}, 12"); a(f"v_add_u32 v{vT}, s3, v{vL16}")
        a(f"v_add_u32 v{vT+1}, s{sW1K}, v{vL16}"); a(f"v_add_u32 v{vT+1}, {EE_A2}, v{vT+1}")
        phi_pack(acc1(0, 0), 8, [KAa], TMP)
        a(f"ds_write_b128 v{vT}, {vr(KAa,4)} offset:{OPX}")
        if c == 0: phi_pack(acc1(4, 0), 8, [EO], TMP)
        else: pack(acc1(4, 0), EO); pack(acc1(4, 1), EO + 2)
        a(f"ds_write_b128 v{vT+1}, {vr(EO,4)}")
        phi_pack(acc1(1, 0), 8, [KAb], TMP)
        a(f"ds_write_b128 v{vT}, {vr(KAb,4)} offset:{OPX + 1024}")
        for t, d in ((2, VBa), (3, VBb)):
            pack(acc1(t, 0), d); pack(acc1(t, 1), d + 2)
            a(f"ds_write_b128 v{vT}, {vr(d,4)} offset:{OPX + t*1024}")
        a(f"v_add_u32 v{vT}, {OPX + c*16384}, v{vL16}")
        a(f"v_add_u32 v{vT+1}, {EE_A2}, v{vL16}")
        a(f"v_and_b32 v{vT+2}, 0x31, v{vL}"); a(f"v_bfe_u32 v{vT+3}, v{vL}, 2, 2")
        a(f"v_lshl_add_u32 v{vT+2}, v{vT+3}, 1, v{vT+2}"); a(f"v_lshlrev_b32 v{vT+2}, 4, v{vT+2}")
        a(f"v_add_u32 v{vT+2}, {EE_A2 + 4096 + 128*c}, v{vT+2}")
        a(f"v_mov_b32 v89, 0x3f803f80")
        for i in range(4): a(f"v_mov_b32 v{80+i}, s{sK+1}")
    else:
        KA = {("a", 0): 56, ("b", 0): 60, ("a", 1): 64, ("b", 1): 68, ("a", -1): 96, ("b", -1): 100}
        Va, Vb, Ev = 72, 78, 84
        for rt in (1, 0):
            pack(acc1(0, rt), KA[("a", rt)]); pack(acc1(1, rt), KA[("b", rt)])
            if c == 0: pack(acc1(4, rt), KA[("a", rt)] + 2); pack(acc1(4, rt), KA[("b", rt)] + 2)
            else: pack(acc1(4, rt), Ev + 2 + 2 * rt)
            pack(acc1(2, rt), Va + 2 + 2 * rt); pack(acc1(3, rt), Vb + 2 + 2 * rt)
        Eown = [KA[("a", 0)] + 2, KA[("a", 1)] + 2] if c == 0 else [Ev + 2, Ev + 4]
        xs = [KA[("a", 1)], KA[("b", 1)], Va + 4, Vb + 4, Eown[1], Eown[0]]
        a(f"s_mul_i32 s3, s{sWV}, 3072")
        a(f"v_add_u32 v{vT}, s3, v{vL8}")
    a.wait(vm="wq0", lg="all")
    a("s_barrier")
    stamp("E1")
    if A_:
        R0 = 16
        D0, D1, D2 = 84, 72, 76
        def rd(dst, areg, off): return a(f"ds_read_b128 {vr(dst,4)}, v{areg} offset:{off}")
        def evb(dst):
            for j in range(4): a(f"v_cndmask_b32 v{dst+j}, v{dst+j}, v89, vcc")
        a(f"s_cmp_lt_u32 s{sTI}, 2"); a(f"s_cbranch_scc0 L_t23_{P}")
        a(f"s_lshl_b32 s3, s{sTI}, 10"); a(f"v_add_u32 v{vT}, s3, v{vT}")
        a.lg = []
        tg = []
        for g in range(4): tg.append([rd(R0 + 8 * g, vT, g * 4096), rd(R0 + 8 * g + 4, vT, g * 4096 + 2048)])
        for g in range(4):
            a.wait(lg=tg[g]); mfma(D0, R0 + 8 * g, R0 + 8 * g + 4, D0 if g else "0")
        a("s_nop 7")
        a(f"s_branch L_tdone_{P}")
        a.label(f"L_t23_{P}")
        set_mask("vcc", 0x3333333333333333)
        a(f"s_cmp_eq_u32 s{sTI}, 2"); a(f"s_cbranch_scc0 L_t3_{P}")
        a.lg = []
        tg = []
        for g in range(4): tg.append([rd(R0 + 12 * g, vT + 2, g * 1024), rd(R0 + 12 * g + 4, vT, g * 4096), rd(R0 + 12 * g + 8, vT, g * 4096 + 1024)])
        for g in range(4):
            a.wait(lg=tg[g]); evb(R0 + 12 * g)
            mfma(D0, R0 + 12 * g + 4, R0 + 12 * g, D0 if g else "0")
            mfma(D1, R0 + 12 * g + 8, R0 + 12 * g, D1 if g else "0")
        set_mask("vcc", 0x11dd11dd11dd11dd)
        for j in range(4): a(f"v_cndmask_b32 v{D0+j}, v{D1+j}, v{D0+j}, vcc")
        a(f"s_branch L_tdone_{P}")
        a.label(f"L_t3_{P}")
        a.lg = []
        tg = []
        B0 = [16, 32, 48, 16]
        def rd3(g): return [rd(B0[g], vT + 2, g * 1024), rd(B0[g] + 4, vT + 1, g * 1024), rd(B0[g] + 8, vT, g * 4096 + 2048), rd(B0[g] + 12, vT, g * 4096 + 3072)]
        for g in range(3): tg.append(rd3(g))
        for g in range(4):
            a.wait(lg=tg[g]); evb(B0[g])
            mfma(D0, B0[g] + 4, B0[g] + 8, D0 if g else "0")
            mfma(D1, B0[g] + 4, B0[g] + 12, D1 if g else "0")
            mfma(D2, B0[g] + 4, B0[g], D2 if g else "0")
            if g == 0: tg.append(rd3(3))
        set_mask("vcc", gm(hA))
        for j in range(4): a(f"v_cndmask_b32 v{D0+j}, v{D1+j}, v{D0+j}, vcc")
        for j in range(4):
            if c == 0: a(f"v_permlane32_swap_b32 v{D0+j}, v{D2+j}")
            else: a(f"v_permlane32_swap_b32 v{D2+j}, v{D0+j}")
        a.label(f"L_tdone_{P}")
        a.lg = []
        pack(D0, 88)
        a(f"v_min_u32 v{D0}, -2, v88"); a(f"v_min_u32 v{D0+1}, -2, v89")
        a(f"buffer_store_dwordx2 {vr(D0,2)}, v{vL8}, {sr(SS,4)}, s{sKVP} offen sc1")
    else:
        for k in range(6): a(f"ds_write_b64 v{vT}, {vr(xs[k],2)} offset:{EXB + k*512}")
        a(f"s_cmp_eq_u32 s{sI}, 3"); a(f"s_cbranch_scc0 L_nohp_{P}")
        for k in range(5):
            for j in range(2): a(f"v_min_u32 v{xs[k]+j}, -2, v{xs[k]+j}")
            a(f"buffer_store_dwordx2 {vr(xs[k],2)}, v{vL8}, {sr(SS,4)}, s{sHP} offen offset:{k*512} sc1", "~i3hp")
        a.label(f"L_nohp_{P}")
    stamp("pub1")

    ACC2 = 16; WF2 = 40
    oc = 1 - c
    NT2 = 3 if c == 0 else 2
    def acc2(t, rt): return ACC2 + (t * 2 + rt) * 4
    items2 = [(sg, t) for sg in range(16) for t in range(NT2)] + [(sg, t) for t in ((2, 0, 1) if c == 0 else (0, 1)) for sg in range(16, 20)]
    N2 = len(items2)
    def ix(sg): return NT2 * sg
    iEQ = N2 - 8; iQA = N2 - 4
    def reads2(n, w):
        sg, t = items2[n]; tg = []
        for h in range(2):
            off = ((sg >> 1) & 1) * UNIT + (sg & 1) * 5120 + h * 1280
            if t < 2: tg.append(a(f"ds_read_b64_tr_b16 {vr(w+2*h,2)}, v{vWA} offset:{off + 40*t}"))
            else: tg.append(a(f"ds_read_b64_tr_b16 {vr(w+2*h,2)}, v{vWE} offset:{off}"))
        return tg
    def mf2(n, w):
        sg, t = items2[n]
        for rt in (0, 1):
            C = acc2(t, rt) if sg else (80 if A_ else "0")
            mfma(acc2(t, rt), w, X(sg, rt), C)
    GA = 56
    def gather(tag="gat"):
        for r in range(8):
            a(f"s_add_u32 s3, s{sKVG}, {r*4096}")
            a(f"buffer_load_dwordx4 {vr(GA+4*r,4)}, v{vGAD}, {sr(SS,4)}, s3 offen sc1", tag)
    def gather_ops():
        if OPT["hackgat"]: return []
        return [([f"s_add_u32 s3, s{sKVG}, {r*4096}"], f"buffer_load_dwordx4 {vr(GA+4*r,4)}, v{vGAD}, {sr(SS,4)}, s3 offen sc1") for r in range(8)]
    HL = [KA[("a", -1)], KA[("b", -1)], Va, Vb, KA[("a", -1)] + 2, Ev, KA[("b", -1)] + 2] if not A_ else None
    def halo_loads(tag="~h0halo"):
        offs = [c*3072, c*3072 + 512, c*3072 + 1024, c*3072 + 1536, 2048, 3072 + 2048, 2048]
        for d, o in zip(HL, offs):
            a(f"s_add_u32 s3, s{sHG2}, {o}")
            a(f"buffer_load_dwordx2 {vr(d,2)}, v{vL8}, {sr(SS,4)}, s3 offen sc1", tag)
    def halo_issue():
        a(f"s_cmp_eq_u32 s{sHV}, 0")
        a(f"s_cbranch_scc1 L_nohl_{P}")
        halo_loads()
        a.label(f"L_nohl_{P}")
    def bnd2(u):
        ops = []
        if u > 0:
            d = (WQ_UNIT[u] - WQ_UNIT[u - 1]) * UNIT
            for r in (vWA, vWE): a(f"v_add_u32 v{r}, {d}, v{r}")
            if not FB or u in (1, 3):
                a.wait(vm=f"wq{u + 1 if FB else u}", lg="all")
                a("s_barrier")
            stamp(f"p{u}")
        if FB:
            if u == 1: ops += [(op, f"wq{k}") for k in (3, 4) for op in dma_wq(c, k)]
            ops += [(op, "wo") for k in WOA.get(u, []) for op in dma_wo(c, k)]
        else:
            if u in (1, 2): ops += [(op, f"wq{u+2}") for op in dma_wq(c, u + 2)]
            if u >= WD: ops += [(op, "wo") for op in dma_wo(c, u - WD)]
        if u == OPT["prel_at"] and OPT["prel1"] < 0 and not (OPT["st0"] >= 0 and OPT["stp"]): ops = ops + [(opreload, None)]
        if u == (OPT["gat_at"] if A_ else OPT["hal_at"]):
            g = gather_ops()
            if OPT["gspread"]: g = g[:4]
            ops = ([(op, "gat") for op in g] if A_ else [(halo_issue, None)]) + ops
        if u == OPT["gat_at"] + 1 and A_ and OPT["gspread"]:
            ops = [(op, "gat") for op in gather_ops()[4:]] + ops
        return ops
    QB = {("a", 0): 160, ("b", 0): 164, ("a", 1): 168, ("b", 1): 172}
    side = {}
    vEQo, vEQp = 124, 125
    eqaddr = [[f"s_lshl_b32 s4, s{sI}, 10", f"v_add_u32 v{vEQo}, s4, v{vL8}"]]
    cst = [f"v_add_u32 v126, {CST}, v{vL16}"]
    if A_:
        SEL, C0, CA = 96, 100, 104
        Axb = 104; vOW = 126; vOX = 127
        cst += [f"ds_read_b128 {vr(96+4*k,4)}, v126 offset:{k*1024}" for k in range(3)]
        def cfix():
            a.wait(lg="all")
            a(f"s_lshl_b32 s4, s{sTI}, 9"); a(f"v_add_u32 v{vOW}, s4, v{CA}"); a(f"v_mov_b32 v{vOX}, v{CA+1}")
        GS = 108; GT = 88
        def gsum():
            for r in range(8): mfma(GS, SEL, GA + 4 * r, GS if r else "0")
        def gpart1():
            assert OPT["hackgat"] or sum(1 for l in a.lines[pstart:] if f"v{vGAD}, s[32:35]" in l) == 8, "gather not fully issued"
            a.wait(vm="gat"); gsum()
        def gpart2():
            a(f"v_add_f32 v{GT}, v{GS}, v{GS+1}"); a(f"v_add_f32 v{GT+1}, v{GS+2}, v{GS+3}"); a(f"v_add_f32 v{GT}, v{GT}, v{GT+1}")
            a(f"v_cmp_u_f32 vcc, v{GT}, v{GT}")
            a(f"s_cbranch_vccz L_gok_{P}" if not OPT["hackgat"] else f"s_branch L_gok_{P}")
            spin_begin(f"L_gsp_{P}")
            a(f"v_max3_u32 v{GT}, v{GA}, v{GA+1}, v{GA+2}")
            for k in range(3, 31, 2): a(f"v_max3_u32 v{GT}, v{GT}, v{GA+k}, v{GA+k+1}")
            a(f"v_max_u32 v{GT}, v{GT}, v{GA+31}")
            a(f"v_cmp_eq_u32 vcc, -1, v{GT}")
            a(f"s_cbranch_vccz L_gre_{P}")
            gather("~x"); a("s_waitcnt vmcnt(0)")
            spin_check(f"L_gsp_{P}", f"L_gre_{P}")
            gsum(); a("s_nop 7")
            if OPT["stamps"]:
                a(f"s_add_u32 s3, s{sSPIN}, 1"); a(f"v_writelane_b32 v{vST}, s3, 43")
            a.label(f"L_gok_{P}")
            pack(GS, GT)
            a(f"ds_write_b64 v{vOW}, {vr(GT,2)} offset:{OPS + c*2048}")
        side[ix(4) + 1] = cst + eqaddr
        side[ix(8) - 1] = [cfix]
        if c == 0:
            e = phi_ins(acc2(2, 0), 8, [], 112)
            for rt in range(2):
                e += pack_ins(acc2(2, rt), QB[("a", rt)] + 2) + [f"ds_write_b64 v{vEQo}, {vr(QB[('a',rt)]+2,2)} offset:{EQX + rt*512}"]
                e += [f"v_mov_b32 v{QB[('b',rt)]+2+j}, v{QB[('a',rt)]+2+j}" for j in range(2)]
            side[iEQ] = e
        side[iQA] = phi_ins(acc2(0, 0), 8, [], 112) + pack_ins(acc2(0, 0), QB[("a", 0)]) + pack_ins(acc2(0, 1), QB[("a", 1)])
        if OPT["gearly"] >= 0:
            side[N2 - 6] = side.get(N2 - 6, []) + [gpart1]
            side[N2 - 1] = side.get(N2 - 1, []) + [gpart2]
    else:
        BO, BP, ONES, MK, BP0 = 104, 108, 112, 116, 120
        cst += [f"ds_read_b128 {vr(104+4*k,4)}, v126 offset:{k*1024}" for k in range(4)] + [f"ds_read_b128 {vr(BP0,4)}, v126 offset:1024", "v_mov_b32 v127, 0"]
        def foreign():
            a(f"s_xor_b32 s3, s{sWV}, 4"); a(f"s_mul_i32 s3, s3, 3072")
            a(f"v_add_u32 v{vT}, s3, v{vL8}")
            for rt in range(2):
                o = EXB + (4 if rt else 5) * 512
                if c == 0: a(f"ds_read_b64 {vr(Ev+2+2*rt,2)}, v{vT} offset:{o}")
                else:
                    for h in "ab": a(f"ds_read_b64 {vr(KA[(h,rt)]+2,2)}, v{vT} offset:{o}")
        def foreign2():
            a(f"s_cmp_eq_u32 s{sI}, 0"); a(f"s_cbranch_scc1 L_nof2_{P}")
            a("s_waitcnt lgkmcnt(6)")
            a(f"s_sub_u32 s3, s{sI}, 1"); a(f"s_mul_i32 s3, s3, 3072")
            a(f"v_add_u32 v{vT}, s3, v{vL8}")
            cb = EXB + c * 4 * 3072
            sl = list(a.lg); a.lg = []
            a(f"ds_read_b64 {vr(KA[('a',-1)],2)}, v{vT} offset:{cb}")
            a(f"ds_read_b64 {vr(KA[('b',-1)],2)}, v{vT} offset:{cb + 512}")
            a(f"ds_read_b64 {vr(Va,2)}, v{vT} offset:{cb + 1024}")
            a(f"ds_read_b64 {vr(Vb,2)}, v{vT} offset:{cb + 1536}")
            for h in "ab": a(f"ds_read_b64 {vr(KA[(h,-1)]+2,2)}, v{vT} offset:{EXB + 2048}")
            a(f"ds_read_b64 {vr(Ev,2)}, v{vT} offset:{EXB + 4*3072 + 2048}")
            a.lg = sl
            a.label(f"L_nof2_{P}")
        EQ = {0: 156, 1: 158}
        side[ix(4) + 1] = cst + eqaddr
        side[ix(6)] = [foreign]
        side[ix(9)] = [foreign2]
        if c == 0:
            side[iEQ] = pack_ins(acc2(2, 0), EQ[0]) + pack_ins(acc2(2, 1), EQ[1]) + [f"ds_write_b64 v{vEQo}, {vr(EQ[rt],2)} offset:{EQX + rt*512}" for rt in range(2)]
        side[iQA] = pack_ins(acc2(0, 0), QB[("a", 0)]) + pack_ins(acc2(0, 1), QB[("a", 1)])
    wf2 = [WF2 + 4 * k for k in range(4)] + ([32, 36] if c == 1 else [])
    pipeline(N2, reads2, mf2, {ix(4 * u): u for u in range(5)}, bnd2, OPT["L2"], OPT["Lb2"] if c == 0 else OPT["Lb2"] - 1, wf2,
             newbufs={ix(8): [128 + 4 * k for k in range(7)]}, side=side, side_rate=OPT["srate"] + (0 if c == 0 else 1), prio=None)
    if c == 1 and OPT["prep"] >= 0: a(f"s_setprio {OPT['prep']}")
    stamp("p2end")

    if A_:
        if OPT["gearly"] < 0: gpart1()
        late(3)
        phi_pack(acc2(1, 0), 8, [], 136)
        pack(acc2(1, 0), QB[("b", 0)]); pack(acc2(1, 1), QB[("b", 1)])
        if OPT["gearly"] < 0: gpart2()
        late(99)
        a.wait(lg="all")
        a("s_barrier")
        stamp("E2")
        A1a, A1b, Axa, T3, T2 = 128, 132, 136, 140, 142
        ob = OPS + c * 2048
        t3 = a(f"ds_read_b64 {vr(T3,2)}, v{vL8} offset:{ob + 1536}")
        t2 = a(f"ds_read_b64 {vr(T2,2)}, v{vL8} offset:{ob + 1024}")
        t4 = a(f"ds_read_b64 {vr(Axa+2,2)}, v{vOX} offset:{ob + 1536}")
        t0 = a(f"ds_read_b64 {vr(A1a,2)}, v{vL8} offset:{ob}")
        t1 = a(f"ds_read_b64 {vr(A1b,2)}, v{vL8} offset:{ob + 512}")
        tq = [a(f"ds_read_b64 {vr(QB[(h,rt)]+2,2)}, v{vEQo} offset:{EQX + rt*512}") for rt in range(2) for h in "ab"] if c == 1 else [t1]
        late(99, True)
        if OPT["prel_at"] == 5: opreload()
        ma = lambda l: (0x11dd >> (l & 15)) & 1
        Z = Axb + 2
        set_mask("vcc", gm(hA)); a.wait(lg=t3)
        for j in range(2): a(f"v_cndmask_b32 v{A1a+2+j}, v{Z}, v{T3+j}, vcc")
        set_mask("vcc", gm(hB))
        for j in range(2): a(f"v_cndmask_b32 v{A1b+2+j}, v{Z}, v{T3+j}, vcc")
        set_mask("vcc", 0x11dd11dd11dd11dd); a.wait(lg=t4)
        for j in range(2):
            a(f"v_cndmask_b32 v{Axa+j}, v{Z}, v{T2+j}, vcc")
            a(f"v_cndmask_b32 v{Axb+j}, v{T2+j}, v{Z}, vcc")
        set_mask("vcc", lanemask(lambda l: ((l >> 4) == hA and ma(l)) or ((l >> 4) == hB and not ma(l))))
        for j in range(2): a(f"v_cndmask_b32 v{Axa+2+j}, v{Z}, v{Axa+2+j}, vcc")
        O = {(k, rt): 16 + (rt * 3 + i) * 4 for rt in range(2) for i, k in enumerate("xab")}
        a.wait(lg=tq)
        for rt in (c, oc): mfma(O[("x", rt)], Axa, QB[("a", rt)], C0)
        for rt in (c, oc): mfma(O[("a", rt)], A1a, QB[("a", rt)], "0")
        for rt in (c, oc): mfma(O[("x", rt)], Axb, QB[("b", rt)], O[("x", rt)])
        for rt in (c, oc): mfma(O[("b", rt)], A1b, QB[("b", rt)], "0")
        OM = [176, 180]; OX = [184, 186]
        set_mask("vcc", lanemask(lambda l: l < 32))
        for rt in (c, oc):
            x = O[("x", rt)]
            a(f"v_rcp_f32 v{x}, v{x}"); a(f"v_rcp_f32 v{x+1}, v{x+1}")
        for rt in (c, oc):
            x = O[("x", rt)]
            for j in range(4): a(f"v_mul_f32 v{O[('a',rt)]+j}, v{O[('a',rt)]+j}, v{x}")
            for j in range(4): a(f"v_mul_f32 v{O[('b',rt)]+j}, v{O[('b',rt)]+j}, v{x+1}")
            a(f"v_cndmask_b32 v{x}, v{x+1}, v{x}, vcc")
            pack(O[("a", rt)], OM[rt]); pack(O[("b", rt)], OM[rt] + 2)
            for j in (2, 3): a(f"v_mul_f32 v{x+j}, v{x+j}, v{x}")
            a(f"v_cvt_pk_bf16_f32 v{OX[rt]}, v{x+2}, v{x+3}")
    else:
        late(3)
        for rt in range(2): pack(acc2(1, rt), QB[("b", rt)])
        a(f"s_cmp_eq_u32 s{sI}, 0"); a(f"s_cbranch_scc0 L_hdone_{P}")
        a(f"s_cmp_eq_u32 s{sRT}, 0"); a(f"s_cbranch_scc0 L_hwait_{P}")
        for d in HL: a(f"v_mov_b32 v{d}, 0"); a(f"v_mov_b32 v{d+1}, 0")
        for j in range(4): a(f"v_mov_b32 v{BP0+j}, 0x{f2u(-1e30):x}")
        a(f"s_branch L_hok_{P}")
        a.label(f"L_hwait_{P}")
        def htest():
            a(f"v_max3_u32 v228, v{HL[0]}, v{HL[0]+1}, v{HL[1]}")
            a(f"v_max3_u32 v228, v228, v{HL[1]+1}, v{HL[2]}")
            a(f"v_max3_u32 v228, v228, v{HL[2]+1}, v{HL[3]}")
            a(f"v_max3_u32 v228, v228, v{HL[3]+1}, v{HL[4]}")
            a(f"v_max3_u32 v228, v228, v{HL[4]+1}, v{HL[5]}")
            a(f"v_max3_u32 v228, v228, v{HL[5]+1}, v{HL[6]}")
            a(f"v_max_u32 v228, v228, v{HL[6]+1}")
            a(f"v_cmp_eq_u32 vcc, -1, v228")
            a(f"s_cbranch_vccz L_hok_{P}")
        a.wait(vm="~h0halo", keep=True)
        htest()
        spin_begin(f"L_hsp_{P}")
        if OPT["stamps"]: a(f"v_writelane_b32 v{vST}, s{sHV}, 43")
        halo_loads("~x"); a("s_waitcnt vmcnt(0)"); htest()
        spin_check(f"L_hsp_{P}", f"L_hok_{P}")
        a.label(f"L_hdone_{P}")
        def qmask(rt):
            for h, hh in (("a", hA), ("b", hB)):
                set_mask("vcc", gm(hh))
                for j in range(2): a(f"v_cndmask_b32 v{QB[(h,rt)]+2+j}, v127, v{EQ[rt]+j}, vcc")
        if c == 0: qmask(0); qmask(1)
        a.wait(lg="all")
        if c == 1 or not OPT["esk"]:
            a("s_barrier")
            stamp("E2")
        if c == 1: tq = [a(f"ds_read_b64 {vr(EQ[rt],2)}, v{vEQo} offset:{EQX + rt*512}") for rt in range(2)]
        units = [(h, rt) for rt in (0, 1) for h in "ab"]
        S = {u: 176 + 8 * k for k, u in enumerate(units)}
        PB = {u: 208 + 4 * k for k, u in enumerate(units)}
        Om = dict(zip(units, (16, 28, 40, 128)))
        SV = {u: 228 + 2 * k for k, u in enumerate(units)}
        MX = {u: 236 + k for k, u in enumerate(units)}
        def smf(u):
            h, rt = u
            mfma(S[u], KA[(h, rt - 1)], QB[u], BP0 if rt == 0 else BP)
            mfma(S[u] + 4, KA[(h, rt)], QB[u], BO)
        if c == 1:
            a.wait(lg=tq[0]); qmask(0); smf(units[0]); smf(units[1])
            a.wait(lg=tq[1]); qmask(1); smf(units[2]); smf(units[3])
        else:
            for u in units: smf(u)
            if OPT["esk"]:
                a("s_barrier")
                stamp("E2")
        late(99 if OPT["prel_at"] == 5 else 2, True)
        if OPT["prel_at"] == 5: opreload()
        for u in units:
            s_, v = S[u], SV[u]
            a(f"v_max3_f32 v{v}, v{s_}, v{s_+1}, v{s_+4}"); a(f"v_max3_f32 v{v+1}, v{s_+2}, v{s_+3}, v{s_+6}")
            a(f"v_max_f32 v{v}, v{v}, v{s_+5}"); a(f"v_max_f32 v{v+1}, v{v+1}, v{s_+7}")
            a(f"v_max_f32 v{MX[u]}, v{v}, v{v+1}")
        m0_, m1_, m2_, m3_ = [MX[u] for u in units]
        a(f"v_permlane32_swap_b32 v{m0_}, v{m1_}"); a(f"v_permlane32_swap_b32 v{m2_}, v{m3_}")
        a(f"v_max_f32 v{m0_}, v{m0_}, v{m1_}"); a(f"v_max_f32 v{m2_}, v{m2_}, v{m3_}")
        a(f"v_permlane16_swap_b32 v{m0_}, v{m2_}")
        a(f"v_max_f32 v{m0_}, v{m0_}, v{m2_}")
        cs = LOG2E * 20 ** -0.5
        a(f"v_mul_f32 v{m0_}, 0x{f2u(-cs):x}, v{m0_}")
        a(f"v_mov_b32 v{m2_}, v{m0_}")
        a(f"v_permlane16_swap_b32 v{m0_}, v{m2_}")
        a(f"v_mov_b32 v{m1_}, v{m0_}"); a(f"v_mov_b32 v{m3_}, v{m2_}")
        a(f"v_permlane32_swap_b32 v{m0_}, v{m1_}"); a(f"v_permlane32_swap_b32 v{m2_}, v{m3_}")
        late(99, True)
        V = {"a": Va, "b": Vb}
        for u in units:
            for j in range(2): a(f"v_fmamk_f32 v{SV[u]+j}, v{SV[u]+j}, 0x{f2u(cs):x}, v{MX[u]}")
        for u in units:
            for j in range(2): a(f"v_exp_f32 v{SV[u]+j}, v{SV[u]+j}")
        for u in units:
            h, rt = u; v = SV[u]
            for j in range(2): a(f"v_cvt_pk_bf16_f32 v{v+j}, v{v+j}, v{v+j}")
            for k in range(4): a(f"v_and_b32 v{PB[u]+k}, v{v+(k&1)}, v{MK+k}")
            mfma(Om[u] + 8, ONES, PB[u], "0")
            mfma(Om[u], V[h] + 2 * rt, PB[u], "0")
            mfma(Om[u] + 4, Ev + 2 * rt, PB[u], "0")
        OM = [176, 180]; OX = [184, 186]
        set_mask("vcc", gm(hA))
        for rt in (c, oc):
            ua, ub = ("a", rt), ("b", rt)
            for u in (ua, ub): a(f"v_rcp_f32 v{Om[u]+8}, v{Om[u]+8}")
            for j in range(4): a(f"v_cndmask_b32 v{Om[ua]+4+j}, v{Om[ub]+4+j}, v{Om[ua]+4+j}, vcc")
            for u in (ua, ub):
                for j in range(4): a(f"v_mul_f32 v{Om[u]+j}, v{Om[u]+j}, v{Om[u]+8}")
            a(f"v_cndmask_b32 v{Om[ua]+8}, v{Om[ub]+8}, v{Om[ua]+8}, vcc")
            pack(Om[ua], OM[rt]); pack(Om[ub], OM[rt] + 2)
            for j in range(4): a(f"v_mul_f32 v{Om[ua]+4+j}, v{Om[ua]+4+j}, v{Om[ua]+8}")
            pack(Om[ua] + 4, OX[rt])
    a(f"s_mul_i32 s3, s{sHG}, {2*OP_}"); a(f"s_add_u32 s3, s3, s{sOB}"); a(f"s_add_u32 s3, s3, {c*OP_}")
    a(f"s_add_u32 s4, s3, {OT}")
    a(f"s_lshr_b32 s5, s{sHG}, 1"); a(f"s_mul_i32 s5, s5, {4*OP_}"); a(f"s_and_b32 s6, s{sHG}, 1"); a(f"s_lshl_b32 s6, s6, 3")
    a(f"s_add_u32 s5, s5, s6"); a(f"s_add_u32 s5, s5, s{sOB}")
    a(f"s_add_u32 s6, s5, {OT}")
    a(f"v_lshrrev_b32 v{vXE}, 4, v{vL}"); a(f"v_mul_u32_u24 v{vXE}, {OP_ - 256}, v{vXE}"); a(f"v_add_u32 v{vXE}, v{vXE}, v{vL16}")
    a(f"v_mov_b32 v{vT}, s{sN}")
    a(f"s_cmp_eq_u32 s{sFAST}, 1"); a(f"s_cbranch_scc1 L_fast_{P}")
    for fl, end in ((" sc1", f"s_branch L_pubd_{P}"), ((" " + OPT["ofl"]) if OPT["ofl"] != "none" else "", None)):
        if not end: a.label(f"L_fast_{P}")
        a(f"buffer_store_dwordx4 {vr(OM[0],4)}, v{vL16}, {sr(OS,4)}, s3 offen{fl}")
        a(f"buffer_store_dwordx4 {vr(OM[1],4)}, v{vL16}, {sr(OS,4)}, s4 offen{fl}")
        if A_:
            a(f"buffer_store_dword v{OX[0]}, v{vXE}, {sr(OS,4)}, s5 offen offset:{1024 + 4*c}{fl}")
            a(f"buffer_store_dword v{OX[1]}, v{vXE}, {sr(OS,4)}, s6 offen offset:{1024 + 4*c}{fl}")
        else:
            a(f"s_mov_b32 exec_{'hi' if c == 0 else 'lo'}, 0")
            a(f"buffer_store_dwordx2 {vr(OX[0],2)}, v{vXE}, {sr(OS,4)}, s5 offen offset:1024{fl}")
            a(f"buffer_store_dwordx2 {vr(OX[1],2)}, v{vXE}, {sr(OS,4)}, s6 offen offset:1024{fl}")
        if end: a(end)
    a.label(f"L_pubd_{P}")
    a("s_mov_b64 exec, -1")
    stamp("ostore")
    phase2_setup(A_, c)
    a(f"s_cmp_eq_u32 s{sFAST}, 1")
    a("s_mov_b64 exec, 1")
    a("s_waitcnt vmcnt(0) lgkmcnt(0)")
    a(f"s_cbranch_scc1 L_fast2_{P}")
    a(f"buffer_store_dword v{vT}, off, {sr(SS,4)}, s{sFP} sc1")
    a(f"s_branch L_pubd2_{P}")
    a.label(f"L_fast2_{P}")
    a(f"buffer_store_dword v{vT}, off, {sr(SS,4)}, s{sFP}")
    a.label(f"L_pubd2_{P}")
    a("s_mov_b64 exec, -1")
    if late_wo:
        late(99, 2)
        phase2_setup2()
        a("s_waitcnt vmcnt(0)")
    a.vm = ["flag"]
    stamp("oack")
    a("s_branch L_phase2")

vM0, vE0, vPA, vPD, vSA = 1, 2, 3, 0, 5
RA = [8, 9, 11]; GA_ = [12, 13, 95]
vRW, vRR = 4, 7
RX = 43008
RX = 0
OST2 = 40960
def phase2_setup(A_, c):
    a(f"s_mul_i32 s7, s{sKH}, 51200"); a(f"s_add_u32 s7, s7, {WO_BASE}")
    half = "s7"
    a(f"v_and_b32 v{vPD}, 3, v{vL}")
    a(f"v_lshrrev_b32 v{vM0}, 2, v{vL}"); a(f"v_mul_u32_u24 v{vM0}, 160, v{vM0}")
    a(f"v_lshl_add_u32 v{vM0}, v{vPD}, 3, v{vM0}"); a(f"v_add_u32 v{vM0}, {half}, v{vM0}")
    if A_:
        a(f"v_bfe_u32 v{vE0}, v{vL}, 3, 1"); a(f"v_mul_u32_u24 v{vE0}, 40, v{vE0}")
        a(f"v_lshrrev_b32 v{vPA}, 5, v{vL}"); a(f"v_mad_u32_u24 v{vE0}, v{vPA}, 20, v{vE0}")
        a(f"v_bfe_u32 v{vPA}, v{vL}, 4, 1"); a(f"v_lshl_add_u32 v{vE0}, v{vPA}, 1, v{vE0}")
        a(f"v_bfe_u32 v{vPA}, v{vL}, 2, 1"); a(f"v_add_u32 v{vE0}, v{vE0}, v{vPA}")
    else:
        a(f"v_lshrrev_b32 v{vE0}, 4, v{vL}"); a(f"v_mul_u32_u24 v{vE0}, 20, v{vE0}")
        a(f"v_bfe_u32 v{vPA}, v{vL}, 2, 2"); a(f"v_add_u32 v{vE0}, v{vE0}, v{vPA}")
    a(f"v_mul_u32_u24 v{vE0}, 160, v{vE0}")
    a(f"v_lshl_add_u32 v{vE0}, v{vPD}, 3, v{vE0}"); a(f"v_add_u32 v{vE0}, {half}, v{vE0}")
    a(f"v_lshlrev_b32 v{vPA}, 2, v{vL}")
    a(f"s_mul_i32 s7, s{sWV}, 5120"); a(f"v_add_u32 v{vRR}, s7, v{vXA0}")
    a(f"s_xor_b32 s7, s{sWV}, 1"); a(f"s_mul_i32 s7, s7, 5120"); a(f"v_add_u32 v{vRW}, s7, v{vXA0}")
    a(f"s_mul_i32 s7, s{sWV}, 2560"); a(f"s_add_u32 s7, s7, {OST2}")
    a(f"v_mov_b32 v16, s7"); a("v_mov_b32 v17, 0"); a("ds_write_b32 v16, v17")

def phase2_setup2():
    a(f"s_mul_i32 s7, s{sWV}, 2560"); a(f"s_add_u32 s7, s7, {OST2}")
    for j in range(3):
        a(f"v_add_u32 v{RA[j]}, {64*j}, v{vL}")
        a(f"v_mul_u32_u24 v{GA_[j]}, 6554, v{RA[j]}"); a(f"v_lshrrev_b32 v{GA_[j]}, 16, v{GA_[j]}")
        a(f"v_mul_u32_u24 v{vSA}, 2400, v{GA_[j]}")
        a(f"v_lshlrev_b32 v{RA[j]}, 4, v{RA[j]}")
        a(f"v_add_u32 v{GA_[j]}, v{vSA}, v{RA[j]}")
        a(f"v_add_u32 v{RA[j]}, s7, v{RA[j]}")
    a(f"v_and_b32 v{vSA}, 15, v{vL}"); a(f"v_mul_u32_u24 v{vSA}, 160, v{vSA}")
    a(f"v_lshrrev_b32 v16, 4, v{vL}"); a(f"v_lshlrev_b32 v16, 3, v16"); a(f"v_add3_u32 v{vSA}, v{vSA}, v16, s7")

def phase2():
    a.label("L_phase2")
    a.vm = ["flag"]; a.lg = []
    vL16 = vXA0
    a("s_barrier")
    stamp("E3")
    OF = 176; ACC = 16
    def of(k, rt): return OF + (k * 2 + rt) * 4
    bufs = ([56 + 4 * k for k in range(9)] + [96 + 4 * k for k in range(20)])[:OPT["npre"]]
    NB = len(bufs)
    def reads(n):
        k, t = divmod(n, 5); w = bufs[n % NB]; tg = []
        for h in range(2):
            if k < 8: row = 40 * k + 20 * h; base = vM0
            else: row = 80 * (2 * (k - 8) + h) + 16; base = vE0
            tg.append(a(f"ds_read_b64_tr_b16 {vr(w+2*h,2)}, v{base} offset:{row * 160 + 32 * t}"))
        return tg
    def oload(j):
        k, rt = divmod(j, 2)
        if k < 8:
            if k % 2 == 0: a(f"s_add_u32 s{3+rt}, s{sOC}, {rt*OT + k*OP_}")
            a(f"buffer_load_dwordx4 {vr(of(k,rt),4)}, v{vL16}, {sr(OS,4)}, s{3+rt} offen offset:{(k%2)*OP_} sc1", f"o{k}")
        else:
            a(f"s_add_u32 s{3+rt}, s{sOE}, {rt*OT + (k-8)*4*OP_}")
            a(f"buffer_load_dwordx4 {vr(of(k,rt),4)}, v{vXE}, {sr(OS,4)}, s{3+rt} offen offset:1024 sc1", f"o{k}")
    NP = OPT["npoll"]; per = NB // NP
    batches = [list(range(k * per, (k + 1) * per if k < NP - 1 else NB)) for k in range(NP)]
    tags = {}
    def poll_issue():
        a("s_mov_b64 exec, 0xff"); a(f"buffer_load_dword v{vPD}, v{vPA}, {sr(SS,4)}, s{sFC} offen sc1"); a("s_mov_b64 exec, -1")
    def poll_check(lbl):
        a("s_waitcnt vmcnt(0)")
        a(f"v_cmp_ne_u32 vcc, s{sN}, v{vPD}"); a("s_and_b32 vcc_lo, vcc_lo, 0xff"); a(f"s_cbranch_scc0 {lbl}" if not OPT["hackpoll"] else f"s_branch {lbl}")
    lgs = []
    for k in range(NP):
        poll_issue()
        for n in batches[k]: tags[n] = reads(n)
        if k == 0 and not OPT['woaft']: phase2_setup2()
        lgs.append(list(a.lg))
        poll_check(f"L_go{k}")
    spin_begin("L_poll")
    poll_issue(); poll_check(f"L_go{NP-1}")
    spin_check("L_poll", "L_pollx")
    XL = OPT["oburst"] + NP - 1
    full = list(a.lg)
    for k in range(NP - 1, -1, -1):
        a.label(f"L_go{k}")
        a.vm = []; a.lg = list(lgs[k])
        stamp("polled")
        nxt = 0
        for _ in range(OPT["oburst"]): oload(nxt); nxt += 1
        for j in range(k + 1, NP):
            for n in batches[j]: reads(n)
            oload(nxt); nxt += 1
        while nxt < XL: oload(nxt); nxt += 1
        if k > 0: a("s_branch L_conv")
    a.label("L_conv")
    a.lg = full[-12:]
    a("s_waitcnt lgkmcnt(12)")
    rd = NB
    NLOOP = 45 if OPT["lastk"] else 50
    for n in range(NLOOP):
        k, t = divmod(n, 5)
        p3 = parse_pr(OPT["pr3"])
        if (n % 10) in p3:
            a(f"s_bitcmp1_b32 s{sWV}, 2"); a(f"s_cbranch_scc0 L_np{n}"); a(f"s_setprio {p3[n % 10]}"); a.label(f"L_np{n}")
        a.wait(vm=f"o{k}" if t == 0 else None, lg=tags[n])
        if n == 0: stamp("ofirst")
        if n == 45 and AL:
            a(f"v_mov_b32 v{vPD}, s{sN}"); a("s_mov_b64 exec, 1")
            a(f"s_cmp_eq_u32 s{sFAST}, 1"); a("s_cbranch_scc1 L_df1")
            a(f"buffer_store_dword v{vPD}, off, {sr(SS,4)}, s{sDFP} sc1"); a("s_branch L_df2")
            a.label("L_df1"); a(f"buffer_store_dword v{vPD}, off, {sr(SS,4)}, s{sDFP}"); a.label("L_df2")
            a("s_mov_b64 exec, -1")
        for rt in range(2):
            d = ACC + (rt * 5 + t) * 4
            mfma(d, bufs[n % NB], of(k, rt), d if k else "0")
        if t in (0, 2) and nxt < 20: oload(nxt); nxt += 1
        if OPT["wb"] >= 3 and n == OPT["wbn"]:
            a(f"s_xor_b32 s3, s{sWV}, {OPT['wbw']}")
            if OPT["wb"] == 3: a(f"s_or_b32 s3, s3, s{sHG}")
            else: a(f"s_and_b32 s4, s{sHG}, 3"); a("s_or_b32 s3, s3, s4")
            a(f"s_cmp_eq_u32 s3, 0"); a(f"s_cselect_b32 s3, s{sFAST}, 0"); a("s_cmp_eq_u32 s3, 1")
            a("s_cbranch_scc0 L_nowb")
            a("buffer_wbl2 sc1", "~wb")
            a.label("L_nowb")
        if t == 1 and nxt == 20 and OPT["wb"] in (1, 2):
            nxt = 21
            if OPT["wb"] == 1: a(f"s_or_b32 s3, s{sWV}, s{sHG}")
            else: a(f"s_mov_b32 s3, s{sWV}")
            a(f"s_cmp_eq_u32 s3, 0"); a(f"s_cselect_b32 s3, s{sFAST}, 0"); a("s_cmp_eq_u32 s3, 1")
            a("s_cbranch_scc0 L_nowb")
            a("buffer_wbl2 sc1", "~wb")
            a.label("L_nowb")
        if rd < 50: tags[rd] = reads(rd); rd += 1
    if not OPT["lastk"]: stamp("g2end")
    assert not (AL and OPT["lastk"])
    if AL: a("s_mov_b64 exec, 0xffff"); a(f"buffer_load_dword v{vPD}, v{vPA}, {sr(SS,4)}, s{sDFC} offen sc1"); a("s_mov_b64 exec, -1")
    else: a("s_nop 2")
    a(f"s_xor_b32 s7, s{sWV}, 1"); a(f"s_mul_i32 s7, s7, 2560"); a(f"s_add_u32 s7, s7, {OST2}")
    a(f"v_mov_b32 v92, s7"); a(f"s_mul_i32 s7, s{sWV}, 2560"); a(f"s_add_u32 s7, s7, {OST2}"); a(f"v_mov_b32 v93, s7")
    if OPT["lastk"]: a.wait(vm="o9", lg="all")
    a(f"s_cmp_eq_u32 s{sKH}, 0"); a("s_cbranch_scc0 L_red1")
    for c in range(2):
        if c == 1: a.label("L_red1")
        a.lg = []
        give = ACC + (1 - c) * 20; keep = ACC + c * 20
        if OPT["lastk"]:
            for t in range(5): mfma(give + 4 * t, bufs[(45 + t) % NB], of(9, 1 - c), give + 4 * t)
            for t in range(5):
                mfma(keep + 4 * t, bufs[(45 + t) % NB], of(9, c), keep + 4 * t)
                if t >= 2: a(f"ds_write_b128 v{vRW}, {vr(give+4*(t-2),4)} offset:{RX + (t-2)*1024}")
            for t in (3, 4): a(f"ds_write_b128 v{vRW}, {vr(give+4*t,4)} offset:{RX + t*1024}")
            stamp("g2end")
        else:
            for t in range(5): a(f"ds_write_b128 v{vRW}, {vr(give+4*t,4)} offset:{RX + t*1024}")
        a.wait(lg="all")
        a("ds_write_b32 v92, v92")
        spin_begin(f"L_pw{c}")
        a("ds_read_b32 v94, v93"); a("s_waitcnt lgkmcnt(0)")
        a("v_cmp_ne_u32 vcc, 0, v94"); a(f"s_cbranch_vccnz L_pwok{c}")
        spin_check(f"L_pw{c}", f"L_pwok{c}")
        a.lg = []
        tg = [a(f"ds_read_b128 {vr(56+4*t,4)}, v{vRR} offset:{RX + t*1024}") for t in range(5)]
        for t in range(5):
            a.wait(lg=tg[t])
            for j in range(4): a(f"v_add_f32 v{56+4*t+j}, v{56+4*t+j}, v{keep+4*t+j}")
            pack(56 + 4 * t, 80 + 2 * t)
            a(f"ds_write_b64 v{vSA}, {vr(80+2*t,2)} offset:{32*t}")
        if c == 0: a("s_branch L_red2")
    a.label("L_red2")
    a.wait(lg="all")
    tg = []
    for j in range(3):
        if j == 2: a("s_mov_b32 exec_hi, 0")
        tg.append(a(f"ds_read_b128 {vr(96+4*j,4)}, v{RA[j]}"))
    a("s_mov_b64 exec, -1")
    def dfcheck():
        a("s_waitcnt vmcnt(0)")
        a(f"v_cmp_ne_u32 vcc, s{sN}, v{vPD}"); a("s_and_b32 vcc_lo, vcc_lo, 0xffff"); a("s_cbranch_scc0 L_dfok")
    if AL:
        dfcheck()
        spin_begin("L_dfs")
        a("s_mov_b64 exec, 0xffff"); a(f"buffer_load_dword v{vPD}, v{vPA}, {sr(SS,4)}, s{sDFC} offen sc1"); a("s_mov_b64 exec, -1")
        dfcheck()
        spin_check("L_dfs", "L_dfok")
    fl = OPT["outflag"].replace("+", " "); fl = "" if fl == "none" else " " + fl
    for j in range(3):
        a.wait(lg=tg[j])
        if j == 2: a("s_mov_b32 exec_hi, 0")
        a(f"buffer_store_dwordx4 {vr(96+4*j,4)}, v{GA_[j]}, {sr(SD,4)}, s{sOUT} offen{fl}")
    if OPT["wbe"]:
        a(f"s_xor_b32 s3, s{sWV}, {OPT['wbw']}"); a(f"s_and_b32 s4, s{sHG}, {OPT['wbe']-1 if OPT['wbe'] > 1 else 7}"); a("s_or_b32 s3, s3, s4")
        a("s_cmp_eq_u32 s3, 0"); a("s_cbranch_scc0 L_nowbe")
        a("s_waitcnt vmcnt(0)"); a("buffer_wbl2 sc1")
        a.label("L_nowbe")
    if OPT["stamps"]:
        a("s_mov_b64 exec, -1")
        a("s_waitcnt vmcnt(0)")
        stamp("end")
        a(f"s_memrealtime s[100:101]"); a("s_waitcnt lgkmcnt(0)"); a(f"v_writelane_b32 v{vST}, s100, 41")
        a(f"v_writelane_b32 v{vST}, s{sFAST}, 42")
        a(f"s_lshl_b32 s3, s2, 3"); a(f"s_add_u32 s3, s3, s{sWV}"); a("s_lshl_b32 s3, s3, 8"); a(f"s_add_u32 s3, s3, {WS_STAMP}")
        a(f"v_lshlrev_b32 v0, 2, v{vL}")
        a(f"buffer_store_dword v{vST}, v0, {sr(SS,4)}, s3 offen")
    a.label("L_end")
    a("s_endpgm")
    a.label("L_codeend")

prologue()
sv0 = list(a.vm)
for b, c in ((0, 0), (0, 1), (1, 0), (1, 1)):
    a.vm = list(sv0); a.lg = []
    path(b, c)
phase2()
a.raw(f""".section .rodata,"a"
.p2align 6
.amdhsa_kernel {KNAME}
  .amdhsa_next_free_vgpr 256
  .amdhsa_next_free_sgpr 102
  .amdhsa_accum_offset 256
  .amdhsa_group_segment_fixed_size 0
  .amdhsa_kernarg_size 72
  .amdhsa_user_sgpr_count 2
  .amdhsa_user_sgpr_kernarg_segment_ptr 1
  .amdhsa_system_sgpr_workgroup_id_x 1
.end_amdhsa_kernel""")
open(sys.argv[1], "w").write(a.text())
print("nops inserted:", a.nops_inserted, "lines:", len(a.lines), file=sys.stderr)
```

```python
import sys, os, struct
from collections import deque
from asmlib import Asm, vr, sr

KNAME = "concat_heads__linear_attn_block__sliding_local_dilated__prompt_kernel"
OPT = dict(prepoll=0, eoff=0, axt=-1, awt=-2, xw=-1, xq=-1, ecpar=-1, rv=0, dmap="", ord="n", ordoff=1, lean2=1, lean=1, lastk=0, rot2=0, hal_at=3, fewb=1, woA="2:0,4:1", esk=0, rts=0, woaft=0, gearly=54, tbal=1, exact=1, hackwo=0, hackgat=0, hackphi=0, hackpoll=0, sched="", tcm="", pr1="", pr2="", pr3="", prep=-1, hackport=0, hackdma=0, tcs=0, tc="", tcw=3, tc0=0, tcpos=0, alias=0, wbe=0, worot=0, wbn=49, wbw=4, tqonly=0, st0=-1, stn=6, stq=1, stp=1, srate=3, prel1=-1, ofl="nt", npoll=3, pre1=10, gspread=1, LA=2, p1n=3, win="", ea=0, eb=-1, ec=3, ecg=0, pst=-1, rev0=0, wodef=3, wnt=0, wont=0, pnt=0, xrot=1, prest=0, xnt=0, t0=0, wosched=0, G=10, stamps=0, L=4, Lb=2, L2=8, Lb2=4, force_slow=0, wb=0, codepf=1, outflag="nt", gat_at=3, pro=2, tq=-1,
           oburst=8, npre=27, rdy_at=4, prel_at=1, stampset="all")
for x in sys.argv[2:]:
    k, v = x.split("="); OPT[k] = int(v) if v.lstrip("-").isdigit() else v

def f2u(x): return struct.unpack("<I", struct.pack("<f", x))[0]

SLOT = 36864; UNIT = 10240
SC = 20480
EE_A = SC; RED = SC + 8192; OPS = 40960; EQX = SC + 28672; EXB = SC; OST = SC
BCAST = 147456 + 64
WO_BASE = 6 * UNIT
WQ_UNIT = [8, 10, 12, 0, 14]
CST = 148480
EE_A2 = 154624
OPX = 0
WS_KV = 0x600000; WS_HALO = 0x700000; WS_FLAG = 0x800000; WS_RDY = 0x810000; WS_E = 0x820000; WS_STAMP = 0x900000
WS_SIZE = 0x10000000
SPIN_MAX = 200000
EPS = f2u(1e-6)
LOG2E = 1.4426950408889634

SX, SW, SO, SD, SS, SG = 16, 20, 24, 28, 32, 36
sB, sRT, sHG, sWV, sI, sC, sXCC, sN, sFAST = 40, 41, 42, 43, 44, 45, 46, 47, 48
sXO, sWK = 50, 60
sW1K, sX2K = 70, 71
sT0, sT1, sT2, sT3 = 72, 73, 74, 75
sOB, sKVP, sKVG, sHP, sHG2, sFP, sFC = 76, 77, 78, 79, 49, 9, 8
sM = 80
sHV = 87; sTI = 86; sSPIN = 92; sCUR = 93; sDUTY = 90
sK = 94; sTM = 96; sOC = 98; sOUT = 99; sOE = 91; sKH = 85; sDFP = 84; sDFC = 83; sFPL = 82
vXD0, vXD1, vWD = 1, 2, 3
vXA0, vXA1, vWA, vWE, vL = 6, 7, 8, 9, 10
vT = 11; vST = 15
vWO = 90; vPRE = 93; vGAD = 94; vXE = 14
ACC1 = 16; WF = 56; XB = 96
def X(ks, rt): return XB + (ks * 2 + rt) * 4

a = Asm()
if OPT["exact"]:
    a.ghost_cond = {"w0": [f"s_cmp_eq_u32 s{sWV}, 0"], "i3": [f"s_cmp_eq_u32 s{sI}, 3"], "h0": [f"s_cmp_lg_u32 s{sHV}, 0"]}
AL = OPT['alias']
OS = SD if AL else SS
OP_ = 2560 if AL else 1280
OT = 16 * OP_
STAMPS = ["start", "issued", "b0", "b1", "b2", "b3", "b4", "b5", "b6", "b7", "b8", "b9", "p1end", "E1", "pub1", "p1", "p2", "p3", "p4", "p2end", "E2", "ostore", "oack", "E3", "polled", "ofirst", "g2end", "end", "first"]
FEW = {"first", "b0", "b1", "b2", "b4", "b6", "p1end", "pub1", "p2end", "ostore", "ofirst", "g2end", "end"}
def stamp(name):
    if not OPT["stamps"]: return
    if OPT["stampset"] == "few" and name not in FEW: return
    if OPT["stampset"] == "end" and name not in ("end",): return
    a(f"s_memtime {sr(sTM,2)}")
    RT = {"b0": 44, "b1": 45, "b6": 46, "p1end": 47, "pub1": 48, "p2end": 49, "ostore": 50, "ofirst": 51, "g2end": 52}
    if name in RT and OPT["rts"]: a("s_memrealtime s[100:101]")
    a("s_waitcnt lgkmcnt(0)"); a.lg = []
    a(f"v_writelane_b32 v{vST}, s{sTM}, {STAMPS.index(name)}")
    if name in RT and OPT["rts"]: a(f"v_writelane_b32 v{vST}, s100, {RT[name]}")

def srd(d, lo, hi, size):
    a(f"s_mov_b32 s{d}, s{lo}"); a(f"s_mov_b32 s{d+1}, s{hi}")
    a(f"s_mov_b32 s{d+2}, {size}"); a(f"s_mov_b32 s{d+3}, 0x20000")
def mask_ins(s, val):
    if s == "vcc": return [f"s_mov_b32 vcc_lo, 0x{val & 0xffffffff:x}", f"s_mov_b32 vcc_hi, 0x{val >> 32:x}"]
    return [f"s_mov_b32 s{s}, 0x{val & 0xffffffff:x}", f"s_mov_b32 s{s+1}, 0x{val >> 32:x}"]
def set_mask(s, val):
    for i in mask_ins(s, val): a(i)
def lanemask(f):
    m = 0
    for l in range(64):
        if f(l): m |= 1 << l
    return m

V0OK = [True]
def wvoff_ins(dst, q, pitch, swap, second):
    if q == 0: r = [f"v_and_b32 v{vT}, 0x1ff, v0" if V0OK[0] else f"v_lshl_add_u32 v{vT}, s{sWV}, 6, v{vL}"]
    elif q == 2: r = [f"s_lshl_b32 s{sT0}, s{sWV}, 6", f"s_add_u32 s{sT0}, s{sT0}, 384", f"s_mov_b32 s{sT1}, {second}", f"v_add_u32 v{vT}, s{sT0}, v{vL}"]
    else: r = [f"s_add_u32 s{sT0}, s{sWV}, {8*q}", f"s_cmp_ge_u32 s{sT0}, 10", f"s_cselect_b32 s{sT1}, {second}, 0", f"s_cselect_b32 s{sT2}, 10, 0",
         f"s_sub_u32 s{sT0}, s{sT0}, s{sT2}", f"s_lshl_b32 s{sT0}, s{sT0}, 6", f"v_add_u32 v{vT}, s{sT0}, v{vL}"]
    r += [ f"v_mul_u32_u24 v{vT+1}, 6554, v{vT}", f"v_lshrrev_b32 v{vT+1}, 16, v{vT+1}",
         f"v_mul_u32_u24 v{vT+2}, 10, v{vT+1}", f"v_sub_u32 v{vT}, v{vT}, v{vT+2}"]
    if swap:
        r += [f"v_lshrrev_b32 v{vT+2}, 1, v{vT+1}", f"v_xor_b32 v{vT+2}, v{vT+2}, v{vT+1}", f"v_and_b32 v{vT+2}, 4, v{vT+2}",
              f"v_mul_u32_u24 v{vT+2}, 3, v{vT+2}", f"v_xor_b32 v{vT+1}, v{vT+1}, v{vT+2}"]
    r += [f"v_mul_u32_u24 v{vT+1}, {pitch}, v{vT+1}", f"v_lshlrev_b32 v{vT}, 4, v{vT}", f"v_add3_u32 v{dst}, v{vT}, v{vT+1}, s{sT1}" if q else f"v_add_u32 v{dst}, v{vT}, v{vT+1}"]
    return r
def wvoff(*args):
    for i in wvoff_ins(*args): a(i)

XF = " nt" if OPT["xnt"] else ""
WFL = " nt" if OPT["wnt"] else ""
WOFL = " nt" if OPT["wont"] else ""
def dma_chunk(c, step):
    base = (step % 4) * SLOT
    ops = [([f"s_add_u32 m0, s{sX2K}, {base}"], f"buffer_load_dwordx4 v{vXD0}, {sr(SX,4)}, s{sXO+step} offen{XF} lds"),
           ([f"s_add_u32 m0, s{sX2K}, {base + 1024}"], f"buffer_load_dwordx4 v{vXD1}, {sr(SX,4)}, s{sXO+step} offen{XF} lds")]
    for q in range(3 if c == 0 else 2):
        if OPT["hackdma"] and q >= 1 and step >= 2: continue
        ops.append(([f"s_add_u32 m0, s{sW1K}, {base + 16384 + q*8192}"], f"buffer_load_dwordx4 v{vWD+q}, {sr(SW,4)}, s{sWK+step} offen{WFL} lds"))
    return ops
def dma_wq(c, u):
    base = WQ_UNIT[u] * UNIT
    ops = []
    for q in range(3 if c == 0 else 2):
        pre = []
        if q == 0: pre.append(f"s_sub_u32 s{sT3}, s{sWK+2*u}, 1280")
        elif q == 2 or c == 1: pre.append(f"s_sub_u32 s{sT3}, s{sWK+2*u+1}, 1280")
        else: pre += [f"s_cmp_lt_u32 s{sWV}, 2", f"s_cselect_b32 s{sT3}, s{sWK+2*u}, s{sWK+2*u+1}", f"s_sub_u32 s{sT3}, s{sT3}, 1280"]
        pre.append(f"s_add_u32 m0, s{sW1K}, {base + q*8192}")
        ops.append((pre, f"buffer_load_dwordx4 v{vWD+q}, {sr(SW,4)}, s{sT3} offen{WFL} lds"))
    return ops
sWOR = 86
def dma_wo(c, u):
    base = WO_BASE + u * 2 * UNIT
    ops = []
    if OPT["hackwo"]: return ops
    if u < OPT["worot"]:
        for q in range(3 if c == 0 else 2):
            pre = [f"s_lshl_b32 s{sT3}, s{sWOR+u}, 3", f"s_add_u32 s{sT3}, s{sT3}, s{sCUR}", f"s_add_u32 s{sT2}, s{sW1K}, s{sWOR+u}", f"s_add_u32 m0, s{sT2}, {WO_BASE + q*8192}"]
            ops.append((pre, f"buffer_load_dwordx4 v{vWO+q}, {sr(SO,4)}, s{sT3} offen{WOFL} lds"))
        return ops
    for q in range(3 if c == 0 else 2):
        pre = [f"s_add_u32 s{sT3}, s{sCUR}, {u*128*1280}", f"s_add_u32 m0, s{sW1K}, {base + q*8192}"]
        ops.append((pre, f"buffer_load_dwordx4 v{vWO+q}, {sr(SO,4)}, s{sT3} offen{WOFL} lds"))
    return ops
def emit_op(op, tag):
    if callable(op): return op()
    for p in op[0]: a(p)
    a(op[1], tag)

def spin_begin(name):
    a(f"s_mov_b32 s{sSPIN}, 0"); a.label(name)
def spin_check(name, done):
    a.vm = [t for t in a.vm if t != "~x"]
    a(f"s_add_u32 s{sSPIN}, s{sSPIN}, 1"); a(f"s_cmp_lt_u32 s{sSPIN}, {SPIN_MAX}"); a(f"s_cbranch_scc1 {name}")
    a.label(done)

def phi_ins(src, n, dst_list, tmp):
    r = []
    if OPT["hackphi"]:
        for d in dst_list:
            for i in range(0, n, 2): r.append(f"v_cvt_pk_bf16_f32 v{d+i//2}, v{src+i}, v{src+i+1}")
        return r
    for i in range(n): r.append(f"v_mul_f32 v{tmp+i}, s{sK}, v{src+i}")
    for i in range(n):
        r.append(f"v_exp_f32_e64 v{tmp+i}, v{tmp+i} clamp")
        r.append(f"v_max_f32 v{src+i}, s{sK+1}, v{src+i}")
    for i in range(n): r.append(f"v_add_f32 v{src+i}, v{src+i}, v{tmp+i}")
    for d in dst_list:
        for i in range(0, n, 2): r.append(f"v_cvt_pk_bf16_f32 v{d+i//2}, v{src+i}, v{src+i+1}")
    return r
def phi_pack(*args):
    for i in phi_ins(*args): a(i)
def pack_ins(src, dst):
    return [f"v_cvt_pk_bf16_f32 v{dst}, v{src}, v{src+1}", f"v_cvt_pk_bf16_f32 v{dst+1}, v{src+2}, v{src+3}"]
def pack(src, dst):
    for i in pack_ins(src, dst): a(i)
def mfma(d, A, B, C):
    c = C if isinstance(C, str) else vr(C, 4)
    a(f"v_mfma_f32_16x16x32_bf16 {vr(d,4)}, {vr(A,4)}, {vr(B,4)}, {c}")

def emit_side(x):
    if callable(x): x(); return 4
    if isinstance(x, list):
        for y in x: a(y)
        return max(1, sum(1 for y in x if y.startswith("v_")))
    a(x); return 1

def parse_pr(x):
    return {int(e.split(':')[0]): int(e.split(':')[1]) for e in str(x).split(',') if e}

def pipeline(N, reads, mf, bounds, boundary, L, Lb, bufs, newbufs={}, side={}, side_rate=3, prio=None):
    rd = 0; m = 0; tags = {}; bufof = {}; pend = []; every = 1; cnt = 0
    free = deque(bufs); bl = sorted(bounds); sq = deque()
    while m < N:
        can_read = rd < N and rd - m < L + 1 and len(free) > 0
        if can_read and rd in bounds and rd - m > Lb: can_read = False
        if can_read:
            if rd in bounds:
                for op in pend: emit_op(op[0], op[1])
                pend = list(boundary(bounds[rd]))
                nxt = [x for x in bl if x > rd]
                span = (nxt[0] if nxt else N) - rd
                every = max(1, (span - 1) // max(1, len(pend))); cnt = 0
            bufof[rd] = free.popleft()
            tags[rd] = reads(rd, bufof[rd]); rd += 1
        else:
            if prio and (m % prio[0]) in prio[1]: a(f"s_setprio {prio[1][m % prio[0]]}")
            a.wait(lg=tags[m])
            cnt += 1; op = None
            if pend and cnt % every == 0:
                op = pend.pop(0)
                if not callable(op[0]):
                    for p in op[0][0]: a(p)
            mf(m, bufof[m])
            free.append(bufof[m])
            for b_ in newbufs.get(m, []): free.append(b_)
            if op is not None:
                if callable(op[0]): op[0]()
                else: a(op[0][1], op[1])
            for x in side.get(m, []): sq.append(x)
            k = 0
            while sq and k < side_rate:
                k += emit_side(sq.popleft())
            m += 1
    for op in pend: emit_op(op[0], op[1])
    while sq: emit_side(sq.popleft())

def step_offsets_win(s):
    sizes = [int(x) for x in str(OPT["win"]).split(",")]
    w0 = 0
    for sz in sizes:
        if s < w0 + sz: break
        w0 += sz
    if sz == 1:
        a(f"s_add_u32 s{sWK+s}, s5, {s*245760}"); a(f"s_add_u32 s{sXO+s}, s4, {s*128}")
        return
    a(f"s_add_u32 s{sT3}, s{sCUR}, {s - w0}"); a(f"s_and_b32 s{sT3}, s{sT3}, {sz-1}"); a(f"s_add_u32 s{sT3}, s{sT3}, {w0}")
    a(f"s_mul_i32 s{sWK+s}, s{sT3}, 245760"); a(f"s_add_u32 s{sWK+s}, s{sWK+s}, s5")
    a(f"s_lshl_b32 s{sXO+s}, s{sT3}, 7"); a(f"s_add_u32 s{sXO+s}, s{sXO+s}, s4")

def touch_steps(c, s0, n, par, tag):
    a(f"s_lshr_b32 s3, s2, 3"); a(f"s_and_b32 s6, s3, 1"); a(f"s_cmp_eq_u32 s6, {par}"); a(f"s_cbranch_scc0 L_nt_{tag}")
    a(f"s_lshr_b32 s3, s3, 1")
    a(f"s_and_b32 s6, s2, 3")
    if c == 1:
        a(f"s_cmp_eq_u32 s{sWV}, 4"); a(f"s_cbranch_scc0 L_tw_{tag}")
    if n < 5 and c == 1: a(f"s_branch L_nt_{tag}")
    else:
        a(f"s_lshl_b32 s6, s6, 4"); a(f"s_add_u32 s6, s6, s3"); a(f"s_mul_i32 s6, s6, {32*1280}")
        a(f"s_lshl_b32 s7, s{sWV}, 7"); a(f"s_add_u32 s6, s6, s7"); a(f"s_add_u32 s6, s6, {s0*128}")
        a(f"v_mul_u32_u24 v86, 1280, v{vL}")
        a("s_mov_b32 exec_hi, 0")
        a(f"buffer_load_dword v87, v86, {sr(SX,4)}, s6 offen nt", "~t")
        a("s_mov_b32 exec_hi, -1")
        if c == 1: a(f"s_branch L_nt_{tag}")
    if c == 1:
        a.label(f"L_tw_{tag}")
        a(f"s_lshl_b32 s6, s6, 4"); a(f"s_add_u32 s6, s6, s3"); a(f"s_mul_i32 s6, s6, 3840"); a(f"s_add_u32 s6, s6, {s0*245760 + 1280}")
        a(f"s_sub_u32 s7, s{sWV}, 5"); a(f"s_mul_i32 s7, s7, 34")
        a(f"v_add_u32 v86, s7, v{vL}"); a(f"v_min_u32 v86, {20*n-1}, v86")
        a(f"v_mul_u32_u24 v87, 3277, v86"); a(f"v_lshrrev_b32 v87, 16, v87")
        a(f"v_mul_u32_u24 v88, 20, v87"); a(f"v_sub_u32 v86, v86, v88"); a(f"v_lshlrev_b32 v86, 7, v86")
        a(f"v_mul_u32_u24 v87, 245760, v87"); a(f"v_add_u32 v86, v86, v87")
        a("s_mov_b32 exec_hi, 3")
        a(f"buffer_load_dword v87, v86, {sr(SW,4)}, s6 offen", "~t")
        a("s_mov_b32 exec_hi, -1")
    a.label(f"L_nt_{tag}")

vTX, vTW, vTD = 79, 89, 95
sTXB, sTWB = 12, 13
def tc_setup(sx, sw):
    a(f"v_lshrrev_b32 v{vTX}, 1, v{vL}"); a(f"v_mul_u32_u24 v{vTX}, 1280, v{vTX}"); a(f"v_and_b32 v{vTW}, 1, v{vL}"); a(f"v_lshl_add_u32 v{vTX}, v{vTW}, 7, v{vTX}")
    a(f"v_mul_u32_u24 v{vTW}, 3277, v{vL}"); a(f"v_lshrrev_b32 v{vTW}, 16, v{vTW}"); a(f"v_mul_u32_u24 v{vTW}, {3840 - 2560}, v{vTW}")
    a(f"v_lshl_add_u32 v{vTW}, v{vL}, 7, v{vTW}")
    a(f"s_lshr_b32 s6, s2, 3"); a(f"s_and_b32 s7, s2, 3"); a("s_lshl_b32 s7, s7, 5"); a("s_add_u32 s7, s7, s6"); a(f"s_mul_i32 s{sx}, s7, 20480")
    a(f"s_mul_i32 s{sw}, s6, 15360"); a(f"s_add_u32 s{sw}, s{sw}, 1280")
def tc_issue(s0, sx, sw, tag="~t"):
    a(f"s_add_u32 s6, s{sx}, {s0*128}"); a(f"s_add_u32 s7, s{sw}, {s0*245760}")
    a("s_mov_b32 exec_hi, 0")
    a(f"buffer_load_dword v{vTD}, v{vTX}, {sr(SX,4)}, s6 offen", tag)
    a("s_mov_b32 exec_hi, 0xff")
    a(f"buffer_load_dword v{vTD}, v{vTW}, {sr(SW,4)}, s7 offen", tag)
    a("s_add_u32 s7, s7, 7680")
    a(f"buffer_load_dword v{vTD}, v{vTW}, {sr(SW,4)}, s7 offen", tag)
    a("s_mov_b32 exec_hi, -1")

TQN = [0]
sAP = 12
CURB = [0]
def touch_ax(c, what):
    a(f"s_lshl_b32 s3, s{sRT}, 3"); a(f"s_add_u32 s3, s3, s{sHG}")
    if what == "x":
        a(f"s_lshl_b32 s3, s3, 3"); a(f"s_add_u32 s3, s3, s{sWV}"); a("s_mul_i32 s3, s3, 2560")
        a(f"v_lshlrev_b32 v86, 7, v{vL}")
        a("s_mov_b32 s4, s14"); a("s_mov_b32 s5, s15"); a("s_mov_b32 s6, 2621440"); a("s_mov_b32 s7, 0x20000")
        a("s_mov_b64 exec, 0xfffff")
    else:
        a(f"s_mul_i32 s3, s3, 5"); a(f"s_min_u32 s4, s{sWV}, 4"); a(f"s_add_u32 s3, s3, s4"); a("s_mul_i32 s3, s3, 3840"); a("s_add_u32 s3, s3, 1280")
        a(f"v_lshlrev_b32 v86, 7, v{vL}")
        a(f"s_cmp_lt_u32 s{sWV}, 5"); a("s_cselect_b32 vcc_lo, 0xfffff, 1")
        a("s_mov_b32 s4, s100"); a("s_mov_b32 s5, s101"); a("s_mov_b32 s6, 2457600"); a("s_mov_b32 s7, 0x20000")
        a("s_mov_b32 exec_lo, vcc_lo"); a("s_mov_b32 exec_hi, 0")
    a(f"buffer_load_dword v95, v86, s[4:7], s3 offen")
    a("s_mov_b64 exec, -1")

def touch_qo(c):
    if OPT["tqonly"] and c == 1: return
    if OPT["eoff"] and CURB[0] == 0: return
    if OPT["ecpar"] >= 0:
        TQN[0] += 1
        a(f"s_add_u32 s3, s{sRT}, s{sHG}"); a(f"s_bitcmp1_b32 s3, 0"); a(f"s_cbranch_scc{1 - OPT['ecpar']} L_noq{TQN[0]}")
        a(f"s_lshl_b32 s3, s{sRT}, 2"); a(f"s_lshr_b32 s6, s{sHG}, 1"); a("s_add_u32 s3, s3, s6"); a(f"s_mul_i32 s3, s3, 100"); a(f"s_mul_i32 s6, s{sI}, 25"); a("s_add_u32 s3, s3, s6")
    else:
        a(f"s_lshl_b32 s3, s{sRT}, 3"); a(f"s_add_u32 s3, s3, s{sHG}"); a(f"s_mul_i32 s3, s3, 50"); a(f"s_mul_i32 s6, s{sI}, 13"); a("s_add_u32 s3, s3, s6")
    a(f"v_add_u32 v86, s3, v{vL}")
    if c == 0:
        a(f"v_mul_u32_u24 v87, 52429, v86"); a(f"v_lshrrev_b32 v87, 19, v87")
        a(f"v_mul_u32_u24 v88, 10, v87"); a(f"v_sub_u32 v86, v86, v88"); a(f"v_lshlrev_b32 v86, 7, v86")
        a(f"v_mul_u32_u24 v87, 3840, v87"); a(f"v_add_u32 v86, v86, v87")
    else:
        a(f"v_lshlrev_b32 v86, 7, v86")
    a(f"s_mov_b64 exec, {0x1fff if OPT['ecpar'] < 0 else 0x1ffffff}")
    if OPT["ecpar"] >= 0:
        a.ghost_cond["eq"] = [f"s_add_u32 s3, s{sRT}, s{sHG}", "s_and_b32 s3, s3, 1", f"s_cmp_eq_u32 s3, {OPT['ecpar']}"]
    a(f"buffer_load_dword v95, v86, {sr(SW if c == 0 else SO,4)}, 0 offen", "~eq" if OPT["ecpar"] >= 0 else None)
    if OPT["eoff"]:
        a(f"s_mov_b32 s4, s{sAP}"); a(f"s_mov_b32 s5, s{sAP+1}"); a(f"s_mov_b32 s6, {2457600 if c == 0 else 819200}"); a("s_mov_b32 s7, 0x20000")
        a(f"buffer_load_dword v95, v86, s[4:7], 0 offen")
    a("s_mov_b64 exec, -1")
    if OPT["ecpar"] >= 0: a.label(f"L_noq{TQN[0]}")

def prestore(c):
    a(f"s_lshl_b32 s3, s{sHG}, 11"); a(f"s_add_u32 s3, s3, s{sOB}"); a(f"s_add_u32 s3, s3, {c*1024}"); a("s_add_u32 s4, s3, 20480")
    a(f"s_lshl_b32 s5, s{sHG}, 9"); a(f"s_add_u32 s5, s5, s{sOB}"); a(f"s_add_u32 s5, s5, {16384 + c*256}"); a("s_add_u32 s6, s5, 20480")
    a(f"v_lshlrev_b32 v79, 4, v{vL}")
    a(f"buffer_store_dwordx4 v[80:83], v79, {sr(SS,4)}, s3 offen sc1")
    a(f"buffer_store_dwordx4 v[80:83], v79, {sr(SS,4)}, s4 offen sc1")
    a("s_mov_b64 exec, 0xffff")
    a(f"buffer_store_dwordx4 v[80:83], v79, {sr(SS,4)}, s5 offen sc1")
    a(f"buffer_store_dwordx4 v[80:83], v79, {sr(SS,4)}, s6 offen sc1")
    a("s_mov_b64 exec, -1")

ORDS = {
 "a": ["0213645789", "0142358679", "1302475689", "1053246978"],
 "b": ["0412385679", "1253049678", "2306145789", "3012745689"],
 "c": ["0123456789"] * 4,
 "d": ["0246135789", "0357124689", "1024683579", "1035792468"],
 "g": ["0213465789", "0132457689", "1024356879", "1023546798"],
 "h": ["0216345789", "0142835679", "1307245689", "1052934678"],
 "i": ["0213645789", "0142358679", "1302475689", "1053249678"],
 "j": ["0214365879", "0132547698", "1302456789", "1023456789"],
 "k": ["0321645789", "0145238679", "1203475689", "1054326978"],
 "l": ["0261345789", "0148235679", "1370245689", "1059234678"],
 "m": ["0316425789", "1047235689", "2150834679", "0125934678"],
 "n": ["0246135789", "0135724689", "1380245679", "1029345678"],
 "o": ["0213645789", "0142835679", "1302745689", "1053294678"],
 "p": ["0246135789", "0158234679", "1370245689", "1029345678"],
 "q": ["0245136789", "0136782459", "1302456789", "1023945678"],
 "r": ["0247135689", "0135824679", "1369024578", "1023456789"],
 "s": ["0241635789", "0135274689", "1308245679", "1023945678"],
 "t": ["0357124689", "1046235789", "2180345679", "0129345678"],
 "u": ["0234561789", "0167823459", "1023945678", "1023456789"],
 "v": ["0241356789", "0126834579", "1350246789", "1037924568"],
 "w": ["0241356789", "0126348579", "1350246789", "1037294568"],
 "x": ["0241635789", "0126345789".replace("6345", "7345").replace("789", "689"), "1350824679", "1032945678"],
 "y": ["0241356789", "0162834579", "1350246789", "1073924568"],
 "e": ["0231645789", "0145238679", "1320475689", "1054326978"],
}
sORD = 84
def step_offsets_ord(s):
    tabs = ORDS[OPT["ord"]]
    for t in tabs: assert sorted(t) == list("0123456789")
    if s == 0:
        a(f"s_add_u32 s{sCUR}, s3, s{sHG}"); a(f"s_and_b32 s{sCUR}, s{sCUR}, 3")
        f0 = sum(int(t[0]) << (4 * k) for k, t in enumerate(tabs))
        a(f"s_lshl_b32 s{sT1}, s{sCUR}, 2"); a(f"s_lshr_b32 s{sT3}, 0x{f0:x}, s{sT1}"); a(f"s_and_b32 s{sT3}, s{sT3}, 15")
        if OPT["ordoff"]:
            a(f"s_and_b32 s83, s2, 3"); a("s_mul_i32 s83, s83, 5"); a("s_add_u32 s83, s83, 1"); a("s_lshr_b32 s83, s83, 1")
    else:
        if s == 1:
            pk = [sum(int(ch) << (4 * k) for k, ch in enumerate(t[1:9])) for t in tabs]
            p9 = sum(int(t[9]) << (4 * k) for k, t in enumerate(tabs))
            a(f"s_mov_b32 s{sORD}, 0x{pk[0]:x}")
            for k in (1, 2, 3): a(f"s_cmp_eq_u32 s{sCUR}, {k}"); a(f"s_cselect_b32 s{sORD}, 0x{pk[k]:x}, s{sORD}")
            a(f"s_lshl_b32 s{sT1}, s{sCUR}, 2"); a(f"s_lshr_b32 s{sORD+1}, 0x{p9:x}, s{sT1}"); a(f"s_and_b32 s{sORD+1}, s{sORD+1}, 15")
        if s < 9: a(f"s_bfe_u32 s{sT3}, s{sORD}, 0x{(4 << 16) | (4 * (s - 1)):x}")
        else: a(f"s_mov_b32 s{sT3}, s{sORD+1}")
    if OPT["ordoff"]:
        a(f"s_add_u32 s{sT3}, s{sT3}, s83"); a(f"s_cmp_ge_u32 s{sT3}, 10"); a(f"s_cselect_b32 s{sT1}, 10, 0"); a(f"s_sub_u32 s{sT3}, s{sT3}, s{sT1}")
    a(f"s_mul_i32 s{sWK+s}, s{sT3}, 245760"); a(f"s_add_u32 s{sWK+s}, s{sWK+s}, s5")
    a(f"s_lshl_b32 s{sXO+s}, s{sT3}, 7"); a(f"s_add_u32 s{sXO+s}, s{sXO+s}, s4")

def step_offsets(s):
    if OPT["ord"]: return step_offsets_ord(s)
    if OPT["win"]: return step_offsets_win(s)
    G = OPT["G"]; w0 = (s // G) * G
    if w0: a(f"s_add_u32 s{sT3}, s{sCUR}, {w0}"); src = sT3
    else: src = sCUR
    a(f"s_mul_i32 s{sWK+s}, s{src}, 245760"); a(f"s_add_u32 s{sWK+s}, s{sWK+s}, s5")
    a(f"s_lshl_b32 s{sXO+s}, s{src}, 7"); a(f"s_add_u32 s{sXO+s}, s{sXO+s}, s4")
    if G > 1 and s < 9:
        a(f"s_add_u32 s{sCUR}, s{sCUR}, 1"); a(f"s_cmp_eq_u32 s{sCUR}, {G}"); a(f"s_cselect_b32 s{sCUR}, 0, s{sCUR}")

sTCX, sTCW = 88, 89
def tc_start():
    f0 = OPT["tcpos"]
    a(f"s_cmp_lt_u32 s{sWV}, {OPT['tc0']}"); a("s_cbranch_scc0 L_notc0")
    a(f"s_mul_i32 s6, s{sWV}, 256"); a(f"s_add_u32 s{sT0}, s{sTCX}, s6"); a(f"s_mul_i32 s6, s{sWV}, {2*245760}"); a(f"s_add_u32 s{sT1}, s{sTCW}, s6")
    tc_issue(OPT["tcs"], sT0, sT1)
    a.label("L_notc0")

SCHED = {}
for ent in str(OPT["sched"]).split(","):
    if ent:
        p_, ks = ent.split(":"); SCHED[int(p_)] = [int(x) for x in ks.split(".")]
for p_, ks in SCHED.items():
    for k in ks: assert k - p_ <= 3 and k - p_ >= 1

def prologue():
    a.raw(f"; @launch grid=(256,1,1) block=(512,1,1) lds=163840")
    a.raw('.amdgcn_target "amdgcn-amd-amdhsa--gfx950"')
    a.raw(".text"); a.raw(f".globl {KNAME}"); a.raw(".p2align 8"); a.raw(f".type {KNAME},@function")
    a.label(KNAME)
    a("s_cmp_ge_u32 s2, 256")
    a("s_cbranch_scc1 L_end")
    a(f"s_bfe_u32 s{sB}, s2, 0x10002")
    a(f"s_mul_i32 s3, s{sB}, 24")
    a("s_add_u32 s76, s0, s3"); a("s_addc_u32 s77, s1, 0")
    if OPT["lean2"]:
        a(f"s_load_dwordx2 s[{SX}:{SX+1}], s[76:77], 0"); a(f"s_load_dwordx2 s[{SW}:{SW+1}], s[76:77], 8")
    else:
        a(f"s_load_dwordx4 s[{sM}:{sM+3}], s[76:77], 0")
        a("s_load_dwordx2 s[8:9], s[76:77], 16")
        a("s_load_dwordx4 s[12:15], s[0:1], 48")
        a("s_load_dwordx2 s[10:11], s[0:1], 64")
    a(f"v_lshrrev_b32 v{vT}, 6, v0")
    a(f"v_and_b32 v{vL}, 63, v0")
    a(f"v_readfirstlane_b32 s{sWV}, v{vT}")
    if OPT["stamps"]:
        a(f"v_mov_b32 v{vST}, 0"); a(f"s_memtime {sr(sTM,2)}"); a("s_memrealtime s[100:101]")
    a(f"v_lshrrev_b32 v{vT}, 3, v{vL}")
    a(f"v_lshrrev_b32 v{vT+1}, 4, v{vL}")
    a(f"v_xor_b32 v{vT+1}, v{vT+1}, v{vL}")
    a(f"v_and_b32 v{vT+1}, 7, v{vT+1}")
    a(f"v_mul_u32_u24 v{vT}, 1280, v{vT}")
    a(f"v_lshl_add_u32 v{vXD0}, v{vT+1}, 4, v{vT}")
    a(f"v_xor_b32 v{vXD1}, 64, v{vXD0}")
    a(f"v_add_u32 v{vXD1}, 10240, v{vXD1}")
    a(f"s_and_b32 s{sRT}, s2, 3"); a(f"s_lshl_b32 s{sRT}, s{sRT}, 2")
    a(f"s_bfe_u32 s3, s2, 0x20003"); a(f"s_add_u32 s{sRT}, s{sRT}, s3")
    a(f"s_lshr_b32 s{sHG}, s2, 5")
    a(f"s_lshr_b32 s{sC}, s{sWV}, 2")
    a(f"s_lshl_b32 s{sW1K}, s{sWV}, 10"); a(f"s_lshl_b32 s{sX2K}, s{sWV}, 11")
    G = OPT["G"]
    if OPT["ord"]: pass
    elif OPT["win"]: a(f"s_mov_b32 s{sCUR}, s3")
    elif G == 1: a(f"s_mov_b32 s{sCUR}, 0")
    elif G == 2: a(f"s_add_u32 s{sCUR}, s3, s{sHG}"); a(f"s_and_b32 s{sCUR}, s{sCUR}, 1")
    else:
        if OPT["rot2"]:
            a(f"s_mul_i32 s{sCUR}, s3, 5"); a(f"s_add_u32 s{sCUR}, s{sCUR}, 1"); a(f"s_lshr_b32 s{sCUR}, s{sCUR}, 1")
            a(f"s_add_u32 s{sCUR}, s{sCUR}, s{sHG}")
            if OPT["rot2"] == 1: a(f"s_lshr_b32 s{sT1}, s{sHG}, 2"); a(f"s_add_u32 s{sCUR}, s{sCUR}, s{sT1}")
            if OPT["rot2"] == 3: a(f"s_add_u32 s{sCUR}, s{sCUR}, s{sHG}"); a(f"s_add_u32 s{sCUR}, s{sCUR}, s{sHG}")
        else:
            a(f"s_lshl_b32 s{sCUR}, s3, 1"); a(f"s_add_u32 s{sCUR}, s{sCUR}, s{sHG}")
        if OPT["xrot"]: a(f"s_and_b32 s{sT1}, s2, 3"); a(f"s_add_u32 s{sCUR}, s{sCUR}, s{sT1}")
        for _ in range(3 if G == 5 or OPT['rot2'] == 3 else 1):
            a(f"s_cmp_ge_u32 s{sCUR}, {G}"); a(f"s_cselect_b32 s{sT1}, {G}, 0"); a(f"s_sub_u32 s{sCUR}, s{sCUR}, s{sT1}")
    a(f"s_lshl_b32 s4, s{sRT}, 3"); a(f"s_add_u32 s4, s4, s{sWV}"); a(f"s_mul_i32 s4, s4, 20480")
    a(f"s_mul_i32 s5, s{sHG}, 160"); a(f"s_add_u32 s5, s5, 1280")
    step_offsets(0)
    def cpf_addr():
        a("s_getpc_b64 s[6:7]")
        a.label(f"L_pc")
        a(f"s_sub_u32 s6, s6, L_pc-{KNAME}"); a("s_subb_u32 s7, s7, 0")
        a(f"s_lshr_b32 s3, s2, 3"); a(f"s_lshl_b32 s3, s3, 3"); a(f"s_add_u32 s3, s3, s{sWV}"); a("s_lshl_b32 s3, s3, 8")
        a(f"v_lshl_add_u32 v88, v{vL}, 7, s3")
        a(f"v_min_u32 v88, L_codeend-{KNAME}-4, v88")
        a(f"v_mov_b32 v87, s7")
        a(f"v_add_co_u32 v86, vcc, s6, v88")
        a(f"v_addc_co_u32 v87, vcc, 0, v87, vcc")
    def cpf_go():
        a("s_mov_b64 exec, 3"); a(f"global_load_dword v95, v[86:87], off"); a("s_mov_b64 exec, -1")
    LEAN = OPT["lean"]
    if not OPT["lean2"]:
        for q in range(1 if LEAN else 2): wvoff(vWD + q, q, 3840, True, 1280)
    a(f"s_mov_b32 s{SX+2}, 2621440"); a(f"s_mov_b32 s{SX+3}, 0x20000"); a(f"s_mov_b32 s{SW+2}, 2457600"); a(f"s_mov_b32 s{SW+3}, 0x20000")
    if OPT["codepf"] and not LEAN: cpf_addr()
    if OPT["tc0"]: tc_setup(sTCX, sTCW)
    a("s_waitcnt lgkmcnt(0)")
    if not OPT["lean2"]:
        a(f"s_mov_b32 s{SX}, s{sM}"); a(f"s_mov_b32 s{SX+1}, s{sM+1}"); a(f"s_mov_b32 s{SW}, s{sM+2}"); a(f"s_mov_b32 s{SW+1}, s{sM+3}")
    if OPT["codepf"] == 1 and not LEAN: cpf_go()
    if OPT["stamps"]:
        a(f"v_writelane_b32 v{vST}, s{sTM}, 0"); stamp("first")
    if OPT["tc0"] and OPT["tcpos"] == 0: tc_start()
    ops = dma_chunk(0, 0)
    if OPT["rv"]:
        def rvop(q):
            pre = []
            if q == 0:
                pre += [f"s_bitcmp1_b32 s{sCUR}, 0", f"s_cselect_b32 s6, 1280, 0", f"s_cselect_b32 s7, 10240, 0"]
                pre += [f"s_add_u32 s{sT3}, s{sWK}, s6", f"s_add_u32 s{sT2}, s{sW1K}, s7"]
            elif q == 1:
                pre += [f"s_bitcmp1_b32 s{sCUR}, 0", f"s_cselect_b32 s6, 1280, 0", f"s_cselect_b32 s7, 10240, 0"]
                pre += [f"s_add_u32 s{sT3}, s{sWK}, s6", f"s_add_u32 s{sT2}, s{sW1K}, s7", f"s_sub_u32 s{sT0}, s{sWK}, s6", f"s_sub_u32 s{sT1}, s{sW1K}, s7",
                        f"s_cmp_lt_u32 s{sWV}, 2", f"s_cselect_b32 s{sT3}, s{sT3}, s{sT0}", f"s_cselect_b32 s{sT2}, s{sT2}, s{sT1}"]
            else:
                pre += [f"s_sub_u32 s{sT3}, s{sWK}, s6", f"s_sub_u32 s{sT2}, s{sW1K}, s7"]
            pre.append(f"s_add_u32 m0, s{sT2}, {16384 + q*8192}")
            return (pre, f"buffer_load_dwordx4 v{vWD+q}, {sr(SW,4)}, s{sT3} offen lds")
        ops = ops[:2] + [rvop(q) for q in range(3)]
    if OPT["lean2"]:
        for op in ops[:2]: emit_op(op, "ch0")
        a("s_load_dwordx2 s[8:9], s[76:77], 16"); a("s_load_dwordx4 s[12:15], s[0:1], 48"); a("s_load_dwordx2 s[10:11], s[0:1], 64")
        wvoff(vWD, 0, 3840, True, 1280)
        emit_op(ops[2], "ch0")
    else:
        for op in ops[:3]: emit_op(op, "ch0")
    if LEAN:
        if OPT["codepf"] == 1: cpf_addr(); cpf_go()
        wvoff(vWD + 1, 1, 3840, True, 1280)
    emit_op(ops[3], "ch0")
    wvoff(vWD + 2, 2, 3840, True, 1280)
    a(f"s_cmp_eq_u32 s{sC}, 0"); a("s_cbranch_scc0 L_no5")
    emit_op(ops[4], "~c0")
    a.label("L_no5")
    if OPT["tc0"] and OPT["tcpos"] == 1: tc_start()
    if OPT["codepf"] == 2:
        if LEAN: cpf_addr()
        cpf_go()
    if OPT["stamps"]:
        a(f"v_writelane_b32 v{vST}, s100, 40")
    if OPT["lean2"]: a("s_waitcnt lgkmcnt(0)")
    srd(SS, 10, 11, WS_SIZE); srd(SG, 14, 15, 256)
    a(f"s_and_b32 s{sI}, s{sWV}, 3")
    a(f"s_or_b32 s3, s2, s{sWV}"); a("s_cmp_eq_u32 s3, 0"); a(f"s_cbranch_scc0 L_nn0")
    a(f"s_add_u32 s6, s10, {WS_E}"); a("s_addc_u32 s7, s11, 0")
    a(f"s_load_dword s{sN}, s[6:7], 0")
    a.label("L_nn0")
    if OPT["tbal"]: a(f"s_mul_i32 s7, s{sC}, 3"); a(f"s_xor_b32 s{sTI}, s{sI}, s7")
    else: a(f"s_mov_b32 s{sTI}, s{sI}")
    a(f"s_lshl_b32 s6, s{sHG}, 16"); a(f"s_lshl_b32 s7, s{sTI}, 9"); a(f"s_add_u32 s6, s6, s7")
    a(f"s_lshl_b32 s7, s{sC}, 11"); a("s_add_u32 s6, s6, s7")
    a(f"s_add_u32 s{sKVG}, s6, {WS_KV}")
    a(f"s_lshl_b32 s7, s{sRT}, 12"); a(f"s_add_u32 s{sKVP}, s{sKVG}, s7")
    a(f"s_lshl_b32 s6, s{sRT}, 3"); a(f"s_add_u32 s6, s6, s{sHG}"); a(f"s_mul_i32 s6, s6, 6144")
    a(f"s_mul_i32 s7, s{sC}, 3072"); a(f"s_add_u32 s{sHP}, s6, s7"); a(f"s_add_u32 s{sHP}, s{sHP}, {WS_HALO}")
    a(f"s_add_u32 s{sHG2}, s6, {WS_HALO - 8*6144}")
    a(f"v_mov_b32 v76, -1"); a(f"v_mov_b32 v77, -1"); a(f"v_lshlrev_b32 v78, 3, v{vL}")
    a(f"s_cmp_eq_u32 s{sB}, 0"); a(f"s_cbranch_scc0 L_preB")
    a(f"buffer_store_dwordx2 v[76:77], v78, {sr(SS,4)}, s{sKVP} offen sc1", "~preA")
    a(f"s_branch L_pred")
    a.label(f"L_preB")
    a(f"s_cmp_eq_u32 s{sI}, 3"); a(f"s_cbranch_scc0 L_pred")
    for k in range(5): a(f"buffer_store_dwordx2 v[76:77], v78, {sr(SS,4)}, s{sHP} offen offset:{k*512} sc1", "~preB")
    a.label(f"L_pred")
    step_offsets(1)
    for op in dma_chunk(0, 1)[:OPT["p1n"]]: emit_op(op, "ch1")
    stamp("issued")
    a(f"s_lshl_b32 s3, s{sB}, 1"); a(f"s_add_u32 s3, s3, s{sC}")
    a("s_cmp_eq_u32 s3, 1"); a("s_cbranch_scc1 L_path_01")
    a("s_cmp_eq_u32 s3, 2"); a("s_cbranch_scc1 L_path_10")
    a("s_cmp_eq_u32 s3, 3"); a("s_cbranch_scc1 L_path_11")

def prologue2(b, c):
    P = f"{b}{c}"
    if OPT["ea"]: touch_steps(c, 1, 5, 0, f"ea{P}")
    for s in range(2, 10): step_offsets(s)
    srd(SO, 8, 9, 819200); srd(SD, 12, 13, 5242880)
    CURB[0] = b
    if b == 1 and (OPT["eoff"] or OPT["axt"] > -2 or OPT["awt"] > -2):
        a(f"s_load_dwordx2 s[12:13], s[0:1], {8 if c == 0 else 16}"); a("s_load_dwordx2 s[14:15], s[0:1], 0")
        if OPT["awt"] > -2: a("s_load_dwordx2 s[100:101], s[0:1], 8")
        a("s_waitcnt lgkmcnt(0)")
        if OPT["axt"] == -1: touch_ax(c, "x")
        if OPT["awt"] == -1: touch_ax(c, "w")
    a(f"s_getreg_b32 s{sXCC}, hwreg(HW_REG_XCC_ID, 0, 3)")
    a(f"s_mul_i32 s{sCUR}, s{sHG}, 160")
    if P == "00":
        a(f"s_or_b32 s3, s2, s{sWV}"); a("s_cmp_eq_u32 s3, 0"); a(f"s_cbranch_scc0 L_nononce")
        a("s_waitcnt lgkmcnt(0)")
        a(f"s_add_u32 s6, s{sN}, 0x9e3779b0"); a("s_or_b32 s6, s6, 8"); a("s_andn2_b32 s6, s6, 7")
        a(f"v_mov_b32 v{vT}, s6"); a(f"v_mov_b32 v{vT+1}, 0"); a(f"s_mov_b32 s3, {WS_E}")
        a("s_mov_b64 exec, 1")
        a(f"buffer_store_dword v{vT}, v{vT+1}, {sr(SG,4)}, 0 offen sc1", "~n")
        a(f"buffer_store_dword v{vT}, v{vT+1}, {sr(SS,4)}, s3 offen sc1", "~n")
        a("s_mov_b64 exec, -1")
        a.label("L_nononce")
    a(f"v_and_b32 v{vT}, 15, v{vL}"); a(f"v_lshrrev_b32 v{vT+1}, 4, v{vL}")
    a(f"v_lshrrev_b32 v{vT+2}, 1, v{vT}"); a(f"v_xor_b32 v{vT+2}, v{vT+2}, v{vT+1}"); a(f"v_lshlrev_b32 v{vT+2}, 4, v{vT+2}")
    a(f"v_lshl_add_u32 v{vT+2}, v{vT}, 7, v{vT+2}")
    a(f"s_lshl_b32 s3, s{sI}, 12")
    a(f"v_add_u32 v{vXA0}, s3, v{vT+2}"); a(f"v_xor_b32 v{vXA1}, 64, v{vXA0}")
    a(f"v_lshrrev_b32 v{vT}, 5, v{vL}"); a(f"v_lshlrev_b32 v{vT}, 4, v{vT}")
    a(f"v_bfe_u32 v{vT+2}, v{vL}, 2, 3"); a(f"v_add_u32 v{vT}, v{vT}, v{vT+2}"); a(f"v_mul_u32_u24 v{vT}, 160, v{vT}")
    a(f"v_and_b32 v{vT+1}, 3, v{vL}")
    a(f"v_lshl_add_u32 v{vWA}, v{vT+1}, 3, v{vT}")
    if c: a(f"v_add_u32 v{vWA}, 80, v{vWA}")
    a(f"v_mad_u32_u24 v{vWE}, v{vT+1}, 40, v{vT}")
    a(f"v_add_u32 v{vWE}, {32 + (UNIT if c else 0)}, v{vWE}")
    a(f"s_lshl_b32 s3, s{sB}, 4"); a(f"s_add_u32 s3, s3, s{sRT}")
    a(f"s_lshl_b32 s4, s{sRT}, 3")
    boff = (1280 if AL else 128 * OT) * b
    a(f"s_lshl_b32 s5, s{sI}, 1"); a(f"s_add_u32 s5, s5, s4"); a(f"s_mul_i32 s{sOB}, s5, {OT}")
    if b: a(f"s_add_u32 s{sOB}, s{sOB}, {boff}")
    a(f"s_and_b32 s{sKH}, s{sWV}, 1")
    a(f"s_add_u32 s5, s4, s{sWV}"); a(f"s_mul_i32 s{sOUT}, s5, 40960")
    if b: a(f"s_add_u32 s{sOUT}, s{sOUT}, 1280")
    a(f"s_sub_u32 s5, s5, s{sKH}"); a(f"s_mul_i32 s{sOC}, s5, {OT}")
    a(f"s_mul_i32 s5, s{sKH}, {8*OP_}"); a(f"s_add_u32 s{sOC}, s{sOC}, s5")
    if b: a(f"s_add_u32 s{sOC}, s{sOC}, {boff}")
    a(f"s_mov_b32 s{sOE}, s{sOC}")
    a(f"s_add_u32 s{sOUT}, s{sOUT}, s{sCUR}")
    a(f"s_lshl_b32 s4, s3, 2")
    a(f"s_add_u32 s5, s4, s{sI}"); a(f"s_lshl_b32 s5, s5, 7"); a(f"s_lshl_b32 s6, s{sHG}, 3"); a(f"s_add_u32 s5, s5, s6")
    a(f"s_add_u32 s{sFP}, s5, {WS_FLAG + 4*c}")
    a(f"s_lshr_b32 s5, s{sWV}, 1"); a(f"s_add_u32 s5, s5, s4"); a(f"s_lshl_b32 s5, s5, 7"); a(f"s_add_u32 s5, s5, {WS_FLAG}")
    a(f"s_add_u32 s{sDFC}, s5, 64")
    a(f"s_lshl_b32 s7, s{sKH}, 2"); a(f"s_add_u32 s{sDFP}, s{sDFC}, s6"); a(f"s_add_u32 s{sDFP}, s{sDFP}, s7")
    a(f"s_lshl_b32 s7, s{sKH}, 5"); a(f"s_add_u32 s{sFC}, s5, s7")
    a(f"s_mov_b32 s{sK}, 0x{f2u(LOG2E):x}"); a(f"s_mov_b32 s{sK+1}, 0x{EPS:x}")
    for i in range(4): a(f"v_mov_b32 v{80+i}, s{sK+1}")
    a("v_mov_b32 v84, 0")
    if OPT["t0"]: touch_qo(c)
    if OPT["worot"]:
        R_ = OPT["worot"]
        a(f"s_and_b32 s3, s{sRT}, 3")
        for u in range(R_):
            a(f"s_add_u32 s4, s3, {u}")
            for _ in range(2): a(f"s_cmp_ge_u32 s4, {R_}"); a(f"s_cselect_b32 s5, {R_}, 0"); a("s_sub_u32 s4, s4, s5")
            a(f"s_mul_i32 s{sWOR+u}, s4, 20480")
    if OPT["dmap"]:
        dm = sum(int(ch) << (4 * k) for k, ch in enumerate(str(OPT["dmap"])[-4:]))
        a(f"s_and_b32 s3, s{sRT}, 3"); a(f"s_add_u32 s3, s3, s{sHG}"); a("s_and_b32 s3, s3, 3"); a("s_lshl_b32 s3, s3, 2")
        a(f"s_lshr_b32 s{sDUTY}, 0x{dm:x}, s3"); a(f"s_and_b32 s{sDUTY}, s{sDUTY}, 15")
    elif OPT["st0"] >= 0:
        a(f"s_lshr_b32 s3, s2, 3"); a(f"s_mul_i32 s4, s3, {(65536 + OPT['stn'] - 1) // OPT['stn']}"); a("s_lshr_b32 s4, s4, 16")
        a(f"s_mul_i32 s4, s4, {OPT['stn']}"); a(f"s_sub_u32 s{sDUTY}, s3, s4")
    if (OPT["tc"] or OPT["tcm"]) and not OPT["tc0"]: tc_setup(sTCX, sTCW)
    for q in range(3 if c == 0 else 2): wvoff(vWO + q, q, 1280, False, 64 * 1280)
    a(f"v_and_b32 v{vT}, 7, v{vL}"); a(f"v_lshlrev_b32 v{vT}, 7, v{vT}")
    a(f"s_mul_i32 s3, s{sHG}, {2*OP_}"); a(f"s_add_u32 s3, s3, {c*OP_}")
    a(f"v_add_u32 v{vT}, s3, v{vT}")
    a(f"v_bfe_u32 v{vT+1}, v{vL}, 3, 1"); a(f"v_mul_u32_u24 v{vT+1}, {OT}, v{vT+1}"); a(f"v_add_u32 v{vT}, v{vT}, v{vT+1}")
    a(f"v_and_b32 v{vT+1}, 1, v{vL}"); a(f"v_lshlrev_b32 v{vT+1}, 7, v{vT+1}")
    a(f"s_add_u32 s3, s3, 1024")
    a(f"v_add_u32 v{vT+1}, s3, v{vT+1}")
    a(f"v_bfe_u32 v{vT+2}, v{vL}, 1, 1"); a(f"v_mul_u32_u24 v{vT+2}, {OT}, v{vT+2}"); a(f"v_add_u32 v{vT+1}, v{vT+1}, v{vT+2}")
    set_mask("vcc", 0xffff)
    a(f"v_cndmask_b32 v{vPRE}, v{vT+1}, v{vT}, vcc")
    Z = 56; T1 = 57; T2_ = 58
    a(f"v_mov_b32 v{Z}, 0")
    if b == 0:
        a(f"v_and_b32 v{vGAD}, 31, v{vL}"); a(f"v_lshlrev_b32 v{vGAD}, 4, v{vGAD}"); a(f"v_lshrrev_b32 v{vT}, 5, v{vL}"); a(f"v_lshl_add_u32 v{vGAD}, v{vT}, 15, v{vGAD}")
        selm = lambda l: ((l >> 3) & 1) == ((l >> 4) & 1)
        a(f"v_mov_b32 v{T1}, 0x3f80"); a(f"v_mov_b32 v{T2_}, 0x3f800000")
        set_mask("vcc", lanemask(lambda l: l & 1)); a(f"v_cndmask_b32 v{T1}, v{T1}, v{T2_}, vcc")
        for r in range(4):
            set_mask("vcc", lanemask(lambda l: selm(l) and ((l & 7) >> 1) == r)); a(f"v_cndmask_b32 v{16+r}, v{Z}, v{T1}, vcc")
        a(f"v_mov_b32 v20, s{sK+1}"); a(f"v_mov_b32 v21, s{sK+1}"); a("v_mov_b32 v22, 0"); a("v_mov_b32 v23, 0")
        a(f"v_and_b32 v24, 15, v{vL}"); a("v_lshlrev_b32 v24, 1, v24"); a(f"v_and_b32 v25, 32, v{vL}"); a("v_add_u32 v24, v24, v25")
        a(f"v_bfe_u32 v25, v{vL}, 4, 1"); a("v_add_u32 v24, v24, v25"); a("v_lshlrev_b32 v24, 3, v24")
        a(f"v_lshlrev_b32 v25, 3, v{vL}"); a("v_xor_b32 v25, 256, v25"); a("v_mov_b32 v26, 0"); a("v_mov_b32 v27, 0")
        ncst = 3
    else:
        dd = lambda l, j: (l & 15) - 4 * (l >> 4) - j
        own = lambda l, j: dd(l, j) >= 0 and dd(l, j) % 2 == 0
        prv = lambda l, j: dd(l, j) <= -2 and dd(l, j) % 2 == 0
        a(f"v_mov_b32 v{T1}, 0x{f2u(-1e30):x}")
        for j in range(4):
            set_mask("vcc", lanemask(lambda l: own(l, j))); a(f"v_cndmask_b32 v{16+j}, v{T1}, v{Z}, vcc")
            set_mask("vcc", lanemask(lambda l: prv(l, j))); a(f"v_cndmask_b32 v{20+j}, v{T1}, v{Z}, vcc")
            a(f"v_mov_b32 v{24+j}, 0x3f803f80")
        a(f"v_mov_b32 v{T1}, 0xffff"); a(f"v_mov_b32 v{T2_}, 0xffff0000")
        set_mask("vcc", lanemask(lambda l: l & 1)); a(f"v_cndmask_b32 v{T1}, v{T1}, v{T2_}, vcc")
        for k, (fn, pr) in enumerate(((prv, 0), (prv, 1), (own, 0), (own, 1))):
            set_mask("vcc", lanemask(lambda l: fn(l, 2 * pr + (l & 1)))); a(f"v_cndmask_b32 v{28+k}, v{Z}, v{T1}, vcc")
        ncst = 4
    a(f"v_lshlrev_b32 v{vT}, 4, v{vL}"); a(f"v_add_u32 v{vT}, {CST}, v{vT}")
    for k in range(ncst): a(f"ds_write_b128 v{vT}, {vr(16+4*k,4)} offset:{k*1024}")
    a.wait(lg="all")

def path(b, c):
    P = f"{b}{c}"; A_ = (b == 0)
    FB = A_ and OPT["fewb"]
    WQ_UNIT[:] = [8, 10, 12, 0, 2] if FB else [8, 10, 12, 0, 14]
    a.label(f"L_path_{P}")
    pstart = len(a.lines)
    a.vm = [("ch0" if (t == "~c0" and c == 0) else t) for t in a.vm]
    a.vm = [t for t in a.vm if not (t == "~preA" and b == 1) and not (t == "~preB" and b == 0) and not (t == "~c0")]
    a.vm = [{"~preA": "preA", "~preB": "~i3pre"}.get(t, t) for t in a.vm]
    a(f"s_cmp_eq_u32 s{sI}, 0"); a(f"s_cselect_b32 s{sHV}, s{sRT}, 0")
    prologue2(b, c)
    vN0, vN1 = 84, 85
    def w0_begin(tag): a(f"s_cmp_eq_u32 s{sWV}, 0"); a(f"s_cbranch_scc0 L_{tag}_{P}")
    def w0_end(tag): a.label(f"L_{tag}_{P}")
    def nonce_load():
        w0_begin("nl")
        a(f"v_mov_b32 v{vN0}, 0")
        a(f"buffer_load_dword v{vN1}, v{vN0}, {sr(SG,4)}, 0 offen sc1", "~w0nonce")
        w0_end("nl")
    def nonce_check():
        w0_begin("nc")
        a.wait(vm="~w0nonce", keep=True)
        a(f"v_readfirstlane_b32 s{sN}, v{vN1}")
        a(f"s_cmp_lg_u32 s{sN}, 0"); a(f"s_cbranch_scc1 L_nok_{P}")
        spin_begin(f"L_nsp_{P}")
        a(f"buffer_load_dword v{vN1}, v{vN0}, {sr(SG,4)}, 0 offen sc1", "~x"); a("s_waitcnt vmcnt(0)")
        a(f"v_readfirstlane_b32 s{sN}, v{vN1}")
        a(f"s_cmp_lg_u32 s{sN}, 0"); a(f"s_cbranch_scc1 L_nok_{P}")
        spin_check(f"L_nsp_{P}", f"L_nok_{P}")
        a(f"s_lshl_b32 s3, s{sB}, 4"); a(f"s_add_u32 s3, s3, s{sRT}"); a(f"s_lshl_b32 s3, s3, 3"); a(f"s_add_u32 s3, s3, s{sHG}")
        a(f"s_lshl_b32 s3, s3, 7"); a(f"s_add_u32 s3, s3, {WS_RDY}")
        a(f"s_or_b32 s4, s{sN}, s{sXCC}")
        a(f"v_mov_b32 v{vN1}, s4")
        a("s_mov_b64 exec, 1")
        a(f"buffer_store_dword v{vN1}, v{vN0}, {sr(SS,4)}, s3 offen sc1", "~w0st")
        a("s_mov_b64 exec, -1")
        w0_end("nc")
    def rdy_load():
        w0_begin("rl")
        a(f"s_lshl_b32 s3, s{sB}, 4"); a(f"s_add_u32 s4, s3, s{sRT}"); a(f"s_lshl_b32 s4, s4, 3")
        a(f"v_add_u32 v{vN0}, s4, v{vL}")
        if A_:
            a(f"s_lshl_b32 s5, s3, 3"); a(f"s_add_u32 s5, s5, s{sHG}"); a(f"s_sub_u32 s5, s5, 64")
            a(f"v_lshl_add_u32 v{vN1}, v{vL}, 3, s5")
        else:
            a(f"s_max_u32 s5, s{sRT}, 1"); a(f"s_sub_u32 s5, s5, 1"); a(f"s_add_u32 s5, s5, s3"); a(f"s_lshl_b32 s5, s5, 3"); a(f"s_add_u32 s5, s5, s{sHG}")
            a(f"v_mov_b32 v{vN1}, s5")
        set_mask(sM, 0xff)
        a(f"v_cndmask_b32_e64 v{vN0}, v{vN1}, v{vN0}, {sr(sM,2)}")
        a(f"v_lshlrev_b32 v{vN0}, 7, v{vN0}")
        a(f"s_mov_b32 s3, {WS_RDY}")
        a(f"s_mov_b64 exec, {0xffffff if A_ else 0x1ff}")
        a(f"buffer_load_dword v{vN1}, v{vN0}, {sr(SS,4)}, s3 offen sc1", "~w0rdy")
        a("s_mov_b64 exec, -1")
        w0_end("rl")
    def rdy_check():
        em = 0xffffff if A_ else 0x1ff
        w0_begin("rc")
        a.wait(vm="~w0rdy", keep=True)
        def test():
            a(f"v_and_b32 v{vN1+1}, -8, v{vN1}")
            a(f"s_mov_b64 exec, {em}")
            a(f"v_cmp_ne_u32 vcc, s{sN}, v{vN1+1}")
            a("s_mov_b64 exec, -1")
            a(f"s_cbranch_vccz L_rok_{P}")
        test()
        spin_begin(f"L_rsp_{P}")
        a(f"s_mov_b32 s3, {WS_RDY}")
        a(f"s_mov_b64 exec, {em}")
        a(f"buffer_load_dword v{vN1}, v{vN0}, {sr(SS,4)}, s3 offen sc1", "~x"); a("s_waitcnt vmcnt(0)")
        test()
        spin_check(f"L_rsp_{P}", f"L_rok_{P}")
        a(f"s_or_b32 s3, s{sN}, s{sXCC}")
        a("s_mov_b64 exec, 0xff")
        a(f"v_cmp_ne_u32 vcc, s3, v{vN1}")
        a("s_mov_b64 exec, -1")
        a(f"s_cmp_eq_u32 vcc_lo, 0")
        a(f"s_cselect_b32 s3, {0 if OPT['force_slow'] else 1}, 0")
        a(f"s_or_b32 s3, s3, s{sN}")
        a(f"v_mov_b32 v{vN1}, s3"); a(f"v_mov_b32 v{vN0}, {BCAST}")
        sl = list(a.lg)
        a(f"ds_write_b32 v{vN0}, v{vN1}")
        a.lg = sl
        w0_end("rc")
    def bcast_read():
        a(f"v_mov_b32 v{vN0}, {BCAST}")
        a(f"ds_read_b32 v{vN1}, v{vN0}", "bc")
    def bcast_use():
        a.wait(lg="bc")
        a(f"v_readfirstlane_b32 s3, v{vN1}")
        a(f"s_and_b32 s{sFAST}, s3, 1"); a(f"s_andn2_b32 s{sN}, s3, 7")
    def touch():
        a(f"s_mul_i32 s3, s{sI}, 50"); a(f"v_add_u32 v86, s3, v{vL}"); a(f"s_lshr_b32 s4, s2, 3")
        if c == 0:
            a(f"v_mul_u32_u24 v87, 6554, v86"); a(f"v_lshrrev_b32 v87, 16, v87")
            a(f"v_mul_u32_u24 v88, 10, v87"); a(f"v_sub_u32 v86, v86, v88"); a(f"v_lshlrev_b32 v86, 7, v86")
            a(f"v_mul_u32_u24 v87, 3840, v87"); a(f"v_add_u32 v86, v86, v87"); a(f"s_mul_i32 s4, s4, {20*3840}")
        else:
            a(f"v_lshlrev_b32 v86, 7, v86"); a(f"s_mul_i32 s4, s4, 25600")
        a("s_mov_b32 exec_hi, 0x3ffff")
        a(f"buffer_load_dword v87, v86, {sr(SW if c == 0 else SO,4)}, s4 offen")
        a("s_mov_b32 exec_hi, -1")
    def opreload():
        a("s_mov_b64 exec, 0xfffff")
        a(f"buffer_load_dword v95, v{vPRE}, {sr(OS,4)}, s{sOB} offen{['', ' sc1', ' nt'][OPT['pnt']]}")
        a("s_mov_b64 exec, 1")
        a(f"buffer_load_dword v95, off, {sr(SS,4)}, s{sFC}")
        a("s_mov_b64 exec, -1")

    def xcd_touch(kind):
        a(f"s_and_b32 s3, s{sRT}, 3"); a(f"s_add_u32 s4, s3, s{sHG}"); a("s_bitcmp1_b32 s4, 1"); a(f"s_cbranch_scc0 L_nxt{kind}_{P}")
        a("s_and_b32 s4, s4, 1"); a("s_lshl_b32 s3, s3, 2"); a("s_add_u32 s3, s3, s4"); a(f"s_lshr_b32 s4, s{sHG}, 2"); a("s_lshl_b32 s4, s4, 1"); a("s_add_u32 s3, s3, s4")
        a("s_mul_i32 s3, s3, 400"); a(f"s_mul_i32 s4, s{sWV}, 50"); a("s_add_u32 s3, s3, s4")
        a(f"v_add_u32 v86, s3, v{vL}")
        if kind == "q":
            a(f"v_mul_u32_u24 v87, 52429, v86"); a(f"v_lshrrev_b32 v87, 19, v87")
            a(f"v_mul_u32_u24 v88, 10, v87"); a(f"v_sub_u32 v86, v86, v88"); a(f"v_lshlrev_b32 v86, 7, v86")
            a(f"v_mul_u32_u24 v87, 3840, v87"); a(f"v_add_u32 v86, v86, v87")
        else:
            a(f"v_lshlrev_b32 v86, 7, v86")
        a("s_mov_b32 exec_hi, 0x3ffff")
        a.ghost_cond["x2"] = [f"s_add_u32 s3, s{sRT}, s{sHG}", "s_bitcmp1_b32 s3, 1"]
        a(f"buffer_load_dword v95, v86, {sr(SW if kind == 'q' else SO,4)}, 0 offen", "~x2")
        a("s_mov_b32 exec_hi, -1")
        a.label(f"L_nxt{kind}_{P}")
    def fix_wd_for_q():
        if c == 0:
            a(f"s_cmp_lt_u32 s{sWV}, 2"); a(f"s_cselect_b32 s3, 0, 1280")
            a(f"v_subrev_u32 v{vWD+1}, s3, v{vWD+1}"); a(f"v_subrev_u32 v{vWD+2}, 1280, v{vWD+2}")
        else:
            a(f"v_subrev_u32 v{vWD+1}, 1280, v{vWD+1}")

    def acc1(t, rt): return ACC1 + (t * 2 + rt) * 4
    Tor = [not A_, not A_, False, False, (not A_) and c == 0]
    eps1 = [A_, A_, False, False, A_ and c == 0]
    items1 = [(sg, t) for sg in range(18) for t in range(5)] + [(18, 0), (18, 4), (18, 1), (19, 0), (19, 4), (19, 1), (18, 2), (18, 3), (19, 2), (19, 3)]
    seenx = set()
    def reads(n, w):
        sg, t = items1[n]; s = sg & 1; tg = []
        if sg not in seenx:
            seenx.add(sg)
            for rt in range(2): tg.append(a(f"ds_read_b128 {vr(X(sg,rt),4)}, v{vXA1 if s else vXA0} offset:{rt*2048}"))
        for h in range(2):
            if OPT["hackport"] in (1, 2) and t == 4 and sg > 0: continue
            if OPT["hackport"] == 4 and t in (1, 3, 4) and sg > 0: continue
            off = 16384 + s * 5120 + h * 1280
            if t < 4: tg.append(a(f"ds_read_b64_tr_b16 {vr(w+2*h,2)}, v{vWA} offset:{off + (UNIT if t >= 2 else 0) + 40*(t&1)}"))
            else: tg.append(a(f"ds_read_b64_tr_b16 {vr(w+2*h,2)}, v{vWE} offset:{off}"))
        return tg
    def mf(n, w):
        sg, t = items1[n]
        if OPT["hackport"] in (1, 3) and t == 4 and sg > 0: return
        for rt in range(2):
            C = acc1(t, rt) if sg else (80 if eps1[t] else "0")
            if Tor[t]: mfma(acc1(t, rt), w, X(sg, rt), C)
            else: mfma(acc1(t, rt), X(sg, rt), w, C)
    R = OPT["rdy_at"]
    def bnd1(ch):
        if ch > 0:
            d = SLOT if ch % 4 else -3 * SLOT
            for r in (vXA0, vXA1, vWA, vWE): a(f"v_add_u32 v{r}, {d}, v{r}")
        a.wait(vm=f"ch{ch}", lg="all" if (ch and OPT["LA"] == 3) or ch == 9 or any(k - ch >= 3 for k in SCHED.get(ch, [])) and ch else None)
        a("s_barrier")
        stamp(f"b{ch}")
        ops = []
        if c == 0:
            if ch == 0: ops.append((nonce_load, None))
            if ch == 1: ops.append((nonce_check, None))
            if ch == R: ops.append((rdy_load, None))
            if ch == R + 2: ops.append((rdy_check, None))
        if ch == R + 3: ops.append((bcast_read, None))
        if OPT["LA"] == 3:
            if ch == 0 and OPT["pro"] < 3: ops += [(op, "ch2") for op in dma_chunk(c, 2)]
            if ch + 3 <= 9: ops += [(op, f"ch{ch+3}") for op in dma_chunk(c, ch + 3)]
        elif OPT["sched"]:
            if ch == 0: ops += [(op, "ch1") for op in dma_chunk(c, 1)[OPT["p1n"]:]]
            for k in SCHED.get(ch, []): ops += [(op, f"ch{k}") for op in dma_chunk(c, k)]
        else:
            if ch == 0: ops += [(op, "ch1") for op in dma_chunk(c, 1)[OPT["p1n"]:]]
            if ch + 2 <= 9: ops += [(op, f"ch{ch+2}") for op in dma_chunk(c, ch + 2)]
        if ch == R + 3: ops.append((bcast_use, None))
        if ch == OPT["tq"]: ops.append((touch, None))
        if ch == OPT["eb"]: ops.insert(0, (lambda: touch_steps(c, 6, 4, 1, f"eb{P}"), None))
        if ch == OPT["eb"] + 100 or (OPT["eb"] >= 100 and ch == OPT["eb"] - 100): ops.append((lambda: touch_steps(c, 6, 4, 1, f"eb{P}"), None))
        if ch == OPT["ec"] and not (OPT["st0"] >= 0 and OPT["stq"]): ops.append((lambda: touch_qo(c), None))
        if OPT["tc"]:
            for ent in str(OPT["tc"]).split(","):
                per, st = (int(x) for x in ent.split(":"))
                if per == ch and c == OPT["tcw"] >> 2:
                    def tcl(st=st):
                        a(f"s_cmp_eq_u32 s{sWV}, {OPT['tcw']}"); a(f"s_cbranch_scc0 L_ntc{st}_{P}")
                        tc_issue(st, sTCX, sTCW)
                        a.label(f"L_ntc{st}_{P}")
                    ops.append((tcl, None))
        if OPT["tcm"] and c == 0:
            per, sts = str(OPT["tcm"]).split(":")
            if int(per) == ch:
                def tcm():
                    for w_, st in enumerate(int(x) for x in sts.split(".")):
                        a(f"s_cmp_eq_u32 s{sWV}, {w_ + 1}"); a(f"s_cbranch_scc0 L_tcm{w_}_{P}")
                        tc_issue(st, sTCX, sTCW)
                        a.label(f"L_tcm{w_}_{P}")
                ops.append((tcm, None))
        if ch == OPT["xw"]: ops.append((lambda: xcd_touch("w"), None))
        if ch == OPT["xq"]: ops.append((lambda: xcd_touch("q"), None))
        if b == 1 and ch == OPT["axt"]: ops.insert(0, (lambda: touch_ax(c, "x"), None))
        if b == 1 and ch == OPT["awt"]: ops.insert(0, (lambda: touch_ax(c, "w"), None))
        if ch == OPT["prel1"]: ops.append((opreload, None))
        if OPT["st0"] >= 0 and 0 <= ch - OPT["st0"] < OPT["stn"]:
            def duty(k=ch - OPT["st0"]):
                a(f"s_cmp_eq_u32 s{sDUTY}, {k}"); a(f"s_cbranch_scc0 L_nd{k}_{P}")
                n0 = len(a.vm)
                if OPT["stq"]: touch_qo(c)
                if OPT["stp"]: opreload()
                a.vm = a.vm[:n0] + [f"~d{k}" for _ in a.vm[n0:]]
                a.ghost_cond[f"d{k}"] = [f"s_cmp_eq_u32 s{sDUTY}, {k}"]
                a.label(f"L_nd{k}_{P}")
            ops.append((duty, None))
        if ch == OPT["pst"]: ops.append((lambda: prestore(c), None))
        if OPT["LA"] == 3:
            if ch == 7: ops += [(fix_wd_for_q, None)] + [(op, "wq0") for op in dma_wq(c, 0)]
            if ch == 8: ops += [(op, f"wq{u}") for u in (1, 2) for op in dma_wq(c, u)]
            if ch == 9: ops += [(op, f"wq{u}") for u in (3, 4) for op in dma_wq(c, u)]
        else:
            if ch == 8: ops += [(fix_wd_for_q, None)] + [(op, "wq0") for op in dma_wq(c, 0)]
            if ch == 9: ops += [(op, f"wq{u}") for u in (1, 2) for op in dma_wq(c, u)]
        return ops
    hA, hB = 2 * c, 2 * c + 1
    gm = lambda h: lanemask(lambda l: (l >> 4) == h)
    half = lanemask(lambda l: (l >> 5) == c)
    pipeline(100, reads, mf, {10 * ch: ch for ch in range(10)}, bnd1, OPT["L"], OPT["Lb"], [WF + 4 * k for k in range(5)], prio=(10, parse_pr(OPT["pr1"])) if c == 1 else None)
    if c == 1 and OPT["prep"] >= 0: a(f"s_setprio {OPT['prep']}")
    stamp("p1end")

    vL16, vL8 = vXA0, vXA1
    a(f"v_lshlrev_b32 v{vL16}, 4, v{vL}"); a(f"v_lshlrev_b32 v{vL8}, 3, v{vL}")
    a(f"v_add_u32 v{vWA}, {WQ_UNIT[0]*UNIT - SLOT}, v{vWA}")
    a(f"v_add_u32 v{vWE}, {WQ_UNIT[0]*UNIT - SLOT - (UNIT if c else 0)}, v{vWE}")
    WD = OPT["wodef"]; assert WD >= 2 and OPT["LA"] == 2
    WOA = {u + WD: [u] for u in range(5) if u + WD <= 4}
    if OPT["woA"]:
        WOA = {int(e.split(":")[0]): [int(x) for x in e.split(":")[1].split(".")] for e in OPT["woA"].split(",")}
        for u_, ks in WOA.items():
            for k in ks: assert u_ >= (0, 1, 3, 3, 3)[k]
    if FB: late_wo = [op for u in range(5) if not any(u in v for v in WOA.values()) for op in dma_wo(c, u)]
    else: late_wo = [op for u in range(5) if u + WD > 4 for op in dma_wo(c, u)]
    nq = 3 if c == 0 else 2
    def late(k, last=False):
        for _ in range(k):
            keep_ = nq * OPT["woaft"] if (last or FB) else nq * max(1, OPT["woaft"])
            if last == 2: keep_ = 0
            if len(late_wo) > keep_: emit_op(late_wo.pop(0), "wo")
    if A_:
        KAa, KAb, VBa, VBb, EO = 56, 60, 64, 68, 72
        TMP = 76
        a(f"s_lshl_b32 s3, s{sWV}, 12"); a(f"v_add_u32 v{vT}, s3, v{vL16}")
        a(f"v_add_u32 v{vT+1}, s{sW1K}, v{vL16}"); a(f"v_add_u32 v{vT+1}, {EE_A2}, v{vT+1}")
        phi_pack(acc1(0, 0), 8, [KAa], TMP)
        a(f"ds_write_b128 v{vT}, {vr(KAa,4)} offset:{OPX}")
        if c == 0: phi_pack(acc1(4, 0), 8, [EO], TMP)
        else: pack(acc1(4, 0), EO); pack(acc1(4, 1), EO + 2)
        a(f"ds_write_b128 v{vT+1}, {vr(EO,4)}")
        phi_pack(acc1(1, 0), 8, [KAb], TMP)
        a(f"ds_write_b128 v{vT}, {vr(KAb,4)} offset:{OPX + 1024}")
        for t, d in ((2, VBa), (3, VBb)):
            pack(acc1(t, 0), d); pack(acc1(t, 1), d + 2)
            a(f"ds_write_b128 v{vT}, {vr(d,4)} offset:{OPX + t*1024}")
        a(f"v_add_u32 v{vT}, {OPX + c*16384}, v{vL16}")
        a(f"v_add_u32 v{vT+1}, {EE_A2}, v{vL16}")
        a(f"v_and_b32 v{vT+2}, 0x31, v{vL}"); a(f"v_bfe_u32 v{vT+3}, v{vL}, 2, 2")
        a(f"v_lshl_add_u32 v{vT+2}, v{vT+3}, 1, v{vT+2}"); a(f"v_lshlrev_b32 v{vT+2}, 4, v{vT+2}")
        a(f"v_add_u32 v{vT+2}, {EE_A2 + 4096 + 128*c}, v{vT+2}")
        a(f"v_mov_b32 v89, 0x3f803f80")
        for i in range(4): a(f"v_mov_b32 v{80+i}, s{sK+1}")
    else:
        KA = {("a", 0): 56, ("b", 0): 60, ("a", 1): 64, ("b", 1): 68, ("a", -1): 96, ("b", -1): 100}
        Va, Vb, Ev = 72, 78, 84
        for rt in (1, 0):
            pack(acc1(0, rt), KA[("a", rt)]); pack(acc1(1, rt), KA[("b", rt)])
            if c == 0: pack(acc1(4, rt), KA[("a", rt)] + 2); pack(acc1(4, rt), KA[("b", rt)] + 2)
            else: pack(acc1(4, rt), Ev + 2 + 2 * rt)
            pack(acc1(2, rt), Va + 2 + 2 * rt); pack(acc1(3, rt), Vb + 2 + 2 * rt)
        Eown = [KA[("a", 0)] + 2, KA[("a", 1)] + 2] if c == 0 else [Ev + 2, Ev + 4]
        xs = [KA[("a", 1)], KA[("b", 1)], Va + 4, Vb + 4, Eown[1], Eown[0]]
        a(f"s_mul_i32 s3, s{sWV}, 3072")
        a(f"v_add_u32 v{vT}, s3, v{vL8}")
    a.wait(vm="wq0", lg="all")
    a("s_barrier")
    stamp("E1")
    if A_:
        R0 = 16
        D0, D1, D2 = 84, 72, 76
        def rd(dst, areg, off): return a(f"ds_read_b128 {vr(dst,4)}, v{areg} offset:{off}")
        def evb(dst):
            for j in range(4): a(f"v_cndmask_b32 v{dst+j}, v{dst+j}, v89, vcc")
        a(f"s_cmp_lt_u32 s{sTI}, 2"); a(f"s_cbranch_scc0 L_t23_{P}")
        a(f"s_lshl_b32 s3, s{sTI}, 10"); a(f"v_add_u32 v{vT}, s3, v{vT}")
        a.lg = []
        tg = []
        for g in range(4): tg.append([rd(R0 + 8 * g, vT, g * 4096), rd(R0 + 8 * g + 4, vT, g * 4096 + 2048)])
        for g in range(4):
            a.wait(lg=tg[g]); mfma(D0, R0 + 8 * g, R0 + 8 * g + 4, D0 if g else "0")
        a("s_nop 7")
        a(f"s_branch L_tdone_{P}")
        a.label(f"L_t23_{P}")
        set_mask("vcc", 0x3333333333333333)
        a(f"s_cmp_eq_u32 s{sTI}, 2"); a(f"s_cbranch_scc0 L_t3_{P}")
        a.lg = []
        tg = []
        for g in range(4): tg.append([rd(R0 + 12 * g, vT + 2, g * 1024), rd(R0 + 12 * g + 4, vT, g * 4096), rd(R0 + 12 * g + 8, vT, g * 4096 + 1024)])
        for g in range(4):
            a.wait(lg=tg[g]); evb(R0 + 12 * g)
            mfma(D0, R0 + 12 * g + 4, R0 + 12 * g, D0 if g else "0")
            mfma(D1, R0 + 12 * g + 8, R0 + 12 * g, D1 if g else "0")
        set_mask("vcc", 0x11dd11dd11dd11dd)
        for j in range(4): a(f"v_cndmask_b32 v{D0+j}, v{D1+j}, v{D0+j}, vcc")
        a(f"s_branch L_tdone_{P}")
        a.label(f"L_t3_{P}")
        a.lg = []
        tg = []
        B0 = [16, 32, 48, 16]
        def rd3(g): return [rd(B0[g], vT + 2, g * 1024), rd(B0[g] + 4, vT + 1, g * 1024), rd(B0[g] + 8, vT, g * 4096 + 2048), rd(B0[g] + 12, vT, g * 4096 + 3072)]
        for g in range(3): tg.append(rd3(g))
        for g in range(4):
            a.wait(lg=tg[g]); evb(B0[g])
            mfma(D0, B0[g] + 4, B0[g] + 8, D0 if g else "0")
            mfma(D1, B0[g] + 4, B0[g] + 12, D1 if g else "0")
            mfma(D2, B0[g] + 4, B0[g], D2 if g else "0")
            if g == 0: tg.append(rd3(3))
        set_mask("vcc", gm(hA))
        for j in range(4): a(f"v_cndmask_b32 v{D0+j}, v{D1+j}, v{D0+j}, vcc")
        for j in range(4):
            if c == 0: a(f"v_permlane32_swap_b32 v{D0+j}, v{D2+j}")
            else: a(f"v_permlane32_swap_b32 v{D2+j}, v{D0+j}")
        a.label(f"L_tdone_{P}")
        a.lg = []
        pack(D0, 88)
        a(f"v_min_u32 v{D0}, -2, v88"); a(f"v_min_u32 v{D0+1}, -2, v89")
        a(f"buffer_store_dwordx2 {vr(D0,2)}, v{vL8}, {sr(SS,4)}, s{sKVP} offen sc1")
    else:
        for k in range(6): a(f"ds_write_b64 v{vT}, {vr(xs[k],2)} offset:{EXB + k*512}")
        a(f"s_cmp_eq_u32 s{sI}, 3"); a(f"s_cbranch_scc0 L_nohp_{P}")
        for k in range(5):
            for j in range(2): a(f"v_min_u32 v{xs[k]+j}, -2, v{xs[k]+j}")
            a(f"buffer_store_dwordx2 {vr(xs[k],2)}, v{vL8}, {sr(SS,4)}, s{sHP} offen offset:{k*512} sc1", "~i3hp")
        a.label(f"L_nohp_{P}")
    stamp("pub1")

    ACC2 = 16; WF2 = 40
    oc = 1 - c
    NT2 = 3 if c == 0 else 2
    def acc2(t, rt): return ACC2 + (t * 2 + rt) * 4
    items2 = [(sg, t) for sg in range(16) for t in range(NT2)] + [(sg, t) for t in ((2, 0, 1) if c == 0 else (0, 1)) for sg in range(16, 20)]
    N2 = len(items2)
    def ix(sg): return NT2 * sg
    iEQ = N2 - 8; iQA = N2 - 4
    def reads2(n, w):
        sg, t = items2[n]; tg = []
        for h in range(2):
            off = ((sg >> 1) & 1) * UNIT + (sg & 1) * 5120 + h * 1280
            if t < 2: tg.append(a(f"ds_read_b64_tr_b16 {vr(w+2*h,2)}, v{vWA} offset:{off + 40*t}"))
            else: tg.append(a(f"ds_read_b64_tr_b16 {vr(w+2*h,2)}, v{vWE} offset:{off}"))
        return tg
    def mf2(n, w):
        sg, t = items2[n]
        for rt in (0, 1):
            C = acc2(t, rt) if sg else (80 if A_ else "0")
            mfma(acc2(t, rt), w, X(sg, rt), C)
    GA = 56
    def gather(tag="gat"):
        for r in range(8):
            a(f"s_add_u32 s3, s{sKVG}, {r*4096}")
            a(f"buffer_load_dwordx4 {vr(GA+4*r,4)}, v{vGAD}, {sr(SS,4)}, s3 offen sc1", tag)
    def gather_ops():
        if OPT["hackgat"]: return []
        return [([f"s_add_u32 s3, s{sKVG}, {r*4096}"], f"buffer_load_dwordx4 {vr(GA+4*r,4)}, v{vGAD}, {sr(SS,4)}, s3 offen sc1") for r in range(8)]
    HL = [KA[("a", -1)], KA[("b", -1)], Va, Vb, KA[("a", -1)] + 2, Ev, KA[("b", -1)] + 2] if not A_ else None
    def halo_loads(tag="~h0halo"):
        offs = [c*3072, c*3072 + 512, c*3072 + 1024, c*3072 + 1536, 2048, 3072 + 2048, 2048]
        for d, o in zip(HL, offs):
            a(f"s_add_u32 s3, s{sHG2}, {o}")
            a(f"buffer_load_dwordx2 {vr(d,2)}, v{vL8}, {sr(SS,4)}, s3 offen sc1", tag)
    def halo_issue():
        a(f"s_cmp_eq_u32 s{sHV}, 0")
        a(f"s_cbranch_scc1 L_nohl_{P}")
        halo_loads()
        a.label(f"L_nohl_{P}")
    def bnd2(u):
        ops = []
        if u > 0:
            d = (WQ_UNIT[u] - WQ_UNIT[u - 1]) * UNIT
            for r in (vWA, vWE): a(f"v_add_u32 v{r}, {d}, v{r}")
            if not FB or u in (1, 3):
                a.wait(vm=f"wq{u + 1 if FB else u}", lg="all")
                a("s_barrier")
            stamp(f"p{u}")
        if FB:
            if u == 1: ops += [(op, f"wq{k}") for k in (3, 4) for op in dma_wq(c, k)]
            ops += [(op, "wo") for k in WOA.get(u, []) for op in dma_wo(c, k)]
        else:
            if u in (1, 2): ops += [(op, f"wq{u+2}") for op in dma_wq(c, u + 2)]
            if u >= WD: ops += [(op, "wo") for op in dma_wo(c, u - WD)]
        if u == OPT["prel_at"] and OPT["prel1"] < 0 and not (OPT["st0"] >= 0 and OPT["stp"]): ops = ops + [(opreload, None)]
        if u == (OPT["gat_at"] if A_ else OPT["hal_at"]):
            g = gather_ops()
            if OPT["gspread"]: g = g[:4]
            ops = ([(op, "gat") for op in g] if A_ else [(halo_issue, None)]) + ops
        if u == OPT["gat_at"] + 1 and A_ and OPT["gspread"]:
            ops = [(op, "gat") for op in gather_ops()[4:]] + ops
        return ops
    QB = {("a", 0): 160, ("b", 0): 164, ("a", 1): 168, ("b", 1): 172}
    side = {}
    vEQo, vEQp = 124, 125
    eqaddr = [[f"s_lshl_b32 s4, s{sI}, 10", f"v_add_u32 v{vEQo}, s4, v{vL8}"]]
    cst = [f"v_add_u32 v126, {CST}, v{vL16}"]
    if A_:
        SEL, C0, CA = 96, 100, 104
        Axb = 104; vOW = 126; vOX = 127
        cst += [f"ds_read_b128 {vr(96+4*k,4)}, v126 offset:{k*1024}" for k in range(3)]
        def cfix():
            a.wait(lg="all")
            a(f"s_lshl_b32 s4, s{sTI}, 9"); a(f"v_add_u32 v{vOW}, s4, v{CA}"); a(f"v_mov_b32 v{vOX}, v{CA+1}")
        GS = 108; GT = 88
        def gsum():
            for r in range(8): mfma(GS, SEL, GA + 4 * r, GS if r else "0")
        def gpart1():
            assert OPT["hackgat"] or sum(1 for l in a.lines[pstart:] if f"v{vGAD}, s[32:35]" in l) == 8, "gather not fully issued"
            a.wait(vm="gat"); gsum()
        def gpart2():
            a(f"v_add_f32 v{GT}, v{GS}, v{GS+1}"); a(f"v_add_f32 v{GT+1}, v{GS+2}, v{GS+3}"); a(f"v_add_f32 v{GT}, v{GT}, v{GT+1}")
            a(f"v_cmp_u_f32 vcc, v{GT}, v{GT}")
            a(f"s_cbranch_vccz L_gok_{P}" if not OPT["hackgat"] else f"s_branch L_gok_{P}")
            spin_begin(f"L_gsp_{P}")
            a(f"v_max3_u32 v{GT}, v{GA}, v{GA+1}, v{GA+2}")
            for k in range(3, 31, 2): a(f"v_max3_u32 v{GT}, v{GT}, v{GA+k}, v{GA+k+1}")
            a(f"v_max_u32 v{GT}, v{GT}, v{GA+31}")
            a(f"v_cmp_eq_u32 vcc, -1, v{GT}")
            a(f"s_cbranch_vccz L_gre_{P}")
            gather("~x"); a("s_waitcnt vmcnt(0)")
            spin_check(f"L_gsp_{P}", f"L_gre_{P}")
            gsum(); a("s_nop 7")
            if OPT["stamps"]:
                a(f"s_add_u32 s3, s{sSPIN}, 1"); a(f"v_writelane_b32 v{vST}, s3, 43")
            a.label(f"L_gok_{P}")
            pack(GS, GT)
            a(f"ds_write_b64 v{vOW}, {vr(GT,2)} offset:{OPS + c*2048}")
        side[ix(4) + 1] = cst + eqaddr
        side[ix(8) - 1] = [cfix]
        if c == 0:
            e = phi_ins(acc2(2, 0), 8, [], 112)
            for rt in range(2):
                e += pack_ins(acc2(2, rt), QB[("a", rt)] + 2) + [f"ds_write_b64 v{vEQo}, {vr(QB[('a',rt)]+2,2)} offset:{EQX + rt*512}"]
                e += [f"v_mov_b32 v{QB[('b',rt)]+2+j}, v{QB[('a',rt)]+2+j}" for j in range(2)]
            side[iEQ] = e
        side[iQA] = phi_ins(acc2(0, 0), 8, [], 112) + pack_ins(acc2(0, 0), QB[("a", 0)]) + pack_ins(acc2(0, 1), QB[("a", 1)])
        if OPT["gearly"] >= 0:
            side[N2 - 6] = side.get(N2 - 6, []) + [gpart1]
            side[N2 - 1] = side.get(N2 - 1, []) + [gpart2]
    else:
        BO, BP, ONES, MK, BP0 = 104, 108, 112, 116, 120
        cst += [f"ds_read_b128 {vr(104+4*k,4)}, v126 offset:{k*1024}" for k in range(4)] + [f"ds_read_b128 {vr(BP0,4)}, v126 offset:1024", "v_mov_b32 v127, 0"]
        def foreign():
            a(f"s_xor_b32 s3, s{sWV}, 4"); a(f"s_mul_i32 s3, s3, 3072")
            a(f"v_add_u32 v{vT}, s3, v{vL8}")
            for rt in range(2):
                o = EXB + (4 if rt else 5) * 512
                if c == 0: a(f"ds_read_b64 {vr(Ev+2+2*rt,2)}, v{vT} offset:{o}")
                else:
                    for h in "ab": a(f"ds_read_b64 {vr(KA[(h,rt)]+2,2)}, v{vT} offset:{o}")
        def foreign2():
            a(f"s_cmp_eq_u32 s{sI}, 0"); a(f"s_cbranch_scc1 L_nof2_{P}")
            a("s_waitcnt lgkmcnt(6)")
            a(f"s_sub_u32 s3, s{sI}, 1"); a(f"s_mul_i32 s3, s3, 3072")
            a(f"v_add_u32 v{vT}, s3, v{vL8}")
            cb = EXB + c * 4 * 3072
            sl = list(a.lg); a.lg = []
            a(f"ds_read_b64 {vr(KA[('a',-1)],2)}, v{vT} offset:{cb}")
            a(f"ds_read_b64 {vr(KA[('b',-1)],2)}, v{vT} offset:{cb + 512}")
            a(f"ds_read_b64 {vr(Va,2)}, v{vT} offset:{cb + 1024}")
            a(f"ds_read_b64 {vr(Vb,2)}, v{vT} offset:{cb + 1536}")
            for h in "ab": a(f"ds_read_b64 {vr(KA[(h,-1)]+2,2)}, v{vT} offset:{EXB + 2048}")
            a(f"ds_read_b64 {vr(Ev,2)}, v{vT} offset:{EXB + 4*3072 + 2048}")
            a.lg = sl
            a.label(f"L_nof2_{P}")
        EQ = {0: 156, 1: 158}
        side[ix(4) + 1] = cst + eqaddr
        side[ix(6)] = [foreign]
        side[ix(9)] = [foreign2]
        if c == 0:
            side[iEQ] = pack_ins(acc2(2, 0), EQ[0]) + pack_ins(acc2(2, 1), EQ[1]) + [f"ds_write_b64 v{vEQo}, {vr(EQ[rt],2)} offset:{EQX + rt*512}" for rt in range(2)]
        side[iQA] = pack_ins(acc2(0, 0), QB[("a", 0)]) + pack_ins(acc2(0, 1), QB[("a", 1)])
    wf2 = [WF2 + 4 * k for k in range(4)] + ([32, 36] if c == 1 else [])
    pipeline(N2, reads2, mf2, {ix(4 * u): u for u in range(5)}, bnd2, OPT["L2"], OPT["Lb2"] if c == 0 else OPT["Lb2"] - 1, wf2,
             newbufs={ix(8): [128 + 4 * k for k in range(7)]}, side=side, side_rate=OPT["srate"] + (0 if c == 0 else 1), prio=None)
    if c == 1 and OPT["prep"] >= 0: a(f"s_setprio {OPT['prep']}")
    stamp("p2end")

    if A_:
        if OPT["gearly"] < 0: gpart1()
        late(3)
        phi_pack(acc2(1, 0), 8, [], 136)
        pack(acc2(1, 0), QB[("b", 0)]); pack(acc2(1, 1), QB[("b", 1)])
        if OPT["gearly"] < 0: gpart2()
        late(99)
        a.wait(lg="all")
        a("s_barrier")
        stamp("E2")
        A1a, A1b, Axa, T3, T2 = 128, 132, 136, 140, 142
        ob = OPS + c * 2048
        t3 = a(f"ds_read_b64 {vr(T3,2)}, v{vL8} offset:{ob + 1536}")
        t2 = a(f"ds_read_b64 {vr(T2,2)}, v{vL8} offset:{ob + 1024}")
        t4 = a(f"ds_read_b64 {vr(Axa+2,2)}, v{vOX} offset:{ob + 1536}")
        t0 = a(f"ds_read_b64 {vr(A1a,2)}, v{vL8} offset:{ob}")
        t1 = a(f"ds_read_b64 {vr(A1b,2)}, v{vL8} offset:{ob + 512}")
        tq = [a(f"ds_read_b64 {vr(QB[(h,rt)]+2,2)}, v{vEQo} offset:{EQX + rt*512}") for rt in range(2) for h in "ab"] if c == 1 else [t1]
        late(99, True)
        if OPT["prel_at"] == 5: opreload()
        ma = lambda l: (0x11dd >> (l & 15)) & 1
        Z = Axb + 2
        set_mask("vcc", gm(hA)); a.wait(lg=t3)
        for j in range(2): a(f"v_cndmask_b32 v{A1a+2+j}, v{Z}, v{T3+j}, vcc")
        set_mask("vcc", gm(hB))
        for j in range(2): a(f"v_cndmask_b32 v{A1b+2+j}, v{Z}, v{T3+j}, vcc")
        set_mask("vcc", 0x11dd11dd11dd11dd); a.wait(lg=t4)
        for j in range(2):
            a(f"v_cndmask_b32 v{Axa+j}, v{Z}, v{T2+j}, vcc")
            a(f"v_cndmask_b32 v{Axb+j}, v{T2+j}, v{Z}, vcc")
        set_mask("vcc", lanemask(lambda l: ((l >> 4) == hA and ma(l)) or ((l >> 4) == hB and not ma(l))))
        for j in range(2): a(f"v_cndmask_b32 v{Axa+2+j}, v{Z}, v{Axa+2+j}, vcc")
        O = {(k, rt): 16 + (rt * 3 + i) * 4 for rt in range(2) for i, k in enumerate("xab")}
        a.wait(lg=tq)
        for rt in (c, oc): mfma(O[("x", rt)], Axa, QB[("a", rt)], C0)
        for rt in (c, oc): mfma(O[("a", rt)], A1a, QB[("a", rt)], "0")
        for rt in (c, oc): mfma(O[("x", rt)], Axb, QB[("b", rt)], O[("x", rt)])
        for rt in (c, oc): mfma(O[("b", rt)], A1b, QB[("b", rt)], "0")
        OM = [176, 180]; OX = [184, 186]
        set_mask("vcc", lanemask(lambda l: l < 32))
        for rt in (c, oc):
            x = O[("x", rt)]
            a(f"v_rcp_f32 v{x}, v{x}"); a(f"v_rcp_f32 v{x+1}, v{x+1}")
        for rt in (c, oc):
            x = O[("x", rt)]
            for j in range(4): a(f"v_mul_f32 v{O[('a',rt)]+j}, v{O[('a',rt)]+j}, v{x}")
            for j in range(4): a(f"v_mul_f32 v{O[('b',rt)]+j}, v{O[('b',rt)]+j}, v{x+1}")
            a(f"v_cndmask_b32 v{x}, v{x+1}, v{x}, vcc")
            pack(O[("a", rt)], OM[rt]); pack(O[("b", rt)], OM[rt] + 2)
            for j in (2, 3): a(f"v_mul_f32 v{x+j}, v{x+j}, v{x}")
            a(f"v_cvt_pk_bf16_f32 v{OX[rt]}, v{x+2}, v{x+3}")
    else:
        late(3)
        for rt in range(2): pack(acc2(1, rt), QB[("b", rt)])
        a(f"s_cmp_eq_u32 s{sI}, 0"); a(f"s_cbranch_scc0 L_hdone_{P}")
        a(f"s_cmp_eq_u32 s{sRT}, 0"); a(f"s_cbranch_scc0 L_hwait_{P}")
        for d in HL: a(f"v_mov_b32 v{d}, 0"); a(f"v_mov_b32 v{d+1}, 0")
        for j in range(4): a(f"v_mov_b32 v{BP0+j}, 0x{f2u(-1e30):x}")
        a(f"s_branch L_hok_{P}")
        a.label(f"L_hwait_{P}")
        def htest():
            a(f"v_max3_u32 v228, v{HL[0]}, v{HL[0]+1}, v{HL[1]}")
            a(f"v_max3_u32 v228, v228, v{HL[1]+1}, v{HL[2]}")
            a(f"v_max3_u32 v228, v228, v{HL[2]+1}, v{HL[3]}")
            a(f"v_max3_u32 v228, v228, v{HL[3]+1}, v{HL[4]}")
            a(f"v_max3_u32 v228, v228, v{HL[4]+1}, v{HL[5]}")
            a(f"v_max3_u32 v228, v228, v{HL[5]+1}, v{HL[6]}")
            a(f"v_max_u32 v228, v228, v{HL[6]+1}")
            a(f"v_cmp_eq_u32 vcc, -1, v228")
            a(f"s_cbranch_vccz L_hok_{P}")
        a.wait(vm="~h0halo", keep=True)
        htest()
        spin_begin(f"L_hsp_{P}")
        if OPT["stamps"]: a(f"v_writelane_b32 v{vST}, s{sHV}, 43")
        halo_loads("~x"); a("s_waitcnt vmcnt(0)"); htest()
        spin_check(f"L_hsp_{P}", f"L_hok_{P}")
        a.label(f"L_hdone_{P}")
        def qmask(rt):
            for h, hh in (("a", hA), ("b", hB)):
                set_mask("vcc", gm(hh))
                for j in range(2): a(f"v_cndmask_b32 v{QB[(h,rt)]+2+j}, v127, v{EQ[rt]+j}, vcc")
        if c == 0: qmask(0); qmask(1)
        a.wait(lg="all")
        if c == 1 or not OPT["esk"]:
            a("s_barrier")
            stamp("E2")
        if c == 1: tq = [a(f"ds_read_b64 {vr(EQ[rt],2)}, v{vEQo} offset:{EQX + rt*512}") for rt in range(2)]
        units = [(h, rt) for rt in (0, 1) for h in "ab"]
        S = {u: 176 + 8 * k for k, u in enumerate(units)}
        PB = {u: 208 + 4 * k for k, u in enumerate(units)}
        Om = dict(zip(units, (16, 28, 40, 128)))
        SV = {u: 228 + 2 * k for k, u in enumerate(units)}
        MX = {u: 236 + k for k, u in enumerate(units)}
        def smf(u):
            h, rt = u
            mfma(S[u], KA[(h, rt - 1)], QB[u], BP0 if rt == 0 else BP)
            mfma(S[u] + 4, KA[(h, rt)], QB[u], BO)
        if c == 1:
            a.wait(lg=tq[0]); qmask(0); smf(units[0]); smf(units[1])
            a.wait(lg=tq[1]); qmask(1); smf(units[2]); smf(units[3])
        else:
            for u in units: smf(u)
            if OPT["esk"]:
                a("s_barrier")
                stamp("E2")
        late(99 if OPT["prel_at"] == 5 else 2, True)
        if OPT["prel_at"] == 5: opreload()
        for u in units:
            s_, v = S[u], SV[u]
            a(f"v_max3_f32 v{v}, v{s_}, v{s_+1}, v{s_+4}"); a(f"v_max3_f32 v{v+1}, v{s_+2}, v{s_+3}, v{s_+6}")
            a(f"v_max_f32 v{v}, v{v}, v{s_+5}"); a(f"v_max_f32 v{v+1}, v{v+1}, v{s_+7}")
            a(f"v_max_f32 v{MX[u]}, v{v}, v{v+1}")
        m0_, m1_, m2_, m3_ = [MX[u] for u in units]
        a(f"v_permlane32_swap_b32 v{m0_}, v{m1_}"); a(f"v_permlane32_swap_b32 v{m2_}, v{m3_}")
        a(f"v_max_f32 v{m0_}, v{m0_}, v{m1_}"); a(f"v_max_f32 v{m2_}, v{m2_}, v{m3_}")
        a(f"v_permlane16_swap_b32 v{m0_}, v{m2_}")
        a(f"v_max_f32 v{m0_}, v{m0_}, v{m2_}")
        cs = LOG2E * 20 ** -0.5
        a(f"v_mul_f32 v{m0_}, 0x{f2u(-cs):x}, v{m0_}")
        a(f"v_mov_b32 v{m2_}, v{m0_}")
        a(f"v_permlane16_swap_b32 v{m0_}, v{m2_}")
        a(f"v_mov_b32 v{m1_}, v{m0_}"); a(f"v_mov_b32 v{m3_}, v{m2_}")
        a(f"v_permlane32_swap_b32 v{m0_}, v{m1_}"); a(f"v_permlane32_swap_b32 v{m2_}, v{m3_}")
        late(99, True)
        V = {"a": Va, "b": Vb}
        for u in units:
            for j in range(2): a(f"v_fmamk_f32 v{SV[u]+j}, v{SV[u]+j}, 0x{f2u(cs):x}, v{MX[u]}")
        for u in units:
            for j in range(2): a(f"v_exp_f32 v{SV[u]+j}, v{SV[u]+j}")
        for u in units:
            h, rt = u; v = SV[u]
            for j in range(2): a(f"v_cvt_pk_bf16_f32 v{v+j}, v{v+j}, v{v+j}")
            for k in range(4): a(f"v_and_b32 v{PB[u]+k}, v{v+(k&1)}, v{MK+k}")
            mfma(Om[u] + 8, ONES, PB[u], "0")
            mfma(Om[u], V[h] + 2 * rt, PB[u], "0")
            mfma(Om[u] + 4, Ev + 2 * rt, PB[u], "0")
        OM = [176, 180]; OX = [184, 186]
        set_mask("vcc", gm(hA))
        for rt in (c, oc):
            ua, ub = ("a", rt), ("b", rt)
            for u in (ua, ub): a(f"v_rcp_f32 v{Om[u]+8}, v{Om[u]+8}")
            for j in range(4): a(f"v_cndmask_b32 v{Om[ua]+4+j}, v{Om[ub]+4+j}, v{Om[ua]+4+j}, vcc")
            for u in (ua, ub):
                for j in range(4): a(f"v_mul_f32 v{Om[u]+j}, v{Om[u]+j}, v{Om[u]+8}")
            a(f"v_cndmask_b32 v{Om[ua]+8}, v{Om[ub]+8}, v{Om[ua]+8}, vcc")
            pack(Om[ua], OM[rt]); pack(Om[ub], OM[rt] + 2)
            for j in range(4): a(f"v_mul_f32 v{Om[ua]+4+j}, v{Om[ua]+4+j}, v{Om[ua]+8}")
            pack(Om[ua] + 4, OX[rt])
    a(f"s_mul_i32 s3, s{sHG}, {2*OP_}"); a(f"s_add_u32 s3, s3, s{sOB}"); a(f"s_add_u32 s3, s3, {c*OP_}")
    a(f"s_add_u32 s4, s3, {OT}")
    a(f"s_lshr_b32 s5, s{sHG}, 1"); a(f"s_mul_i32 s5, s5, {4*OP_}"); a(f"s_and_b32 s6, s{sHG}, 1"); a(f"s_lshl_b32 s6, s6, 3")
    a(f"s_add_u32 s5, s5, s6"); a(f"s_add_u32 s5, s5, s{sOB}")
    a(f"s_add_u32 s6, s5, {OT}")
    a(f"v_lshrrev_b32 v{vXE}, 4, v{vL}"); a(f"v_mul_u32_u24 v{vXE}, {OP_ - 256}, v{vXE}"); a(f"v_add_u32 v{vXE}, v{vXE}, v{vL16}")
    a(f"v_mov_b32 v{vT}, s{sN}")
    a(f"s_cmp_eq_u32 s{sFAST}, 1"); a(f"s_cbranch_scc1 L_fast_{P}")
    for fl, end in ((" sc1", f"s_branch L_pubd_{P}"), ((" " + OPT["ofl"]) if OPT["ofl"] != "none" else "", None)):
        if not end: a.label(f"L_fast_{P}")
        a(f"buffer_store_dwordx4 {vr(OM[0],4)}, v{vL16}, {sr(OS,4)}, s3 offen{fl}")
        a(f"buffer_store_dwordx4 {vr(OM[1],4)}, v{vL16}, {sr(OS,4)}, s4 offen{fl}")
        if A_:
            a(f"buffer_store_dword v{OX[0]}, v{vXE}, {sr(OS,4)}, s5 offen offset:{1024 + 4*c}{fl}")
            a(f"buffer_store_dword v{OX[1]}, v{vXE}, {sr(OS,4)}, s6 offen offset:{1024 + 4*c}{fl}")
        else:
            a(f"s_mov_b32 exec_{'hi' if c == 0 else 'lo'}, 0")
            a(f"buffer_store_dwordx2 {vr(OX[0],2)}, v{vXE}, {sr(OS,4)}, s5 offen offset:1024{fl}")
            a(f"buffer_store_dwordx2 {vr(OX[1],2)}, v{vXE}, {sr(OS,4)}, s6 offen offset:1024{fl}")
        if end: a(end)
    a.label(f"L_pubd_{P}")
    a("s_mov_b64 exec, -1")
    stamp("ostore")
    phase2_setup(A_, c)
    a(f"s_cmp_eq_u32 s{sFAST}, 1")
    a("s_mov_b64 exec, 1")
    a("s_waitcnt vmcnt(0) lgkmcnt(0)")
    a(f"s_cbranch_scc1 L_fast2_{P}")
    a(f"buffer_store_dword v{vT}, off, {sr(SS,4)}, s{sFP} sc1")
    a(f"s_branch L_pubd2_{P}")
    a.label(f"L_fast2_{P}")
    a(f"buffer_store_dword v{vT}, off, {sr(SS,4)}, s{sFP}")
    a.label(f"L_pubd2_{P}")
    a("s_mov_b64 exec, -1")
    if late_wo:
        late(99, 2)
        phase2_setup2()
        a("s_waitcnt vmcnt(0)")
    a.vm = ["flag"]
    stamp("oack")
    a("s_branch L_phase2")

vM0, vE0, vPA, vPD, vSA = 1, 2, 3, 0, 5
RA = [8, 9, 11]; GA_ = [12, 13, 95]
vRW, vRR = 4, 7
RX = 43008
RX = 0
OST2 = 40960
def phase2_setup(A_, c):
    a(f"s_mul_i32 s7, s{sKH}, 51200"); a(f"s_add_u32 s7, s7, {WO_BASE}")
    half = "s7"
    a(f"v_and_b32 v{vPD}, 3, v{vL}")
    a(f"v_lshrrev_b32 v{vM0}, 2, v{vL}"); a(f"v_mul_u32_u24 v{vM0}, 160, v{vM0}")
    a(f"v_lshl_add_u32 v{vM0}, v{vPD}, 3, v{vM0}"); a(f"v_add_u32 v{vM0}, {half}, v{vM0}")
    if A_:
        a(f"v_bfe_u32 v{vE0}, v{vL}, 3, 1"); a(f"v_mul_u32_u24 v{vE0}, 40, v{vE0}")
        a(f"v_lshrrev_b32 v{vPA}, 5, v{vL}"); a(f"v_mad_u32_u24 v{vE0}, v{vPA}, 20, v{vE0}")
        a(f"v_bfe_u32 v{vPA}, v{vL}, 4, 1"); a(f"v_lshl_add_u32 v{vE0}, v{vPA}, 1, v{vE0}")
        a(f"v_bfe_u32 v{vPA}, v{vL}, 2, 1"); a(f"v_add_u32 v{vE0}, v{vE0}, v{vPA}")
    else:
        a(f"v_lshrrev_b32 v{vE0}, 4, v{vL}"); a(f"v_mul_u32_u24 v{vE0}, 20, v{vE0}")
        a(f"v_bfe_u32 v{vPA}, v{vL}, 2, 2"); a(f"v_add_u32 v{vE0}, v{vE0}, v{vPA}")
    a(f"v_mul_u32_u24 v{vE0}, 160, v{vE0}")
    a(f"v_lshl_add_u32 v{vE0}, v{vPD}, 3, v{vE0}"); a(f"v_add_u32 v{vE0}, {half}, v{vE0}")
    a(f"v_lshlrev_b32 v{vPA}, 2, v{vL}")
    a(f"s_mul_i32 s7, s{sWV}, 5120"); a(f"v_add_u32 v{vRR}, s7, v{vXA0}")
    a(f"s_xor_b32 s7, s{sWV}, 1"); a(f"s_mul_i32 s7, s7, 5120"); a(f"v_add_u32 v{vRW}, s7, v{vXA0}")
    a(f"s_mul_i32 s7, s{sWV}, 2560"); a(f"s_add_u32 s7, s7, {OST2}")
    a(f"v_mov_b32 v16, s7"); a("v_mov_b32 v17, 0"); a("ds_write_b32 v16, v17")

def phase2_setup2():
    a(f"s_mul_i32 s7, s{sWV}, 2560"); a(f"s_add_u32 s7, s7, {OST2}")
    for j in range(3):
        a(f"v_add_u32 v{RA[j]}, {64*j}, v{vL}")
        a(f"v_mul_u32_u24 v{GA_[j]}, 6554, v{RA[j]}"); a(f"v_lshrrev_b32 v{GA_[j]}, 16, v{GA_[j]}")
        a(f"v_mul_u32_u24 v{vSA}, 2400, v{GA_[j]}")
        a(f"v_lshlrev_b32 v{RA[j]}, 4, v{RA[j]}")
        a(f"v_add_u32 v{GA_[j]}, v{vSA}, v{RA[j]}")
        a(f"v_add_u32 v{RA[j]}, s7, v{RA[j]}")
    a(f"v_and_b32 v{vSA}, 15, v{vL}"); a(f"v_mul_u32_u24 v{vSA}, 160, v{vSA}")
    a(f"v_lshrrev_b32 v16, 4, v{vL}"); a(f"v_lshlrev_b32 v16, 3, v16"); a(f"v_add3_u32 v{vSA}, v{vSA}, v16, s7")

def phase2():
    a.label("L_phase2")
    a.vm = ["flag"]; a.lg = []
    vL16 = vXA0
    PP = OPT["prepoll"]
    if not PP:
        a("s_barrier")
        stamp("E3")
    OF = 176; ACC = 16
    def of(k, rt): return OF + (k * 2 + rt) * 4
    bufs = ([56 + 4 * k for k in range(9)] + [96 + 4 * k for k in range(20)])[:OPT["npre"]]
    NB = len(bufs)
    def reads(n):
        k, t = divmod(n, 5); w = bufs[n % NB]; tg = []
        for h in range(2):
            if k < 8: row = 40 * k + 20 * h; base = vM0
            else: row = 80 * (2 * (k - 8) + h) + 16; base = vE0
            tg.append(a(f"ds_read_b64_tr_b16 {vr(w+2*h,2)}, v{base} offset:{row * 160 + 32 * t}"))
        return tg
    def oload(j):
        k, rt = divmod(j, 2)
        if k < 8:
            if k % 2 == 0: a(f"s_add_u32 s{3+rt}, s{sOC}, {rt*OT + k*OP_}")
            a(f"buffer_load_dwordx4 {vr(of(k,rt),4)}, v{vL16}, {sr(OS,4)}, s{3+rt} offen offset:{(k%2)*OP_} sc1", f"o{k}")
        else:
            a(f"s_add_u32 s{3+rt}, s{sOE}, {rt*OT + (k-8)*4*OP_}")
            a(f"buffer_load_dwordx4 {vr(of(k,rt),4)}, v{vXE}, {sr(OS,4)}, s{3+rt} offen offset:1024 sc1", f"o{k}")
    NP = OPT["npoll"]; per = NB // NP
    batches = [list(range(k * per, (k + 1) * per if k < NP - 1 else NB)) for k in range(NP)]
    tags = {}
    def poll_issue():
        a("s_mov_b64 exec, 0xff"); a(f"buffer_load_dword v{vPD}, v{vPA}, {sr(SS,4)}, s{sFC} offen sc1"); a("s_mov_b64 exec, -1")
    def poll_check(lbl):
        a("s_waitcnt vmcnt(0)")
        a(f"v_cmp_ne_u32 vcc, s{sN}, v{vPD}"); a("s_and_b32 vcc_lo, vcc_lo, 0xff"); a(f"s_cbranch_scc0 {lbl}" if not OPT["hackpoll"] else f"s_branch {lbl}")
    lgs = []
    if PP:
        poll_issue()
        if not OPT['woaft']: phase2_setup2()
        for r_ in range(PP - 1):
            poll_check("L_gopre"); poll_issue()
        poll_check("L_gopre")
        a("s_barrier")
        stamp("E3")
    for k in range(NP):
        poll_issue()
        for n in batches[k]: tags[n] = reads(n)
        if k == 0 and not OPT['woaft'] and not PP: phase2_setup2()
        lgs.append(list(a.lg))
        poll_check(f"L_go{k}")
    spin_begin("L_poll")
    poll_issue(); poll_check(f"L_go{NP-1}")
    spin_check("L_poll", "L_pollx")
    XL = OPT["oburst"] + NP - 1
    full = list(a.lg)
    XL += 1 if PP else 0
    for k in range(NP - 1, -2 if PP else -1, -1):
        a.label(f"L_go{k}" if k >= 0 else "L_gopre")
        a.vm = []; a.lg = list(lgs[k]) if k >= 0 else []
        stamp("polled")
        nxt = 0
        for _ in range(OPT["oburst"]): oload(nxt); nxt += 1
        if k < 0:
            a("s_barrier")
            stamp("E3")
        for j in range(k + 1, NP):
            for n in batches[j]: reads(n)
            oload(nxt); nxt += 1
        while nxt < XL: oload(nxt); nxt += 1
        if k > (-1 if PP else 0): a("s_branch L_conv")
    a.label("L_conv")
    a.lg = full[-12:]
    a("s_waitcnt lgkmcnt(12)")
    rd = NB
    NLOOP = 45 if OPT["lastk"] else 50
    for n in range(NLOOP):
        k, t = divmod(n, 5)
        p3 = parse_pr(OPT["pr3"])
        if (n % 10) in p3:
            a(f"s_bitcmp1_b32 s{sWV}, 2"); a(f"s_cbranch_scc0 L_np{n}"); a(f"s_setprio {p3[n % 10]}"); a.label(f"L_np{n}")
        a.wait(vm=f"o{k}" if t == 0 else None, lg=tags[n])
        if n == 0: stamp("ofirst")
        if n == 45 and AL:
            a(f"v_mov_b32 v{vPD}, s{sN}"); a("s_mov_b64 exec, 1")
            a(f"s_cmp_eq_u32 s{sFAST}, 1"); a("s_cbranch_scc1 L_df1")
            a(f"buffer_store_dword v{vPD}, off, {sr(SS,4)}, s{sDFP} sc1"); a("s_branch L_df2")
            a.label("L_df1"); a(f"buffer_store_dword v{vPD}, off, {sr(SS,4)}, s{sDFP}"); a.label("L_df2")
            a("s_mov_b64 exec, -1")
        for rt in range(2):
            d = ACC + (rt * 5 + t) * 4
            mfma(d, bufs[n % NB], of(k, rt), d if k else "0")
        if t in (0, 2) and nxt < 20: oload(nxt); nxt += 1
        if OPT["wb"] >= 3 and n == OPT["wbn"]:
            a(f"s_xor_b32 s3, s{sWV}, {OPT['wbw']}")
            if OPT["wb"] == 3: a(f"s_or_b32 s3, s3, s{sHG}")
            else: a(f"s_and_b32 s4, s{sHG}, 3"); a("s_or_b32 s3, s3, s4")
            a(f"s_cmp_eq_u32 s3, 0"); a(f"s_cselect_b32 s3, s{sFAST}, 0"); a("s_cmp_eq_u32 s3, 1")
            a("s_cbranch_scc0 L_nowb")
            a("buffer_wbl2 sc1", "~wb")
            a.label("L_nowb")
        if t == 1 and nxt == 20 and OPT["wb"] in (1, 2):
            nxt = 21
            if OPT["wb"] == 1: a(f"s_or_b32 s3, s{sWV}, s{sHG}")
            else: a(f"s_mov_b32 s3, s{sWV}")
            a(f"s_cmp_eq_u32 s3, 0"); a(f"s_cselect_b32 s3, s{sFAST}, 0"); a("s_cmp_eq_u32 s3, 1")
            a("s_cbranch_scc0 L_nowb")
            a("buffer_wbl2 sc1", "~wb")
            a.label("L_nowb")
        if rd < 50: tags[rd] = reads(rd); rd += 1
    if not OPT["lastk"]: stamp("g2end")
    assert not (AL and OPT["lastk"])
    if AL: a("s_mov_b64 exec, 0xffff"); a(f"buffer_load_dword v{vPD}, v{vPA}, {sr(SS,4)}, s{sDFC} offen sc1"); a("s_mov_b64 exec, -1")
    else: a("s_nop 2")
    a(f"s_xor_b32 s7, s{sWV}, 1"); a(f"s_mul_i32 s7, s7, 2560"); a(f"s_add_u32 s7, s7, {OST2}")
    a(f"v_mov_b32 v92, s7"); a(f"s_mul_i32 s7, s{sWV}, 2560"); a(f"s_add_u32 s7, s7, {OST2}"); a(f"v_mov_b32 v93, s7")
    if OPT["lastk"]: a.wait(vm="o9", lg="all")
    a(f"s_cmp_eq_u32 s{sKH}, 0"); a("s_cbranch_scc0 L_red1")
    for c in range(2):
        if c == 1: a.label("L_red1")
        a.lg = []
        give = ACC + (1 - c) * 20; keep = ACC + c * 20
        if OPT["lastk"]:
            for t in range(5): mfma(give + 4 * t, bufs[(45 + t) % NB], of(9, 1 - c), give + 4 * t)
            for t in range(5):
                mfma(keep + 4 * t, bufs[(45 + t) % NB], of(9, c), keep + 4 * t)
                if t >= 2: a(f"ds_write_b128 v{vRW}, {vr(give+4*(t-2),4)} offset:{RX + (t-2)*1024}")
            for t in (3, 4): a(f"ds_write_b128 v{vRW}, {vr(give+4*t,4)} offset:{RX + t*1024}")
            stamp("g2end")
        else:
            for t in range(5): a(f"ds_write_b128 v{vRW}, {vr(give+4*t,4)} offset:{RX + t*1024}")
        a.wait(lg="all")
        a("ds_write_b32 v92, v92")
        spin_begin(f"L_pw{c}")
        a("ds_read_b32 v94, v93"); a("s_waitcnt lgkmcnt(0)")
        a("v_cmp_ne_u32 vcc, 0, v94"); a(f"s_cbranch_vccnz L_pwok{c}")
        spin_check(f"L_pw{c}", f"L_pwok{c}")
        a.lg = []
        tg = [a(f"ds_read_b128 {vr(56+4*t,4)}, v{vRR} offset:{RX + t*1024}") for t in range(5)]
        for t in range(5):
            a.wait(lg=tg[t])
            for j in range(4): a(f"v_add_f32 v{56+4*t+j}, v{56+4*t+j}, v{keep+4*t+j}")
            pack(56 + 4 * t, 80 + 2 * t)
            a(f"ds_write_b64 v{vSA}, {vr(80+2*t,2)} offset:{32*t}")
        if c == 0: a("s_branch L_red2")
    a.label("L_red2")
    a.wait(lg="all")
    tg = []
    for j in range(3):
        if j == 2: a("s_mov_b32 exec_hi, 0")
        tg.append(a(f"ds_read_b128 {vr(96+4*j,4)}, v{RA[j]}"))
    a("s_mov_b64 exec, -1")
    def dfcheck():
        a("s_waitcnt vmcnt(0)")
        a(f"v_cmp_ne_u32 vcc, s{sN}, v{vPD}"); a("s_and_b32 vcc_lo, vcc_lo, 0xffff"); a("s_cbranch_scc0 L_dfok")
    if AL:
        dfcheck()
        spin_begin("L_dfs")
        a("s_mov_b64 exec, 0xffff"); a(f"buffer_load_dword v{vPD}, v{vPA}, {sr(SS,4)}, s{sDFC} offen sc1"); a("s_mov_b64 exec, -1")
        dfcheck()
        spin_check("L_dfs", "L_dfok")
    fl = OPT["outflag"].replace("+", " "); fl = "" if fl == "none" else " " + fl
    for j in range(3):
        a.wait(lg=tg[j])
        if j == 2: a("s_mov_b32 exec_hi, 0")
        a(f"buffer_store_dwordx4 {vr(96+4*j,4)}, v{GA_[j]}, {sr(SD,4)}, s{sOUT} offen{fl}")
    if OPT["wbe"]:
        a(f"s_xor_b32 s3, s{sWV}, {OPT['wbw']}"); a(f"s_and_b32 s4, s{sHG}, {OPT['wbe']-1 if OPT['wbe'] > 1 else 7}"); a("s_or_b32 s3, s3, s4")
        a("s_cmp_eq_u32 s3, 0"); a("s_cbranch_scc0 L_nowbe")
        a("s_waitcnt vmcnt(0)"); a("buffer_wbl2 sc1")
        a.label("L_nowbe")
    if OPT["stamps"]:
        a("s_mov_b64 exec, -1")
        a("s_waitcnt vmcnt(0)")
        stamp("end")
        a(f"s_memrealtime s[100:101]"); a("s_waitcnt lgkmcnt(0)"); a(f"v_writelane_b32 v{vST}, s100, 41")
        a(f"v_writelane_b32 v{vST}, s{sFAST}, 42")
        a(f"s_lshl_b32 s3, s2, 3"); a(f"s_add_u32 s3, s3, s{sWV}"); a("s_lshl_b32 s3, s3, 8"); a(f"s_add_u32 s3, s3, {WS_STAMP}")
        a(f"v_lshlrev_b32 v0, 2, v{vL}")
        a(f"buffer_store_dword v{vST}, v0, {sr(SS,4)}, s3 offen")
    a.label("L_end")
    a("s_endpgm")
    a.label("L_codeend")

prologue()
sv0 = list(a.vm)
for b, c in ((0, 0), (0, 1), (1, 0), (1, 1)):
    a.vm = list(sv0); a.lg = []
    path(b, c)
phase2()
a.raw(f""".section .rodata,"a"
.p2align 6
.amdhsa_kernel {KNAME}
  .amdhsa_next_free_vgpr 256
  .amdhsa_next_free_sgpr 102
  .amdhsa_accum_offset 256
  .amdhsa_group_segment_fixed_size 0
  .amdhsa_kernarg_size 72
  .amdhsa_user_sgpr_count 2
  .amdhsa_user_sgpr_kernarg_segment_ptr 1
  .amdhsa_system_sgpr_workgroup_id_x 1
.end_amdhsa_kernel""")
open(sys.argv[1], "w").write(a.text())
print("nops inserted:", a.nops_inserted, "lines:", len(a.lines), file=sys.stderr)
```

```python
import sys, os, struct
from collections import deque
from asmlib import Asm, vr, sr

KNAME = "concat_heads__linear_attn_block__sliding_local_dilated__prompt_kernel"
OPT = dict(gk="", front=0, front2=0, ahead=0, ordB="", axf=4, p1late=1, tlb=-2, opr=1, e3e=1, e3n=6, oxb=0, oxt=0, oxpos=0, oxf=4, aot=-2, awn=5, snake=0, prepoll=0, eoff=0, axt=-1, awt=-2, xw=-1, xq=-1, ecpar=-1, rv=0, dmap="", ord="q", ordoff=1, lean2=1, lean=1, lastk=0, rot2=0, hal_at=3, fewb=1, woA="2:0,4:1", esk=0, rts=0, woaft=0, gearly=54, tbal=1, exact=1, hackwo=0, hackgat=0, hackphi=0, hackpoll=0, sched="", tcm="", pr1="", pr2="", pr3="", prep=-1, hackport=0, hackdma=0, tcs=0, tc="", tcw=3, tc0=0, tcpos=0, alias=0, wbe=0, worot=0, wbn=49, wbw=4, tqonly=0, st0=-1, stn=6, stq=1, stp=1, srate=3, prel1=-1, ofl="nt", npoll=2, pre1=10, gspread=1, LA=2, p1n=1, win="", ea=0, eb=-1, ec=3, ecg=0, pst=-1, rev0=0, wodef=3, wnt=0, wont=0, pnt=0, xrot=1, prest=0, xnt=0, t0=0, wosched=0, G=10, stamps=0, L=4, Lb=2, L2=8, Lb2=4, force_slow=0, wb=0, codepf=1, outflag="nt", gat_at=3, pro=2, tq=-1,
           oburst=8, npre=27, rdy_at=4, prel_at=1, stampset="all")
for x in sys.argv[2:]:
    k, v = x.split("="); OPT[k] = int(v) if v.lstrip("-").isdigit() else v

def f2u(x): return struct.unpack("<I", struct.pack("<f", x))[0]

SLOT = 36864; UNIT = 10240
SC = 20480
EE_A = SC; RED = SC + 8192; OPS = 40960; EQX = SC + 28672; EXB = SC; OST = SC
BCAST = 147456 + 64
WO_BASE = 6 * UNIT
WQ_UNIT = [8, 10, 12, 0, 14]
CST = 148480
EE_A2 = 154624
OPX = 0
WS_KV = 0x600000; WS_HALO = 0x700000; WS_FLAG = 0x800000; WS_RDY = 0x810000; WS_E = 0x820000; WS_STAMP = 0x900000
WS_SIZE = 0x10000000
SPIN_MAX = 200000
EPS = f2u(1e-6)
LOG2E = 1.4426950408889634

SX, SW, SO, SD, SS, SG = 16, 20, 24, 28, 32, 36
sB, sRT, sHG, sWV, sI, sC, sXCC, sN, sFAST = 40, 41, 42, 43, 44, 45, 46, 47, 48
sXO, sWK = 50, 60
sW1K, sX2K = 70, 71
sT0, sT1, sT2, sT3 = 72, 73, 74, 75
sOB, sKVP, sKVG, sHP, sHG2, sFP, sFC = 76, 77, 78, 79, 49, 9, 8
sM = 80
sHV = 87; sTI = 86; sSPIN = 92; sCUR = 93; sDUTY = 90
sK = 94; sTM = 96; sOC = 98; sOUT = 99; sOE = 91; sKH = 85; sDFP = 84; sDFC = 83; sFPL = 82
vXD0, vXD1, vWD = 1, 2, 3
vXA0, vXA1, vWA, vWE, vL = 6, 7, 8, 9, 10
vT = 11; vST = 15
vWO = 90; vPRE = 93; vGAD = 94; vXE = 14
ACC1 = 16; WF = 56; XB = 96
def X(ks, rt): return XB + (ks * 2 + rt) * 4

a = Asm()
if OPT["exact"]:
    a.ghost_cond = {"w0": [f"s_cmp_eq_u32 s{sWV}, 0"], "i3": [f"s_cmp_eq_u32 s{sI}, 3"], "h0": [f"s_cmp_lg_u32 s{sHV}, 0"]}
AL = OPT['alias']
OS = SD if AL else SS
OP_ = 2560 if AL else 1280
OT = 16 * OP_
STAMPS = ["start", "issued", "b0", "b1", "b2", "b3", "b4", "b5", "b6", "b7", "b8", "b9", "p1end", "E1", "pub1", "p1", "p2", "p3", "p4", "p2end", "E2", "ostore", "oack", "E3", "polled", "ofirst", "g2end", "end", "first"]
FEW = {"first", "b0", "b1", "b2", "b4", "b6", "p1end", "pub1", "p2end", "ostore", "ofirst", "g2end", "end"}
def stamp(name):
    if not OPT["stamps"]: return
    if OPT["stampset"] == "few" and name not in FEW: return
    if OPT["stampset"] == "end" and name not in ("end",): return
    a(f"s_memtime {sr(sTM,2)}")
    RT = {"b0": 44, "b1": 45, "b6": 46, "p1end": 47, "pub1": 48, "p2end": 49, "ostore": 50, "ofirst": 51, "g2end": 52}
    if name in RT and OPT["rts"]: a("s_memrealtime s[100:101]")
    a("s_waitcnt lgkmcnt(0)"); a.lg = []
    a(f"v_writelane_b32 v{vST}, s{sTM}, {STAMPS.index(name)}")
    if name in RT and OPT["rts"]: a(f"v_writelane_b32 v{vST}, s100, {RT[name]}")

def srd(d, lo, hi, size):
    a(f"s_mov_b32 s{d}, s{lo}"); a(f"s_mov_b32 s{d+1}, s{hi}")
    a(f"s_mov_b32 s{d+2}, {size}"); a(f"s_mov_b32 s{d+3}, 0x20000")
def mask_ins(s, val):
    if s == "vcc": return [f"s_mov_b32 vcc_lo, 0x{val & 0xffffffff:x}", f"s_mov_b32 vcc_hi, 0x{val >> 32:x}"]
    return [f"s_mov_b32 s{s}, 0x{val & 0xffffffff:x}", f"s_mov_b32 s{s+1}, 0x{val >> 32:x}"]
def set_mask(s, val):
    for i in mask_ins(s, val): a(i)
def lanemask(f):
    m = 0
    for l in range(64):
        if f(l): m |= 1 << l
    return m

V0OK = [True]
def wvoff_ins(dst, q, pitch, swap, second):
    if q == 0: r = [f"v_and_b32 v{vT}, 0x1ff, v0" if V0OK[0] else f"v_lshl_add_u32 v{vT}, s{sWV}, 6, v{vL}"]
    elif q == 2: r = [f"s_lshl_b32 s{sT0}, s{sWV}, 6", f"s_add_u32 s{sT0}, s{sT0}, 384", f"s_mov_b32 s{sT1}, {second}", f"v_add_u32 v{vT}, s{sT0}, v{vL}"]
    else: r = [f"s_add_u32 s{sT0}, s{sWV}, {8*q}", f"s_cmp_ge_u32 s{sT0}, 10", f"s_cselect_b32 s{sT1}, {second}, 0", f"s_cselect_b32 s{sT2}, 10, 0",
         f"s_sub_u32 s{sT0}, s{sT0}, s{sT2}", f"s_lshl_b32 s{sT0}, s{sT0}, 6", f"v_add_u32 v{vT}, s{sT0}, v{vL}"]
    r += [ f"v_mul_u32_u24 v{vT+1}, 6554, v{vT}", f"v_lshrrev_b32 v{vT+1}, 16, v{vT+1}",
         f"v_mul_u32_u24 v{vT+2}, 10, v{vT+1}", f"v_sub_u32 v{vT}, v{vT}, v{vT+2}"]
    if swap:
        r += [f"v_lshrrev_b32 v{vT+2}, 1, v{vT+1}", f"v_xor_b32 v{vT+2}, v{vT+2}, v{vT+1}", f"v_and_b32 v{vT+2}, 4, v{vT+2}",
              f"v_mul_u32_u24 v{vT+2}, 3, v{vT+2}", f"v_xor_b32 v{vT+1}, v{vT+1}, v{vT+2}"]
    r += [f"v_mul_u32_u24 v{vT+1}, {pitch}, v{vT+1}", f"v_lshlrev_b32 v{vT}, 4, v{vT}", f"v_add3_u32 v{dst}, v{vT}, v{vT+1}, s{sT1}" if q else f"v_add_u32 v{dst}, v{vT}, v{vT+1}"]
    return r
def wvoff(*args):
    for i in wvoff_ins(*args): a(i)

XF = " nt" if OPT["xnt"] else ""
WFL = " nt" if OPT["wnt"] else ""
WOFL = " nt" if OPT["wont"] else ""
def dma_chunk(c, step):
    base = (step % 4) * SLOT
    ops = [([f"s_add_u32 m0, s{sX2K}, {base}"], f"buffer_load_dwordx4 v{vXD0}, {sr(SX,4)}, s{sXO+step} offen{XF} lds"),
           ([f"s_add_u32 m0, s{sX2K}, {base + 1024}"], f"buffer_load_dwordx4 v{vXD1}, {sr(SX,4)}, s{sXO+step} offen{XF} lds")]
    for q in range(3 if c == 0 else 2):
        if OPT["hackdma"] and q >= 1 and step >= 2: continue
        ops.append(([f"s_add_u32 m0, s{sW1K}, {base + 16384 + q*8192}"], f"buffer_load_dwordx4 v{vWD+q}, {sr(SW,4)}, s{sWK+step} offen{WFL} lds"))
    return ops
def dma_wq(c, u):
    base = WQ_UNIT[u] * UNIT
    ops = []
    for q in range(3 if c == 0 else 2):
        pre = []
        if q == 0: pre.append(f"s_sub_u32 s{sT3}, s{sWK+2*u}, 1280")
        elif q == 2 or c == 1: pre.append(f"s_sub_u32 s{sT3}, s{sWK+2*u+1}, 1280")
        else: pre += [f"s_cmp_lt_u32 s{sWV}, 2", f"s_cselect_b32 s{sT3}, s{sWK+2*u}, s{sWK+2*u+1}", f"s_sub_u32 s{sT3}, s{sT3}, 1280"]
        pre.append(f"s_add_u32 m0, s{sW1K}, {base + q*8192}")
        ops.append((pre, f"buffer_load_dwordx4 v{vWD+q}, {sr(SW,4)}, s{sT3} offen{WFL} lds"))
    return ops
sWOR = 86
def dma_wo(c, u):
    base = WO_BASE + u * 2 * UNIT
    ops = []
    if OPT["hackwo"]: return ops
    if u < OPT["worot"]:
        for q in range(3 if c == 0 else 2):
            pre = [f"s_lshl_b32 s{sT3}, s{sWOR+u}, 3", f"s_add_u32 s{sT3}, s{sT3}, s{sCUR}", f"s_add_u32 s{sT2}, s{sW1K}, s{sWOR+u}", f"s_add_u32 m0, s{sT2}, {WO_BASE + q*8192}"]
            ops.append((pre, f"buffer_load_dwordx4 v{vWO+q}, {sr(SO,4)}, s{sT3} offen{WOFL} lds"))
        return ops
    for q in range(3 if c == 0 else 2):
        pre = [f"s_add_u32 s{sT3}, s{sCUR}, {u*128*1280}", f"s_add_u32 m0, s{sW1K}, {base + q*8192}"]
        ops.append((pre, f"buffer_load_dwordx4 v{vWO+q}, {sr(SO,4)}, s{sT3} offen{WOFL} lds"))
    return ops
def emit_op(op, tag):
    if callable(op): return op()
    for p in op[0]: a(p)
    a(op[1], tag)

def spin_begin(name):
    a(f"s_mov_b32 s{sSPIN}, 0"); a.label(name)
def spin_check(name, done):
    a.vm = [t for t in a.vm if t != "~x"]
    a(f"s_add_u32 s{sSPIN}, s{sSPIN}, 1"); a(f"s_cmp_lt_u32 s{sSPIN}, {SPIN_MAX}"); a(f"s_cbranch_scc1 {name}")
    a.label(done)

def phi_ins(src, n, dst_list, tmp):
    r = []
    if OPT["hackphi"]:
        for d in dst_list:
            for i in range(0, n, 2): r.append(f"v_cvt_pk_bf16_f32 v{d+i//2}, v{src+i}, v{src+i+1}")
        return r
    for i in range(n): r.append(f"v_mul_f32 v{tmp+i}, s{sK}, v{src+i}")
    for i in range(n):
        r.append(f"v_exp_f32_e64 v{tmp+i}, v{tmp+i} clamp")
        r.append(f"v_max_f32 v{src+i}, s{sK+1}, v{src+i}")
    for i in range(n): r.append(f"v_add_f32 v{src+i}, v{src+i}, v{tmp+i}")
    for d in dst_list:
        for i in range(0, n, 2): r.append(f"v_cvt_pk_bf16_f32 v{d+i//2}, v{src+i}, v{src+i+1}")
    return r
def phi_pack(*args):
    for i in phi_ins(*args): a(i)
def pack_ins(src, dst):
    return [f"v_cvt_pk_bf16_f32 v{dst}, v{src}, v{src+1}", f"v_cvt_pk_bf16_f32 v{dst+1}, v{src+2}, v{src+3}"]
def pack(src, dst):
    for i in pack_ins(src, dst): a(i)
def mfma(d, A, B, C):
    c = C if isinstance(C, str) else vr(C, 4)
    a(f"v_mfma_f32_16x16x32_bf16 {vr(d,4)}, {vr(A,4)}, {vr(B,4)}, {c}")

def emit_side(x):
    if callable(x): x(); return 4
    if isinstance(x, list):
        for y in x: a(y)
        return max(1, sum(1 for y in x if y.startswith("v_")))
    a(x); return 1

def parse_pr(x):
    return {int(e.split(':')[0]): int(e.split(':')[1]) for e in str(x).split(',') if e}

def pipeline(N, reads, mf, bounds, boundary, L, Lb, bufs, newbufs={}, side={}, side_rate=3, prio=None, front=0):
    rd = 0; m = 0; tags = {}; bufof = {}; pend = []; every = 1; cnt = 0
    free = deque(bufs); bl = sorted(bounds); sq = deque()
    while m < N:
        can_read = rd < N and rd - m < L + 1 and len(free) > 0
        if can_read and rd in bounds and rd - m > Lb: can_read = False
        if can_read:
            if rd in bounds:
                for op in pend: emit_op(op[0], op[1])
                pend = list(boundary(bounds[rd]))
                nxt = [x for x in bl if x > rd]
                span = (nxt[0] if nxt else N) - rd
                every = max(1, (span - 1) // max(1, len(pend))); cnt = 0
                if front == 1: every = 1
                if front == 2:
                    for op in pend: emit_op(op[0], op[1])
                    pend = []
            bufof[rd] = free.popleft()
            tags[rd] = reads(rd, bufof[rd]); rd += 1
        else:
            if prio and (m % prio[0]) in prio[1]: a(f"s_setprio {prio[1][m % prio[0]]}")
            a.wait(lg=tags[m])
            cnt += 1; op = None
            if pend and cnt % every == 0:
                op = pend.pop(0)
                if not callable(op[0]):
                    for p in op[0][0]: a(p)
            mf(m, bufof[m])
            free.append(bufof[m])
            for b_ in newbufs.get(m, []): free.append(b_)
            if op is not None:
                if callable(op[0]): op[0]()
                else: a(op[0][1], op[1])
            for x in side.get(m, []): sq.append(x)
            k = 0
            while sq and k < side_rate:
                k += emit_side(sq.popleft())
            m += 1
    for op in pend: emit_op(op[0], op[1])
    while sq: emit_side(sq.popleft())

def step_offsets_win(s):
    sizes = [int(x) for x in str(OPT["win"]).split(",")]
    w0 = 0
    for sz in sizes:
        if s < w0 + sz: break
        w0 += sz
    if sz == 1:
        a(f"s_add_u32 s{sWK+s}, s5, {s*245760}"); a(f"s_add_u32 s{sXO+s}, s4, {s*128}")
        return
    a(f"s_add_u32 s{sT3}, s{sCUR}, {s - w0}"); a(f"s_and_b32 s{sT3}, s{sT3}, {sz-1}"); a(f"s_add_u32 s{sT3}, s{sT3}, {w0}")
    a(f"s_mul_i32 s{sWK+s}, s{sT3}, 245760"); a(f"s_add_u32 s{sWK+s}, s{sWK+s}, s5")
    a(f"s_lshl_b32 s{sXO+s}, s{sT3}, 7"); a(f"s_add_u32 s{sXO+s}, s{sXO+s}, s4")

def touch_steps(c, s0, n, par, tag):
    a(f"s_lshr_b32 s3, s2, 3"); a(f"s_and_b32 s6, s3, 1"); a(f"s_cmp_eq_u32 s6, {par}"); a(f"s_cbranch_scc0 L_nt_{tag}")
    a(f"s_lshr_b32 s3, s3, 1")
    a(f"s_and_b32 s6, s2, 3")
    if c == 1:
        a(f"s_cmp_eq_u32 s{sWV}, 4"); a(f"s_cbranch_scc0 L_tw_{tag}")
    if n < 5 and c == 1: a(f"s_branch L_nt_{tag}")
    else:
        a(f"s_lshl_b32 s6, s6, 4"); a(f"s_add_u32 s6, s6, s3"); a(f"s_mul_i32 s6, s6, {32*1280}")
        a(f"s_lshl_b32 s7, s{sWV}, 7"); a(f"s_add_u32 s6, s6, s7"); a(f"s_add_u32 s6, s6, {s0*128}")
        a(f"v_mul_u32_u24 v86, 1280, v{vL}")
        a("s_mov_b32 exec_hi, 0")
        a(f"buffer_load_dword v87, v86, {sr(SX,4)}, s6 offen nt", "~t")
        a("s_mov_b32 exec_hi, -1")
        if c == 1: a(f"s_branch L_nt_{tag}")
    if c == 1:
        a.label(f"L_tw_{tag}")
        a(f"s_lshl_b32 s6, s6, 4"); a(f"s_add_u32 s6, s6, s3"); a(f"s_mul_i32 s6, s6, 3840"); a(f"s_add_u32 s6, s6, {s0*245760 + 1280}")
        a(f"s_sub_u32 s7, s{sWV}, 5"); a(f"s_mul_i32 s7, s7, 34")
        a(f"v_add_u32 v86, s7, v{vL}"); a(f"v_min_u32 v86, {20*n-1}, v86")
        a(f"v_mul_u32_u24 v87, 3277, v86"); a(f"v_lshrrev_b32 v87, 16, v87")
        a(f"v_mul_u32_u24 v88, 20, v87"); a(f"v_sub_u32 v86, v86, v88"); a(f"v_lshlrev_b32 v86, 7, v86")
        a(f"v_mul_u32_u24 v87, 245760, v87"); a(f"v_add_u32 v86, v86, v87")
        a("s_mov_b32 exec_hi, 3")
        a(f"buffer_load_dword v87, v86, {sr(SW,4)}, s6 offen", "~t")
        a("s_mov_b32 exec_hi, -1")
    a.label(f"L_nt_{tag}")

vTX, vTW, vTD = 79, 89, 95
sTXB, sTWB = 12, 13
def tc_setup(sx, sw):
    a(f"v_lshrrev_b32 v{vTX}, 1, v{vL}"); a(f"v_mul_u32_u24 v{vTX}, 1280, v{vTX}"); a(f"v_and_b32 v{vTW}, 1, v{vL}"); a(f"v_lshl_add_u32 v{vTX}, v{vTW}, 7, v{vTX}")
    a(f"v_mul_u32_u24 v{vTW}, 3277, v{vL}"); a(f"v_lshrrev_b32 v{vTW}, 16, v{vTW}"); a(f"v_mul_u32_u24 v{vTW}, {3840 - 2560}, v{vTW}")
    a(f"v_lshl_add_u32 v{vTW}, v{vL}, 7, v{vTW}")
    a(f"s_lshr_b32 s6, s2, 3"); a(f"s_and_b32 s7, s2, 3"); a("s_lshl_b32 s7, s7, 5"); a("s_add_u32 s7, s7, s6"); a(f"s_mul_i32 s{sx}, s7, 20480")
    a(f"s_mul_i32 s{sw}, s6, 15360"); a(f"s_add_u32 s{sw}, s{sw}, 1280")
def tc_issue(s0, sx, sw, tag="~t"):
    a(f"s_add_u32 s6, s{sx}, {s0*128}"); a(f"s_add_u32 s7, s{sw}, {s0*245760}")
    a("s_mov_b32 exec_hi, 0")
    a(f"buffer_load_dword v{vTD}, v{vTX}, {sr(SX,4)}, s6 offen", tag)
    a("s_mov_b32 exec_hi, 0xff")
    a(f"buffer_load_dword v{vTD}, v{vTW}, {sr(SW,4)}, s7 offen", tag)
    a("s_add_u32 s7, s7, 7680")
    a(f"buffer_load_dword v{vTD}, v{vTW}, {sr(SW,4)}, s7 offen", tag)
    a("s_mov_b32 exec_hi, -1")

TQN = [0]
sAP = 12
CURB = [0]
def touch_ax(c, what):
    a(f"s_lshl_b32 s3, s{sRT}, 3"); a(f"s_add_u32 s3, s3, s{sHG}")
    if what == "o":
        a(f"s_lshl_b32 s3, s3, 3"); a(f"s_add_u32 s3, s3, s{sWV}"); a("s_mul_i32 s3, s3, 2560")
        a(f"v_lshlrev_b32 v86, 7, v{vL}")
        a("s_mov_b64 exec, 0xfffff")
        a(f"buffer_load_dword v95, v86, {sr(SS,4)}, s3 offen")
        a("s_mov_b64 exec, -1")
        return
    if what == "x":
        a(f"s_lshl_b32 s3, s3, 3"); a(f"s_add_u32 s3, s3, s{sWV}"); a("s_mul_i32 s3, s3, 2560")
        if OPT["axf"]:
            n = 10 - OPT["axf"]
            a(f"s_lshr_b32 s6, s{sRT}, 2"); a("s_mul_i32 s6, s6, 5"); a("s_add_u32 s6, s6, 1"); a("s_lshr_b32 s6, s6, 1"); a(f"s_add_u32 s6, s6, {OPT['axf']}")
            a(f"v_cmp_le_u32 vcc, {n}, v{vL}")
            a(f"v_add_u32 v86, s6, v{vL}"); a(f"v_subrev_u32 v87, {n}, v86"); a("v_cndmask_b32 v86, v86, v87, vcc")
            a("v_subrev_u32 v87, 10, v86"); a("v_min_u32 v86, v86, v87")
            a("v_lshlrev_b32 v86, 7, v86"); a("v_add_u32 v87, 1280, v86"); a("v_cndmask_b32 v86, v86, v87, vcc")
        else: a(f"v_lshlrev_b32 v86, 7, v{vL}")
        a("s_mov_b32 s4, s14"); a("s_mov_b32 s5, s15"); a("s_mov_b32 s6, 2621440"); a("s_mov_b32 s7, 0x20000")
        a(f"s_mov_b64 exec, {(1 << (2 * (10 - OPT['axf']))) - 1}")
    else:
        a(f"s_mul_i32 s3, s3, 5"); a(f"s_min_u32 s4, s{sWV}, 4"); a(f"s_add_u32 s3, s3, s4"); a("s_mul_i32 s3, s3, 3840"); a("s_add_u32 s3, s3, 1280")
        a(f"v_lshlrev_b32 v86, 7, v{vL}")
        a(f"s_cmp_lt_u32 s{sWV}, {OPT['awn']}"); a("s_cselect_b32 vcc_lo, 0xfffff, 1")
        a("s_mov_b32 s4, s100"); a("s_mov_b32 s5, s101"); a("s_mov_b32 s6, 2457600"); a("s_mov_b32 s7, 0x20000")
        a("s_mov_b32 exec_lo, vcc_lo"); a("s_mov_b32 exec_hi, 0")
    a(f"buffer_load_dword v95, v86, s[4:7], s3 offen")
    a("s_mov_b64 exec, -1")

def touch_qo(c):
    if OPT["tqonly"] == 1 and c == 1: return
    if OPT["tqonly"] == 2 and c == 0: return
    if OPT["eoff"] and CURB[0] == 0: return
    if OPT["ecpar"] >= 0:
        TQN[0] += 1
        a(f"s_add_u32 s3, s{sRT}, s{sHG}"); a(f"s_bitcmp1_b32 s3, 0"); a(f"s_cbranch_scc{1 - OPT['ecpar']} L_noq{TQN[0]}")
        a(f"s_lshl_b32 s3, s{sRT}, 2"); a(f"s_lshr_b32 s6, s{sHG}, 1"); a("s_add_u32 s3, s3, s6"); a(f"s_mul_i32 s3, s3, 100"); a(f"s_mul_i32 s6, s{sI}, 25"); a("s_add_u32 s3, s3, s6")
    else:
        a(f"s_lshl_b32 s3, s{sRT}, 3"); a(f"s_add_u32 s3, s3, s{sHG}"); a(f"s_mul_i32 s3, s3, 50"); a(f"s_mul_i32 s6, s{sI}, 13"); a("s_add_u32 s3, s3, s6")
    a(f"v_add_u32 v86, s3, v{vL}")
    if c == 0:
        a(f"v_mul_u32_u24 v87, 52429, v86"); a(f"v_lshrrev_b32 v87, 19, v87")
        a(f"v_mul_u32_u24 v88, 10, v87"); a(f"v_sub_u32 v86, v86, v88"); a(f"v_lshlrev_b32 v86, 7, v86")
        a(f"v_mul_u32_u24 v87, 3840, v87"); a(f"v_add_u32 v86, v86, v87")
    else:
        a(f"v_lshlrev_b32 v86, 7, v86")
    a(f"s_mov_b64 exec, {0x1fff if OPT['ecpar'] < 0 else 0x1ffffff}")
    if OPT["ecpar"] >= 0:
        a.ghost_cond["eq"] = [f"s_add_u32 s3, s{sRT}, s{sHG}", "s_and_b32 s3, s3, 1", f"s_cmp_eq_u32 s3, {OPT['ecpar']}"]
    a(f"buffer_load_dword v95, v86, {sr(SW if c == 0 else SO,4)}, 0 offen", "~eq" if OPT["ecpar"] >= 0 else None)
    if OPT["eoff"]:
        a(f"s_mov_b32 s4, s{sAP}"); a(f"s_mov_b32 s5, s{sAP+1}"); a(f"s_mov_b32 s6, {2457600 if c == 0 else 819200}"); a("s_mov_b32 s7, 0x20000")
        a(f"buffer_load_dword v95, v86, s[4:7], 0 offen")
    a("s_mov_b64 exec, -1")
    if OPT["ecpar"] >= 0: a.label(f"L_noq{TQN[0]}")

def prestore(c):
    a(f"s_lshl_b32 s3, s{sHG}, 11"); a(f"s_add_u32 s3, s3, s{sOB}"); a(f"s_add_u32 s3, s3, {c*1024}"); a("s_add_u32 s4, s3, 20480")
    a(f"s_lshl_b32 s5, s{sHG}, 9"); a(f"s_add_u32 s5, s5, s{sOB}"); a(f"s_add_u32 s5, s5, {16384 + c*256}"); a("s_add_u32 s6, s5, 20480")
    a(f"v_lshlrev_b32 v79, 4, v{vL}")
    a(f"buffer_store_dwordx4 v[80:83], v79, {sr(SS,4)}, s3 offen sc1")
    a(f"buffer_store_dwordx4 v[80:83], v79, {sr(SS,4)}, s4 offen sc1")
    a("s_mov_b64 exec, 0xffff")
    a(f"buffer_store_dwordx4 v[80:83], v79, {sr(SS,4)}, s5 offen sc1")
    a(f"buffer_store_dwordx4 v[80:83], v79, {sr(SS,4)}, s6 offen sc1")
    a("s_mov_b64 exec, -1")

ORDS = {
 "a": ["0213645789", "0142358679", "1302475689", "1053246978"],
 "b": ["0412385679", "1253049678", "2306145789", "3012745689"],
 "c": ["0123456789"] * 4,
 "d": ["0246135789", "0357124689", "1024683579", "1035792468"],
 "g": ["0213465789", "0132457689", "1024356879", "1023546798"],
 "h": ["0216345789", "0142835679", "1307245689", "1052934678"],
 "i": ["0213645789", "0142358679", "1302475689", "1053249678"],
 "j": ["0214365879", "0132547698", "1302456789", "1023456789"],
 "k": ["0321645789", "0145238679", "1203475689", "1054326978"],
 "l": ["0261345789", "0148235679", "1370245689", "1059234678"],
 "m": ["0316425789", "1047235689", "2150834679", "0125934678"],
 "n": ["0246135789", "0135724689", "1380245679", "1029345678"],
 "o": ["0213645789", "0142835679", "1302745689", "1053294678"],
 "p": ["0246135789", "0158234679", "1370245689", "1029345678"],
 "q": ["0245136789", "0136782459", "1302456789", "1023945678"],
 "r": ["0247135689", "0135824679", "1369024578", "1023456789"],
 "s": ["0241635789", "0135274689", "1308245679", "1023945678"],
 "t": ["0357124689", "1046235789", "2180345679", "0129345678"],
 "u": ["0234561789", "0167823459", "1023945678", "1023456789"],
 "v": ["0241356789", "0126834579", "1350246789", "1037924568"],
 "w": ["0241356789", "0126348579", "1350246789", "1037294568"],
 "x": ["0241635789", "0126345789".replace("6345", "7345").replace("789", "689"), "1350824679", "1032945678"],
 "y": ["0241356789", "0162834579", "1350246789", "1073924568"],
 "e": ["0231645789", "0145238679", "1320475689", "1054326978"],
}
sORD = 84
def step_offsets_ord(s):
    tabs = ORDS[OPT["ord"]]
    tabsB = ORDS[OPT["ordB"]] if OPT["ordB"] else tabs
    for t in tabs + tabsB: assert sorted(t) == list("0123456789")
    for t, u in zip(tabs, tabsB): assert t[0] == u[0]
    if s == 0:
        a(f"s_add_u32 s{sCUR}, s3, s{sHG}"); a(f"s_and_b32 s{sCUR}, s{sCUR}, 3")
        f0 = sum(int(t[0]) << (4 * k) for k, t in enumerate(tabs))
        a(f"s_lshl_b32 s{sT1}, s{sCUR}, 2"); a(f"s_lshr_b32 s{sT3}, 0x{f0:x}, s{sT1}"); a(f"s_and_b32 s{sT3}, s{sT3}, 15")
        if OPT["ordoff"]:
            a(f"s_and_b32 s83, s2, 3"); a("s_mul_i32 s83, s83, 5"); a("s_add_u32 s83, s83, 1"); a("s_lshr_b32 s83, s83, 1")
    else:
        if s == 1:
            pk = [sum(int(ch) << (4 * k) for k, ch in enumerate(t[1:9])) for t in tabs]
            p9 = sum(int(t[9]) << (4 * k) for k, t in enumerate(tabs))
            if tabsB is tabs:
                a(f"s_mov_b32 s{sORD}, 0x{pk[0]:x}")
                for k in (1, 2, 3): a(f"s_cmp_eq_u32 s{sCUR}, {k}"); a(f"s_cselect_b32 s{sORD}, 0x{pk[k]:x}, s{sORD}")
                a(f"s_lshl_b32 s{sT1}, s{sCUR}, 2"); a(f"s_lshr_b32 s{sORD+1}, 0x{p9:x}, s{sT1}"); a(f"s_and_b32 s{sORD+1}, s{sORD+1}, 15")
            else:
                pk += [sum(int(ch) << (4 * k) for k, ch in enumerate(t[1:9])) for t in tabsB]
                p9 |= sum(int(t[9]) << (16 + 4 * k) for k, t in enumerate(tabsB))
                a(f"s_lshl_b32 s{sT2}, s{sB}, 2"); a(f"s_add_u32 s{sT2}, s{sT2}, s{sCUR}")
                a(f"s_mov_b32 s{sORD}, 0x{pk[0]:x}")
                for k in range(1, 8): a(f"s_cmp_eq_u32 s{sT2}, {k}"); a(f"s_cselect_b32 s{sORD}, 0x{pk[k]:x}, s{sORD}")
                a(f"s_lshl_b32 s{sT1}, s{sT2}, 2"); a(f"s_lshr_b32 s{sORD+1}, 0x{p9:x}, s{sT1}"); a(f"s_and_b32 s{sORD+1}, s{sORD+1}, 15")
        if s < 9: a(f"s_bfe_u32 s{sT3}, s{sORD}, 0x{(4 << 16) | (4 * (s - 1)):x}")
        else: a(f"s_mov_b32 s{sT3}, s{sORD+1}")
    if OPT["ordoff"]:
        a(f"s_add_u32 s{sT3}, s{sT3}, s83"); a(f"s_cmp_ge_u32 s{sT3}, 10"); a(f"s_cselect_b32 s{sT1}, 10, 0"); a(f"s_sub_u32 s{sT3}, s{sT3}, s{sT1}")
    a(f"s_mul_i32 s{sWK+s}, s{sT3}, 245760"); a(f"s_add_u32 s{sWK+s}, s{sWK+s}, s5")
    a(f"s_lshl_b32 s{sXO+s}, s{sT3}, 7"); a(f"s_add_u32 s{sXO+s}, s{sXO+s}, s4")

def step_offsets(s):
    if OPT["ord"]: return step_offsets_ord(s)
    if OPT["win"]: return step_offsets_win(s)
    G = OPT["G"]; w0 = (s // G) * G
    if w0: a(f"s_add_u32 s{sT3}, s{sCUR}, {w0}"); src = sT3
    else: src = sCUR
    a(f"s_mul_i32 s{sWK+s}, s{src}, 245760"); a(f"s_add_u32 s{sWK+s}, s{sWK+s}, s5")
    a(f"s_lshl_b32 s{sXO+s}, s{src}, 7"); a(f"s_add_u32 s{sXO+s}, s{sXO+s}, s4")
    if G > 1 and s < 9:
        a(f"s_add_u32 s{sCUR}, s{sCUR}, 1"); a(f"s_cmp_eq_u32 s{sCUR}, {G}"); a(f"s_cselect_b32 s{sCUR}, 0, s{sCUR}")

sTCX, sTCW = 88, 89
def tc_start():
    f0 = OPT["tcpos"]
    a(f"s_cmp_lt_u32 s{sWV}, {OPT['tc0']}"); a("s_cbranch_scc0 L_notc0")
    a(f"s_mul_i32 s6, s{sWV}, 256"); a(f"s_add_u32 s{sT0}, s{sTCX}, s6"); a(f"s_mul_i32 s6, s{sWV}, {2*245760}"); a(f"s_add_u32 s{sT1}, s{sTCW}, s6")
    tc_issue(OPT["tcs"], sT0, sT1)
    a.label("L_notc0")

SCHED = {}
for ent in str(OPT["sched"]).split(","):
    if ent:
        p_, ks = ent.split(":"); SCHED[int(p_)] = [int(x) for x in ks.split(".")]
for p_, ks in SCHED.items():
    for k in ks: assert k - p_ <= 3 and k - p_ >= 1

def tlb_warm():
    a(f"v_lshlrev_b32 v88, 20, v{vL}")
    a("s_mov_b64 exec, 0x1f")
    a(f"buffer_load_dword v95, v88, {sr(SD,4)}, 0 offen")
    a("s_mov_b64 exec, 0x1ff")
    a(f"buffer_load_dword v95, v88, {sr(SS,4)}, 0 offen")
    a("s_mov_b64 exec, 1")
    a(f"buffer_load_dword v95, v88, {sr(SO,4)}, 0 offen")
    a("s_mov_b64 exec, -1")

def own_x_touch():
    if OPT["oxb"]: a(f"s_cmp_eq_u32 s{sB}, 0"); a("s_cbranch_scc1 L_noox")
    a(f"s_and_b32 s3, s2, 3"); a("s_lshl_b32 s3, s3, 5"); a("s_lshr_b32 s6, s2, 3"); a("s_add_u32 s3, s3, s6")
    a(f"s_lshl_b32 s3, s3, 3"); a(f"s_add_u32 s3, s3, s{sWV}"); a("s_mul_i32 s3, s3, 2560")
    if OPT["oxt"] == 1:
        a(f"v_lshlrev_b32 v88, 7, v{vL}"); a("s_mov_b64 exec, 0xfffff")
    else:
        n = 10 - OPT["oxf"]
        a(f"v_cmp_le_u32 vcc, {n}, v{vL}"); a(f"s_add_u32 s6, s83, {OPT['oxf']}")
        a(f"v_add_u32 v88, s6, v{vL}"); a(f"v_subrev_u32 v87, {n}, v88"); a("v_cndmask_b32 v88, v88, v87, vcc")
        a("v_subrev_u32 v87, 10, v88"); a("v_min_u32 v88, v88, v87")
        a("v_lshlrev_b32 v88, 7, v88"); a("v_add_u32 v87, 1280, v88"); a("v_cndmask_b32 v88, v88, v87, vcc")
        a(f"s_mov_b64 exec, {(1 << (2 * n)) - 1}")
    a(f"buffer_load_dword v95, v88, {sr(SX,4)}, s3 offen", "~oxB" if OPT["oxb"] else None)
    a("s_mov_b64 exec, -1")
    if OPT["oxb"]: a.label("L_noox")

def prologue():
    a.raw(f"; @launch grid=(256,1,1) block=(512,1,1) lds=163840")
    a.raw('.amdgcn_target "amdgcn-amd-amdhsa--gfx950"')
    a.raw(".text"); a.raw(f".globl {KNAME}"); a.raw(".p2align 8"); a.raw(f".type {KNAME},@function")
    a.label(KNAME)
    a("s_cmp_ge_u32 s2, 256")
    a("s_cbranch_scc1 L_end")
    a(f"s_bfe_u32 s{sB}, s2, 0x10002")
    a(f"s_mul_i32 s3, s{sB}, 24")
    a("s_add_u32 s76, s0, s3"); a("s_addc_u32 s77, s1, 0")
    if OPT["lean2"]:
        a(f"s_load_dwordx2 s[{SX}:{SX+1}], s[76:77], 0"); a(f"s_load_dwordx2 s[{SW}:{SW+1}], s[76:77], 8")
    else:
        a(f"s_load_dwordx4 s[{sM}:{sM+3}], s[76:77], 0")
        a("s_load_dwordx2 s[8:9], s[76:77], 16")
        a("s_load_dwordx4 s[12:15], s[0:1], 48")
        a("s_load_dwordx2 s[10:11], s[0:1], 64")
    a(f"v_lshrrev_b32 v{vT}, 6, v0")
    a(f"v_and_b32 v{vL}, 63, v0")
    a(f"v_readfirstlane_b32 s{sWV}, v{vT}")
    if OPT["stamps"]:
        a(f"v_mov_b32 v{vST}, 0"); a(f"s_memtime {sr(sTM,2)}"); a("s_memrealtime s[100:101]")
    a(f"v_lshrrev_b32 v{vT}, 3, v{vL}")
    a(f"v_lshrrev_b32 v{vT+1}, 4, v{vL}")
    a(f"v_xor_b32 v{vT+1}, v{vT+1}, v{vL}")
    a(f"v_and_b32 v{vT+1}, 7, v{vT+1}")
    a(f"v_mul_u32_u24 v{vT}, 1280, v{vT}")
    a(f"v_lshl_add_u32 v{vXD0}, v{vT+1}, 4, v{vT}")
    a(f"v_xor_b32 v{vXD1}, 64, v{vXD0}")
    a(f"v_add_u32 v{vXD1}, 10240, v{vXD1}")
    a(f"s_and_b32 s{sRT}, s2, 3"); a(f"s_lshl_b32 s{sRT}, s{sRT}, 2")
    a(f"s_bfe_u32 s3, s2, 0x20003"); a(f"s_add_u32 s{sRT}, s{sRT}, s3")
    a(f"s_lshr_b32 s{sHG}, s2, 5")
    a(f"s_lshr_b32 s{sC}, s{sWV}, 2")
    a(f"s_lshl_b32 s{sW1K}, s{sWV}, 10"); a(f"s_lshl_b32 s{sX2K}, s{sWV}, 11")
    G = OPT["G"]
    if OPT["ord"]: pass
    elif OPT["win"]: a(f"s_mov_b32 s{sCUR}, s3")
    elif G == 1: a(f"s_mov_b32 s{sCUR}, 0")
    elif G == 2: a(f"s_add_u32 s{sCUR}, s3, s{sHG}"); a(f"s_and_b32 s{sCUR}, s{sCUR}, 1")
    else:
        if OPT["rot2"]:
            a(f"s_mul_i32 s{sCUR}, s3, 5"); a(f"s_add_u32 s{sCUR}, s{sCUR}, 1"); a(f"s_lshr_b32 s{sCUR}, s{sCUR}, 1")
            a(f"s_add_u32 s{sCUR}, s{sCUR}, s{sHG}")
            if OPT["rot2"] == 1: a(f"s_lshr_b32 s{sT1}, s{sHG}, 2"); a(f"s_add_u32 s{sCUR}, s{sCUR}, s{sT1}")
            if OPT["rot2"] == 3: a(f"s_add_u32 s{sCUR}, s{sCUR}, s{sHG}"); a(f"s_add_u32 s{sCUR}, s{sCUR}, s{sHG}")
        else:
            a(f"s_lshl_b32 s{sCUR}, s3, 1"); a(f"s_add_u32 s{sCUR}, s{sCUR}, s{sHG}")
        if OPT["xrot"]: a(f"s_and_b32 s{sT1}, s2, 3"); a(f"s_add_u32 s{sCUR}, s{sCUR}, s{sT1}")
        for _ in range(3 if G == 5 or OPT['rot2'] == 3 else 1):
            a(f"s_cmp_ge_u32 s{sCUR}, {G}"); a(f"s_cselect_b32 s{sT1}, {G}, 0"); a(f"s_sub_u32 s{sCUR}, s{sCUR}, s{sT1}")
    a(f"s_lshl_b32 s4, s{sRT}, 3"); a(f"s_add_u32 s4, s4, s{sWV}"); a(f"s_mul_i32 s4, s4, 20480")
    a(f"s_mul_i32 s5, s{sHG}, 160"); a(f"s_add_u32 s5, s5, 1280")
    step_offsets(0)
    def cpf_addr():
        a("s_getpc_b64 s[6:7]")
        a.label(f"L_pc")
        a(f"s_sub_u32 s6, s6, L_pc-{KNAME}"); a("s_subb_u32 s7, s7, 0")
        a(f"s_lshr_b32 s3, s2, 3"); a(f"s_lshl_b32 s3, s3, 3"); a(f"s_add_u32 s3, s3, s{sWV}"); a("s_lshl_b32 s3, s3, 8")
        a(f"v_lshl_add_u32 v88, v{vL}, 7, s3")
        a(f"v_min_u32 v88, L_codeend-{KNAME}-4, v88")
        a(f"v_mov_b32 v87, s7")
        a(f"v_add_co_u32 v86, vcc, s6, v88")
        a(f"v_addc_co_u32 v87, vcc, 0, v87, vcc")
    def cpf_go():
        a("s_mov_b64 exec, 3"); a(f"global_load_dword v95, v[86:87], off"); a("s_mov_b64 exec, -1")
    LEAN = OPT["lean"]
    if not OPT["lean2"]:
        for q in range(1 if LEAN else 2): wvoff(vWD + q, q, 3840, True, 1280)
    a(f"s_mov_b32 s{SX+2}, 2621440"); a(f"s_mov_b32 s{SX+3}, 0x20000"); a(f"s_mov_b32 s{SW+2}, 2457600"); a(f"s_mov_b32 s{SW+3}, 0x20000")
    if OPT["codepf"] and not LEAN: cpf_addr()
    if OPT["tc0"]: tc_setup(sTCX, sTCW)
    a("s_waitcnt lgkmcnt(0)")
    if not OPT["lean2"]:
        a(f"s_mov_b32 s{SX}, s{sM}"); a(f"s_mov_b32 s{SX+1}, s{sM+1}"); a(f"s_mov_b32 s{SW}, s{sM+2}"); a(f"s_mov_b32 s{SW+1}, s{sM+3}")
    if OPT["codepf"] == 1 and not LEAN: cpf_go()
    if OPT["stamps"]:
        a(f"v_writelane_b32 v{vST}, s{sTM}, 0"); stamp("first")
    if OPT["tc0"] and OPT["tcpos"] == 0: tc_start()
    ops = dma_chunk(0, 0)
    if OPT["rv"]:
        def rvop(q):
            pre = []
            if q == 0:
                pre += [f"s_bitcmp1_b32 s{sCUR}, 0", f"s_cselect_b32 s6, 1280, 0", f"s_cselect_b32 s7, 10240, 0"]
                pre += [f"s_add_u32 s{sT3}, s{sWK}, s6", f"s_add_u32 s{sT2}, s{sW1K}, s7"]
            elif q == 1:
                pre += [f"s_bitcmp1_b32 s{sCUR}, 0", f"s_cselect_b32 s6, 1280, 0", f"s_cselect_b32 s7, 10240, 0"]
                pre += [f"s_add_u32 s{sT3}, s{sWK}, s6", f"s_add_u32 s{sT2}, s{sW1K}, s7", f"s_sub_u32 s{sT0}, s{sWK}, s6", f"s_sub_u32 s{sT1}, s{sW1K}, s7",
                        f"s_cmp_lt_u32 s{sWV}, 2", f"s_cselect_b32 s{sT3}, s{sT3}, s{sT0}", f"s_cselect_b32 s{sT2}, s{sT2}, s{sT1}"]
            else:
                pre += [f"s_sub_u32 s{sT3}, s{sWK}, s6", f"s_sub_u32 s{sT2}, s{sW1K}, s7"]
            pre.append(f"s_add_u32 m0, s{sT2}, {16384 + q*8192}")
            return (pre, f"buffer_load_dwordx4 v{vWD+q}, {sr(SW,4)}, s{sT3} offen lds")
        ops = ops[:2] + [rvop(q) for q in range(3)]
    if OPT["lean2"]:
        for op in ops[:2]: emit_op(op, "ch0")
        a("s_load_dwordx2 s[8:9], s[76:77], 16"); a("s_load_dwordx4 s[12:15], s[0:1], 48"); a("s_load_dwordx2 s[10:11], s[0:1], 64")
        wvoff(vWD, 0, 3840, True, 1280)
        emit_op(ops[2], "ch0")
    else:
        for op in ops[:3]: emit_op(op, "ch0")
    if LEAN:
        if OPT["codepf"] == 1: cpf_addr(); cpf_go()
        wvoff(vWD + 1, 1, 3840, True, 1280)
    emit_op(ops[3], "ch0")
    wvoff(vWD + 2, 2, 3840, True, 1280)
    a(f"s_cmp_eq_u32 s{sC}, 0"); a("s_cbranch_scc0 L_no5")
    emit_op(ops[4], "~c0")
    a.label("L_no5")
    if OPT["oxt"] and OPT["oxpos"] == 0: own_x_touch()
    if OPT["tc0"] and OPT["tcpos"] == 1: tc_start()
    if OPT["codepf"] == 2:
        if LEAN: cpf_addr()
        cpf_go()
    if OPT["stamps"]:
        a(f"v_writelane_b32 v{vST}, s100, 40")
    if OPT["lean2"]: a("s_waitcnt lgkmcnt(0)")
    srd(SS, 10, 11, WS_SIZE); srd(SG, 14, 15, 256)
    a(f"s_and_b32 s{sI}, s{sWV}, 3")
    a(f"s_or_b32 s3, s2, s{sWV}"); a("s_cmp_eq_u32 s3, 0"); a(f"s_cbranch_scc0 L_nn0")
    a(f"s_add_u32 s6, s10, {WS_E}"); a("s_addc_u32 s7, s11, 0")
    a(f"s_load_dword s{sN}, s[6:7], 0")
    a.label("L_nn0")
    if OPT["tbal"]: a(f"s_mul_i32 s7, s{sC}, 3"); a(f"s_xor_b32 s{sTI}, s{sI}, s7")
    else: a(f"s_mov_b32 s{sTI}, s{sI}")
    a(f"s_lshl_b32 s6, s{sHG}, 16"); a(f"s_lshl_b32 s7, s{sTI}, 9"); a(f"s_add_u32 s6, s6, s7")
    a(f"s_lshl_b32 s7, s{sC}, 11"); a("s_add_u32 s6, s6, s7")
    a(f"s_add_u32 s{sKVG}, s6, {WS_KV}")
    a(f"s_lshl_b32 s7, s{sRT}, 12"); a(f"s_add_u32 s{sKVP}, s{sKVG}, s7")
    a(f"s_lshl_b32 s6, s{sRT}, 3"); a(f"s_add_u32 s6, s6, s{sHG}"); a(f"s_mul_i32 s6, s6, 6144")
    a(f"s_mul_i32 s7, s{sC}, 3072"); a(f"s_add_u32 s{sHP}, s6, s7"); a(f"s_add_u32 s{sHP}, s{sHP}, {WS_HALO}")
    a(f"s_add_u32 s{sHG2}, s6, {WS_HALO - 8*6144}")
    a(f"v_mov_b32 v76, -1"); a(f"v_mov_b32 v77, -1"); a(f"v_lshlrev_b32 v78, 3, v{vL}")
    a(f"s_cmp_eq_u32 s{sB}, 0"); a(f"s_cbranch_scc0 L_preB")
    a(f"buffer_store_dwordx2 v[76:77], v78, {sr(SS,4)}, s{sKVP} offen sc1", "~preA")
    a(f"s_branch L_pred")
    a.label(f"L_preB")
    a(f"s_cmp_eq_u32 s{sI}, 3"); a(f"s_cbranch_scc0 L_pred")
    for k in range(5): a(f"buffer_store_dwordx2 v[76:77], v78, {sr(SS,4)}, s{sHP} offen offset:{k*512} sc1", "~preB")
    a.label(f"L_pred")
    step_offsets(1)
    for op in dma_chunk(0, 1)[:OPT["p1n"]]: emit_op(op, "ch1")
    if OPT["oxt"] and OPT["oxpos"] == 1: own_x_touch()
    stamp("issued")
    a(f"s_lshl_b32 s3, s{sB}, 1"); a(f"s_add_u32 s3, s3, s{sC}")
    a("s_cmp_eq_u32 s3, 1"); a("s_cbranch_scc1 L_path_01")
    a("s_cmp_eq_u32 s3, 2"); a("s_cbranch_scc1 L_path_10")
    a("s_cmp_eq_u32 s3, 3"); a("s_cbranch_scc1 L_path_11")

def prologue2(b, c):
    P = f"{b}{c}"
    if OPT["ea"]: touch_steps(c, 1, 5, 0, f"ea{P}")
    for s in range(2, 10): step_offsets(s)
    srd(SO, 8, 9, 819200); srd(SD, 12, 13, 5242880)
    CURB[0] = b
    if OPT["tlb"] == -1 and c == 1:
        a(f"s_cmp_eq_u32 s{sWV}, 7"); a(f"s_cbranch_scc0 L_notlb_{P}")
        n0 = len(a.vm); tlb_warm(); a.vm = a.vm[:n0] + ["~w7"] * 3
        a.ghost_cond["w7"] = [f"s_cmp_eq_u32 s{sWV}, 7"]
        a.label(f"L_notlb_{P}")
    if b == 1 and (OPT["eoff"] or OPT["axt"] > -2 or OPT["awt"] > -2):
        a(f"s_load_dwordx2 s[12:13], s[0:1], {8 if c == 0 else 16}"); a("s_load_dwordx2 s[14:15], s[0:1], 0")
        if OPT["awt"] > -2: a("s_load_dwordx2 s[100:101], s[0:1], 8")
        a("s_waitcnt lgkmcnt(0)")
        if OPT["axt"] == -1: touch_ax(c, "x")
        if OPT["awt"] == -1: touch_ax(c, "w")
        if OPT["aot"] == -1: touch_ax(c, "o")
    a(f"s_getreg_b32 s{sXCC}, hwreg(HW_REG_XCC_ID, 0, 3)")
    a(f"s_mul_i32 s{sCUR}, s{sHG}, 160")
    if P == "00":
        a(f"s_or_b32 s3, s2, s{sWV}"); a("s_cmp_eq_u32 s3, 0"); a(f"s_cbranch_scc0 L_nononce")
        a("s_waitcnt lgkmcnt(0)")
        a(f"s_add_u32 s6, s{sN}, 0x9e3779b0"); a("s_or_b32 s6, s6, 8"); a("s_andn2_b32 s6, s6, 7")
        a(f"v_mov_b32 v{vT}, s6"); a(f"v_mov_b32 v{vT+1}, 0"); a(f"s_mov_b32 s3, {WS_E}")
        a("s_mov_b64 exec, 1")
        a(f"buffer_store_dword v{vT}, v{vT+1}, {sr(SG,4)}, 0 offen sc1", "~n")
        a(f"buffer_store_dword v{vT}, v{vT+1}, {sr(SS,4)}, s3 offen sc1", "~n")
        a("s_mov_b64 exec, -1")
        a.label("L_nononce")
    a(f"v_and_b32 v{vT}, 15, v{vL}"); a(f"v_lshrrev_b32 v{vT+1}, 4, v{vL}")
    a(f"v_lshrrev_b32 v{vT+2}, 1, v{vT}"); a(f"v_xor_b32 v{vT+2}, v{vT+2}, v{vT+1}"); a(f"v_lshlrev_b32 v{vT+2}, 4, v{vT+2}")
    a(f"v_lshl_add_u32 v{vT+2}, v{vT}, 7, v{vT+2}")
    a(f"s_lshl_b32 s3, s{sI}, 12")
    a(f"v_add_u32 v{vXA0}, s3, v{vT+2}"); a(f"v_xor_b32 v{vXA1}, 64, v{vXA0}")
    a(f"v_lshrrev_b32 v{vT}, 5, v{vL}"); a(f"v_lshlrev_b32 v{vT}, 4, v{vT}")
    a(f"v_bfe_u32 v{vT+2}, v{vL}, 2, 3"); a(f"v_add_u32 v{vT}, v{vT}, v{vT+2}"); a(f"v_mul_u32_u24 v{vT}, 160, v{vT}")
    a(f"v_and_b32 v{vT+1}, 3, v{vL}")
    a(f"v_lshl_add_u32 v{vWA}, v{vT+1}, 3, v{vT}")
    if c: a(f"v_add_u32 v{vWA}, 80, v{vWA}")
    a(f"v_mad_u32_u24 v{vWE}, v{vT+1}, 40, v{vT}")
    a(f"v_add_u32 v{vWE}, {32 + (UNIT if c else 0)}, v{vWE}")
    a(f"s_lshl_b32 s3, s{sB}, 4"); a(f"s_add_u32 s3, s3, s{sRT}")
    a(f"s_lshl_b32 s4, s{sRT}, 3")
    boff = (1280 if AL else 128 * OT) * b
    a(f"s_lshl_b32 s5, s{sI}, 1"); a(f"s_add_u32 s5, s5, s4"); a(f"s_mul_i32 s{sOB}, s5, {OT}")
    if b: a(f"s_add_u32 s{sOB}, s{sOB}, {boff}")
    a(f"s_and_b32 s{sKH}, s{sWV}, 1")
    a(f"s_add_u32 s5, s4, s{sWV}"); a(f"s_mul_i32 s{sOUT}, s5, 40960")
    if b: a(f"s_add_u32 s{sOUT}, s{sOUT}, 1280")
    a(f"s_sub_u32 s5, s5, s{sKH}"); a(f"s_mul_i32 s{sOC}, s5, {OT}")
    a(f"s_mul_i32 s5, s{sKH}, {8*OP_}"); a(f"s_add_u32 s{sOC}, s{sOC}, s5")
    if b: a(f"s_add_u32 s{sOC}, s{sOC}, {boff}")
    a(f"s_mov_b32 s{sOE}, s{sOC}")
    a(f"s_add_u32 s{sOUT}, s{sOUT}, s{sCUR}")
    a(f"s_lshl_b32 s4, s3, 2")
    a(f"s_add_u32 s5, s4, s{sI}"); a(f"s_lshl_b32 s5, s5, 7"); a(f"s_lshl_b32 s6, s{sHG}, 3"); a(f"s_add_u32 s5, s5, s6")
    a(f"s_add_u32 s{sFP}, s5, {WS_FLAG + 4*c}")
    a(f"s_lshr_b32 s5, s{sWV}, 1"); a(f"s_add_u32 s5, s5, s4"); a(f"s_lshl_b32 s5, s5, 7"); a(f"s_add_u32 s5, s5, {WS_FLAG}")
    a(f"s_add_u32 s{sDFC}, s5, 64")
    a(f"s_lshl_b32 s7, s{sKH}, 2"); a(f"s_add_u32 s{sDFP}, s{sDFC}, s6"); a(f"s_add_u32 s{sDFP}, s{sDFP}, s7")
    a(f"s_lshl_b32 s7, s{sKH}, 5"); a(f"s_add_u32 s{sFC}, s5, s7")
    a(f"s_mov_b32 s{sK}, 0x{f2u(LOG2E):x}"); a(f"s_mov_b32 s{sK+1}, 0x{EPS:x}")
    for i in range(4): a(f"v_mov_b32 v{80+i}, s{sK+1}")
    a("v_mov_b32 v84, 0")
    if OPT["t0"]: touch_qo(c)
    if OPT["worot"]:
        R_ = OPT["worot"]
        a(f"s_and_b32 s3, s{sRT}, 3")
        for u in range(R_):
            a(f"s_add_u32 s4, s3, {u}")
            for _ in range(2): a(f"s_cmp_ge_u32 s4, {R_}"); a(f"s_cselect_b32 s5, {R_}, 0"); a("s_sub_u32 s4, s4, s5")
            a(f"s_mul_i32 s{sWOR+u}, s4, 20480")
    if OPT["dmap"]:
        dm = sum(int(ch) << (4 * k) for k, ch in enumerate(str(OPT["dmap"])[-4:]))
        a(f"s_and_b32 s3, s{sRT}, 3"); a(f"s_add_u32 s3, s3, s{sHG}"); a("s_and_b32 s3, s3, 3"); a("s_lshl_b32 s3, s3, 2")
        a(f"s_lshr_b32 s{sDUTY}, 0x{dm:x}, s3"); a(f"s_and_b32 s{sDUTY}, s{sDUTY}, 15")
    elif OPT["st0"] >= 0:
        a(f"s_lshr_b32 s3, s2, 3"); a(f"s_mul_i32 s4, s3, {(65536 + OPT['stn'] - 1) // OPT['stn']}"); a("s_lshr_b32 s4, s4, 16")
        a(f"s_mul_i32 s4, s4, {OPT['stn']}"); a(f"s_sub_u32 s{sDUTY}, s3, s4")
    if (OPT["tc"] or OPT["tcm"]) and not OPT["tc0"]: tc_setup(sTCX, sTCW)
    for q in range(3 if c == 0 else 2): wvoff(vWO + q, q, 1280, False, 64 * 1280)
    a(f"v_and_b32 v{vT}, 7, v{vL}"); a(f"v_lshlrev_b32 v{vT}, 7, v{vT}")
    a(f"s_mul_i32 s3, s{sHG}, {2*OP_}"); a(f"s_add_u32 s3, s3, {c*OP_}")
    a(f"v_add_u32 v{vT}, s3, v{vT}")
    a(f"v_bfe_u32 v{vT+1}, v{vL}, 3, 1"); a(f"v_mul_u32_u24 v{vT+1}, {OT}, v{vT+1}"); a(f"v_add_u32 v{vT}, v{vT}, v{vT+1}")
    a(f"v_and_b32 v{vT+1}, 1, v{vL}"); a(f"v_lshlrev_b32 v{vT+1}, 7, v{vT+1}")
    a(f"s_add_u32 s3, s3, 1024")
    a(f"v_add_u32 v{vT+1}, s3, v{vT+1}")
    a(f"v_bfe_u32 v{vT+2}, v{vL}, 1, 1"); a(f"v_mul_u32_u24 v{vT+2}, {OT}, v{vT+2}"); a(f"v_add_u32 v{vT+1}, v{vT+1}, v{vT+2}")
    set_mask("vcc", 0xffff)
    a(f"v_cndmask_b32 v{vPRE}, v{vT+1}, v{vT}, vcc")
    Z = 56; T1 = 57; T2_ = 58
    a(f"v_mov_b32 v{Z}, 0")
    if b == 0:
        a(f"v_and_b32 v{vGAD}, 31, v{vL}"); a(f"v_lshlrev_b32 v{vGAD}, 4, v{vGAD}"); a(f"v_lshrrev_b32 v{vT}, 5, v{vL}"); a(f"v_lshl_add_u32 v{vGAD}, v{vT}, 15, v{vGAD}")
        selm = lambda l: ((l >> 3) & 1) == ((l >> 4) & 1)
        a(f"v_mov_b32 v{T1}, 0x3f80"); a(f"v_mov_b32 v{T2_}, 0x3f800000")
        set_mask("vcc", lanemask(lambda l: l & 1)); a(f"v_cndmask_b32 v{T1}, v{T1}, v{T2_}, vcc")
        for r in range(4):
            set_mask("vcc", lanemask(lambda l: selm(l) and ((l & 7) >> 1) == r)); a(f"v_cndmask_b32 v{16+r}, v{Z}, v{T1}, vcc")
        a(f"v_mov_b32 v20, s{sK+1}"); a(f"v_mov_b32 v21, s{sK+1}"); a("v_mov_b32 v22, 0"); a("v_mov_b32 v23, 0")
        a(f"v_and_b32 v24, 15, v{vL}"); a("v_lshlrev_b32 v24, 1, v24"); a(f"v_and_b32 v25, 32, v{vL}"); a("v_add_u32 v24, v24, v25")
        a(f"v_bfe_u32 v25, v{vL}, 4, 1"); a("v_add_u32 v24, v24, v25"); a(f"v_lshlrev_b32 v24, {4 if OPT['opr'] else 3}, v24")
        if OPT["opr"]: a("v_xor_b32 v25, 512, v24")
        else: a(f"v_lshlrev_b32 v25, 3, v{vL}"); a("v_xor_b32 v25, 256, v25")
        a("v_mov_b32 v26, 0"); a("v_mov_b32 v26, 0"); a("v_mov_b32 v27, 0")
        ncst = 3
    else:
        dd = lambda l, j: (l & 15) - 4 * (l >> 4) - j
        own = lambda l, j: dd(l, j) >= 0 and dd(l, j) % 2 == 0
        prv = lambda l, j: dd(l, j) <= -2 and dd(l, j) % 2 == 0
        a(f"v_mov_b32 v{T1}, 0x{f2u(-1e30):x}")
        for j in range(4):
            set_mask("vcc", lanemask(lambda l: own(l, j))); a(f"v_cndmask_b32 v{16+j}, v{T1}, v{Z}, vcc")
            set_mask("vcc", lanemask(lambda l: prv(l, j))); a(f"v_cndmask_b32 v{20+j}, v{T1}, v{Z}, vcc")
            a(f"v_mov_b32 v{24+j}, 0x3f803f80")
        a(f"v_mov_b32 v{T1}, 0xffff"); a(f"v_mov_b32 v{T2_}, 0xffff0000")
        set_mask("vcc", lanemask(lambda l: l & 1)); a(f"v_cndmask_b32 v{T1}, v{T1}, v{T2_}, vcc")
        for k, (fn, pr) in enumerate(((prv, 0), (prv, 1), (own, 0), (own, 1))):
            set_mask("vcc", lanemask(lambda l: fn(l, 2 * pr + (l & 1)))); a(f"v_cndmask_b32 v{28+k}, v{Z}, v{T1}, vcc")
        ncst = 4
    a(f"v_lshlrev_b32 v{vT}, 4, v{vL}"); a(f"v_add_u32 v{vT}, {CST}, v{vT}")
    for k in range(ncst): a(f"ds_write_b128 v{vT}, {vr(16+4*k,4)} offset:{k*1024}")
    a.wait(lg="all")

def path(b, c):
    P = f"{b}{c}"; A_ = (b == 0)
    FB = A_ and OPT["fewb"]
    WQ_UNIT[:] = [8, 10, 12, 0, 2] if FB else [8, 10, 12, 0, 14]
    a.label(f"L_path_{P}")
    pstart = len(a.lines)
    a.vm = [("ch0" if (t == "~c0" and c == 0) else t) for t in a.vm]
    a.vm = [t for t in a.vm if not (t == "~preA" and b == 1) and not (t == "~preB" and b == 0) and not (t == "~c0")]
    a.vm = [t for t in a.vm if not (t == "~oxB" and b == 0)]
    a.vm = [{"~preA": "preA", "~preB": "~i3pre", "~oxB": "oxB"}.get(t, t) for t in a.vm]
    a(f"s_cmp_eq_u32 s{sI}, 0"); a(f"s_cselect_b32 s{sHV}, s{sRT}, 0")
    prologue2(b, c)
    if OPT["p1late"]:
        for op in dma_chunk(c, 1)[OPT["p1n"]:]: emit_op(op, "ch1")
        for op in dma_chunk(c, 2)[:OPT["p1late"] - 1]: emit_op(op, "ch2")
    vN0, vN1 = 84, 85
    def w0_begin(tag): a(f"s_cmp_eq_u32 s{sWV}, 0"); a(f"s_cbranch_scc0 L_{tag}_{P}")
    def w0_end(tag): a.label(f"L_{tag}_{P}")
    def nonce_load():
        w0_begin("nl")
        a(f"v_mov_b32 v{vN0}, 0")
        a(f"buffer_load_dword v{vN1}, v{vN0}, {sr(SG,4)}, 0 offen sc1", "~w0nonce")
        w0_end("nl")
    def nonce_check():
        w0_begin("nc")
        a.wait(vm="~w0nonce", keep=True)
        a(f"v_readfirstlane_b32 s{sN}, v{vN1}")
        a(f"s_cmp_lg_u32 s{sN}, 0"); a(f"s_cbranch_scc1 L_nok_{P}")
        spin_begin(f"L_nsp_{P}")
        a(f"buffer_load_dword v{vN1}, v{vN0}, {sr(SG,4)}, 0 offen sc1", "~x"); a("s_waitcnt vmcnt(0)")
        a(f"v_readfirstlane_b32 s{sN}, v{vN1}")
        a(f"s_cmp_lg_u32 s{sN}, 0"); a(f"s_cbranch_scc1 L_nok_{P}")
        spin_check(f"L_nsp_{P}", f"L_nok_{P}")
        a(f"s_lshl_b32 s3, s{sB}, 4"); a(f"s_add_u32 s3, s3, s{sRT}"); a(f"s_lshl_b32 s3, s3, 3"); a(f"s_add_u32 s3, s3, s{sHG}")
        a(f"s_lshl_b32 s3, s3, 7"); a(f"s_add_u32 s3, s3, {WS_RDY}")
        a(f"s_or_b32 s4, s{sN}, s{sXCC}")
        a(f"v_mov_b32 v{vN1}, s4")
        a("s_mov_b64 exec, 1")
        a(f"buffer_store_dword v{vN1}, v{vN0}, {sr(SS,4)}, s3 offen sc1", "~w0st")
        a("s_mov_b64 exec, -1")
        w0_end("nc")
    def rdy_load():
        w0_begin("rl")
        a(f"s_lshl_b32 s3, s{sB}, 4"); a(f"s_add_u32 s4, s3, s{sRT}"); a(f"s_lshl_b32 s4, s4, 3")
        a(f"v_add_u32 v{vN0}, s4, v{vL}")
        if A_:
            a(f"s_lshl_b32 s5, s3, 3"); a(f"s_add_u32 s5, s5, s{sHG}"); a(f"s_sub_u32 s5, s5, 64")
            a(f"v_lshl_add_u32 v{vN1}, v{vL}, 3, s5")
        else:
            a(f"s_max_u32 s5, s{sRT}, 1"); a(f"s_sub_u32 s5, s5, 1"); a(f"s_add_u32 s5, s5, s3"); a(f"s_lshl_b32 s5, s5, 3"); a(f"s_add_u32 s5, s5, s{sHG}")
            a(f"v_mov_b32 v{vN1}, s5")
        set_mask(sM, 0xff)
        a(f"v_cndmask_b32_e64 v{vN0}, v{vN1}, v{vN0}, {sr(sM,2)}")
        a(f"v_lshlrev_b32 v{vN0}, 7, v{vN0}")
        a(f"s_mov_b32 s3, {WS_RDY}")
        a(f"s_mov_b64 exec, {0xffffff if A_ else 0x1ff}")
        a(f"buffer_load_dword v{vN1}, v{vN0}, {sr(SS,4)}, s3 offen sc1", "~w0rdy")
        a("s_mov_b64 exec, -1")
        w0_end("rl")
    def rdy_check():
        em = 0xffffff if A_ else 0x1ff
        w0_begin("rc")
        a.wait(vm="~w0rdy", keep=True)
        def test():
            a(f"v_and_b32 v{vN1+1}, -8, v{vN1}")
            a(f"s_mov_b64 exec, {em}")
            a(f"v_cmp_ne_u32 vcc, s{sN}, v{vN1+1}")
            a("s_mov_b64 exec, -1")
            a(f"s_cbranch_vccz L_rok_{P}")
        test()
        spin_begin(f"L_rsp_{P}")
        a(f"s_mov_b32 s3, {WS_RDY}")
        a(f"s_mov_b64 exec, {em}")
        a(f"buffer_load_dword v{vN1}, v{vN0}, {sr(SS,4)}, s3 offen sc1", "~x"); a("s_waitcnt vmcnt(0)")
        test()
        spin_check(f"L_rsp_{P}", f"L_rok_{P}")
        a(f"s_or_b32 s3, s{sN}, s{sXCC}")
        a("s_mov_b64 exec, 0xff")
        a(f"v_cmp_ne_u32 vcc, s3, v{vN1}")
        a("s_mov_b64 exec, -1")
        a(f"s_cmp_eq_u32 vcc_lo, 0")
        a(f"s_cselect_b32 s3, {0 if OPT['force_slow'] else 1}, 0")
        a(f"s_or_b32 s3, s3, s{sN}")
        a(f"v_mov_b32 v{vN1}, s3"); a(f"v_mov_b32 v{vN0}, {BCAST}")
        sl = list(a.lg)
        a(f"ds_write_b32 v{vN0}, v{vN1}")
        a.lg = sl
        w0_end("rc")
    def bcast_read():
        a(f"v_mov_b32 v{vN0}, {BCAST}")
        a(f"ds_read_b32 v{vN1}, v{vN0}", "bc")
    def bcast_use():
        a.wait(lg="bc")
        a(f"v_readfirstlane_b32 s3, v{vN1}")
        a(f"s_and_b32 s{sFAST}, s3, 1"); a(f"s_andn2_b32 s{sN}, s3, 7")
    def touch():
        a(f"s_mul_i32 s3, s{sI}, 50"); a(f"v_add_u32 v86, s3, v{vL}"); a(f"s_lshr_b32 s4, s2, 3")
        if c == 0:
            a(f"v_mul_u32_u24 v87, 6554, v86"); a(f"v_lshrrev_b32 v87, 16, v87")
            a(f"v_mul_u32_u24 v88, 10, v87"); a(f"v_sub_u32 v86, v86, v88"); a(f"v_lshlrev_b32 v86, 7, v86")
            a(f"v_mul_u32_u24 v87, 3840, v87"); a(f"v_add_u32 v86, v86, v87"); a(f"s_mul_i32 s4, s4, {20*3840}")
        else:
            a(f"v_lshlrev_b32 v86, 7, v86"); a(f"s_mul_i32 s4, s4, 25600")
        a("s_mov_b32 exec_hi, 0x3ffff")
        a(f"buffer_load_dword v87, v86, {sr(SW if c == 0 else SO,4)}, s4 offen")
        a("s_mov_b32 exec_hi, -1")
    def opreload():
        a("s_mov_b64 exec, 0xfffff")
        a(f"buffer_load_dword v95, v{vPRE}, {sr(OS,4)}, s{sOB} offen{['', ' sc1', ' nt'][OPT['pnt']]}")
        a("s_mov_b64 exec, 1")
        a(f"buffer_load_dword v95, off, {sr(SS,4)}, s{sFC}")
        a("s_mov_b64 exec, -1")

    def xcd_touch(kind):
        a(f"s_and_b32 s3, s{sRT}, 3"); a(f"s_add_u32 s4, s3, s{sHG}"); a("s_bitcmp1_b32 s4, 1"); a(f"s_cbranch_scc0 L_nxt{kind}_{P}")
        a("s_and_b32 s4, s4, 1"); a("s_lshl_b32 s3, s3, 2"); a("s_add_u32 s3, s3, s4"); a(f"s_lshr_b32 s4, s{sHG}, 2"); a("s_lshl_b32 s4, s4, 1"); a("s_add_u32 s3, s3, s4")
        a("s_mul_i32 s3, s3, 400"); a(f"s_mul_i32 s4, s{sWV}, 50"); a("s_add_u32 s3, s3, s4")
        a(f"v_add_u32 v86, s3, v{vL}")
        if kind == "q":
            a(f"v_mul_u32_u24 v87, 52429, v86"); a(f"v_lshrrev_b32 v87, 19, v87")
            a(f"v_mul_u32_u24 v88, 10, v87"); a(f"v_sub_u32 v86, v86, v88"); a(f"v_lshlrev_b32 v86, 7, v86")
            a(f"v_mul_u32_u24 v87, 3840, v87"); a(f"v_add_u32 v86, v86, v87")
        else:
            a(f"v_lshlrev_b32 v86, 7, v86")
        a("s_mov_b32 exec_hi, 0x3ffff")
        a.ghost_cond["x2"] = [f"s_add_u32 s3, s{sRT}, s{sHG}", "s_bitcmp1_b32 s3, 1"]
        a(f"buffer_load_dword v95, v86, {sr(SW if kind == 'q' else SO,4)}, 0 offen", "~x2")
        a("s_mov_b32 exec_hi, -1")
        a.label(f"L_nxt{kind}_{P}")
    def fix_wd_for_q():
        if c == 0:
            a(f"s_cmp_lt_u32 s{sWV}, 2"); a(f"s_cselect_b32 s3, 0, 1280")
            a(f"v_subrev_u32 v{vWD+1}, s3, v{vWD+1}"); a(f"v_subrev_u32 v{vWD+2}, 1280, v{vWD+2}")
        else:
            a(f"v_subrev_u32 v{vWD+1}, 1280, v{vWD+1}")

    def acc1(t, rt): return ACC1 + (t * 2 + rt) * 4
    Tor = [not A_, not A_, False, False, (not A_) and c == 0]
    eps1 = [A_, A_, False, False, A_ and c == 0]
    items1 = [(sg, t) for sg in range(18) for t in range(5)] + [(18, 0), (18, 4), (18, 1), (19, 0), (19, 4), (19, 1), (18, 2), (18, 3), (19, 2), (19, 3)]
    seenx = set()
    def reads(n, w):
        sg, t = items1[n]; s = sg & 1; tg = []
        if sg not in seenx:
            seenx.add(sg)
            for rt in range(2): tg.append(a(f"ds_read_b128 {vr(X(sg,rt),4)}, v{vXA1 if s else vXA0} offset:{rt*2048}"))
        for h in range(2):
            if OPT["hackport"] in (1, 2) and t == 4 and sg > 0: continue
            if OPT["hackport"] == 4 and t in (1, 3, 4) and sg > 0: continue
            off = 16384 + s * 5120 + h * 1280
            if t < 4: tg.append(a(f"ds_read_b64_tr_b16 {vr(w+2*h,2)}, v{vWA} offset:{off + (UNIT if t >= 2 else 0) + 40*(t&1)}"))
            else: tg.append(a(f"ds_read_b64_tr_b16 {vr(w+2*h,2)}, v{vWE} offset:{off}"))
        return tg
    def mf(n, w):
        sg, t = items1[n]
        if OPT["hackport"] in (1, 3) and t == 4 and sg > 0: return
        for rt in ((1, 0) if (OPT["snake"] and n % 2) else (0, 1)):
            C = acc1(t, rt) if sg else (80 if eps1[t] else "0")
            if Tor[t]: mfma(acc1(t, rt), w, X(sg, rt), C)
            else: mfma(acc1(t, rt), X(sg, rt), w, C)
    R = OPT["rdy_at"]
    def bnd1(ch):
        if ch > 0:
            d = SLOT if ch % 4 else -3 * SLOT
            for r in (vXA0, vXA1, vWA, vWE): a(f"v_add_u32 v{r}, {d}, v{r}")
        a.wait(vm=f"ch{ch}", lg="all" if (ch and OPT["LA"] == 3) or ch == 9 or (OPT["ahead"] and 1 <= ch <= 6) or any(k - ch >= 3 for k in SCHED.get(ch, [])) and ch else None)
        a("s_barrier")
        stamp(f"b{ch}")
        ops = []
        if c == 0:
            if ch == 0: ops.append((nonce_load, None))
            if ch == 1: ops.append((nonce_check, None))
            if ch == R: ops.append((rdy_load, None))
            if ch == R + 2: ops.append((rdy_check, None))
        if ch == R + 3: ops.append((bcast_read, None))
        if OPT["LA"] == 3:
            if ch == 0 and OPT["pro"] < 3: ops += [(op, "ch2") for op in dma_chunk(c, 2)]
            if ch + 3 <= 9: ops += [(op, f"ch{ch+3}") for op in dma_chunk(c, ch + 3)]
        elif OPT["sched"]:
            if ch == 0: ops += [(op, "ch1") for op in dma_chunk(c, 1)[OPT["p1n"]:]]
            for k in SCHED.get(ch, []): ops += [(op, f"ch{k}") for op in dma_chunk(c, k)]
        else:
            if ch == 0 and not OPT["p1late"]: ops += [(op, "ch1") for op in dma_chunk(c, 1)[OPT["p1n"]:]]
            AH = OPT["ahead"]
            if ch + 2 <= 9: ops += [(op, f"ch{ch+2}") for op in dma_chunk(c, ch + 2)[(max(0, OPT["p1late"] - 1) if ch == 0 else (AH if ch >= 2 else 0)):]]
            if AH and ch >= 1 and ch + 3 <= 9: ops += [(op, f"ch{ch+3}") for op in dma_chunk(c, ch + 3)[:AH]]
        if ch == R + 3: ops.append((bcast_use, None))
        if ch == OPT["tq"]: ops.append((touch, None))
        if ch == OPT["eb"]: ops.insert(0, (lambda: touch_steps(c, 6, 4, 1, f"eb{P}"), None))
        if ch == OPT["eb"] + 100 or (OPT["eb"] >= 100 and ch == OPT["eb"] - 100): ops.append((lambda: touch_steps(c, 6, 4, 1, f"eb{P}"), None))
        if ch == OPT["ec"] and not (OPT["st0"] >= 0 and OPT["stq"]): ops.append((lambda: touch_qo(c), None))
        if OPT["tc"]:
            for ent in str(OPT["tc"]).split(","):
                per, st = (int(x) for x in ent.split(":"))
                if per == ch and c == OPT["tcw"] >> 2:
                    def tcl(st=st):
                        a(f"s_cmp_eq_u32 s{sWV}, {OPT['tcw']}"); a(f"s_cbranch_scc0 L_ntc{st}_{P}")
                        tc_issue(st, sTCX, sTCW)
                        a.label(f"L_ntc{st}_{P}")
                    ops.append((tcl, None))
        if OPT["tcm"] and c == 0:
            per, sts = str(OPT["tcm"]).split(":")
            if int(per) == ch:
                def tcm():
                    for w_, st in enumerate(int(x) for x in sts.split(".")):
                        a(f"s_cmp_eq_u32 s{sWV}, {w_ + 1}"); a(f"s_cbranch_scc0 L_tcm{w_}_{P}")
                        tc_issue(st, sTCX, sTCW)
                        a.label(f"L_tcm{w_}_{P}")
                ops.append((tcm, None))
        if ch == OPT["xw"]: ops.append((lambda: xcd_touch("w"), None))
        if ch == OPT["xq"]: ops.append((lambda: xcd_touch("q"), None))
        if ch == OPT["tlb"] and c == 1:
            def tl():
                a(f"s_cmp_eq_u32 s{sWV}, 7"); a(f"s_cbranch_scc0 L_notlb_{P}")
                n0 = len(a.vm); tlb_warm(); a.vm = a.vm[:n0] + ["~w7"] * 3
                a.ghost_cond["w7"] = [f"s_cmp_eq_u32 s{sWV}, 7"]
                a.label(f"L_notlb_{P}")
            ops.append((tl, None))
        if b == 1 and ch == OPT["aot"]: ops.append((lambda: touch_ax(c, "o"), None))
        if b == 1 and ch == OPT["axt"]: ops.insert(0, (lambda: touch_ax(c, "x"), None))
        if b == 1 and ch == OPT["awt"]: ops.insert(0, (lambda: touch_ax(c, "w"), None))
        if ch == OPT["prel1"]: ops.append((opreload, None))
        if OPT["st0"] >= 0 and 0 <= ch - OPT["st0"] < OPT["stn"]:
            def duty(k=ch - OPT["st0"]):
                a(f"s_cmp_eq_u32 s{sDUTY}, {k}"); a(f"s_cbranch_scc0 L_nd{k}_{P}")
                n0 = len(a.vm)
                if OPT["stq"]: touch_qo(c)
                if OPT["stp"]: opreload()
                a.vm = a.vm[:n0] + [f"~d{k}" for _ in a.vm[n0:]]
                a.ghost_cond[f"d{k}"] = [f"s_cmp_eq_u32 s{sDUTY}, {k}"]
                a.label(f"L_nd{k}_{P}")
            ops.append((duty, None))
        if ch == OPT["pst"]: ops.append((lambda: prestore(c), None))
        if OPT["LA"] == 3:
            if ch == 7: ops += [(fix_wd_for_q, None)] + [(op, "wq0") for op in dma_wq(c, 0)]
            if ch == 8: ops += [(op, f"wq{u}") for u in (1, 2) for op in dma_wq(c, u)]
            if ch == 9: ops += [(op, f"wq{u}") for u in (3, 4) for op in dma_wq(c, u)]
        else:
            if ch == 8: ops += [(fix_wd_for_q, None)] + [(op, "wq0") for op in dma_wq(c, 0)]
            if ch == 9: ops += [(op, f"wq{u}") for u in (1, 2) for op in dma_wq(c, u)]
        return ops
    hA, hB = 2 * c, 2 * c + 1
    gm = lambda h: lanemask(lambda l: (l >> 4) == h)
    half = lanemask(lambda l: (l >> 5) == c)
    pipeline(100, reads, mf, {10 * ch: ch for ch in range(10)}, bnd1, OPT["L"], OPT["Lb"], [WF + 4 * k for k in range(5)], prio=(10, parse_pr(OPT["pr1"])) if c == 1 else None, front=OPT["front"])
    if c == 1 and OPT["prep"] >= 0: a(f"s_setprio {OPT['prep']}")
    stamp("p1end")

    vL16, vL8 = vXA0, vXA1
    a(f"v_lshlrev_b32 v{vL16}, 4, v{vL}"); a(f"v_lshlrev_b32 v{vL8}, 3, v{vL}")
    a(f"v_add_u32 v{vWA}, {WQ_UNIT[0]*UNIT - SLOT}, v{vWA}")
    a(f"v_add_u32 v{vWE}, {WQ_UNIT[0]*UNIT - SLOT - (UNIT if c else 0)}, v{vWE}")
    WD = OPT["wodef"]; assert WD >= 2 and OPT["LA"] == 2
    WOA = {u + WD: [u] for u in range(5) if u + WD <= 4}
    if OPT["woA"]:
        WOA = {int(e.split(":")[0]): [int(x) for x in e.split(":")[1].split(".")] for e in OPT["woA"].split(",")}
        for u_, ks in WOA.items():
            for k in ks: assert u_ >= (0, 1, 3, 3, 3)[k]
    if FB: late_wo = [op for u in range(5) if not any(u in v for v in WOA.values()) for op in dma_wo(c, u)]
    else: late_wo = [op for u in range(5) if u + WD > 4 for op in dma_wo(c, u)]
    nq = 3 if c == 0 else 2
    def late(k, last=False):
        for _ in range(k):
            keep_ = nq * OPT["woaft"] if (last or FB) else nq * max(1, OPT["woaft"])
            if last == 2: keep_ = 0
            if len(late_wo) > keep_: emit_op(late_wo.pop(0), "wo")
    if A_:
        KAa, KAb, VBa, VBb, EO = 56, 60, 64, 68, 72
        TMP = 76
        a(f"s_lshl_b32 s3, s{sWV}, 12"); a(f"v_add_u32 v{vT}, s3, v{vL16}")
        a(f"v_add_u32 v{vT+1}, s{sW1K}, v{vL16}"); a(f"v_add_u32 v{vT+1}, {EE_A2}, v{vT+1}")
        phi_pack(acc1(0, 0), 8, [KAa], TMP)
        a(f"ds_write_b128 v{vT}, {vr(KAa,4)} offset:{OPX}")
        if c == 0: phi_pack(acc1(4, 0), 8, [EO], TMP)
        else: pack(acc1(4, 0), EO); pack(acc1(4, 1), EO + 2)
        a(f"ds_write_b128 v{vT+1}, {vr(EO,4)}")
        phi_pack(acc1(1, 0), 8, [KAb], TMP)
        a(f"ds_write_b128 v{vT}, {vr(KAb,4)} offset:{OPX + 1024}")
        for t, d in ((2, VBa), (3, VBb)):
            pack(acc1(t, 0), d); pack(acc1(t, 1), d + 2)
            a(f"ds_write_b128 v{vT}, {vr(d,4)} offset:{OPX + t*1024}")
        a(f"v_add_u32 v{vT}, {OPX + c*16384}, v{vL16}")
        a(f"v_add_u32 v{vT+1}, {EE_A2}, v{vL16}")
        a(f"v_and_b32 v{vT+2}, 0x31, v{vL}"); a(f"v_bfe_u32 v{vT+3}, v{vL}, 2, 2")
        a(f"v_lshl_add_u32 v{vT+2}, v{vT+3}, 1, v{vT+2}"); a(f"v_lshlrev_b32 v{vT+2}, 4, v{vT+2}")
        a(f"v_add_u32 v{vT+2}, {EE_A2 + 4096 + 128*c}, v{vT+2}")
        a(f"v_mov_b32 v89, 0x3f803f80")
        for i in range(4): a(f"v_mov_b32 v{80+i}, s{sK+1}")
    else:
        KA = {("a", 0): 56, ("b", 0): 60, ("a", 1): 64, ("b", 1): 68, ("a", -1): 96, ("b", -1): 100}
        Va, Vb, Ev = 72, 78, 84
        for rt in (1, 0):
            pack(acc1(0, rt), KA[("a", rt)]); pack(acc1(1, rt), KA[("b", rt)])
            if c == 0: pack(acc1(4, rt), KA[("a", rt)] + 2); pack(acc1(4, rt), KA[("b", rt)] + 2)
            else: pack(acc1(4, rt), Ev + 2 + 2 * rt)
            pack(acc1(2, rt), Va + 2 + 2 * rt); pack(acc1(3, rt), Vb + 2 + 2 * rt)
        Eown = [KA[("a", 0)] + 2, KA[("a", 1)] + 2] if c == 0 else [Ev + 2, Ev + 4]
        xs = [KA[("a", 1)], KA[("b", 1)], Va + 4, Vb + 4, Eown[1], Eown[0]]
        a(f"s_mul_i32 s3, s{sWV}, 3072")
        a(f"v_add_u32 v{vT}, s3, v{vL8}")
    a.wait(vm="wq0", lg="all")
    a("s_barrier")
    stamp("E1")
    if A_:
        R0 = 16
        D0, D1, D2 = 84, 72, 76
        def rd(dst, areg, off): return a(f"ds_read_b128 {vr(dst,4)}, v{areg} offset:{off}")
        def evb(dst):
            for j in range(4): a(f"v_cndmask_b32 v{dst+j}, v{dst+j}, v89, vcc")
        a(f"s_cmp_lt_u32 s{sTI}, 2"); a(f"s_cbranch_scc0 L_t23_{P}")
        a(f"s_lshl_b32 s3, s{sTI}, 10"); a(f"v_add_u32 v{vT}, s3, v{vT}")
        a.lg = []
        tg = []
        for g in range(4): tg.append([rd(R0 + 8 * g, vT, g * 4096), rd(R0 + 8 * g + 4, vT, g * 4096 + 2048)])
        for g in range(4):
            a.wait(lg=tg[g]); mfma(D0, R0 + 8 * g, R0 + 8 * g + 4, D0 if g else "0")
        a("s_nop 7")
        a(f"s_branch L_tdone_{P}")
        a.label(f"L_t23_{P}")
        set_mask("vcc", 0x3333333333333333)
        a(f"s_cmp_eq_u32 s{sTI}, 2"); a(f"s_cbranch_scc0 L_t3_{P}")
        a.lg = []
        tg = []
        for g in range(4): tg.append([rd(R0 + 12 * g, vT + 2, g * 1024), rd(R0 + 12 * g + 4, vT, g * 4096), rd(R0 + 12 * g + 8, vT, g * 4096 + 1024)])
        for g in range(4):
            a.wait(lg=tg[g]); evb(R0 + 12 * g)
            mfma(D0, R0 + 12 * g + 4, R0 + 12 * g, D0 if g else "0")
            mfma(D1, R0 + 12 * g + 8, R0 + 12 * g, D1 if g else "0")
        set_mask("vcc", 0x11dd11dd11dd11dd)
        for j in range(4): a(f"v_cndmask_b32 v{D0+j}, v{D1+j}, v{D0+j}, vcc")
        a(f"s_branch L_tdone_{P}")
        a.label(f"L_t3_{P}")
        a.lg = []
        tg = []
        B0 = [16, 32, 48, 16]
        def rd3(g): return [rd(B0[g], vT + 2, g * 1024), rd(B0[g] + 4, vT + 1, g * 1024), rd(B0[g] + 8, vT, g * 4096 + 2048), rd(B0[g] + 12, vT, g * 4096 + 3072)]
        for g in range(3): tg.append(rd3(g))
        for g in range(4):
            a.wait(lg=tg[g]); evb(B0[g])
            mfma(D0, B0[g] + 4, B0[g] + 8, D0 if g else "0")
            mfma(D1, B0[g] + 4, B0[g] + 12, D1 if g else "0")
            mfma(D2, B0[g] + 4, B0[g], D2 if g else "0")
            if g == 0: tg.append(rd3(3))
        set_mask("vcc", gm(hA))
        for j in range(4): a(f"v_cndmask_b32 v{D0+j}, v{D1+j}, v{D0+j}, vcc")
        for j in range(4):
            if c == 0: a(f"v_permlane32_swap_b32 v{D0+j}, v{D2+j}")
            else: a(f"v_permlane32_swap_b32 v{D2+j}, v{D0+j}")
        a.label(f"L_tdone_{P}")
        a.lg = []
        pack(D0, 88)
        a(f"v_min_u32 v{D0}, -2, v88"); a(f"v_min_u32 v{D0+1}, -2, v89")
        a(f"buffer_store_dwordx2 {vr(D0,2)}, v{vL8}, {sr(SS,4)}, s{sKVP} offen sc1")
    else:
        for k in range(6): a(f"ds_write_b64 v{vT}, {vr(xs[k],2)} offset:{EXB + k*512}")
        a(f"s_cmp_eq_u32 s{sI}, 3"); a(f"s_cbranch_scc0 L_nohp_{P}")
        for k in range(5):
            for j in range(2): a(f"v_min_u32 v{xs[k]+j}, -2, v{xs[k]+j}")
            a(f"buffer_store_dwordx2 {vr(xs[k],2)}, v{vL8}, {sr(SS,4)}, s{sHP} offen offset:{k*512} sc1", "~i3hp")
        a.label(f"L_nohp_{P}")
    stamp("pub1")

    ACC2 = 16; WF2 = 40
    oc = 1 - c
    NT2 = 3 if c == 0 else 2
    def acc2(t, rt): return ACC2 + (t * 2 + rt) * 4
    items2 = [(sg, t) for sg in range(16) for t in range(NT2)] + [(sg, t) for t in ((2, 0, 1) if c == 0 else (0, 1)) for sg in range(16, 20)]
    N2 = len(items2)
    def ix(sg): return NT2 * sg
    iEQ = N2 - 8; iQA = N2 - 4
    def reads2(n, w):
        sg, t = items2[n]; tg = []
        for h in range(2):
            off = ((sg >> 1) & 1) * UNIT + (sg & 1) * 5120 + h * 1280
            if t < 2: tg.append(a(f"ds_read_b64_tr_b16 {vr(w+2*h,2)}, v{vWA} offset:{off + 40*t}"))
            else: tg.append(a(f"ds_read_b64_tr_b16 {vr(w+2*h,2)}, v{vWE} offset:{off}"))
        return tg
    def mf2(n, w):
        sg, t = items2[n]
        for rt in ((1, 0) if (OPT["snake"] and n % 2) else (0, 1)):
            C = acc2(t, rt) if sg else (80 if A_ else "0")
            mfma(acc2(t, rt), w, X(sg, rt), C)
    GA = 56
    def gather(tag="gat"):
        for r in range(8):
            a(f"s_add_u32 s3, s{sKVG}, {r*4096}")
            a(f"buffer_load_dwordx4 {vr(GA+4*r,4)}, v{vGAD}, {sr(SS,4)}, s3 offen sc1", tag)
    def gather_ops():
        if OPT["hackgat"]: return []
        return [([f"s_add_u32 s3, s{sKVG}, {r*4096}"], f"buffer_load_dwordx4 {vr(GA+4*r,4)}, v{vGAD}, {sr(SS,4)}, s3 offen sc1") for r in range(8)]
    HL = [KA[("a", -1)], KA[("b", -1)], Va, Vb, KA[("a", -1)] + 2, Ev, KA[("b", -1)] + 2] if not A_ else None
    def halo_loads(tag="~h0halo"):
        offs = [c*3072, c*3072 + 512, c*3072 + 1024, c*3072 + 1536, 2048, 3072 + 2048, 2048]
        for d, o in zip(HL, offs):
            a(f"s_add_u32 s3, s{sHG2}, {o}")
            a(f"buffer_load_dwordx2 {vr(d,2)}, v{vL8}, {sr(SS,4)}, s3 offen sc1", tag)
    def halo_issue():
        a(f"s_cmp_eq_u32 s{sHV}, 0")
        a(f"s_cbranch_scc1 L_nohl_{P}")
        halo_loads()
        a.label(f"L_nohl_{P}")
    def bnd2(u):
        ops = []
        if u > 0:
            d = (WQ_UNIT[u] - WQ_UNIT[u - 1]) * UNIT
            for r in (vWA, vWE): a(f"v_add_u32 v{r}, {d}, v{r}")
            if not FB or u in (1, 3):
                a.wait(vm=f"wq{u + 1 if FB else u}", lg="all")
                a("s_barrier")
            stamp(f"p{u}")
        if FB:
            if u == 1: ops += [(op, f"wq{k}") for k in (3, 4) for op in dma_wq(c, k)]
            ops += [(op, "wo") for k in WOA.get(u, []) for op in dma_wo(c, k)]
        else:
            if u in (1, 2): ops += [(op, f"wq{u+2}") for op in dma_wq(c, u + 2)]
            if u >= WD: ops += [(op, "wo") for op in dma_wo(c, u - WD)]
        if u == OPT["prel_at"] and OPT["prel1"] < 0 and not (OPT["st0"] >= 0 and OPT["stp"]): ops = ops + [(opreload, None)]
        if A_ and OPT["gk"]: return ops
        if u == (OPT["gat_at"] if A_ else OPT["hal_at"]):
            g = gather_ops()
            if OPT["gspread"]: g = g[:4]
            ops = ([(op, "gat") for op in g] if A_ else [(halo_issue, None)]) + ops
        if u == OPT["gat_at"] + 1 and A_ and OPT["gspread"]:
            ops = [(op, "gat") for op in gather_ops()[4:]] + ops
        return ops
    QB = {("a", 0): 160, ("b", 0): 164, ("a", 1): 168, ("b", 1): 172}
    side = {}
    vEQo, vEQp = 124, 125
    eqaddr = [[f"s_lshl_b32 s4, s{sI}, 10", f"v_add_u32 v{vEQo}, s4, v{vL8}"]]
    cst = [f"v_add_u32 v126, {CST}, v{vL16}"]
    if A_:
        SEL, C0, CA = 96, 100, 104
        Axb = 104; vOW = 126; vOX = 127
        cst += [f"ds_read_b128 {vr(96+4*k,4)}, v126 offset:{k*1024}" for k in range(3)]
        def cfix():
            a.wait(lg="all")
            if OPT["opr"]: a(f"v_mov_b32 v{vOW}, v{CA}")
            else: a(f"s_lshl_b32 s4, s{sTI}, 9"); a(f"v_add_u32 v{vOW}, s4, v{CA}")
            a(f"v_mov_b32 v{vOX}, v{CA+1}")
        GS = 108; GT = 88
        def gsum():
            for r in range(8): mfma(GS, SEL, GA + 4 * r, GS if r else "0")
        def gpart1():
            assert OPT["hackgat"] or sum(1 for l in a.lines[pstart:] if f"v{vGAD}, s[32:35]" in l) == 8, "gather not fully issued"
            a.wait(vm="gat"); gsum()
        def gpart2():
            a(f"v_add_f32 v{GT}, v{GS}, v{GS+1}"); a(f"v_add_f32 v{GT+1}, v{GS+2}, v{GS+3}"); a(f"v_add_f32 v{GT}, v{GT}, v{GT+1}")
            a(f"v_cmp_u_f32 vcc, v{GT}, v{GT}")
            a(f"s_cbranch_vccz L_gok_{P}" if not OPT["hackgat"] else f"s_branch L_gok_{P}")
            spin_begin(f"L_gsp_{P}")
            a(f"v_max3_u32 v{GT}, v{GA}, v{GA+1}, v{GA+2}")
            for k in range(3, 31, 2): a(f"v_max3_u32 v{GT}, v{GT}, v{GA+k}, v{GA+k+1}")
            a(f"v_max_u32 v{GT}, v{GT}, v{GA+31}")
            a(f"v_cmp_eq_u32 vcc, -1, v{GT}")
            a(f"s_cbranch_vccz L_gre_{P}")
            gather("~x"); a("s_waitcnt vmcnt(0)")
            spin_check(f"L_gsp_{P}", f"L_gre_{P}")
            gsum(); a("s_nop 7")
            if OPT["stamps"]:
                a(f"s_add_u32 s3, s{sSPIN}, 1"); a(f"v_writelane_b32 v{vST}, s3, 43")
            a.label(f"L_gok_{P}")
            pack(GS, GT)
            if not OPT["opr"]:
                a(f"ds_write_b64 v{vOW}, {vr(GT,2)} offset:{OPS + c*2048}")
                return
            ob = OPS + c * 4096
            nu = lambda l: 32 * (l >> 5) + 2 * (l & 15) + ((l >> 4) & 1)
            ma_ = lambda l: (0x11dd >> (l & 15)) & 1
            m7 = lambda l: ((l >> 4) == hA and ma_(l)) or ((l >> 4) == hB and not ma_(l))
            Z_ = CA + 2
            def wr(mask, addr, off, tmp):
                set_mask("vcc", lanemask(mask))
                for j in range(2): a(f"v_cndmask_b32 v{tmp+j}, v{Z_}, v{GT+j}, vcc")
                a(f"ds_write_b64 v{addr}, {vr(tmp,2)} offset:{off}")
            sl = list(a.lg)
            a(f"s_cmp_lt_u32 s{sTI}, 2"); a(f"s_cbranch_scc0 L_w23_{P}")
            a(f"s_lshl_b32 s4, s{sTI}, 10"); a(f"v_add_u32 v{GS}, s4, v{vOW}")
            a(f"ds_write_b64 v{GS}, {vr(GT,2)} offset:{ob}")
            a(f"s_branch L_wd_{P}")
            a.label(f"L_w23_{P}")
            a(f"s_cmp_eq_u32 s{sTI}, 2"); a(f"s_cbranch_scc0 L_w3_{P}")
            wr(lambda l: ma_(nu(l)), vOW, ob + 2048, GS)
            wr(lambda l: not ma_(nu(l)), vOW, ob + 3072, GS + 2)
            a(f"s_branch L_wd_{P}")
            a.label(f"L_w3_{P}")
            wr(lambda l: m7(nu(l) ^ 32), vOX, ob + 2048 + 8, GS)
            wr(lambda l: (nu(l) >> 4) == hA, vOW, ob + 8, GS + 2)
            wr(lambda l: (nu(l) >> 4) == hB, vOW, ob + 1024 + 8, GS)
            a.label(f"L_wd_{P}")
            a.lg = sl
        side[ix(4) + 1] = cst + eqaddr
        side[ix(8) - 1] = [cfix]
        if c == 0:
            e = phi_ins(acc2(2, 0), 8, [], 112)
            for rt in range(2):
                e += pack_ins(acc2(2, rt), QB[("a", rt)] + 2) + [f"ds_write_b64 v{vEQo}, {vr(QB[('a',rt)]+2,2)} offset:{EQX + rt*512}"]
                e += [f"v_mov_b32 v{QB[('b',rt)]+2+j}, v{QB[('a',rt)]+2+j}" for j in range(2)]
            side[iEQ] = e
        side[iQA] = phi_ins(acc2(0, 0), 8, [], 112) + pack_ins(acc2(0, 0), QB[("a", 0)]) + pack_ins(acc2(0, 1), QB[("a", 1)])
        if OPT["gk"]:
            ks = [int(x) for x in str(OPT["gk"]).split(".")]
            for r, op in enumerate(gather_ops()):
                side[ix(ks[r])] = side.get(ix(ks[r]), []) + [lambda op=op: emit_op(op, "gat")]
        if OPT["gearly"] >= 0:
            side[N2 - 6] = side.get(N2 - 6, []) + [gpart1]
            side[N2 - 1] = side.get(N2 - 1, []) + [gpart2]
    else:
        BO, BP, ONES, MK, BP0 = 104, 108, 112, 116, 120
        cst += [f"ds_read_b128 {vr(104+4*k,4)}, v126 offset:{k*1024}" for k in range(4)] + [f"ds_read_b128 {vr(BP0,4)}, v126 offset:1024", "v_mov_b32 v127, 0"]
        def foreign():
            a(f"s_xor_b32 s3, s{sWV}, 4"); a(f"s_mul_i32 s3, s3, 3072")
            a(f"v_add_u32 v{vT}, s3, v{vL8}")
            for rt in range(2):
                o = EXB + (4 if rt else 5) * 512
                if c == 0: a(f"ds_read_b64 {vr(Ev+2+2*rt,2)}, v{vT} offset:{o}")
                else:
                    for h in "ab": a(f"ds_read_b64 {vr(KA[(h,rt)]+2,2)}, v{vT} offset:{o}")
        def foreign2():
            a(f"s_cmp_eq_u32 s{sI}, 0"); a(f"s_cbranch_scc1 L_nof2_{P}")
            a("s_waitcnt lgkmcnt(6)")
            a(f"s_sub_u32 s3, s{sI}, 1"); a(f"s_mul_i32 s3, s3, 3072")
            a(f"v_add_u32 v{vT}, s3, v{vL8}")
            cb = EXB + c * 4 * 3072
            sl = list(a.lg); a.lg = []
            a(f"ds_read_b64 {vr(KA[('a',-1)],2)}, v{vT} offset:{cb}")
            a(f"ds_read_b64 {vr(KA[('b',-1)],2)}, v{vT} offset:{cb + 512}")
            a(f"ds_read_b64 {vr(Va,2)}, v{vT} offset:{cb + 1024}")
            a(f"ds_read_b64 {vr(Vb,2)}, v{vT} offset:{cb + 1536}")
            for h in "ab": a(f"ds_read_b64 {vr(KA[(h,-1)]+2,2)}, v{vT} offset:{EXB + 2048}")
            a(f"ds_read_b64 {vr(Ev,2)}, v{vT} offset:{EXB + 4*3072 + 2048}")
            a.lg = sl
            a.label(f"L_nof2_{P}")
        EQ = {0: 156, 1: 158}
        side[ix(4) + 1] = cst + eqaddr
        side[ix(6)] = [foreign]
        side[ix(9)] = [foreign2]
        if c == 0:
            side[iEQ] = pack_ins(acc2(2, 0), EQ[0]) + pack_ins(acc2(2, 1), EQ[1]) + [f"ds_write_b64 v{vEQo}, {vr(EQ[rt],2)} offset:{EQX + rt*512}" for rt in range(2)]
        side[iQA] = pack_ins(acc2(0, 0), QB[("a", 0)]) + pack_ins(acc2(0, 1), QB[("a", 1)])
    wf2 = [WF2 + 4 * k for k in range(4)] + ([32, 36] if c == 1 else [])
    pipeline(N2, reads2, mf2, {ix(4 * u): u for u in range(5)}, bnd2, OPT["L2"], OPT["Lb2"] if c == 0 else OPT["Lb2"] - 1, wf2,
             newbufs={ix(8): [128 + 4 * k for k in range(7)]}, side=side, side_rate=OPT["srate"] + (0 if c == 0 else 1), prio=None, front=OPT["front2"])
    if c == 1 and OPT["prep"] >= 0: a(f"s_setprio {OPT['prep']}")
    stamp("p2end")

    if A_:
        if OPT["gearly"] < 0: gpart1()
        late(3)
        phi_pack(acc2(1, 0), 8, [], 136)
        pack(acc2(1, 0), QB[("b", 0)]); pack(acc2(1, 1), QB[("b", 1)])
        if OPT["gearly"] < 0: gpart2()
        late(99)
        a.wait(lg="all")
        a("s_barrier")
        stamp("E2")
        if OPT["opr"]:
            A1a, A1b, Axa = 128, 132, 136
            ob = OPS + c * 4096
            tq = [a(f"ds_read_b64 {vr(QB[(h,rt)]+2,2)}, v{vEQo} offset:{EQX + rt*512}") for rt in range(2) for h in "ab"] if c == 1 else []
            tq.append(a(f"ds_read_b128 {vr(Axa,4)}, v{vL16} offset:{ob + 2048}"))
            tq.append(a(f"ds_read_b128 {vr(A1a,4)}, v{vL16} offset:{ob}"))
            tq.append(a(f"ds_read_b64 {vr(Axb,2)}, v{vL16} offset:{ob + 3072}"))
            tq.append(a(f"ds_read_b128 {vr(A1b,4)}, v{vL16} offset:{ob + 1024}"))
            late(99, True)
            if OPT["prel_at"] == 5: opreload()
        else:
            A1a, A1b, Axa, T3, T2 = 128, 132, 136, 140, 142
            ob = OPS + c * 2048
            t3 = a(f"ds_read_b64 {vr(T3,2)}, v{vL8} offset:{ob + 1536}")
            t2 = a(f"ds_read_b64 {vr(T2,2)}, v{vL8} offset:{ob + 1024}")
            t4 = a(f"ds_read_b64 {vr(Axa+2,2)}, v{vOX} offset:{ob + 1536}")
            t0 = a(f"ds_read_b64 {vr(A1a,2)}, v{vL8} offset:{ob}")
            t1 = a(f"ds_read_b64 {vr(A1b,2)}, v{vL8} offset:{ob + 512}")
            tq = [a(f"ds_read_b64 {vr(QB[(h,rt)]+2,2)}, v{vEQo} offset:{EQX + rt*512}") for rt in range(2) for h in "ab"] if c == 1 else [t1]
            late(99, True)
            if OPT["prel_at"] == 5: opreload()
            ma = lambda l: (0x11dd >> (l & 15)) & 1
            Z = Axb + 2
            set_mask("vcc", gm(hA)); a.wait(lg=t3)
            for j in range(2): a(f"v_cndmask_b32 v{A1a+2+j}, v{Z}, v{T3+j}, vcc")
            set_mask("vcc", gm(hB))
            for j in range(2): a(f"v_cndmask_b32 v{A1b+2+j}, v{Z}, v{T3+j}, vcc")
            set_mask("vcc", 0x11dd11dd11dd11dd); a.wait(lg=t4)
            for j in range(2):
                a(f"v_cndmask_b32 v{Axa+j}, v{Z}, v{T2+j}, vcc")
                a(f"v_cndmask_b32 v{Axb+j}, v{T2+j}, v{Z}, vcc")
            set_mask("vcc", lanemask(lambda l: ((l >> 4) == hA and ma(l)) or ((l >> 4) == hB and not ma(l))))
            for j in range(2): a(f"v_cndmask_b32 v{Axa+2+j}, v{Z}, v{Axa+2+j}, vcc")
        O = {(k, rt): 16 + (rt * 3 + i) * 4 for rt in range(2) for i, k in enumerate("xab")}
        a.wait(lg=tq if not OPT["opr"] else tq[-4])
        for rt in (c, oc): mfma(O[("x", rt)], Axa, QB[("a", rt)], C0)
        if OPT["opr"]: a.wait(lg=tq[-3])
        for rt in (c, oc): mfma(O[("a", rt)], A1a, QB[("a", rt)], "0")
        if OPT["opr"]: a.wait(lg=tq[-2])
        for rt in (c, oc): mfma(O[("x", rt)], Axb, QB[("b", rt)], O[("x", rt)])
        if OPT["opr"]: a.wait(lg=tq[-1])
        for rt in (c, oc): mfma(O[("b", rt)], A1b, QB[("b", rt)], "0")
        OM = [176, 180]; OX = [184, 186]
        set_mask("vcc", lanemask(lambda l: l < 32))
        for rt in (c, oc):
            x = O[("x", rt)]
            a(f"v_rcp_f32 v{x}, v{x}"); a(f"v_rcp_f32 v{x+1}, v{x+1}")
        for rt in (c, oc):
            x = O[("x", rt)]
            for j in range(4): a(f"v_mul_f32 v{O[('a',rt)]+j}, v{O[('a',rt)]+j}, v{x}")
            for j in range(4): a(f"v_mul_f32 v{O[('b',rt)]+j}, v{O[('b',rt)]+j}, v{x+1}")
            a(f"v_cndmask_b32 v{x}, v{x+1}, v{x}, vcc")
            pack(O[("a", rt)], OM[rt]); pack(O[("b", rt)], OM[rt] + 2)
            for j in (2, 3): a(f"v_mul_f32 v{x+j}, v{x+j}, v{x}")
            a(f"v_cvt_pk_bf16_f32 v{OX[rt]}, v{x+2}, v{x+3}")
    else:
        late(3)
        for rt in range(2): pack(acc2(1, rt), QB[("b", rt)])
        a(f"s_cmp_eq_u32 s{sI}, 0"); a(f"s_cbranch_scc0 L_hdone_{P}")
        a(f"s_cmp_eq_u32 s{sRT}, 0"); a(f"s_cbranch_scc0 L_hwait_{P}")
        for d in HL: a(f"v_mov_b32 v{d}, 0"); a(f"v_mov_b32 v{d+1}, 0")
        for j in range(4): a(f"v_mov_b32 v{BP0+j}, 0x{f2u(-1e30):x}")
        a(f"s_branch L_hok_{P}")
        a.label(f"L_hwait_{P}")
        def htest():
            a(f"v_max3_u32 v228, v{HL[0]}, v{HL[0]+1}, v{HL[1]}")
            a(f"v_max3_u32 v228, v228, v{HL[1]+1}, v{HL[2]}")
            a(f"v_max3_u32 v228, v228, v{HL[2]+1}, v{HL[3]}")
            a(f"v_max3_u32 v228, v228, v{HL[3]+1}, v{HL[4]}")
            a(f"v_max3_u32 v228, v228, v{HL[4]+1}, v{HL[5]}")
            a(f"v_max3_u32 v228, v228, v{HL[5]+1}, v{HL[6]}")
            a(f"v_max_u32 v228, v228, v{HL[6]+1}")
            a(f"v_cmp_eq_u32 vcc, -1, v228")
            a(f"s_cbranch_vccz L_hok_{P}")
        a.wait(vm="~h0halo", keep=True)
        htest()
        spin_begin(f"L_hsp_{P}")
        if OPT["stamps"]: a(f"v_writelane_b32 v{vST}, s{sHV}, 43")
        halo_loads("~x"); a("s_waitcnt vmcnt(0)"); htest()
        spin_check(f"L_hsp_{P}", f"L_hok_{P}")
        a.label(f"L_hdone_{P}")
        def qmask(rt):
            for h, hh in (("a", hA), ("b", hB)):
                set_mask("vcc", gm(hh))
                for j in range(2): a(f"v_cndmask_b32 v{QB[(h,rt)]+2+j}, v127, v{EQ[rt]+j}, vcc")
        if c == 0: qmask(0); qmask(1)
        a.wait(lg="all")
        if c == 1 or not OPT["esk"]:
            a("s_barrier")
            stamp("E2")
        if c == 1: tq = [a(f"ds_read_b64 {vr(EQ[rt],2)}, v{vEQo} offset:{EQX + rt*512}") for rt in range(2)]
        units = [(h, rt) for rt in (0, 1) for h in "ab"]
        S = {u: 176 + 8 * k for k, u in enumerate(units)}
        PB = {u: 208 + 4 * k for k, u in enumerate(units)}
        Om = dict(zip(units, (16, 28, 40, 128)))
        SV = {u: 228 + 2 * k for k, u in enumerate(units)}
        MX = {u: 236 + k for k, u in enumerate(units)}
        def smf(u):
            h, rt = u
            mfma(S[u], KA[(h, rt - 1)], QB[u], BP0 if rt == 0 else BP)
            mfma(S[u] + 4, KA[(h, rt)], QB[u], BO)
        if c == 1:
            a.wait(lg=tq[0]); qmask(0); smf(units[0]); smf(units[1])
            a.wait(lg=tq[1]); qmask(1); smf(units[2]); smf(units[3])
        else:
            for u in units: smf(u)
            if OPT["esk"]:
                a("s_barrier")
                stamp("E2")
        late(99 if OPT["prel_at"] == 5 else 2, True)
        if OPT["prel_at"] == 5: opreload()
        for u in units:
            s_, v = S[u], SV[u]
            a(f"v_max3_f32 v{v}, v{s_}, v{s_+1}, v{s_+4}"); a(f"v_max3_f32 v{v+1}, v{s_+2}, v{s_+3}, v{s_+6}")
            a(f"v_max_f32 v{v}, v{v}, v{s_+5}"); a(f"v_max_f32 v{v+1}, v{v+1}, v{s_+7}")
            a(f"v_max_f32 v{MX[u]}, v{v}, v{v+1}")
        m0_, m1_, m2_, m3_ = [MX[u] for u in units]
        a(f"v_permlane32_swap_b32 v{m0_}, v{m1_}"); a(f"v_permlane32_swap_b32 v{m2_}, v{m3_}")
        a(f"v_max_f32 v{m0_}, v{m0_}, v{m1_}"); a(f"v_max_f32 v{m2_}, v{m2_}, v{m3_}")
        a(f"v_permlane16_swap_b32 v{m0_}, v{m2_}")
        a(f"v_max_f32 v{m0_}, v{m0_}, v{m2_}")
        cs = LOG2E * 20 ** -0.5
        a(f"v_mul_f32 v{m0_}, 0x{f2u(-cs):x}, v{m0_}")
        a(f"v_mov_b32 v{m2_}, v{m0_}")
        a(f"v_permlane16_swap_b32 v{m0_}, v{m2_}")
        a(f"v_mov_b32 v{m1_}, v{m0_}"); a(f"v_mov_b32 v{m3_}, v{m2_}")
        a(f"v_permlane32_swap_b32 v{m0_}, v{m1_}"); a(f"v_permlane32_swap_b32 v{m2_}, v{m3_}")
        late(99, True)
        V = {"a": Va, "b": Vb}
        for u in units:
            for j in range(2): a(f"v_fmamk_f32 v{SV[u]+j}, v{SV[u]+j}, 0x{f2u(cs):x}, v{MX[u]}")
        for u in units:
            for j in range(2): a(f"v_exp_f32 v{SV[u]+j}, v{SV[u]+j}")
        for u in units:
            h, rt = u; v = SV[u]
            for j in range(2): a(f"v_cvt_pk_bf16_f32 v{v+j}, v{v+j}, v{v+j}")
            for k in range(4): a(f"v_and_b32 v{PB[u]+k}, v{v+(k&1)}, v{MK+k}")
            mfma(Om[u] + 8, ONES, PB[u], "0")
            mfma(Om[u], V[h] + 2 * rt, PB[u], "0")
            mfma(Om[u] + 4, Ev + 2 * rt, PB[u], "0")
        OM = [176, 180]; OX = [184, 186]
        set_mask("vcc", gm(hA))
        for rt in (c, oc):
            ua, ub = ("a", rt), ("b", rt)
            for u in (ua, ub): a(f"v_rcp_f32 v{Om[u]+8}, v{Om[u]+8}")
            for j in range(4): a(f"v_cndmask_b32 v{Om[ua]+4+j}, v{Om[ub]+4+j}, v{Om[ua]+4+j}, vcc")
            for u in (ua, ub):
                for j in range(4): a(f"v_mul_f32 v{Om[u]+j}, v{Om[u]+j}, v{Om[u]+8}")
            a(f"v_cndmask_b32 v{Om[ua]+8}, v{Om[ub]+8}, v{Om[ua]+8}, vcc")
            pack(Om[ua], OM[rt]); pack(Om[ub], OM[rt] + 2)
            for j in range(4): a(f"v_mul_f32 v{Om[ua]+4+j}, v{Om[ua]+4+j}, v{Om[ua]+8}")
            pack(Om[ua] + 4, OX[rt])
    a(f"s_mul_i32 s3, s{sHG}, {2*OP_}"); a(f"s_add_u32 s3, s3, s{sOB}"); a(f"s_add_u32 s3, s3, {c*OP_}")
    a(f"s_add_u32 s4, s3, {OT}")
    a(f"s_lshr_b32 s5, s{sHG}, 1"); a(f"s_mul_i32 s5, s5, {4*OP_}"); a(f"s_and_b32 s6, s{sHG}, 1"); a(f"s_lshl_b32 s6, s6, 3")
    a(f"s_add_u32 s5, s5, s6"); a(f"s_add_u32 s5, s5, s{sOB}")
    a(f"s_add_u32 s6, s5, {OT}")
    a(f"v_lshrrev_b32 v{vXE}, 4, v{vL}"); a(f"v_mul_u32_u24 v{vXE}, {OP_ - 256}, v{vXE}"); a(f"v_add_u32 v{vXE}, v{vXE}, v{vL16}")
    a(f"v_mov_b32 v{vT}, s{sN}")
    a(f"s_cmp_eq_u32 s{sFAST}, 1"); a(f"s_cbranch_scc1 L_fast_{P}")
    for fl, end in ((" sc1", f"s_branch L_pubd_{P}"), ((" " + OPT["ofl"]) if OPT["ofl"] != "none" else "", None)):
        if not end: a.label(f"L_fast_{P}")
        a(f"buffer_store_dwordx4 {vr(OM[0],4)}, v{vL16}, {sr(OS,4)}, s3 offen{fl}")
        a(f"buffer_store_dwordx4 {vr(OM[1],4)}, v{vL16}, {sr(OS,4)}, s4 offen{fl}")
        if A_:
            a(f"buffer_store_dword v{OX[0]}, v{vXE}, {sr(OS,4)}, s5 offen offset:{1024 + 4*c}{fl}")
            a(f"buffer_store_dword v{OX[1]}, v{vXE}, {sr(OS,4)}, s6 offen offset:{1024 + 4*c}{fl}")
        else:
            a(f"s_mov_b32 exec_{'hi' if c == 0 else 'lo'}, 0")
            a(f"buffer_store_dwordx2 {vr(OX[0],2)}, v{vXE}, {sr(OS,4)}, s5 offen offset:1024{fl}")
            a(f"buffer_store_dwordx2 {vr(OX[1],2)}, v{vXE}, {sr(OS,4)}, s6 offen offset:1024{fl}")
        if end: a(end)
    a.label(f"L_pubd_{P}")
    a("s_mov_b64 exec, -1")
    stamp("ostore")
    phase2_setup(A_, c)
    if OPT["e3e"]:
        assert not late_wo
        a("s_waitcnt vmcnt(4) lgkmcnt(0)")
    else:
        a(f"s_cmp_eq_u32 s{sFAST}, 1")
        a("s_mov_b64 exec, 1")
        a("s_waitcnt vmcnt(0) lgkmcnt(0)")
        a(f"s_cbranch_scc1 L_fast2_{P}")
        a(f"buffer_store_dword v{vT}, off, {sr(SS,4)}, s{sFP} sc1")
        a(f"s_branch L_pubd2_{P}")
        a.label(f"L_fast2_{P}")
        a(f"buffer_store_dword v{vT}, off, {sr(SS,4)}, s{sFP}")
        a.label(f"L_pubd2_{P}")
        a("s_mov_b64 exec, -1")
        if late_wo:
            late(99, 2)
            phase2_setup2()
            a("s_waitcnt vmcnt(0)")
    a.vm = ["flag"]
    stamp("oack")
    a("s_branch L_phase2")

vM0, vE0, vPA, vPD, vSA = 1, 2, 3, 0, 5
RA = [8, 9, 11]; GA_ = [12, 13, 95]
vRW, vRR = 4, 7
RX = 43008
RX = 0
OST2 = 40960
def phase2_setup(A_, c):
    a(f"s_mul_i32 s7, s{sKH}, 51200"); a(f"s_add_u32 s7, s7, {WO_BASE}")
    half = "s7"
    a(f"v_and_b32 v{vPD}, 3, v{vL}")
    a(f"v_lshrrev_b32 v{vM0}, 2, v{vL}"); a(f"v_mul_u32_u24 v{vM0}, 160, v{vM0}")
    a(f"v_lshl_add_u32 v{vM0}, v{vPD}, 3, v{vM0}"); a(f"v_add_u32 v{vM0}, {half}, v{vM0}")
    if A_:
        a(f"v_bfe_u32 v{vE0}, v{vL}, 3, 1"); a(f"v_mul_u32_u24 v{vE0}, 40, v{vE0}")
        a(f"v_lshrrev_b32 v{vPA}, 5, v{vL}"); a(f"v_mad_u32_u24 v{vE0}, v{vPA}, 20, v{vE0}")
        a(f"v_bfe_u32 v{vPA}, v{vL}, 4, 1"); a(f"v_lshl_add_u32 v{vE0}, v{vPA}, 1, v{vE0}")
        a(f"v_bfe_u32 v{vPA}, v{vL}, 2, 1"); a(f"v_add_u32 v{vE0}, v{vE0}, v{vPA}")
    else:
        a(f"v_lshrrev_b32 v{vE0}, 4, v{vL}"); a(f"v_mul_u32_u24 v{vE0}, 20, v{vE0}")
        a(f"v_bfe_u32 v{vPA}, v{vL}, 2, 2"); a(f"v_add_u32 v{vE0}, v{vE0}, v{vPA}")
    a(f"v_mul_u32_u24 v{vE0}, 160, v{vE0}")
    a(f"v_lshl_add_u32 v{vE0}, v{vPD}, 3, v{vE0}"); a(f"v_add_u32 v{vE0}, {half}, v{vE0}")
    a(f"v_lshlrev_b32 v{vPA}, 2, v{vL}")
    a(f"s_mul_i32 s7, s{sWV}, 5120"); a(f"v_add_u32 v{vRR}, s7, v{vXA0}")
    a(f"s_xor_b32 s7, s{sWV}, 1"); a(f"s_mul_i32 s7, s7, 5120"); a(f"v_add_u32 v{vRW}, s7, v{vXA0}")
    a(f"s_mul_i32 s7, s{sWV}, 2560"); a(f"s_add_u32 s7, s7, {OST2}")
    a(f"v_mov_b32 v16, s7"); a("v_mov_b32 v17, 0"); a("ds_write_b32 v16, v17")

def phase2_setup2():
    a(f"s_mul_i32 s7, s{sWV}, 2560"); a(f"s_add_u32 s7, s7, {OST2}")
    for j in range(3):
        a(f"v_add_u32 v{RA[j]}, {64*j}, v{vL}")
        a(f"v_mul_u32_u24 v{GA_[j]}, 6554, v{RA[j]}"); a(f"v_lshrrev_b32 v{GA_[j]}, 16, v{GA_[j]}")
        a(f"v_mul_u32_u24 v{vSA}, 2400, v{GA_[j]}")
        a(f"v_lshlrev_b32 v{RA[j]}, 4, v{RA[j]}")
        a(f"v_add_u32 v{GA_[j]}, v{vSA}, v{RA[j]}")
        a(f"v_add_u32 v{RA[j]}, s7, v{RA[j]}")
    a(f"v_and_b32 v{vSA}, 15, v{vL}"); a(f"v_mul_u32_u24 v{vSA}, 160, v{vSA}")
    a(f"v_lshrrev_b32 v16, 4, v{vL}"); a(f"v_lshlrev_b32 v16, 3, v16"); a(f"v_add3_u32 v{vSA}, v{vSA}, v16, s7")

def phase2():
    a.label("L_phase2")
    a.vm = ["flag"]; a.lg = []
    vL16 = vXA0
    PP = OPT["prepoll"]
    if not PP:
        a("s_barrier")
        stamp("E3")
    OF = 176; ACC = 16
    def of(k, rt): return OF + (k * 2 + rt) * 4
    bufs = ([56 + 4 * k for k in range(9)] + [96 + 4 * k for k in range(20)])[:OPT["npre"]]
    NB = len(bufs)
    def reads(n):
        k, t = divmod(n, 5); w = bufs[n % NB]; tg = []
        for h in range(2):
            if k < 8: row = 40 * k + 20 * h; base = vM0
            else: row = 80 * (2 * (k - 8) + h) + 16; base = vE0
            tg.append(a(f"ds_read_b64_tr_b16 {vr(w+2*h,2)}, v{base} offset:{row * 160 + 32 * t}"))
        return tg
    def oload(j):
        k, rt = divmod(j, 2)
        if k < 8:
            if k % 2 == 0: a(f"s_add_u32 s{3+rt}, s{sOC}, {rt*OT + k*OP_}")
            a(f"buffer_load_dwordx4 {vr(of(k,rt),4)}, v{vL16}, {sr(OS,4)}, s{3+rt} offen offset:{(k%2)*OP_} sc1", f"o{k}")
        else:
            a(f"s_add_u32 s{3+rt}, s{sOE}, {rt*OT + (k-8)*4*OP_}")
            a(f"buffer_load_dwordx4 {vr(of(k,rt),4)}, v{vXE}, {sr(OS,4)}, s{3+rt} offen offset:1024 sc1", f"o{k}")
    NP = OPT["npoll"]; per = NB // NP
    batches = [list(range(k * per, (k + 1) * per if k < NP - 1 else NB)) for k in range(NP)]
    tags = {}
    def poll_issue():
        a("s_mov_b64 exec, 0xff"); a(f"buffer_load_dword v{vPD}, v{vPA}, {sr(SS,4)}, s{sFC} offen sc1"); a("s_mov_b64 exec, -1")
    def poll_check(lbl):
        a("s_waitcnt vmcnt(0)")
        a(f"v_cmp_ne_u32 vcc, s{sN}, v{vPD}"); a("s_and_b32 vcc_lo, vcc_lo, 0xff"); a(f"s_cbranch_scc0 {lbl}" if not OPT["hackpoll"] else f"s_branch {lbl}")
    lgs = []
    if OPT["e3e"]:
        n0 = OPT["e3n"]
        rest = list(range(n0, NB)); per = len(rest) // NP
        batches[:] = [rest[k * per:(k + 1) * per if k < NP - 1 else len(rest)] for k in range(NP)]
        for n in range(n0): tags[n] = reads(n)
        a(f"v_mov_b32 v94, s{sN}")
        a(f"s_cmp_eq_u32 s{sFAST}, 1")
        a("s_mov_b64 exec, 1")
        a("s_waitcnt vmcnt(0)")
        a("s_cbranch_scc1 L_fl1")
        a(f"buffer_store_dword v94, off, {sr(SS,4)}, s{sFP} sc1"); a("s_branch L_fl2")
        a.label("L_fl1"); a(f"buffer_store_dword v94, off, {sr(SS,4)}, s{sFP}"); a.label("L_fl2")
        a("s_mov_b64 exec, -1")
    if PP:
        poll_issue()
        if not OPT['woaft']: phase2_setup2()
        for r_ in range(PP - 1):
            poll_check("L_gopre"); poll_issue()
        poll_check("L_gopre")
        a("s_barrier")
        stamp("E3")
    for k in range(NP):
        poll_issue()
        for n in batches[k]: tags[n] = reads(n)
        if k == 0 and not OPT['woaft'] and not PP: phase2_setup2()
        lgs.append(list(a.lg))
        poll_check(f"L_go{k}")
    spin_begin("L_poll")
    poll_issue(); poll_check(f"L_go{NP-1}")
    spin_check("L_poll", "L_pollx")
    XL = OPT["oburst"] + NP - 1
    full = list(a.lg)
    XL += 1 if PP else 0
    for k in range(NP - 1, -2 if PP else -1, -1):
        a.label(f"L_go{k}" if k >= 0 else "L_gopre")
        a.vm = []; a.lg = list(lgs[k]) if k >= 0 else []
        stamp("polled")
        nxt = 0
        for _ in range(OPT["oburst"]): oload(nxt); nxt += 1
        if k < 0:
            a("s_barrier")
            stamp("E3")
        for j in range(k + 1, NP):
            for n in batches[j]: reads(n)
            oload(nxt); nxt += 1
        while nxt < XL: oload(nxt); nxt += 1
        if k > (-1 if PP else 0): a("s_branch L_conv")
    a.label("L_conv")
    a.lg = full[-12:]
    a("s_waitcnt lgkmcnt(12)")
    rd = NB
    NLOOP = 45 if OPT["lastk"] else 50
    for n in range(NLOOP):
        k, t = divmod(n, 5)
        p3 = parse_pr(OPT["pr3"])
        if (n % 10) in p3:
            a(f"s_bitcmp1_b32 s{sWV}, 2"); a(f"s_cbranch_scc0 L_np{n}"); a(f"s_setprio {p3[n % 10]}"); a.label(f"L_np{n}")
        a.wait(vm=f"o{k}" if t == 0 else None, lg=tags[n])
        if n == 0: stamp("ofirst")
        if n == 45 and AL:
            a(f"v_mov_b32 v{vPD}, s{sN}"); a("s_mov_b64 exec, 1")
            a(f"s_cmp_eq_u32 s{sFAST}, 1"); a("s_cbranch_scc1 L_df1")
            a(f"buffer_store_dword v{vPD}, off, {sr(SS,4)}, s{sDFP} sc1"); a("s_branch L_df2")
            a.label("L_df1"); a(f"buffer_store_dword v{vPD}, off, {sr(SS,4)}, s{sDFP}"); a.label("L_df2")
            a("s_mov_b64 exec, -1")
        for rt in ((1, 0) if (OPT["snake"] and t % 2) else (0, 1)):
            d = ACC + (rt * 5 + t) * 4
            mfma(d, bufs[n % NB], of(k, rt), d if k else "0")
        if t in (0, 2) and nxt < 20: oload(nxt); nxt += 1
        if OPT["wb"] >= 3 and n == OPT["wbn"]:
            a(f"s_xor_b32 s3, s{sWV}, {OPT['wbw']}")
            if OPT["wb"] == 3: a(f"s_or_b32 s3, s3, s{sHG}")
            else: a(f"s_and_b32 s4, s{sHG}, 3"); a("s_or_b32 s3, s3, s4")
            a(f"s_cmp_eq_u32 s3, 0"); a(f"s_cselect_b32 s3, s{sFAST}, 0"); a("s_cmp_eq_u32 s3, 1")
            a("s_cbranch_scc0 L_nowb")
            a("buffer_wbl2 sc1", "~wb")
            a.label("L_nowb")
        if t == 1 and nxt == 20 and OPT["wb"] in (1, 2):
            nxt = 21
            if OPT["wb"] == 1: a(f"s_or_b32 s3, s{sWV}, s{sHG}")
            else: a(f"s_mov_b32 s3, s{sWV}")
            a(f"s_cmp_eq_u32 s3, 0"); a(f"s_cselect_b32 s3, s{sFAST}, 0"); a("s_cmp_eq_u32 s3, 1")
            a("s_cbranch_scc0 L_nowb")
            a("buffer_wbl2 sc1", "~wb")
            a.label("L_nowb")
        if rd < 50: tags[rd] = reads(rd); rd += 1
    if not OPT["lastk"]: stamp("g2end")
    assert not (AL and OPT["lastk"])
    if AL: a("s_mov_b64 exec, 0xffff"); a(f"buffer_load_dword v{vPD}, v{vPA}, {sr(SS,4)}, s{sDFC} offen sc1"); a("s_mov_b64 exec, -1")
    else: a("s_nop 2")
    a(f"s_xor_b32 s7, s{sWV}, 1"); a(f"s_mul_i32 s7, s7, 2560"); a(f"s_add_u32 s7, s7, {OST2}")
    a(f"v_mov_b32 v92, s7"); a(f"s_mul_i32 s7, s{sWV}, 2560"); a(f"s_add_u32 s7, s7, {OST2}"); a(f"v_mov_b32 v93, s7")
    if OPT["lastk"]: a.wait(vm="o9", lg="all")
    a(f"s_cmp_eq_u32 s{sKH}, 0"); a("s_cbranch_scc0 L_red1")
    for c in range(2):
        if c == 1: a.label("L_red1")
        a.lg = []
        give = ACC + (1 - c) * 20; keep = ACC + c * 20
        if OPT["lastk"]:
            for t in range(5): mfma(give + 4 * t, bufs[(45 + t) % NB], of(9, 1 - c), give + 4 * t)
            for t in range(5):
                mfma(keep + 4 * t, bufs[(45 + t) % NB], of(9, c), keep + 4 * t)
                if t >= 2: a(f"ds_write_b128 v{vRW}, {vr(give+4*(t-2),4)} offset:{RX + (t-2)*1024}")
            for t in (3, 4): a(f"ds_write_b128 v{vRW}, {vr(give+4*t,4)} offset:{RX + t*1024}")
            stamp("g2end")
        else:
            for t in range(5): a(f"ds_write_b128 v{vRW}, {vr(give+4*t,4)} offset:{RX + t*1024}")
        a.wait(lg="all")
        a("ds_write_b32 v92, v92")
        spin_begin(f"L_pw{c}")
        a("ds_read_b32 v94, v93"); a("s_waitcnt lgkmcnt(0)")
        a("v_cmp_ne_u32 vcc, 0, v94"); a(f"s_cbranch_vccnz L_pwok{c}")
        spin_check(f"L_pw{c}", f"L_pwok{c}")
        a.lg = []
        tg = [a(f"ds_read_b128 {vr(56+4*t,4)}, v{vRR} offset:{RX + t*1024}") for t in range(5)]
        for t in range(5):
            a.wait(lg=tg[t])
            for j in range(4): a(f"v_add_f32 v{56+4*t+j}, v{56+4*t+j}, v{keep+4*t+j}")
            pack(56 + 4 * t, 80 + 2 * t)
            a(f"ds_write_b64 v{vSA}, {vr(80+2*t,2)} offset:{32*t}")
        if c == 0: a("s_branch L_red2")
    a.label("L_red2")
    a.wait(lg="all")
    tg = []
    for j in range(3):
        if j == 2: a("s_mov_b32 exec_hi, 0")
        tg.append(a(f"ds_read_b128 {vr(96+4*j,4)}, v{RA[j]}"))
    a("s_mov_b64 exec, -1")
    def dfcheck():
        a("s_waitcnt vmcnt(0)")
        a(f"v_cmp_ne_u32 vcc, s{sN}, v{vPD}"); a("s_and_b32 vcc_lo, vcc_lo, 0xffff"); a("s_cbranch_scc0 L_dfok")
    if AL:
        dfcheck()
        spin_begin("L_dfs")
        a("s_mov_b64 exec, 0xffff"); a(f"buffer_load_dword v{vPD}, v{vPA}, {sr(SS,4)}, s{sDFC} offen sc1"); a("s_mov_b64 exec, -1")
        dfcheck()
        spin_check("L_dfs", "L_dfok")
    fl = OPT["outflag"].replace("+", " "); fl = "" if fl == "none" else " " + fl
    for j in range(3):
        a.wait(lg=tg[j])
        if j == 2: a("s_mov_b32 exec_hi, 0")
        a(f"buffer_store_dwordx4 {vr(96+4*j,4)}, v{GA_[j]}, {sr(SD,4)}, s{sOUT} offen{fl}")
    if OPT["wbe"]:
        a(f"s_xor_b32 s3, s{sWV}, {OPT['wbw']}"); a(f"s_and_b32 s4, s{sHG}, {OPT['wbe']-1 if OPT['wbe'] > 1 else 7}"); a("s_or_b32 s3, s3, s4")
        a("s_cmp_eq_u32 s3, 0"); a("s_cbranch_scc0 L_nowbe")
        a("s_waitcnt vmcnt(0)"); a("buffer_wbl2 sc1")
        a.label("L_nowbe")
    if OPT["stamps"]:
        a("s_mov_b64 exec, -1")
        a("s_waitcnt vmcnt(0)")
        stamp("end")
        a(f"s_memrealtime s[100:101]"); a("s_waitcnt lgkmcnt(0)"); a(f"v_writelane_b32 v{vST}, s100, 41")
        a(f"v_writelane_b32 v{vST}, s{sFAST}, 42")
        a(f"s_lshl_b32 s3, s2, 3"); a(f"s_add_u32 s3, s3, s{sWV}"); a("s_lshl_b32 s3, s3, 8"); a(f"s_add_u32 s3, s3, {WS_STAMP}")
        a(f"v_lshlrev_b32 v0, 2, v{vL}")
        a(f"buffer_store_dword v{vST}, v0, {sr(SS,4)}, s3 offen")
    a.label("L_end")
    a("s_endpgm")
    a.label("L_codeend")

prologue()
sv0 = list(a.vm)
for b, c in ((0, 0), (0, 1), (1, 0), (1, 1)):
    a.vm = list(sv0); a.lg = []
    path(b, c)
phase2()
a.raw(f""".section .rodata,"a"
.p2align 6
.amdhsa_kernel {KNAME}
  .amdhsa_next_free_vgpr 256
  .amdhsa_next_free_sgpr 102
  .amdhsa_accum_offset 256
  .amdhsa_group_segment_fixed_size 0
  .amdhsa_kernarg_size 72
  .amdhsa_user_sgpr_count 2
  .amdhsa_user_sgpr_kernarg_segment_ptr 1
  .amdhsa_system_sgpr_workgroup_id_x 1
.end_amdhsa_kernel""")
open(sys.argv[1], "w").write(a.text())
print("nops inserted:", a.nops_inserted, "lines:", len(a.lines), file=sys.stderr)
```

```python
import sys, os, struct
from collections import deque
from asmlib import Asm, vr, sr

KNAME = "concat_heads__linear_attn_block__sliding_local_dilated__prompt_kernel"
OPT = dict(p1all=0, p1mid=0, cpl=1, pb="", su2=0, gk="", front=0, front2=0, ahead=0, ordB="", axf=4, p1late=1, tlb=-2, opr=1, e3e=1, e3n=6, oxb=0, oxt=2, oxpos=0, oxf=4, aot=-2, awn=5, snake=0, prepoll=0, eoff=0, axt=-2, awt=-2, xw=-1, xq=-1, ecpar=-1, rv=0, dmap="", ord="q", ordoff=1, lean2=1, lean=1, lastk=0, rot2=0, hal_at=3, fewb=1, woA="2:0,4:1", esk=0, rts=0, woaft=0, gearly=54, tbal=1, exact=1, hackwo=0, hackgat=0, hackphi=0, hackpoll=0, sched="", tcm="", pr1="", pr2="", pr3="", prep=-1, hackport=0, hackdma=0, tcs=0, tc="", tcw=3, tc0=0, tcpos=0, alias=0, wbe=0, worot=0, wbn=49, wbw=4, tqonly=0, st0=-1, stn=6, stq=1, stp=1, srate=3, prel1=-1, ofl="nt", npoll=2, pre1=10, gspread=1, LA=2, p1n=1, win="", ea=0, eb=-1, ec=3, ecg=0, pst=-1, rev0=0, wodef=3, wnt=0, wont=0, pnt=0, xrot=1, prest=0, xnt=0, t0=0, wosched=0, G=10, stamps=0, L=4, Lb=2, L2=8, Lb2=4, force_slow=0, wb=0, codepf=4, outflag="nt", gat_at=3, pro=2, tq=-1,
           oburst=8, npre=27, rdy_at=4, prel_at=1, stampset="all")
for x in sys.argv[2:]:
    k, v = x.split("="); OPT[k] = int(v) if v.lstrip("-").isdigit() else v

def f2u(x): return struct.unpack("<I", struct.pack("<f", x))[0]

SLOT = 36864; UNIT = 10240
SC = 20480
EE_A = SC; RED = SC + 8192; OPS = 40960; EQX = SC + 28672; EXB = SC; OST = SC
BCAST = 147456 + 64
WO_BASE = 6 * UNIT
WQ_UNIT = [8, 10, 12, 0, 14]
CST = 148480
EE_A2 = 154624
OPX = 0
WS_KV = 0x600000; WS_HALO = 0x700000; WS_FLAG = 0x800000; WS_RDY = 0x810000; WS_E = 0x820000; WS_STAMP = 0x900000
WS_SIZE = 0x10000000
SPIN_MAX = 200000
EPS = f2u(1e-6)
LOG2E = 1.4426950408889634

SX, SW, SO, SD, SS, SG = 16, 20, 24, 28, 32, 36
sB, sRT, sHG, sWV, sI, sC, sXCC, sN, sFAST = 40, 41, 42, 43, 44, 45, 46, 47, 48
sXO, sWK = 50, 60
sW1K, sX2K = 70, 71
sT0, sT1, sT2, sT3 = 72, 73, 74, 75
sOB, sKVP, sKVG, sHP, sHG2, sFP, sFC = 76, 77, 78, 79, 49, 9, 8
sM = 80
sHV = 87; sTI = 86; sSPIN = 92; sCUR = 93; sDUTY = 90
sK = 94; sTM = 96; sOC = 98; sOUT = 99; sOE = 91; sKH = 85; sDFP = 84; sDFC = 83; sFPL = 82
vXD0, vXD1, vWD = 1, 2, 3
vXA0, vXA1, vWA, vWE, vL = 6, 7, 8, 9, 10
vT = 11; vST = 15
vWO = 90; vPRE = 93; vGAD = 94; vXE = 14
ACC1 = 16; WF = 56; XB = 96
def X(ks, rt): return XB + (ks * 2 + rt) * 4

a = Asm()
if OPT["exact"]:
    a.ghost_cond = {"w0": [f"s_cmp_eq_u32 s{sWV}, 0"], "i3": [f"s_cmp_eq_u32 s{sI}, 3"], "h0": [f"s_cmp_lg_u32 s{sHV}, 0"]}
AL = OPT['alias']
OS = SD if AL else SS
OP_ = 2560 if AL else 1280
OT = 16 * OP_
STAMPS = ["start", "issued", "b0", "b1", "b2", "b3", "b4", "b5", "b6", "b7", "b8", "b9", "p1end", "E1", "pub1", "p1", "p2", "p3", "p4", "p2end", "E2", "ostore", "oack", "E3", "polled", "ofirst", "g2end", "end", "first"]
FEW = {"first", "b0", "b1", "b2", "b4", "b6", "p1end", "pub1", "p2end", "ostore", "ofirst", "g2end", "end"}
def stamp(name):
    if not OPT["stamps"]: return
    if OPT["stampset"] == "few" and name not in FEW: return
    if OPT["stampset"] == "end" and name not in ("end",): return
    a(f"s_memtime {sr(sTM,2)}")
    RT = {"b0": 44, "b1": 45, "b6": 46, "p1end": 47, "pub1": 48, "p2end": 49, "ostore": 50, "ofirst": 51, "g2end": 52}
    if name in RT and OPT["rts"]: a("s_memrealtime s[100:101]")
    a("s_waitcnt lgkmcnt(0)"); a.lg = []
    a(f"v_writelane_b32 v{vST}, s{sTM}, {STAMPS.index(name)}")
    if name in RT and OPT["rts"]: a(f"v_writelane_b32 v{vST}, s100, {RT[name]}")

def srd(d, lo, hi, size):
    a(f"s_mov_b32 s{d}, s{lo}"); a(f"s_mov_b32 s{d+1}, s{hi}")
    a(f"s_mov_b32 s{d+2}, {size}"); a(f"s_mov_b32 s{d+3}, 0x20000")
def mask_ins(s, val):
    if s == "vcc": return [f"s_mov_b32 vcc_lo, 0x{val & 0xffffffff:x}", f"s_mov_b32 vcc_hi, 0x{val >> 32:x}"]
    return [f"s_mov_b32 s{s}, 0x{val & 0xffffffff:x}", f"s_mov_b32 s{s+1}, 0x{val >> 32:x}"]
def set_mask(s, val):
    for i in mask_ins(s, val): a(i)
def lanemask(f):
    m = 0
    for l in range(64):
        if f(l): m |= 1 << l
    return m

V0OK = [True]
def wvoff_ins(dst, q, pitch, swap, second):
    if q == 0: r = [f"v_and_b32 v{vT}, 0x1ff, v0" if V0OK[0] else f"v_lshl_add_u32 v{vT}, s{sWV}, 6, v{vL}"]
    elif q == 2: r = [f"s_lshl_b32 s{sT0}, s{sWV}, 6", f"s_add_u32 s{sT0}, s{sT0}, 384", f"s_mov_b32 s{sT1}, {second}", f"v_add_u32 v{vT}, s{sT0}, v{vL}"]
    else: r = [f"s_add_u32 s{sT0}, s{sWV}, {8*q}", f"s_cmp_ge_u32 s{sT0}, 10", f"s_cselect_b32 s{sT1}, {second}, 0", f"s_cselect_b32 s{sT2}, 10, 0",
         f"s_sub_u32 s{sT0}, s{sT0}, s{sT2}", f"s_lshl_b32 s{sT0}, s{sT0}, 6", f"v_add_u32 v{vT}, s{sT0}, v{vL}"]
    r += [ f"v_mul_u32_u24 v{vT+1}, 6554, v{vT}", f"v_lshrrev_b32 v{vT+1}, 16, v{vT+1}",
         f"v_mul_u32_u24 v{vT+2}, 10, v{vT+1}", f"v_sub_u32 v{vT}, v{vT}, v{vT+2}"]
    if swap:
        r += [f"v_lshrrev_b32 v{vT+2}, 1, v{vT+1}", f"v_xor_b32 v{vT+2}, v{vT+2}, v{vT+1}", f"v_and_b32 v{vT+2}, 4, v{vT+2}",
              f"v_mul_u32_u24 v{vT+2}, 3, v{vT+2}", f"v_xor_b32 v{vT+1}, v{vT+1}, v{vT+2}"]
    r += [f"v_mul_u32_u24 v{vT+1}, {pitch}, v{vT+1}", f"v_lshlrev_b32 v{vT}, 4, v{vT}", f"v_add3_u32 v{dst}, v{vT}, v{vT+1}, s{sT1}" if q else f"v_add_u32 v{dst}, v{vT}, v{vT+1}"]
    return r
def wvoff(*args):
    for i in wvoff_ins(*args): a(i)

XF = " nt" if OPT["xnt"] else ""
WFL = " nt" if OPT["wnt"] else ""
WOFL = " nt" if OPT["wont"] else ""
def dma_chunk(c, step):
    base = (step % 4) * SLOT
    ops = [([f"s_add_u32 m0, s{sX2K}, {base}"], f"buffer_load_dwordx4 v{vXD0}, {sr(SX,4)}, s{sXO+step} offen{XF} lds"),
           ([f"s_add_u32 m0, s{sX2K}, {base + 1024}"], f"buffer_load_dwordx4 v{vXD1}, {sr(SX,4)}, s{sXO+step} offen{XF} lds")]
    for q in range(3 if c == 0 else 2):
        if OPT["hackdma"] and q >= 1 and step >= 2: continue
        ops.append(([f"s_add_u32 m0, s{sW1K}, {base + 16384 + q*8192}"], f"buffer_load_dwordx4 v{vWD+q}, {sr(SW,4)}, s{sWK+step} offen{WFL} lds"))
    return ops
def dma_wq(c, u):
    base = WQ_UNIT[u] * UNIT
    ops = []
    for q in range(3 if c == 0 else 2):
        pre = []
        if q == 0: pre.append(f"s_sub_u32 s{sT3}, s{sWK+2*u}, 1280")
        elif q == 2 or c == 1: pre.append(f"s_sub_u32 s{sT3}, s{sWK+2*u+1}, 1280")
        else: pre += [f"s_cmp_lt_u32 s{sWV}, 2", f"s_cselect_b32 s{sT3}, s{sWK+2*u}, s{sWK+2*u+1}", f"s_sub_u32 s{sT3}, s{sT3}, 1280"]
        pre.append(f"s_add_u32 m0, s{sW1K}, {base + q*8192}")
        ops.append((pre, f"buffer_load_dwordx4 v{vWD+q}, {sr(SW,4)}, s{sT3} offen{WFL} lds"))
    return ops
sWOR = 86
def dma_wo(c, u):
    base = WO_BASE + u * 2 * UNIT
    ops = []
    if OPT["hackwo"]: return ops
    if u < OPT["worot"]:
        for q in range(3 if c == 0 else 2):
            pre = [f"s_lshl_b32 s{sT3}, s{sWOR+u}, 3", f"s_add_u32 s{sT3}, s{sT3}, s{sCUR}", f"s_add_u32 s{sT2}, s{sW1K}, s{sWOR+u}", f"s_add_u32 m0, s{sT2}, {WO_BASE + q*8192}"]
            ops.append((pre, f"buffer_load_dwordx4 v{vWO+q}, {sr(SO,4)}, s{sT3} offen{WOFL} lds"))
        return ops
    for q in range(3 if c == 0 else 2):
        pre = [f"s_add_u32 s{sT3}, s{sCUR}, {u*128*1280}", f"s_add_u32 m0, s{sW1K}, {base + q*8192}"]
        ops.append((pre, f"buffer_load_dwordx4 v{vWO+q}, {sr(SO,4)}, s{sT3} offen{WOFL} lds"))
    return ops
def emit_op(op, tag):
    if callable(op): return op()
    for p in op[0]: a(p)
    a(op[1], tag)

def spin_begin(name):
    a(f"s_mov_b32 s{sSPIN}, 0"); a.label(name)
def spin_check(name, done):
    a.vm = [t for t in a.vm if t != "~x"]
    a(f"s_add_u32 s{sSPIN}, s{sSPIN}, 1"); a(f"s_cmp_lt_u32 s{sSPIN}, {SPIN_MAX}"); a(f"s_cbranch_scc1 {name}")
    a.label(done)

def phi_ins(src, n, dst_list, tmp):
    r = []
    if OPT["hackphi"]:
        for d in dst_list:
            for i in range(0, n, 2): r.append(f"v_cvt_pk_bf16_f32 v{d+i//2}, v{src+i}, v{src+i+1}")
        return r
    for i in range(n): r.append(f"v_mul_f32 v{tmp+i}, s{sK}, v{src+i}")
    for i in range(n):
        r.append(f"v_exp_f32_e64 v{tmp+i}, v{tmp+i} clamp")
        r.append(f"v_max_f32 v{src+i}, s{sK+1}, v{src+i}")
    for i in range(n): r.append(f"v_add_f32 v{src+i}, v{src+i}, v{tmp+i}")
    for d in dst_list:
        for i in range(0, n, 2): r.append(f"v_cvt_pk_bf16_f32 v{d+i//2}, v{src+i}, v{src+i+1}")
    return r
def phi_pack(*args):
    for i in phi_ins(*args): a(i)
def pack_ins(src, dst):
    return [f"v_cvt_pk_bf16_f32 v{dst}, v{src}, v{src+1}", f"v_cvt_pk_bf16_f32 v{dst+1}, v{src+2}, v{src+3}"]
def pack(src, dst):
    for i in pack_ins(src, dst): a(i)
def mfma(d, A, B, C):
    c = C if isinstance(C, str) else vr(C, 4)
    a(f"v_mfma_f32_16x16x32_bf16 {vr(d,4)}, {vr(A,4)}, {vr(B,4)}, {c}")

def emit_side(x):
    if callable(x): x(); return 4
    if isinstance(x, list):
        for y in x: a(y)
        return max(1, sum(1 for y in x if y.startswith("v_")))
    a(x); return 1

def parse_pr(x):
    return {int(e.split(':')[0]): int(e.split(':')[1]) for e in str(x).split(',') if e}

def pipeline(N, reads, mf, bounds, boundary, L, Lb, bufs, newbufs={}, side={}, side_rate=3, prio=None, front=0):
    rd = 0; m = 0; tags = {}; bufof = {}; pend = []; every = 1; cnt = 0
    free = deque(bufs); bl = sorted(bounds); sq = deque()
    while m < N:
        can_read = rd < N and rd - m < L + 1 and len(free) > 0
        if can_read and rd in bounds and rd - m > Lb: can_read = False
        if can_read:
            if rd in bounds:
                for op in pend: emit_op(op[0], op[1])
                pend = list(boundary(bounds[rd]))
                nxt = [x for x in bl if x > rd]
                span = (nxt[0] if nxt else N) - rd
                every = max(1, (span - 1) // max(1, len(pend))); cnt = 0
                if front == 1: every = 1
                if front == 2:
                    for op in pend: emit_op(op[0], op[1])
                    pend = []
            bufof[rd] = free.popleft()
            tags[rd] = reads(rd, bufof[rd]); rd += 1
        else:
            if prio and (m % prio[0]) in prio[1]: a(f"s_setprio {prio[1][m % prio[0]]}")
            a.wait(lg=tags[m])
            cnt += 1; op = None
            if pend and cnt % every == 0:
                op = pend.pop(0)
                if not callable(op[0]):
                    for p in op[0][0]: a(p)
            mf(m, bufof[m])
            free.append(bufof[m])
            for b_ in newbufs.get(m, []): free.append(b_)
            if op is not None:
                if callable(op[0]): op[0]()
                else: a(op[0][1], op[1])
            for x in side.get(m, []): sq.append(x)
            k = 0
            while sq and k < side_rate:
                k += emit_side(sq.popleft())
            m += 1
    for op in pend: emit_op(op[0], op[1])
    while sq: emit_side(sq.popleft())

def step_offsets_win(s):
    sizes = [int(x) for x in str(OPT["win"]).split(",")]
    w0 = 0
    for sz in sizes:
        if s < w0 + sz: break
        w0 += sz
    if sz == 1:
        a(f"s_add_u32 s{sWK+s}, s5, {s*245760}"); a(f"s_add_u32 s{sXO+s}, s4, {s*128}")
        return
    a(f"s_add_u32 s{sT3}, s{sCUR}, {s - w0}"); a(f"s_and_b32 s{sT3}, s{sT3}, {sz-1}"); a(f"s_add_u32 s{sT3}, s{sT3}, {w0}")
    a(f"s_mul_i32 s{sWK+s}, s{sT3}, 245760"); a(f"s_add_u32 s{sWK+s}, s{sWK+s}, s5")
    a(f"s_lshl_b32 s{sXO+s}, s{sT3}, 7"); a(f"s_add_u32 s{sXO+s}, s{sXO+s}, s4")

def touch_steps(c, s0, n, par, tag):
    a(f"s_lshr_b32 s3, s2, 3"); a(f"s_and_b32 s6, s3, 1"); a(f"s_cmp_eq_u32 s6, {par}"); a(f"s_cbranch_scc0 L_nt_{tag}")
    a(f"s_lshr_b32 s3, s3, 1")
    a(f"s_and_b32 s6, s2, 3")
    if c == 1:
        a(f"s_cmp_eq_u32 s{sWV}, 4"); a(f"s_cbranch_scc0 L_tw_{tag}")
    if n < 5 and c == 1: a(f"s_branch L_nt_{tag}")
    else:
        a(f"s_lshl_b32 s6, s6, 4"); a(f"s_add_u32 s6, s6, s3"); a(f"s_mul_i32 s6, s6, {32*1280}")
        a(f"s_lshl_b32 s7, s{sWV}, 7"); a(f"s_add_u32 s6, s6, s7"); a(f"s_add_u32 s6, s6, {s0*128}")
        a(f"v_mul_u32_u24 v86, 1280, v{vL}")
        a("s_mov_b32 exec_hi, 0")
        a(f"buffer_load_dword v87, v86, {sr(SX,4)}, s6 offen nt", "~t")
        a("s_mov_b32 exec_hi, -1")
        if c == 1: a(f"s_branch L_nt_{tag}")
    if c == 1:
        a.label(f"L_tw_{tag}")
        a(f"s_lshl_b32 s6, s6, 4"); a(f"s_add_u32 s6, s6, s3"); a(f"s_mul_i32 s6, s6, 3840"); a(f"s_add_u32 s6, s6, {s0*245760 + 1280}")
        a(f"s_sub_u32 s7, s{sWV}, 5"); a(f"s_mul_i32 s7, s7, 34")
        a(f"v_add_u32 v86, s7, v{vL}"); a(f"v_min_u32 v86, {20*n-1}, v86")
        a(f"v_mul_u32_u24 v87, 3277, v86"); a(f"v_lshrrev_b32 v87, 16, v87")
        a(f"v_mul_u32_u24 v88, 20, v87"); a(f"v_sub_u32 v86, v86, v88"); a(f"v_lshlrev_b32 v86, 7, v86")
        a(f"v_mul_u32_u24 v87, 245760, v87"); a(f"v_add_u32 v86, v86, v87")
        a("s_mov_b32 exec_hi, 3")
        a(f"buffer_load_dword v87, v86, {sr(SW,4)}, s6 offen", "~t")
        a("s_mov_b32 exec_hi, -1")
    a.label(f"L_nt_{tag}")

vTX, vTW, vTD = 79, 89, 95
sTXB, sTWB = 12, 13
def tc_setup(sx, sw):
    a(f"v_lshrrev_b32 v{vTX}, 1, v{vL}"); a(f"v_mul_u32_u24 v{vTX}, 1280, v{vTX}"); a(f"v_and_b32 v{vTW}, 1, v{vL}"); a(f"v_lshl_add_u32 v{vTX}, v{vTW}, 7, v{vTX}")
    a(f"v_mul_u32_u24 v{vTW}, 3277, v{vL}"); a(f"v_lshrrev_b32 v{vTW}, 16, v{vTW}"); a(f"v_mul_u32_u24 v{vTW}, {3840 - 2560}, v{vTW}")
    a(f"v_lshl_add_u32 v{vTW}, v{vL}, 7, v{vTW}")
    a(f"s_lshr_b32 s6, s2, 3"); a(f"s_and_b32 s7, s2, 3"); a("s_lshl_b32 s7, s7, 5"); a("s_add_u32 s7, s7, s6"); a(f"s_mul_i32 s{sx}, s7, 20480")
    a(f"s_mul_i32 s{sw}, s6, 15360"); a(f"s_add_u32 s{sw}, s{sw}, 1280")
def tc_issue(s0, sx, sw, tag="~t"):
    a(f"s_add_u32 s6, s{sx}, {s0*128}"); a(f"s_add_u32 s7, s{sw}, {s0*245760}")
    a("s_mov_b32 exec_hi, 0")
    a(f"buffer_load_dword v{vTD}, v{vTX}, {sr(SX,4)}, s6 offen", tag)
    a("s_mov_b32 exec_hi, 0xff")
    a(f"buffer_load_dword v{vTD}, v{vTW}, {sr(SW,4)}, s7 offen", tag)
    a("s_add_u32 s7, s7, 7680")
    a(f"buffer_load_dword v{vTD}, v{vTW}, {sr(SW,4)}, s7 offen", tag)
    a("s_mov_b32 exec_hi, -1")

TQN = [0]
sAP = 12
CURB = [0]
def touch_ax(c, what):
    a(f"s_lshl_b32 s3, s{sRT}, 3"); a(f"s_add_u32 s3, s3, s{sHG}")
    if what == "o":
        a(f"s_lshl_b32 s3, s3, 3"); a(f"s_add_u32 s3, s3, s{sWV}"); a("s_mul_i32 s3, s3, 2560")
        a(f"v_lshlrev_b32 v86, 7, v{vL}")
        a("s_mov_b64 exec, 0xfffff")
        a(f"buffer_load_dword v95, v86, {sr(SS,4)}, s3 offen")
        a("s_mov_b64 exec, -1")
        return
    if what == "x":
        a(f"s_lshl_b32 s3, s3, 3"); a(f"s_add_u32 s3, s3, s{sWV}"); a("s_mul_i32 s3, s3, 2560")
        if OPT["axf"]:
            n = 10 - OPT["axf"]
            a(f"s_lshr_b32 s6, s{sRT}, 2"); a("s_mul_i32 s6, s6, 5"); a("s_add_u32 s6, s6, 1"); a("s_lshr_b32 s6, s6, 1"); a(f"s_add_u32 s6, s6, {OPT['axf']}")
            a(f"v_cmp_le_u32 vcc, {n}, v{vL}")
            a(f"v_add_u32 v86, s6, v{vL}"); a(f"v_subrev_u32 v87, {n}, v86"); a("v_cndmask_b32 v86, v86, v87, vcc")
            a("v_subrev_u32 v87, 10, v86"); a("v_min_u32 v86, v86, v87")
            a("v_lshlrev_b32 v86, 7, v86"); a("v_add_u32 v87, 1280, v86"); a("v_cndmask_b32 v86, v86, v87, vcc")
        else: a(f"v_lshlrev_b32 v86, 7, v{vL}")
        a("s_mov_b32 s4, s14"); a("s_mov_b32 s5, s15"); a("s_mov_b32 s6, 2621440"); a("s_mov_b32 s7, 0x20000")
        a(f"s_mov_b64 exec, {(1 << (2 * (10 - OPT['axf']))) - 1}")
    else:
        a(f"s_mul_i32 s3, s3, 5"); a(f"s_min_u32 s4, s{sWV}, 4"); a(f"s_add_u32 s3, s3, s4"); a("s_mul_i32 s3, s3, 3840"); a("s_add_u32 s3, s3, 1280")
        a(f"v_lshlrev_b32 v86, 7, v{vL}")
        a(f"s_cmp_lt_u32 s{sWV}, {OPT['awn']}"); a("s_cselect_b32 vcc_lo, 0xfffff, 1")
        a("s_mov_b32 s4, s100"); a("s_mov_b32 s5, s101"); a("s_mov_b32 s6, 2457600"); a("s_mov_b32 s7, 0x20000")
        a("s_mov_b32 exec_lo, vcc_lo"); a("s_mov_b32 exec_hi, 0")
    a(f"buffer_load_dword v95, v86, s[4:7], s3 offen")
    a("s_mov_b64 exec, -1")

def touch_qo(c):
    if OPT["tqonly"] == 1 and c == 1: return
    if OPT["tqonly"] == 2 and c == 0: return
    if OPT["eoff"] and CURB[0] == 0: return
    if OPT["ecpar"] >= 0:
        TQN[0] += 1
        a(f"s_add_u32 s3, s{sRT}, s{sHG}"); a(f"s_bitcmp1_b32 s3, 0"); a(f"s_cbranch_scc{1 - OPT['ecpar']} L_noq{TQN[0]}")
        a(f"s_lshl_b32 s3, s{sRT}, 2"); a(f"s_lshr_b32 s6, s{sHG}, 1"); a("s_add_u32 s3, s3, s6"); a(f"s_mul_i32 s3, s3, 100"); a(f"s_mul_i32 s6, s{sI}, 25"); a("s_add_u32 s3, s3, s6")
    else:
        a(f"s_lshl_b32 s3, s{sRT}, 3"); a(f"s_add_u32 s3, s3, s{sHG}"); a(f"s_mul_i32 s3, s3, 50"); a(f"s_mul_i32 s6, s{sI}, 13"); a("s_add_u32 s3, s3, s6")
    a(f"v_add_u32 v86, s3, v{vL}")
    if c == 0:
        a(f"v_mul_u32_u24 v87, 52429, v86"); a(f"v_lshrrev_b32 v87, 19, v87")
        a(f"v_mul_u32_u24 v88, 10, v87"); a(f"v_sub_u32 v86, v86, v88"); a(f"v_lshlrev_b32 v86, 7, v86")
        a(f"v_mul_u32_u24 v87, 3840, v87"); a(f"v_add_u32 v86, v86, v87")
    else:
        a(f"v_lshlrev_b32 v86, 7, v86")
    a(f"s_mov_b64 exec, {0x1fff if OPT['ecpar'] < 0 else 0x1ffffff}")
    if OPT["ecpar"] >= 0:
        a.ghost_cond["eq"] = [f"s_add_u32 s3, s{sRT}, s{sHG}", "s_and_b32 s3, s3, 1", f"s_cmp_eq_u32 s3, {OPT['ecpar']}"]
    a(f"buffer_load_dword v95, v86, {sr(SW if c == 0 else SO,4)}, 0 offen", "~eq" if OPT["ecpar"] >= 0 else None)
    if OPT["eoff"]:
        a(f"s_mov_b32 s4, s{sAP}"); a(f"s_mov_b32 s5, s{sAP+1}"); a(f"s_mov_b32 s6, {2457600 if c == 0 else 819200}"); a("s_mov_b32 s7, 0x20000")
        a(f"buffer_load_dword v95, v86, s[4:7], 0 offen")
    a("s_mov_b64 exec, -1")
    if OPT["ecpar"] >= 0: a.label(f"L_noq{TQN[0]}")

def prestore(c):
    a(f"s_lshl_b32 s3, s{sHG}, 11"); a(f"s_add_u32 s3, s3, s{sOB}"); a(f"s_add_u32 s3, s3, {c*1024}"); a("s_add_u32 s4, s3, 20480")
    a(f"s_lshl_b32 s5, s{sHG}, 9"); a(f"s_add_u32 s5, s5, s{sOB}"); a(f"s_add_u32 s5, s5, {16384 + c*256}"); a("s_add_u32 s6, s5, 20480")
    a(f"v_lshlrev_b32 v79, 4, v{vL}")
    a(f"buffer_store_dwordx4 v[80:83], v79, {sr(SS,4)}, s3 offen sc1")
    a(f"buffer_store_dwordx4 v[80:83], v79, {sr(SS,4)}, s4 offen sc1")
    a("s_mov_b64 exec, 0xffff")
    a(f"buffer_store_dwordx4 v[80:83], v79, {sr(SS,4)}, s5 offen sc1")
    a(f"buffer_store_dwordx4 v[80:83], v79, {sr(SS,4)}, s6 offen sc1")
    a("s_mov_b64 exec, -1")

ORDS = {
 "a": ["0213645789", "0142358679", "1302475689", "1053246978"],
 "b": ["0412385679", "1253049678", "2306145789", "3012745689"],
 "c": ["0123456789"] * 4,
 "d": ["0246135789", "0357124689", "1024683579", "1035792468"],
 "g": ["0213465789", "0132457689", "1024356879", "1023546798"],
 "h": ["0216345789", "0142835679", "1307245689", "1052934678"],
 "i": ["0213645789", "0142358679", "1302475689", "1053249678"],
 "j": ["0214365879", "0132547698", "1302456789", "1023456789"],
 "k": ["0321645789", "0145238679", "1203475689", "1054326978"],
 "l": ["0261345789", "0148235679", "1370245689", "1059234678"],
 "m": ["0316425789", "1047235689", "2150834679", "0125934678"],
 "n": ["0246135789", "0135724689", "1380245679", "1029345678"],
 "o": ["0213645789", "0142835679", "1302745689", "1053294678"],
 "p": ["0246135789", "0158234679", "1370245689", "1029345678"],
 "q": ["0245136789", "0136782459", "1302456789", "1023945678"],
 "r": ["0247135689", "0135824679", "1369024578", "1023456789"],
 "s": ["0241635789", "0135274689", "1308245679", "1023945678"],
 "t": ["0357124689", "1046235789", "2180345679", "0129345678"],
 "u": ["0234561789", "0167823459", "1023945678", "1023456789"],
 "v": ["0241356789", "0126834579", "1350246789", "1037924568"],
 "w": ["0241356789", "0126348579", "1350246789", "1037294568"],
 "x": ["0241635789", "0126345789".replace("6345", "7345").replace("789", "689"), "1350824679", "1032945678"],
 "y": ["0241356789", "0162834579", "1350246789", "1073924568"],
 "z": ["0124356789", "0135624789", "1046235789", "1057234689"],
 "A": ["0123465789", "1230547689", "2301456879", "3012456798"],
 "B": ["0142356789", "1203564789", "2310457689", "3021845679"],
 "C": ["0124563789", "1035742689", "2016834579", "0129345678"],
 "D": ["0213457689", "0132645879", "1302456798", "1023546789"],
 "E": ["0245136789", "0134678259", "1302456789", "1023459678"],
 "F": ["0214536789", "0136782459", "1302456789", "1023945678"],
 "e": ["0231645789", "0145238679", "1320475689", "1054326978"],
}
sORD = 84
assert OPT["lean2"] or not OPT["ord"], "ord keeps the XCD offset in s83, which lean2=0 loads a pointer into"
def step_offsets_ord(s):
    tabs = ORDS[OPT["ord"]]
    tabsB = ORDS[OPT["ordB"]] if OPT["ordB"] else tabs
    for t in tabs + tabsB: assert sorted(t) == list("0123456789")
    for t, u in zip(tabs, tabsB): assert t[0] == u[0]
    if s == 0:
        a(f"s_add_u32 s{sCUR}, s3, s{sHG}"); a(f"s_and_b32 s{sCUR}, s{sCUR}, 3")
        f0 = sum(int(t[0]) << (4 * k) for k, t in enumerate(tabs))
        a(f"s_lshl_b32 s{sT1}, s{sCUR}, 2"); a(f"s_lshr_b32 s{sT3}, 0x{f0:x}, s{sT1}"); a(f"s_and_b32 s{sT3}, s{sT3}, 15")
        if OPT["ordoff"]:
            a(f"s_and_b32 s83, s2, 3"); a("s_mul_i32 s83, s83, 5"); a("s_add_u32 s83, s83, 1"); a("s_lshr_b32 s83, s83, 1")
    else:
        if s == 1:
            pk = [sum(int(ch) << (4 * k) for k, ch in enumerate(t[1:9])) for t in tabs]
            p9 = sum(int(t[9]) << (4 * k) for k, t in enumerate(tabs))
            if tabsB is tabs:
                a(f"s_mov_b32 s{sORD}, 0x{pk[0]:x}")
                for k in (1, 2, 3): a(f"s_cmp_eq_u32 s{sCUR}, {k}"); a(f"s_cselect_b32 s{sORD}, 0x{pk[k]:x}, s{sORD}")
                a(f"s_lshl_b32 s{sT1}, s{sCUR}, 2"); a(f"s_lshr_b32 s{sORD+1}, 0x{p9:x}, s{sT1}"); a(f"s_and_b32 s{sORD+1}, s{sORD+1}, 15")
            else:
                pk += [sum(int(ch) << (4 * k) for k, ch in enumerate(t[1:9])) for t in tabsB]
                p9 |= sum(int(t[9]) << (16 + 4 * k) for k, t in enumerate(tabsB))
                a(f"s_lshl_b32 s{sT2}, s{sB}, 2"); a(f"s_add_u32 s{sT2}, s{sT2}, s{sCUR}")
                a(f"s_mov_b32 s{sORD}, 0x{pk[0]:x}")
                for k in range(1, 8): a(f"s_cmp_eq_u32 s{sT2}, {k}"); a(f"s_cselect_b32 s{sORD}, 0x{pk[k]:x}, s{sORD}")
                a(f"s_lshl_b32 s{sT1}, s{sT2}, 2"); a(f"s_lshr_b32 s{sORD+1}, 0x{p9:x}, s{sT1}"); a(f"s_and_b32 s{sORD+1}, s{sORD+1}, 15")
        if s < 9: a(f"s_bfe_u32 s{sT3}, s{sORD}, 0x{(4 << 16) | (4 * (s - 1)):x}")
        else: a(f"s_mov_b32 s{sT3}, s{sORD+1}")
    if OPT["ordoff"]:
        a(f"s_add_u32 s{sT3}, s{sT3}, s83"); a(f"s_cmp_ge_u32 s{sT3}, 10"); a(f"s_cselect_b32 s{sT1}, 10, 0"); a(f"s_sub_u32 s{sT3}, s{sT3}, s{sT1}")
    a(f"s_mul_i32 s{sWK+s}, s{sT3}, 245760"); a(f"s_add_u32 s{sWK+s}, s{sWK+s}, s5")
    a(f"s_lshl_b32 s{sXO+s}, s{sT3}, 7"); a(f"s_add_u32 s{sXO+s}, s{sXO+s}, s4")

def step_offsets(s):
    if OPT["ord"]: return step_offsets_ord(s)
    if OPT["win"]: return step_offsets_win(s)
    G = OPT["G"]; w0 = (s // G) * G
    if w0: a(f"s_add_u32 s{sT3}, s{sCUR}, {w0}"); src = sT3
    else: src = sCUR
    a(f"s_mul_i32 s{sWK+s}, s{src}, 245760"); a(f"s_add_u32 s{sWK+s}, s{sWK+s}, s5")
    a(f"s_lshl_b32 s{sXO+s}, s{src}, 7"); a(f"s_add_u32 s{sXO+s}, s{sXO+s}, s4")
    if G > 1 and s < 9:
        a(f"s_add_u32 s{sCUR}, s{sCUR}, 1"); a(f"s_cmp_eq_u32 s{sCUR}, {G}"); a(f"s_cselect_b32 s{sCUR}, 0, s{sCUR}")

sTCX, sTCW = 88, 89
def tc_start():
    f0 = OPT["tcpos"]
    a(f"s_cmp_lt_u32 s{sWV}, {OPT['tc0']}"); a("s_cbranch_scc0 L_notc0")
    a(f"s_mul_i32 s6, s{sWV}, 256"); a(f"s_add_u32 s{sT0}, s{sTCX}, s6"); a(f"s_mul_i32 s6, s{sWV}, {2*245760}"); a(f"s_add_u32 s{sT1}, s{sTCW}, s6")
    tc_issue(OPT["tcs"], sT0, sT1)
    a.label("L_notc0")

SCHED = {}
for ent in str(OPT["sched"]).split(","):
    if ent:
        p_, ks = ent.split(":"); SCHED[int(p_)] = [int(x) for x in ks.split(".")]
for p_, ks in SCHED.items():
    for k in ks: assert k - p_ <= 3 and k - p_ >= 1

def tlb_warm():
    a(f"v_lshlrev_b32 v88, 20, v{vL}")
    a("s_mov_b64 exec, 0x1f")
    a(f"buffer_load_dword v95, v88, {sr(SD,4)}, 0 offen")
    a("s_mov_b64 exec, 0x1ff")
    a(f"buffer_load_dword v95, v88, {sr(SS,4)}, 0 offen")
    a("s_mov_b64 exec, 1")
    a(f"buffer_load_dword v95, v88, {sr(SO,4)}, 0 offen")
    a("s_mov_b64 exec, -1")

def own_x_touch():
    if OPT["oxb"]: a(f"s_cmp_eq_u32 s{sB}, 0"); a("s_cbranch_scc1 L_noox")
    a(f"s_and_b32 s3, s2, 3"); a("s_lshl_b32 s3, s3, 5"); a("s_lshr_b32 s6, s2, 3"); a("s_add_u32 s3, s3, s6")
    a(f"s_lshl_b32 s3, s3, 3"); a(f"s_add_u32 s3, s3, s{sWV}"); a("s_mul_i32 s3, s3, 2560")
    if OPT["oxt"] == 1:
        a(f"v_lshlrev_b32 v88, 7, v{vL}"); a("s_mov_b64 exec, 0xfffff")
    else:
        n = 10 - OPT["oxf"]
        a(f"v_cmp_le_u32 vcc, {n}, v{vL}"); a(f"s_add_u32 s6, s83, {OPT['oxf']}")
        a(f"v_add_u32 v88, s6, v{vL}"); a(f"v_subrev_u32 v87, {n}, v88"); a("v_cndmask_b32 v88, v88, v87, vcc")
        a("v_subrev_u32 v87, 10, v88"); a("v_min_u32 v88, v88, v87")
        a("v_lshlrev_b32 v88, 7, v88"); a("v_add_u32 v87, 1280, v88"); a("v_cndmask_b32 v88, v88, v87, vcc")
        a(f"s_mov_b64 exec, {(1 << (2 * n)) - 1}")
    a(f"buffer_load_dword v95, v88, {sr(SX,4)}, s3 offen", "~oxB" if OPT["oxb"] else None)
    a("s_mov_b64 exec, -1")
    if OPT["oxb"]: a.label("L_noox")

def prologue():
    a.raw(f"; @launch grid=(256,1,1) block=(512,1,1) lds=163840")
    a.raw('.amdgcn_target "amdgcn-amd-amdhsa--gfx950"')
    a.raw(".text"); a.raw(f".globl {KNAME}"); a.raw(".p2align 8"); a.raw(f".type {KNAME},@function")
    a.label(KNAME)
    a("s_cmp_ge_u32 s2, 256")
    a("s_cbranch_scc1 L_end")
    a(f"s_bfe_u32 s{sB}, s2, 0x10002")
    a(f"s_mul_i32 s3, s{sB}, 24")
    a("s_add_u32 s76, s0, s3"); a("s_addc_u32 s77, s1, 0")
    if OPT["lean2"]:
        a(f"s_load_dwordx2 s[{SX}:{SX+1}], s[76:77], 0"); a(f"s_load_dwordx2 s[{SW}:{SW+1}], s[76:77], 8")
    else:
        a(f"s_load_dwordx4 s[{sM}:{sM+3}], s[76:77], 0")
        a("s_load_dwordx2 s[8:9], s[76:77], 16")
        a("s_load_dwordx4 s[12:15], s[0:1], 48")
        a("s_load_dwordx2 s[10:11], s[0:1], 64")
    a(f"v_lshrrev_b32 v{vT}, 6, v0")
    a(f"v_and_b32 v{vL}, 63, v0")
    a(f"v_readfirstlane_b32 s{sWV}, v{vT}")
    if OPT["codepf"] >= 3:
        nl = OPT["cpl"]
        a("s_getpc_b64 s[6:7]")
        a.label(f"L_pc")
        if OPT["codepf"] == 4:
            a(f"s_mul_i32 s4, s{sB}, L_path_10-L_path_00"); a(f"s_add_u32 s4, s4, L_path_00-L_pc")
            a("s_add_u32 s6, s6, s4"); a("s_addc_u32 s7, s7, 0")
            a(f"s_lshr_b32 s3, s2, 3"); a(f"s_mul_i32 s3, s3, {nl*1024}")
            a(f"v_mul_u32_u24 v88, {nl}, v{vT}"); a(f"v_add_u32 v88, v88, v{vL}"); a(f"v_lshl_add_u32 v88, v88, 7, s3")
            a(f"s_cmp_eq_u32 s{sB}, 0"); a("s_cselect_b32 s4, L_phase2-L_path_10, 0"); a("s_cselect_b32 s5, L_path_10-L_path_00, 0"); a("s_add_u32 s5, s5, L_codeend-L_path_10-4")
            a("v_add_u32 v87, s4, v88"); a("v_cmp_le_u32 vcc, L_path_10-L_path_00, v88"); a("v_cndmask_b32 v88, v88, v87, vcc")
            a("v_min_u32 v88, s5, v88")
        else:
            a(f"s_sub_u32 s6, s6, L_pc-{KNAME}"); a("s_subb_u32 s7, s7, 0")
            a(f"s_lshr_b32 s3, s2, 3"); a(f"s_lshl_b32 s3, s3, 11")
            a(f"v_lshl_add_u32 v88, v{vT}, 1, v{vL}"); a(f"v_lshl_add_u32 v88, v88, 7, s3")
            a(f"v_min_u32 v88, L_codeend-{KNAME}-4, v88")
        a(f"v_mov_b32 v87, s7")
        a(f"v_add_co_u32 v86, vcc, s6, v88")
        a(f"v_addc_co_u32 v87, vcc, 0, v87, vcc")
        a(f"s_mov_b64 exec, {3 if OPT['codepf'] == 3 else (1 << nl) - 1}"); a(f"global_load_dword v95, v[86:87], off"); a("s_mov_b64 exec, -1")
    if OPT["stamps"]:
        a(f"v_mov_b32 v{vST}, 0"); a(f"s_memtime {sr(sTM,2)}"); a("s_memrealtime s[100:101]")
    a(f"v_lshrrev_b32 v{vT}, 3, v{vL}")
    a(f"v_lshrrev_b32 v{vT+1}, 4, v{vL}")
    a(f"v_xor_b32 v{vT+1}, v{vT+1}, v{vL}")
    a(f"v_and_b32 v{vT+1}, 7, v{vT+1}")
    a(f"v_mul_u32_u24 v{vT}, 1280, v{vT}")
    a(f"v_lshl_add_u32 v{vXD0}, v{vT+1}, 4, v{vT}")
    a(f"v_xor_b32 v{vXD1}, 64, v{vXD0}")
    a(f"v_add_u32 v{vXD1}, 10240, v{vXD1}")
    a(f"s_and_b32 s{sRT}, s2, 3"); a(f"s_lshl_b32 s{sRT}, s{sRT}, 2")
    a(f"s_bfe_u32 s3, s2, 0x20003"); a(f"s_add_u32 s{sRT}, s{sRT}, s3")
    a(f"s_lshr_b32 s{sHG}, s2, 5")
    a(f"s_lshr_b32 s{sC}, s{sWV}, 2")
    a(f"s_lshl_b32 s{sW1K}, s{sWV}, 10"); a(f"s_lshl_b32 s{sX2K}, s{sWV}, 11")
    G = OPT["G"]
    if OPT["ord"]: pass
    elif OPT["win"]: a(f"s_mov_b32 s{sCUR}, s3")
    elif G == 1: a(f"s_mov_b32 s{sCUR}, 0")
    elif G == 2: a(f"s_add_u32 s{sCUR}, s3, s{sHG}"); a(f"s_and_b32 s{sCUR}, s{sCUR}, 1")
    else:
        if OPT["rot2"]:
            a(f"s_mul_i32 s{sCUR}, s3, 5"); a(f"s_add_u32 s{sCUR}, s{sCUR}, 1"); a(f"s_lshr_b32 s{sCUR}, s{sCUR}, 1")
            a(f"s_add_u32 s{sCUR}, s{sCUR}, s{sHG}")
            if OPT["rot2"] == 1: a(f"s_lshr_b32 s{sT1}, s{sHG}, 2"); a(f"s_add_u32 s{sCUR}, s{sCUR}, s{sT1}")
            if OPT["rot2"] == 3: a(f"s_add_u32 s{sCUR}, s{sCUR}, s{sHG}"); a(f"s_add_u32 s{sCUR}, s{sCUR}, s{sHG}")
        else:
            a(f"s_lshl_b32 s{sCUR}, s3, 1"); a(f"s_add_u32 s{sCUR}, s{sCUR}, s{sHG}")
        if OPT["xrot"]: a(f"s_and_b32 s{sT1}, s2, 3"); a(f"s_add_u32 s{sCUR}, s{sCUR}, s{sT1}")
        for _ in range(3 if G == 5 or OPT['rot2'] == 3 else 1):
            a(f"s_cmp_ge_u32 s{sCUR}, {G}"); a(f"s_cselect_b32 s{sT1}, {G}, 0"); a(f"s_sub_u32 s{sCUR}, s{sCUR}, s{sT1}")
    a(f"s_lshl_b32 s4, s{sRT}, 3"); a(f"s_add_u32 s4, s4, s{sWV}"); a(f"s_mul_i32 s4, s4, 20480")
    a(f"s_mul_i32 s5, s{sHG}, 160"); a(f"s_add_u32 s5, s5, 1280")
    step_offsets(0)
    def cpf_addr():
        a("s_getpc_b64 s[6:7]")
        a.label(f"L_pc")
        a(f"s_sub_u32 s6, s6, L_pc-{KNAME}"); a("s_subb_u32 s7, s7, 0")
        a(f"s_lshr_b32 s3, s2, 3"); a(f"s_lshl_b32 s3, s3, 3"); a(f"s_add_u32 s3, s3, s{sWV}"); a("s_lshl_b32 s3, s3, 8")
        a(f"v_lshl_add_u32 v88, v{vL}, 7, s3")
        a(f"v_min_u32 v88, L_codeend-{KNAME}-4, v88")
        a(f"v_mov_b32 v87, s7")
        a(f"v_add_co_u32 v86, vcc, s6, v88")
        a(f"v_addc_co_u32 v87, vcc, 0, v87, vcc")
    def cpf_go():
        a("s_mov_b64 exec, 3"); a(f"global_load_dword v95, v[86:87], off"); a("s_mov_b64 exec, -1")
    LEAN = OPT["lean"]
    if not OPT["lean2"]:
        for q in range(1 if LEAN else 2): wvoff(vWD + q, q, 3840, True, 1280)
    a(f"s_mov_b32 s{SX+2}, 2621440"); a(f"s_mov_b32 s{SX+3}, 0x20000"); a(f"s_mov_b32 s{SW+2}, 2457600"); a(f"s_mov_b32 s{SW+3}, 0x20000")
    if OPT["codepf"] and not LEAN: cpf_addr()
    if OPT["tc0"]: tc_setup(sTCX, sTCW)
    a("s_waitcnt lgkmcnt(0)")
    if not OPT["lean2"]:
        a(f"s_mov_b32 s{SX}, s{sM}"); a(f"s_mov_b32 s{SX+1}, s{sM+1}"); a(f"s_mov_b32 s{SW}, s{sM+2}"); a(f"s_mov_b32 s{SW+1}, s{sM+3}")
    if OPT["codepf"] == 1 and not LEAN: cpf_go()
    if OPT["stamps"]:
        a(f"v_writelane_b32 v{vST}, s{sTM}, 0"); stamp("first")
    if OPT["tc0"] and OPT["tcpos"] == 0: tc_start()
    ops = dma_chunk(0, 0)
    if OPT["rv"]:
        def rvop(q):
            pre = []
            if q == 0:
                pre += [f"s_bitcmp1_b32 s{sCUR}, 0", f"s_cselect_b32 s6, 1280, 0", f"s_cselect_b32 s7, 10240, 0"]
                pre += [f"s_add_u32 s{sT3}, s{sWK}, s6", f"s_add_u32 s{sT2}, s{sW1K}, s7"]
            elif q == 1:
                pre += [f"s_bitcmp1_b32 s{sCUR}, 0", f"s_cselect_b32 s6, 1280, 0", f"s_cselect_b32 s7, 10240, 0"]
                pre += [f"s_add_u32 s{sT3}, s{sWK}, s6", f"s_add_u32 s{sT2}, s{sW1K}, s7", f"s_sub_u32 s{sT0}, s{sWK}, s6", f"s_sub_u32 s{sT1}, s{sW1K}, s7",
                        f"s_cmp_lt_u32 s{sWV}, 2", f"s_cselect_b32 s{sT3}, s{sT3}, s{sT0}", f"s_cselect_b32 s{sT2}, s{sT2}, s{sT1}"]
            else:
                pre += [f"s_sub_u32 s{sT3}, s{sWK}, s6", f"s_sub_u32 s{sT2}, s{sW1K}, s7"]
            pre.append(f"s_add_u32 m0, s{sT2}, {16384 + q*8192}")
            return (pre, f"buffer_load_dwordx4 v{vWD+q}, {sr(SW,4)}, s{sT3} offen lds")
        ops = ops[:2] + [rvop(q) for q in range(3)]
    if OPT["lean2"]:
        for op in ops[:2]: emit_op(op, "ch0")
        a("s_load_dwordx2 s[8:9], s[76:77], 16"); a("s_load_dwordx4 s[12:15], s[0:1], 48"); a("s_load_dwordx2 s[10:11], s[0:1], 64")
        wvoff(vWD, 0, 3840, True, 1280)
        emit_op(ops[2], "ch0")
    else:
        for op in ops[:3]: emit_op(op, "ch0")
    if LEAN:
        if OPT["codepf"] == 1: cpf_addr(); cpf_go()
        wvoff(vWD + 1, 1, 3840, True, 1280)
    emit_op(ops[3], "ch0")
    wvoff(vWD + 2, 2, 3840, True, 1280)
    a(f"s_cmp_eq_u32 s{sC}, 0"); a("s_cbranch_scc0 L_no5")
    emit_op(ops[4], "~c0")
    a.label("L_no5")
    if OPT["oxt"] and OPT["oxpos"] == 0: own_x_touch()
    if OPT["tc0"] and OPT["tcpos"] == 1: tc_start()
    if OPT["codepf"] == 2:
        if LEAN: cpf_addr()
        cpf_go()
    if OPT["stamps"]:
        a(f"v_writelane_b32 v{vST}, s100, 40")
    if OPT["lean2"]: a("s_waitcnt lgkmcnt(0)")
    srd(SS, 10, 11, WS_SIZE); srd(SG, 14, 15, 256)
    a(f"s_and_b32 s{sI}, s{sWV}, 3")
    a(f"s_or_b32 s3, s2, s{sWV}"); a("s_cmp_eq_u32 s3, 0"); a(f"s_cbranch_scc0 L_nn0")
    a(f"s_add_u32 s6, s10, {WS_E}"); a("s_addc_u32 s7, s11, 0")
    a(f"s_load_dword s{sN}, s[6:7], 0")
    a.label("L_nn0")
    if OPT["tbal"]: a(f"s_mul_i32 s7, s{sC}, 3"); a(f"s_xor_b32 s{sTI}, s{sI}, s7")
    else: a(f"s_mov_b32 s{sTI}, s{sI}")
    a(f"s_lshl_b32 s6, s{sHG}, 16"); a(f"s_lshl_b32 s7, s{sTI}, 9"); a(f"s_add_u32 s6, s6, s7")
    a(f"s_lshl_b32 s7, s{sC}, 11"); a("s_add_u32 s6, s6, s7")
    a(f"s_add_u32 s{sKVG}, s6, {WS_KV}")
    a(f"s_lshl_b32 s7, s{sRT}, 12"); a(f"s_add_u32 s{sKVP}, s{sKVG}, s7")
    a(f"s_lshl_b32 s6, s{sRT}, 3"); a(f"s_add_u32 s6, s6, s{sHG}"); a(f"s_mul_i32 s6, s6, 6144")
    a(f"s_mul_i32 s7, s{sC}, 3072"); a(f"s_add_u32 s{sHP}, s6, s7"); a(f"s_add_u32 s{sHP}, s{sHP}, {WS_HALO}")
    a(f"s_add_u32 s{sHG2}, s6, {WS_HALO - 8*6144}")
    a(f"v_mov_b32 v76, -1"); a(f"v_mov_b32 v77, -1"); a(f"v_lshlrev_b32 v78, 3, v{vL}")
    a(f"s_cmp_eq_u32 s{sB}, 0"); a(f"s_cbranch_scc0 L_preB")
    a(f"buffer_store_dwordx2 v[76:77], v78, {sr(SS,4)}, s{sKVP} offen sc1", "~preA")
    a(f"s_branch L_pred")
    a.label(f"L_preB")
    a(f"s_cmp_eq_u32 s{sI}, 3"); a(f"s_cbranch_scc0 L_pred")
    for k in range(5): a(f"buffer_store_dwordx2 v[76:77], v78, {sr(SS,4)}, s{sHP} offen offset:{k*512} sc1", "~preB")
    a.label(f"L_pred")
    step_offsets(1)
    if OPT["p1all"]:
        OPT["p1n"] = 5
        o1 = dma_chunk(0, 1)
        for op in o1[:4]: emit_op(op, "ch1")
        a(f"s_cmp_eq_u32 s{sC}, 0"); a("s_cbranch_scc0 L_no15")
        emit_op(o1[4], "~c1")
        a.label("L_no15")
    else:
        for op in dma_chunk(0, 1)[:OPT["p1n"]]: emit_op(op, "ch1")
    if OPT["oxt"] and OPT["oxpos"] == 1: own_x_touch()
    stamp("issued")
    a(f"s_lshl_b32 s3, s{sB}, 1"); a(f"s_add_u32 s3, s3, s{sC}")
    a("s_cmp_eq_u32 s3, 1"); a("s_cbranch_scc1 L_path_01")
    a("s_cmp_eq_u32 s3, 2"); a("s_cbranch_scc1 L_path_10")
    a("s_cmp_eq_u32 s3, 3"); a("s_cbranch_scc1 L_path_11")

def prologue2(b, c):
    P = f"{b}{c}"
    if OPT["p1mid"]:
        for op in dma_chunk(c, 1)[OPT["p1n"]:]: emit_op(op, "ch1")
    if OPT["ea"]: touch_steps(c, 1, 5, 0, f"ea{P}")
    for s in range(2, 10): step_offsets(s)
    srd(SO, 8, 9, 819200); srd(SD, 12, 13, 5242880)
    CURB[0] = b
    if OPT["tlb"] == -1 and c == 1:
        a(f"s_cmp_eq_u32 s{sWV}, 7"); a(f"s_cbranch_scc0 L_notlb_{P}")
        n0 = len(a.vm); tlb_warm(); a.vm = a.vm[:n0] + ["~w7"] * 3
        a.ghost_cond["w7"] = [f"s_cmp_eq_u32 s{sWV}, 7"]
        a.label(f"L_notlb_{P}")
    if b == 1 and (OPT["eoff"] or OPT["axt"] > -2 or OPT["awt"] > -2):
        a(f"s_load_dwordx2 s[12:13], s[0:1], {8 if c == 0 else 16}"); a("s_load_dwordx2 s[14:15], s[0:1], 0")
        if OPT["awt"] > -2: a("s_load_dwordx2 s[100:101], s[0:1], 8")
        a("s_waitcnt lgkmcnt(0)")
        if OPT["axt"] == -1: touch_ax(c, "x")
        if OPT["awt"] == -1: touch_ax(c, "w")
        if OPT["aot"] == -1: touch_ax(c, "o")
    a(f"s_getreg_b32 s{sXCC}, hwreg(HW_REG_XCC_ID, 0, 3)")
    a(f"s_mul_i32 s{sCUR}, s{sHG}, 160")
    if P == "00":
        a(f"s_or_b32 s3, s2, s{sWV}"); a("s_cmp_eq_u32 s3, 0"); a(f"s_cbranch_scc0 L_nononce")
        a("s_waitcnt lgkmcnt(0)")
        a(f"s_add_u32 s6, s{sN}, 0x9e3779b0"); a("s_or_b32 s6, s6, 8"); a("s_andn2_b32 s6, s6, 7")
        a(f"v_mov_b32 v{vT}, s6"); a(f"v_mov_b32 v{vT+1}, 0"); a(f"s_mov_b32 s3, {WS_E}")
        a("s_mov_b64 exec, 1")
        a(f"buffer_store_dword v{vT}, v{vT+1}, {sr(SG,4)}, 0 offen sc1", "~n")
        a(f"buffer_store_dword v{vT}, v{vT+1}, {sr(SS,4)}, s3 offen sc1", "~n")
        a("s_mov_b64 exec, -1")
        a.label("L_nononce")
    a(f"v_and_b32 v{vT}, 15, v{vL}"); a(f"v_lshrrev_b32 v{vT+1}, 4, v{vL}")
    a(f"v_lshrrev_b32 v{vT+2}, 1, v{vT}"); a(f"v_xor_b32 v{vT+2}, v{vT+2}, v{vT+1}"); a(f"v_lshlrev_b32 v{vT+2}, 4, v{vT+2}")
    a(f"v_lshl_add_u32 v{vT+2}, v{vT}, 7, v{vT+2}")
    a(f"s_lshl_b32 s3, s{sI}, 12")
    a(f"v_add_u32 v{vXA0}, s3, v{vT+2}"); a(f"v_xor_b32 v{vXA1}, 64, v{vXA0}")
    a(f"v_lshrrev_b32 v{vT}, 5, v{vL}"); a(f"v_lshlrev_b32 v{vT}, 4, v{vT}")
    a(f"v_bfe_u32 v{vT+2}, v{vL}, 2, 3"); a(f"v_add_u32 v{vT}, v{vT}, v{vT+2}"); a(f"v_mul_u32_u24 v{vT}, 160, v{vT}")
    a(f"v_and_b32 v{vT+1}, 3, v{vL}")
    a(f"v_lshl_add_u32 v{vWA}, v{vT+1}, 3, v{vT}")
    if c: a(f"v_add_u32 v{vWA}, 80, v{vWA}")
    a(f"v_mad_u32_u24 v{vWE}, v{vT+1}, 40, v{vT}")
    a(f"v_add_u32 v{vWE}, {32 + (UNIT if c else 0)}, v{vWE}")
    a(f"s_lshl_b32 s3, s{sB}, 4"); a(f"s_add_u32 s3, s3, s{sRT}")
    a(f"s_lshl_b32 s4, s{sRT}, 3")
    boff = (1280 if AL else 128 * OT) * b
    a(f"s_lshl_b32 s5, s{sI}, 1"); a(f"s_add_u32 s5, s5, s4"); a(f"s_mul_i32 s{sOB}, s5, {OT}")
    if b: a(f"s_add_u32 s{sOB}, s{sOB}, {boff}")
    a(f"s_and_b32 s{sKH}, s{sWV}, 1")
    a(f"s_add_u32 s5, s4, s{sWV}"); a(f"s_mul_i32 s{sOUT}, s5, 40960")
    if b: a(f"s_add_u32 s{sOUT}, s{sOUT}, 1280")
    a(f"s_sub_u32 s5, s5, s{sKH}"); a(f"s_mul_i32 s{sOC}, s5, {OT}")
    a(f"s_mul_i32 s5, s{sKH}, {8*OP_}"); a(f"s_add_u32 s{sOC}, s{sOC}, s5")
    if b: a(f"s_add_u32 s{sOC}, s{sOC}, {boff}")
    a(f"s_mov_b32 s{sOE}, s{sOC}")
    a(f"s_add_u32 s{sOUT}, s{sOUT}, s{sCUR}")
    a(f"s_lshl_b32 s4, s3, 2")
    a(f"s_add_u32 s5, s4, s{sI}"); a(f"s_lshl_b32 s5, s5, 7"); a(f"s_lshl_b32 s6, s{sHG}, 3"); a(f"s_add_u32 s5, s5, s6")
    a(f"s_add_u32 s{sFP}, s5, {WS_FLAG + 4*c}")
    a(f"s_lshr_b32 s5, s{sWV}, 1"); a(f"s_add_u32 s5, s5, s4"); a(f"s_lshl_b32 s5, s5, 7"); a(f"s_add_u32 s5, s5, {WS_FLAG}")
    a(f"s_add_u32 s{sDFC}, s5, 64")
    a(f"s_lshl_b32 s7, s{sKH}, 2"); a(f"s_add_u32 s{sDFP}, s{sDFC}, s6"); a(f"s_add_u32 s{sDFP}, s{sDFP}, s7")
    a(f"s_lshl_b32 s7, s{sKH}, 5"); a(f"s_add_u32 s{sFC}, s5, s7")
    a(f"s_mov_b32 s{sK}, 0x{f2u(LOG2E):x}"); a(f"s_mov_b32 s{sK+1}, 0x{EPS:x}")
    for i in range(4): a(f"v_mov_b32 v{80+i}, s{sK+1}")
    a("v_mov_b32 v84, 0")
    if OPT["t0"]: touch_qo(c)
    if OPT["worot"]:
        R_ = OPT["worot"]
        a(f"s_and_b32 s3, s{sRT}, 3")
        for u in range(R_):
            a(f"s_add_u32 s4, s3, {u}")
            for _ in range(2): a(f"s_cmp_ge_u32 s4, {R_}"); a(f"s_cselect_b32 s5, {R_}, 0"); a("s_sub_u32 s4, s4, s5")
            a(f"s_mul_i32 s{sWOR+u}, s4, 20480")
    if OPT["dmap"]:
        dm = sum(int(ch) << (4 * k) for k, ch in enumerate(str(OPT["dmap"])[-4:]))
        a(f"s_and_b32 s3, s{sRT}, 3"); a(f"s_add_u32 s3, s3, s{sHG}"); a("s_and_b32 s3, s3, 3"); a("s_lshl_b32 s3, s3, 2")
        a(f"s_lshr_b32 s{sDUTY}, 0x{dm:x}, s3"); a(f"s_and_b32 s{sDUTY}, s{sDUTY}, 15")
    elif OPT["st0"] >= 0:
        a(f"s_lshr_b32 s3, s2, 3"); a(f"s_mul_i32 s4, s3, {(65536 + OPT['stn'] - 1) // OPT['stn']}"); a("s_lshr_b32 s4, s4, 16")
        a(f"s_mul_i32 s4, s4, {OPT['stn']}"); a(f"s_sub_u32 s{sDUTY}, s3, s4")
    if (OPT["tc"] or OPT["tcm"]) and not OPT["tc0"]: tc_setup(sTCX, sTCW)
    for q in range(3 if c == 0 else 2): wvoff(vWO + q, q, 1280, False, 64 * 1280)
    a(f"v_and_b32 v{vT}, 7, v{vL}"); a(f"v_lshlrev_b32 v{vT}, 7, v{vT}")
    a(f"s_mul_i32 s3, s{sHG}, {2*OP_}"); a(f"s_add_u32 s3, s3, {c*OP_}")
    a(f"v_add_u32 v{vT}, s3, v{vT}")
    a(f"v_bfe_u32 v{vT+1}, v{vL}, 3, 1"); a(f"v_mul_u32_u24 v{vT+1}, {OT}, v{vT+1}"); a(f"v_add_u32 v{vT}, v{vT}, v{vT+1}")
    a(f"v_and_b32 v{vT+1}, 1, v{vL}"); a(f"v_lshlrev_b32 v{vT+1}, 7, v{vT+1}")
    a(f"s_add_u32 s3, s3, 1024")
    a(f"v_add_u32 v{vT+1}, s3, v{vT+1}")
    a(f"v_bfe_u32 v{vT+2}, v{vL}, 1, 1"); a(f"v_mul_u32_u24 v{vT+2}, {OT}, v{vT+2}"); a(f"v_add_u32 v{vT+1}, v{vT+1}, v{vT+2}")
    set_mask("vcc", 0xffff)
    a(f"v_cndmask_b32 v{vPRE}, v{vT+1}, v{vT}, vcc")
    Z = 56; T1 = 57; T2_ = 58
    a(f"v_mov_b32 v{Z}, 0")
    if b == 0:
        a(f"v_and_b32 v{vGAD}, 31, v{vL}"); a(f"v_lshlrev_b32 v{vGAD}, 4, v{vGAD}"); a(f"v_lshrrev_b32 v{vT}, 5, v{vL}"); a(f"v_lshl_add_u32 v{vGAD}, v{vT}, 15, v{vGAD}")
        selm = lambda l: ((l >> 3) & 1) == ((l >> 4) & 1)
        a(f"v_mov_b32 v{T1}, 0x3f80"); a(f"v_mov_b32 v{T2_}, 0x3f800000")
        set_mask("vcc", lanemask(lambda l: l & 1)); a(f"v_cndmask_b32 v{T1}, v{T1}, v{T2_}, vcc")
        for r in range(4):
            set_mask("vcc", lanemask(lambda l: selm(l) and ((l & 7) >> 1) == r)); a(f"v_cndmask_b32 v{16+r}, v{Z}, v{T1}, vcc")
        a(f"v_mov_b32 v20, s{sK+1}"); a(f"v_mov_b32 v21, s{sK+1}"); a("v_mov_b32 v22, 0"); a("v_mov_b32 v23, 0")
        a(f"v_and_b32 v24, 15, v{vL}"); a("v_lshlrev_b32 v24, 1, v24"); a(f"v_and_b32 v25, 32, v{vL}"); a("v_add_u32 v24, v24, v25")
        a(f"v_bfe_u32 v25, v{vL}, 4, 1"); a("v_add_u32 v24, v24, v25"); a(f"v_lshlrev_b32 v24, {4 if OPT['opr'] else 3}, v24")
        if OPT["opr"]: a("v_xor_b32 v25, 512, v24")
        else: a(f"v_lshlrev_b32 v25, 3, v{vL}"); a("v_xor_b32 v25, 256, v25")
        a("v_mov_b32 v26, 0"); a("v_mov_b32 v26, 0"); a("v_mov_b32 v27, 0")
        ncst = 3
    else:
        dd = lambda l, j: (l & 15) - 4 * (l >> 4) - j
        own = lambda l, j: dd(l, j) >= 0 and dd(l, j) % 2 == 0
        prv = lambda l, j: dd(l, j) <= -2 and dd(l, j) % 2 == 0
        a(f"v_mov_b32 v{T1}, 0x{f2u(-1e30):x}")
        for j in range(4):
            set_mask("vcc", lanemask(lambda l: own(l, j))); a(f"v_cndmask_b32 v{16+j}, v{T1}, v{Z}, vcc")
            set_mask("vcc", lanemask(lambda l: prv(l, j))); a(f"v_cndmask_b32 v{20+j}, v{T1}, v{Z}, vcc")
            a(f"v_mov_b32 v{24+j}, 0x3f803f80")
        a(f"v_mov_b32 v{T1}, 0xffff"); a(f"v_mov_b32 v{T2_}, 0xffff0000")
        set_mask("vcc", lanemask(lambda l: l & 1)); a(f"v_cndmask_b32 v{T1}, v{T1}, v{T2_}, vcc")
        for k, (fn, pr) in enumerate(((prv, 0), (prv, 1), (own, 0), (own, 1))):
            set_mask("vcc", lanemask(lambda l: fn(l, 2 * pr + (l & 1)))); a(f"v_cndmask_b32 v{28+k}, v{Z}, v{T1}, vcc")
        ncst = 4
    a(f"v_lshlrev_b32 v{vT}, 4, v{vL}"); a(f"v_add_u32 v{vT}, {CST}, v{vT}")
    for k in range(ncst): a(f"ds_write_b128 v{vT}, {vr(16+4*k,4)} offset:{k*1024}")
    a.wait(lg="all")

def path(b, c):
    P = f"{b}{c}"; A_ = (b == 0)
    FB = A_ and OPT["fewb"]
    WQ_UNIT[:] = [8, 10, 12, 0, 2] if FB else [8, 10, 12, 0, 14]
    a.label(f"L_path_{P}")
    pstart = len(a.lines)
    a.vm = [("ch0" if (t == "~c0" and c == 0) else t) for t in a.vm]
    a.vm = [("ch1" if (t == "~c1" and c == 0) else t) for t in a.vm if not (t == "~c1" and c == 1)]
    a.vm = [t for t in a.vm if not (t == "~preA" and b == 1) and not (t == "~preB" and b == 0) and not (t == "~c0")]
    a.vm = [t for t in a.vm if not (t == "~oxB" and b == 0)]
    a.vm = [{"~preA": "preA", "~preB": "~i3pre", "~oxB": "oxB"}.get(t, t) for t in a.vm]
    a(f"s_cmp_eq_u32 s{sI}, 0"); a(f"s_cselect_b32 s{sHV}, s{sRT}, 0")
    prologue2(b, c)
    if OPT["p1late"]:
        if not OPT["p1mid"]:
            for op in dma_chunk(c, 1)[OPT["p1n"]:]: emit_op(op, "ch1")
        for op in dma_chunk(c, 2)[:OPT["p1late"] - 1]: emit_op(op, "ch2")
    if OPT["oxt"] and OPT["oxpos"] == 2:
        if OPT["ordoff"]: a(f"s_and_b32 s83, s2, 3"); a("s_mul_i32 s83, s83, 5"); a("s_add_u32 s83, s83, 1"); a("s_lshr_b32 s83, s83, 1")
        assert not AL and not OPT["oxb"]
        own_x_touch()
    vN0, vN1 = 84, 85
    def w0_begin(tag): a(f"s_cmp_eq_u32 s{sWV}, 0"); a(f"s_cbranch_scc0 L_{tag}_{P}")
    def w0_end(tag): a.label(f"L_{tag}_{P}")
    def nonce_load():
        w0_begin("nl")
        a(f"v_mov_b32 v{vN0}, 0")
        a(f"buffer_load_dword v{vN1}, v{vN0}, {sr(SG,4)}, 0 offen sc1", "~w0nonce")
        w0_end("nl")
    def nonce_check():
        w0_begin("nc")
        a.wait(vm="~w0nonce", keep=True)
        a(f"v_readfirstlane_b32 s{sN}, v{vN1}")
        a(f"s_cmp_lg_u32 s{sN}, 0"); a(f"s_cbranch_scc1 L_nok_{P}")
        spin_begin(f"L_nsp_{P}")
        a(f"buffer_load_dword v{vN1}, v{vN0}, {sr(SG,4)}, 0 offen sc1", "~x"); a("s_waitcnt vmcnt(0)")
        a(f"v_readfirstlane_b32 s{sN}, v{vN1}")
        a(f"s_cmp_lg_u32 s{sN}, 0"); a(f"s_cbranch_scc1 L_nok_{P}")
        spin_check(f"L_nsp_{P}", f"L_nok_{P}")
        a(f"s_lshl_b32 s3, s{sB}, 4"); a(f"s_add_u32 s3, s3, s{sRT}"); a(f"s_lshl_b32 s3, s3, 3"); a(f"s_add_u32 s3, s3, s{sHG}")
        a(f"s_lshl_b32 s3, s3, 7"); a(f"s_add_u32 s3, s3, {WS_RDY}")
        a(f"s_or_b32 s4, s{sN}, s{sXCC}")
        a(f"v_mov_b32 v{vN1}, s4")
        a("s_mov_b64 exec, 1")
        a(f"buffer_store_dword v{vN1}, v{vN0}, {sr(SS,4)}, s3 offen sc1", "~w0st")
        a("s_mov_b64 exec, -1")
        w0_end("nc")
    def rdy_load():
        w0_begin("rl")
        a(f"s_lshl_b32 s3, s{sB}, 4"); a(f"s_add_u32 s4, s3, s{sRT}"); a(f"s_lshl_b32 s4, s4, 3")
        a(f"v_add_u32 v{vN0}, s4, v{vL}")
        if A_:
            a(f"s_lshl_b32 s5, s3, 3"); a(f"s_add_u32 s5, s5, s{sHG}"); a(f"s_sub_u32 s5, s5, 64")
            a(f"v_lshl_add_u32 v{vN1}, v{vL}, 3, s5")
        else:
            a(f"s_max_u32 s5, s{sRT}, 1"); a(f"s_sub_u32 s5, s5, 1"); a(f"s_add_u32 s5, s5, s3"); a(f"s_lshl_b32 s5, s5, 3"); a(f"s_add_u32 s5, s5, s{sHG}")
            a(f"v_mov_b32 v{vN1}, s5")
        set_mask(sM, 0xff)
        a(f"v_cndmask_b32_e64 v{vN0}, v{vN1}, v{vN0}, {sr(sM,2)}")
        a(f"v_lshlrev_b32 v{vN0}, 7, v{vN0}")
        a(f"s_mov_b32 s3, {WS_RDY}")
        a(f"s_mov_b64 exec, {0xffffff if A_ else 0x1ff}")
        a(f"buffer_load_dword v{vN1}, v{vN0}, {sr(SS,4)}, s3 offen sc1", "~w0rdy")
        a("s_mov_b64 exec, -1")
        w0_end("rl")
    def rdy_check():
        em = 0xffffff if A_ else 0x1ff
        w0_begin("rc")
        a.wait(vm="~w0rdy", keep=True)
        def test():
            a(f"v_and_b32 v{vN1+1}, -8, v{vN1}")
            a(f"s_mov_b64 exec, {em}")
            a(f"v_cmp_ne_u32 vcc, s{sN}, v{vN1+1}")
            a("s_mov_b64 exec, -1")
            a(f"s_cbranch_vccz L_rok_{P}")
        test()
        spin_begin(f"L_rsp_{P}")
        a(f"s_mov_b32 s3, {WS_RDY}")
        a(f"s_mov_b64 exec, {em}")
        a(f"buffer_load_dword v{vN1}, v{vN0}, {sr(SS,4)}, s3 offen sc1", "~x"); a("s_waitcnt vmcnt(0)")
        test()
        spin_check(f"L_rsp_{P}", f"L_rok_{P}")
        a(f"s_or_b32 s3, s{sN}, s{sXCC}")
        a("s_mov_b64 exec, 0xff")
        a(f"v_cmp_ne_u32 vcc, s3, v{vN1}")
        a("s_mov_b64 exec, -1")
        a(f"s_cmp_eq_u32 vcc_lo, 0")
        a(f"s_cselect_b32 s3, {0 if OPT['force_slow'] else 1}, 0")
        a(f"s_or_b32 s3, s3, s{sN}")
        a(f"v_mov_b32 v{vN1}, s3"); a(f"v_mov_b32 v{vN0}, {BCAST}")
        sl = list(a.lg)
        a(f"ds_write_b32 v{vN0}, v{vN1}")
        a.lg = sl
        w0_end("rc")
    def bcast_read():
        a(f"v_mov_b32 v{vN0}, {BCAST}")
        a(f"ds_read_b32 v{vN1}, v{vN0}", "bc")
    def bcast_use():
        a.wait(lg="bc")
        a(f"v_readfirstlane_b32 s3, v{vN1}")
        a(f"s_and_b32 s{sFAST}, s3, 1"); a(f"s_andn2_b32 s{sN}, s3, 7")
    def touch():
        a(f"s_mul_i32 s3, s{sI}, 50"); a(f"v_add_u32 v86, s3, v{vL}"); a(f"s_lshr_b32 s4, s2, 3")
        if c == 0:
            a(f"v_mul_u32_u24 v87, 6554, v86"); a(f"v_lshrrev_b32 v87, 16, v87")
            a(f"v_mul_u32_u24 v88, 10, v87"); a(f"v_sub_u32 v86, v86, v88"); a(f"v_lshlrev_b32 v86, 7, v86")
            a(f"v_mul_u32_u24 v87, 3840, v87"); a(f"v_add_u32 v86, v86, v87"); a(f"s_mul_i32 s4, s4, {20*3840}")
        else:
            a(f"v_lshlrev_b32 v86, 7, v86"); a(f"s_mul_i32 s4, s4, 25600")
        a("s_mov_b32 exec_hi, 0x3ffff")
        a(f"buffer_load_dword v87, v86, {sr(SW if c == 0 else SO,4)}, s4 offen")
        a("s_mov_b32 exec_hi, -1")
    def opreload():
        a("s_mov_b64 exec, 0xfffff")
        a(f"buffer_load_dword v95, v{vPRE}, {sr(OS,4)}, s{sOB} offen{['', ' sc1', ' nt'][OPT['pnt']]}")
        a("s_mov_b64 exec, 1")
        a(f"buffer_load_dword v95, off, {sr(SS,4)}, s{sFC}")
        a("s_mov_b64 exec, -1")

    def xcd_touch(kind):
        a(f"s_and_b32 s3, s{sRT}, 3"); a(f"s_add_u32 s4, s3, s{sHG}"); a("s_bitcmp1_b32 s4, 1"); a(f"s_cbranch_scc0 L_nxt{kind}_{P}")
        a("s_and_b32 s4, s4, 1"); a("s_lshl_b32 s3, s3, 2"); a("s_add_u32 s3, s3, s4"); a(f"s_lshr_b32 s4, s{sHG}, 2"); a("s_lshl_b32 s4, s4, 1"); a("s_add_u32 s3, s3, s4")
        a("s_mul_i32 s3, s3, 400"); a(f"s_mul_i32 s4, s{sWV}, 50"); a("s_add_u32 s3, s3, s4")
        a(f"v_add_u32 v86, s3, v{vL}")
        if kind == "q":
            a(f"v_mul_u32_u24 v87, 52429, v86"); a(f"v_lshrrev_b32 v87, 19, v87")
            a(f"v_mul_u32_u24 v88, 10, v87"); a(f"v_sub_u32 v86, v86, v88"); a(f"v_lshlrev_b32 v86, 7, v86")
            a(f"v_mul_u32_u24 v87, 3840, v87"); a(f"v_add_u32 v86, v86, v87")
        else:
            a(f"v_lshlrev_b32 v86, 7, v86")
        a("s_mov_b32 exec_hi, 0x3ffff")
        a.ghost_cond["x2"] = [f"s_add_u32 s3, s{sRT}, s{sHG}", "s_bitcmp1_b32 s3, 1"]
        a(f"buffer_load_dword v95, v86, {sr(SW if kind == 'q' else SO,4)}, 0 offen", "~x2")
        a("s_mov_b32 exec_hi, -1")
        a.label(f"L_nxt{kind}_{P}")
    def fix_wd_for_q():
        if c == 0:
            a(f"s_cmp_lt_u32 s{sWV}, 2"); a(f"s_cselect_b32 s3, 0, 1280")
            a(f"v_subrev_u32 v{vWD+1}, s3, v{vWD+1}"); a(f"v_subrev_u32 v{vWD+2}, 1280, v{vWD+2}")
        else:
            a(f"v_subrev_u32 v{vWD+1}, 1280, v{vWD+1}")

    def acc1(t, rt): return ACC1 + (t * 2 + rt) * 4
    Tor = [not A_, not A_, False, False, (not A_) and c == 0]
    eps1 = [A_, A_, False, False, A_ and c == 0]
    items1 = [(sg, t) for sg in range(18) for t in range(5)] + [(18, 0), (18, 4), (18, 1), (19, 0), (19, 4), (19, 1), (18, 2), (18, 3), (19, 2), (19, 3)]
    seenx = set()
    def reads(n, w):
        sg, t = items1[n]; s = sg & 1; tg = []
        if sg not in seenx:
            seenx.add(sg)
            for rt in range(2): tg.append(a(f"ds_read_b128 {vr(X(sg,rt),4)}, v{vXA1 if s else vXA0} offset:{rt*2048}"))
        for h in range(2):
            if OPT["hackport"] in (1, 2) and t == 4 and sg > 0: continue
            if OPT["hackport"] == 4 and t in (1, 3, 4) and sg > 0: continue
            off = 16384 + s * 5120 + h * 1280
            if t < 4: tg.append(a(f"ds_read_b64_tr_b16 {vr(w+2*h,2)}, v{vWA} offset:{off + (UNIT if t >= 2 else 0) + 40*(t&1)}"))
            else: tg.append(a(f"ds_read_b64_tr_b16 {vr(w+2*h,2)}, v{vWE} offset:{off}"))
        return tg
    def mf(n, w):
        sg, t = items1[n]
        if OPT["hackport"] in (1, 3) and t == 4 and sg > 0: return
        for rt in ((1, 0) if (OPT["snake"] and n % 2) else (0, 1)):
            C = acc1(t, rt) if sg else (80 if eps1[t] else "0")
            if Tor[t]: mfma(acc1(t, rt), w, X(sg, rt), C)
            else: mfma(acc1(t, rt), X(sg, rt), w, C)
    R = OPT["rdy_at"]
    def bnd1(ch):
        if ch > 0:
            d = SLOT if ch % 4 else -3 * SLOT
            for r in (vXA0, vXA1, vWA, vWE): a(f"v_add_u32 v{r}, {d}, v{r}")
        a.wait(vm=f"ch{ch}", lg="all" if (ch and OPT["LA"] == 3) or ch == 9 or (OPT["ahead"] and 1 <= ch <= 6) or any(k - ch >= 3 for k in SCHED.get(ch, [])) and ch else None)
        a("s_barrier")
        stamp(f"b{ch}")
        ops = []
        if c == 0:
            if ch == 0: ops.append((nonce_load, None))
            if ch == 1: ops.append((nonce_check, None))
            if ch == R: ops.append((rdy_load, None))
            if ch == R + 2: ops.append((rdy_check, None))
        if ch == R + 3: ops.append((bcast_read, None))
        if OPT["LA"] == 3:
            if ch == 0 and OPT["pro"] < 3: ops += [(op, "ch2") for op in dma_chunk(c, 2)]
            if ch + 3 <= 9: ops += [(op, f"ch{ch+3}") for op in dma_chunk(c, ch + 3)]
        elif OPT["sched"]:
            if ch == 0: ops += [(op, "ch1") for op in dma_chunk(c, 1)[OPT["p1n"]:]]
            for k in SCHED.get(ch, []): ops += [(op, f"ch{k}") for op in dma_chunk(c, k)]
        else:
            if ch == 0 and not OPT["p1late"]: ops += [(op, "ch1") for op in dma_chunk(c, 1)[OPT["p1n"]:]]
            AH = OPT["ahead"]
            if ch + 2 <= 9: ops += [(op, f"ch{ch+2}") for op in dma_chunk(c, ch + 2)[(max(0, OPT["p1late"] - 1) if ch == 0 else (AH if ch >= 2 else 0)):]]
            if AH and ch >= 1 and ch + 3 <= 9: ops += [(op, f"ch{ch+3}") for op in dma_chunk(c, ch + 3)[:AH]]
        if ch == R + 3: ops.append((bcast_use, None))
        if ch == OPT["tq"]: ops.append((touch, None))
        if ch == OPT["eb"]: ops.insert(0, (lambda: touch_steps(c, 6, 4, 1, f"eb{P}"), None))
        if ch == OPT["eb"] + 100 or (OPT["eb"] >= 100 and ch == OPT["eb"] - 100): ops.append((lambda: touch_steps(c, 6, 4, 1, f"eb{P}"), None))
        if ch == OPT["ec"] and not (OPT["st0"] >= 0 and OPT["stq"]): ops.append((lambda: touch_qo(c), None))
        if OPT["tc"]:
            for ent in str(OPT["tc"]).split(","):
                per, st = (int(x) for x in ent.split(":"))
                if per == ch and c == OPT["tcw"] >> 2:
                    def tcl(st=st):
                        a(f"s_cmp_eq_u32 s{sWV}, {OPT['tcw']}"); a(f"s_cbranch_scc0 L_ntc{st}_{P}")
                        tc_issue(st, sTCX, sTCW)
                        a.label(f"L_ntc{st}_{P}")
                    ops.append((tcl, None))
        if OPT["tcm"] and c == 0:
            per, sts = str(OPT["tcm"]).split(":")
            if int(per) == ch:
                def tcm():
                    for w_, st in enumerate(int(x) for x in sts.split(".")):
                        a(f"s_cmp_eq_u32 s{sWV}, {w_ + 1}"); a(f"s_cbranch_scc0 L_tcm{w_}_{P}")
                        tc_issue(st, sTCX, sTCW)
                        a.label(f"L_tcm{w_}_{P}")
                ops.append((tcm, None))
        if ch == OPT["xw"]: ops.append((lambda: xcd_touch("w"), None))
        if ch == OPT["xq"]: ops.append((lambda: xcd_touch("q"), None))
        if ch == OPT["tlb"] and c == 1:
            def tl():
                a(f"s_cmp_eq_u32 s{sWV}, 7"); a(f"s_cbranch_scc0 L_notlb_{P}")
                n0 = len(a.vm); tlb_warm(); a.vm = a.vm[:n0] + ["~w7"] * 3
                a.ghost_cond["w7"] = [f"s_cmp_eq_u32 s{sWV}, 7"]
                a.label(f"L_notlb_{P}")
            ops.append((tl, None))
        if b == 1 and ch == OPT["aot"]: ops.append((lambda: touch_ax(c, "o"), None))
        if b == 1 and ch == OPT["axt"]: ops.insert(0, (lambda: touch_ax(c, "x"), None))
        if b == 1 and ch == OPT["awt"]: ops.insert(0, (lambda: touch_ax(c, "w"), None))
        if ch == OPT["prel1"]: ops.append((opreload, None))
        if OPT["st0"] >= 0 and 0 <= ch - OPT["st0"] < OPT["stn"]:
            def duty(k=ch - OPT["st0"]):
                a(f"s_cmp_eq_u32 s{sDUTY}, {k}"); a(f"s_cbranch_scc0 L_nd{k}_{P}")
                n0 = len(a.vm)
                if OPT["stq"]: touch_qo(c)
                if OPT["stp"]: opreload()
                a.vm = a.vm[:n0] + [f"~d{k}" for _ in a.vm[n0:]]
                a.ghost_cond[f"d{k}"] = [f"s_cmp_eq_u32 s{sDUTY}, {k}"]
                a.label(f"L_nd{k}_{P}")
            ops.append((duty, None))
        if ch == OPT["pst"]: ops.append((lambda: prestore(c), None))
        if OPT["LA"] == 3:
            if ch == 7: ops += [(fix_wd_for_q, None)] + [(op, "wq0") for op in dma_wq(c, 0)]
            if ch == 8: ops += [(op, f"wq{u}") for u in (1, 2) for op in dma_wq(c, u)]
            if ch == 9: ops += [(op, f"wq{u}") for u in (3, 4) for op in dma_wq(c, u)]
        else:
            if ch == 8: ops += [(fix_wd_for_q, None)] + [(op, "wq0") for op in dma_wq(c, 0)]
            if ch == 9: ops += [(op, f"wq{u}") for u in (1, 2) for op in dma_wq(c, u)]
        return ops
    hA, hB = 2 * c, 2 * c + 1
    gm = lambda h: lanemask(lambda l: (l >> 4) == h)
    half = lanemask(lambda l: (l >> 5) == c)
    pipeline(100, reads, mf, {10 * ch: ch for ch in range(10)}, bnd1, OPT["L"], OPT["Lb"], [WF + 4 * k for k in range(5)], prio=(10, parse_pr(OPT["pr1"])) if c == 1 else None, front=OPT["front"])
    if c == 1 and OPT["prep"] >= 0: a(f"s_setprio {OPT['prep']}")
    stamp("p1end")

    vL16, vL8 = vXA0, vXA1
    a(f"v_lshlrev_b32 v{vL16}, 4, v{vL}"); a(f"v_lshlrev_b32 v{vL8}, 3, v{vL}")
    a(f"v_add_u32 v{vWA}, {WQ_UNIT[0]*UNIT - SLOT}, v{vWA}")
    a(f"v_add_u32 v{vWE}, {WQ_UNIT[0]*UNIT - SLOT - (UNIT if c else 0)}, v{vWE}")
    WD = OPT["wodef"]; assert WD >= 2 and OPT["LA"] == 2
    WOA = {u + WD: [u] for u in range(5) if u + WD <= 4}
    if OPT["woA"]:
        WOA = {int(e.split(":")[0]): [int(x) for x in e.split(":")[1].split(".")] for e in OPT["woA"].split(",")}
        for u_, ks in WOA.items():
            for k in ks: assert u_ >= (0, 1, 3, 3, 3)[k]
    if FB: late_wo = [op for u in range(5) if not any(u in v for v in WOA.values()) for op in dma_wo(c, u)]
    else: late_wo = [op for u in range(5) if u + WD > 4 for op in dma_wo(c, u)]
    nq = 3 if c == 0 else 2
    def late(k, last=False):
        for _ in range(k):
            keep_ = nq * OPT["woaft"] if (last or FB) else nq * max(1, OPT["woaft"])
            if last == 2: keep_ = 0
            if len(late_wo) > keep_: emit_op(late_wo.pop(0), "wo")
    if A_:
        KAa, KAb, VBa, VBb, EO = 56, 60, 64, 68, 72
        TMP = 76
        a(f"s_lshl_b32 s3, s{sWV}, 12"); a(f"v_add_u32 v{vT}, s3, v{vL16}")
        a(f"v_add_u32 v{vT+1}, s{sW1K}, v{vL16}"); a(f"v_add_u32 v{vT+1}, {EE_A2}, v{vT+1}")
        phi_pack(acc1(0, 0), 8, [KAa], TMP)
        a(f"ds_write_b128 v{vT}, {vr(KAa,4)} offset:{OPX}")
        if c == 0: phi_pack(acc1(4, 0), 8, [EO], TMP)
        else: pack(acc1(4, 0), EO); pack(acc1(4, 1), EO + 2)
        a(f"ds_write_b128 v{vT+1}, {vr(EO,4)}")
        phi_pack(acc1(1, 0), 8, [KAb], TMP)
        a(f"ds_write_b128 v{vT}, {vr(KAb,4)} offset:{OPX + 1024}")
        for t, d in ((2, VBa), (3, VBb)):
            pack(acc1(t, 0), d); pack(acc1(t, 1), d + 2)
            a(f"ds_write_b128 v{vT}, {vr(d,4)} offset:{OPX + t*1024}")
        a(f"v_add_u32 v{vT}, {OPX + c*16384}, v{vL16}")
        a(f"v_add_u32 v{vT+1}, {EE_A2}, v{vL16}")
        a(f"v_and_b32 v{vT+2}, 0x31, v{vL}"); a(f"v_bfe_u32 v{vT+3}, v{vL}, 2, 2")
        a(f"v_lshl_add_u32 v{vT+2}, v{vT+3}, 1, v{vT+2}"); a(f"v_lshlrev_b32 v{vT+2}, 4, v{vT+2}")
        a(f"v_add_u32 v{vT+2}, {EE_A2 + 4096 + 128*c}, v{vT+2}")
        a(f"v_mov_b32 v89, 0x3f803f80")
        for i in range(4): a(f"v_mov_b32 v{80+i}, s{sK+1}")
    else:
        KA = {("a", 0): 56, ("b", 0): 60, ("a", 1): 64, ("b", 1): 68, ("a", -1): 96, ("b", -1): 100}
        Va, Vb, Ev = 72, 78, 84
        for rt in (1, 0):
            pack(acc1(0, rt), KA[("a", rt)]); pack(acc1(1, rt), KA[("b", rt)])
            if c == 0: pack(acc1(4, rt), KA[("a", rt)] + 2); pack(acc1(4, rt), KA[("b", rt)] + 2)
            else: pack(acc1(4, rt), Ev + 2 + 2 * rt)
            pack(acc1(2, rt), Va + 2 + 2 * rt); pack(acc1(3, rt), Vb + 2 + 2 * rt)
        Eown = [KA[("a", 0)] + 2, KA[("a", 1)] + 2] if c == 0 else [Ev + 2, Ev + 4]
        xs = [KA[("a", 1)], KA[("b", 1)], Va + 4, Vb + 4, Eown[1], Eown[0]]
        a(f"s_mul_i32 s3, s{sWV}, 3072")
        a(f"v_add_u32 v{vT}, s3, v{vL8}")
    a.wait(vm="wq0", lg="all")
    a("s_barrier")
    stamp("E1")
    if A_:
        R0 = 16
        D0, D1, D2 = 84, 72, 76
        def rd(dst, areg, off): return a(f"ds_read_b128 {vr(dst,4)}, v{areg} offset:{off}")
        def evb(dst):
            for j in range(4): a(f"v_cndmask_b32 v{dst+j}, v{dst+j}, v89, vcc")
        a(f"s_cmp_lt_u32 s{sTI}, 2"); a(f"s_cbranch_scc0 L_t23_{P}")
        a(f"s_lshl_b32 s3, s{sTI}, 10"); a(f"v_add_u32 v{vT}, s3, v{vT}")
        a.lg = []
        tg = []
        for g in range(4): tg.append([rd(R0 + 8 * g, vT, g * 4096), rd(R0 + 8 * g + 4, vT, g * 4096 + 2048)])
        for g in range(4):
            a.wait(lg=tg[g]); mfma(D0, R0 + 8 * g, R0 + 8 * g + 4, D0 if g else "0")
        a("s_nop 7")
        a(f"s_branch L_tdone_{P}")
        a.label(f"L_t23_{P}")
        set_mask("vcc", 0x3333333333333333)
        a(f"s_cmp_eq_u32 s{sTI}, 2"); a(f"s_cbranch_scc0 L_t3_{P}")
        a.lg = []
        tg = []
        for g in range(4): tg.append([rd(R0 + 12 * g, vT + 2, g * 1024), rd(R0 + 12 * g + 4, vT, g * 4096), rd(R0 + 12 * g + 8, vT, g * 4096 + 1024)])
        for g in range(4):
            a.wait(lg=tg[g]); evb(R0 + 12 * g)
            mfma(D0, R0 + 12 * g + 4, R0 + 12 * g, D0 if g else "0")
            mfma(D1, R0 + 12 * g + 8, R0 + 12 * g, D1 if g else "0")
        set_mask("vcc", 0x11dd11dd11dd11dd)
        for j in range(4): a(f"v_cndmask_b32 v{D0+j}, v{D1+j}, v{D0+j}, vcc")
        a(f"s_branch L_tdone_{P}")
        a.label(f"L_t3_{P}")
        a.lg = []
        tg = []
        B0 = [16, 32, 48, 16]
        def rd3(g): return [rd(B0[g], vT + 2, g * 1024), rd(B0[g] + 4, vT + 1, g * 1024), rd(B0[g] + 8, vT, g * 4096 + 2048), rd(B0[g] + 12, vT, g * 4096 + 3072)]
        for g in range(3): tg.append(rd3(g))
        for g in range(4):
            a.wait(lg=tg[g]); evb(B0[g])
            mfma(D0, B0[g] + 4, B0[g] + 8, D0 if g else "0")
            mfma(D1, B0[g] + 4, B0[g] + 12, D1 if g else "0")
            mfma(D2, B0[g] + 4, B0[g], D2 if g else "0")
            if g == 0: tg.append(rd3(3))
        set_mask("vcc", gm(hA))
        for j in range(4): a(f"v_cndmask_b32 v{D0+j}, v{D1+j}, v{D0+j}, vcc")
        for j in range(4):
            if c == 0: a(f"v_permlane32_swap_b32 v{D0+j}, v{D2+j}")
            else: a(f"v_permlane32_swap_b32 v{D2+j}, v{D0+j}")
        a.label(f"L_tdone_{P}")
        a.lg = []
        pack(D0, 88)
        a(f"v_min_u32 v{D0}, -2, v88"); a(f"v_min_u32 v{D0+1}, -2, v89")
        a(f"buffer_store_dwordx2 {vr(D0,2)}, v{vL8}, {sr(SS,4)}, s{sKVP} offen sc1")
    else:
        for k in range(6): a(f"ds_write_b64 v{vT}, {vr(xs[k],2)} offset:{EXB + k*512}")
        a(f"s_cmp_eq_u32 s{sI}, 3"); a(f"s_cbranch_scc0 L_nohp_{P}")
        for k in range(5):
            for j in range(2): a(f"v_min_u32 v{xs[k]+j}, -2, v{xs[k]+j}")
            a(f"buffer_store_dwordx2 {vr(xs[k],2)}, v{vL8}, {sr(SS,4)}, s{sHP} offen offset:{k*512} sc1", "~i3hp")
        a.label(f"L_nohp_{P}")
    stamp("pub1")

    ACC2 = 16; WF2 = 40
    oc = 1 - c
    NT2 = 3 if c == 0 else 2
    def acc2(t, rt): return ACC2 + (t * 2 + rt) * 4
    items2 = [(sg, t) for sg in range(16) for t in range(NT2)] + [(sg, t) for t in ((2, 0, 1) if c == 0 else (0, 1)) for sg in range(16, 20)]
    N2 = len(items2)
    def ix(sg): return NT2 * sg
    iEQ = N2 - 8; iQA = N2 - 4
    def reads2(n, w):
        sg, t = items2[n]; tg = []
        for h in range(2):
            off = ((sg >> 1) & 1) * UNIT + (sg & 1) * 5120 + h * 1280
            if t < 2: tg.append(a(f"ds_read_b64_tr_b16 {vr(w+2*h,2)}, v{vWA} offset:{off + 40*t}"))
            else: tg.append(a(f"ds_read_b64_tr_b16 {vr(w+2*h,2)}, v{vWE} offset:{off}"))
        return tg
    def mf2(n, w):
        sg, t = items2[n]
        for rt in ((1, 0) if (OPT["snake"] and n % 2) else (0, 1)):
            C = acc2(t, rt) if sg else (80 if A_ else "0")
            mfma(acc2(t, rt), w, X(sg, rt), C)
    GA = 56
    def gather(tag="gat"):
        for r in range(8):
            a(f"s_add_u32 s3, s{sKVG}, {r*4096}")
            a(f"buffer_load_dwordx4 {vr(GA+4*r,4)}, v{vGAD}, {sr(SS,4)}, s3 offen sc1", tag)
    def gather_ops():
        if OPT["hackgat"]: return []
        return [([f"s_add_u32 s3, s{sKVG}, {r*4096}"], f"buffer_load_dwordx4 {vr(GA+4*r,4)}, v{vGAD}, {sr(SS,4)}, s3 offen sc1") for r in range(8)]
    HL = [KA[("a", -1)], KA[("b", -1)], Va, Vb, KA[("a", -1)] + 2, Ev, KA[("b", -1)] + 2] if not A_ else None
    def halo_loads(tag="~h0halo"):
        offs = [c*3072, c*3072 + 512, c*3072 + 1024, c*3072 + 1536, 2048, 3072 + 2048, 2048]
        for d, o in zip(HL, offs):
            a(f"s_add_u32 s3, s{sHG2}, {o}")
            a(f"buffer_load_dwordx2 {vr(d,2)}, v{vL8}, {sr(SS,4)}, s3 offen sc1", tag)
    def halo_issue():
        a(f"s_cmp_eq_u32 s{sHV}, 0")
        a(f"s_cbranch_scc1 L_nohl_{P}")
        halo_loads()
        a.label(f"L_nohl_{P}")
    def bnd2(u):
        ops = []
        if u > 0:
            d = (WQ_UNIT[u] - WQ_UNIT[u - 1]) * UNIT
            for r in (vWA, vWE): a(f"v_add_u32 v{r}, {d}, v{r}")
            if not FB or u in (1, 3):
                a.wait(vm=f"wq{u + 1 if FB else u}", lg="all")
                a("s_barrier")
            stamp(f"p{u}")
        if FB:
            if u == 1: ops += [(op, f"wq{k}") for k in (3, 4) for op in dma_wq(c, k)]
            ops += [(op, "wo") for k in WOA.get(u, []) for op in dma_wo(c, k)]
        else:
            if u in (1, 2): ops += [(op, f"wq{u+2}") for op in dma_wq(c, u + 2)]
            if u >= WD: ops += [(op, "wo") for op in dma_wo(c, u - WD)]
        if u == OPT["prel_at"] and OPT["prel1"] < 0 and not (OPT["st0"] >= 0 and OPT["stp"]): ops = ops + [(opreload, None)]
        if A_ and OPT["gk"]: return ops
        if u == (OPT["gat_at"] if A_ else OPT["hal_at"]):
            g = gather_ops()
            if OPT["gspread"]: g = g[:4]
            ops = ([(op, "gat") for op in g] if A_ else [(halo_issue, None)]) + ops
        if u == OPT["gat_at"] + 1 and A_ and OPT["gspread"]:
            ops = [(op, "gat") for op in gather_ops()[4:]] + ops
        return ops
    QB = {("a", 0): 160, ("b", 0): 164, ("a", 1): 168, ("b", 1): 172}
    side = {}
    vEQo, vEQp = 124, 125
    eqaddr = [[f"s_lshl_b32 s4, s{sI}, 10", f"v_add_u32 v{vEQo}, s4, v{vL8}"]]
    cst = [f"v_add_u32 v126, {CST}, v{vL16}"]
    if A_:
        SEL, C0, CA = 96, 100, 104
        Axb = 104; vOW = 126; vOX = 127
        cst += [f"ds_read_b128 {vr(96+4*k,4)}, v126 offset:{k*1024}" for k in range(3)]
        def cfix():
            a.wait(lg="all")
            if OPT["opr"]: a(f"v_mov_b32 v{vOW}, v{CA}")
            else: a(f"s_lshl_b32 s4, s{sTI}, 9"); a(f"v_add_u32 v{vOW}, s4, v{CA}")
            a(f"v_mov_b32 v{vOX}, v{CA+1}")
        GS = 108; GT = 88
        def gsum():
            for r in range(8): mfma(GS, SEL, GA + 4 * r, GS if r else "0")
        def gpart1():
            assert OPT["hackgat"] or sum(1 for l in a.lines[pstart:] if f"v{vGAD}, s[32:35]" in l) == 8, "gather not fully issued"
            a.wait(vm="gat"); gsum()
        def gpart2():
            a(f"v_add_f32 v{GT}, v{GS}, v{GS+1}"); a(f"v_add_f32 v{GT+1}, v{GS+2}, v{GS+3}"); a(f"v_add_f32 v{GT}, v{GT}, v{GT+1}")
            a(f"v_cmp_u_f32 vcc, v{GT}, v{GT}")
            a(f"s_cbranch_vccz L_gok_{P}" if not OPT["hackgat"] else f"s_branch L_gok_{P}")
            spin_begin(f"L_gsp_{P}")
            a(f"v_max3_u32 v{GT}, v{GA}, v{GA+1}, v{GA+2}")
            for k in range(3, 31, 2): a(f"v_max3_u32 v{GT}, v{GT}, v{GA+k}, v{GA+k+1}")
            a(f"v_max_u32 v{GT}, v{GT}, v{GA+31}")
            a(f"v_cmp_eq_u32 vcc, -1, v{GT}")
            a(f"s_cbranch_vccz L_gre_{P}")
            gather("~x"); a("s_waitcnt vmcnt(0)")
            spin_check(f"L_gsp_{P}", f"L_gre_{P}")
            gsum(); a("s_nop 7")
            if OPT["stamps"]:
                a(f"s_add_u32 s3, s{sSPIN}, 1"); a(f"v_writelane_b32 v{vST}, s3, 43")
            a.label(f"L_gok_{P}")
            pack(GS, GT)
            if not OPT["opr"]:
                a(f"ds_write_b64 v{vOW}, {vr(GT,2)} offset:{OPS + c*2048}")
                return
            ob = OPS + c * 4096
            nu = lambda l: 32 * (l >> 5) + 2 * (l & 15) + ((l >> 4) & 1)
            ma_ = lambda l: (0x11dd >> (l & 15)) & 1
            m7 = lambda l: ((l >> 4) == hA and ma_(l)) or ((l >> 4) == hB and not ma_(l))
            Z_ = CA + 2
            def wr(mask, addr, off, tmp):
                set_mask("vcc", lanemask(mask))
                for j in range(2): a(f"v_cndmask_b32 v{tmp+j}, v{Z_}, v{GT+j}, vcc")
                a(f"ds_write_b64 v{addr}, {vr(tmp,2)} offset:{off}")
            sl = list(a.lg)
            a(f"s_cmp_lt_u32 s{sTI}, 2"); a(f"s_cbranch_scc0 L_w23_{P}")
            a(f"s_lshl_b32 s4, s{sTI}, 10"); a(f"v_add_u32 v{GS}, s4, v{vOW}")
            a(f"ds_write_b64 v{GS}, {vr(GT,2)} offset:{ob}")
            a(f"s_branch L_wd_{P}")
            a.label(f"L_w23_{P}")
            a(f"s_cmp_eq_u32 s{sTI}, 2"); a(f"s_cbranch_scc0 L_w3_{P}")
            wr(lambda l: ma_(nu(l)), vOW, ob + 2048, GS)
            wr(lambda l: not ma_(nu(l)), vOW, ob + 3072, GS + 2)
            a(f"s_branch L_wd_{P}")
            a.label(f"L_w3_{P}")
            wr(lambda l: m7(nu(l) ^ 32), vOX, ob + 2048 + 8, GS)
            wr(lambda l: (nu(l) >> 4) == hA, vOW, ob + 8, GS + 2)
            wr(lambda l: (nu(l) >> 4) == hB, vOW, ob + 1024 + 8, GS)
            a.label(f"L_wd_{P}")
            a.lg = sl
        side[ix(4) + 1] = cst + eqaddr
        side[ix(8) - 1] = [cfix]
        if c == 0:
            e = phi_ins(acc2(2, 0), 8, [], 112)
            for rt in range(2):
                e += pack_ins(acc2(2, rt), QB[("a", rt)] + 2) + [f"ds_write_b64 v{vEQo}, {vr(QB[('a',rt)]+2,2)} offset:{EQX + rt*512}"]
                e += [f"v_mov_b32 v{QB[('b',rt)]+2+j}, v{QB[('a',rt)]+2+j}" for j in range(2)]
            side[iEQ] = e
        side[iQA] = phi_ins(acc2(0, 0), 8, [], 112) + pack_ins(acc2(0, 0), QB[("a", 0)]) + pack_ins(acc2(0, 1), QB[("a", 1)])
        if OPT["gk"]:
            ks = [int(x) for x in str(OPT["gk"]).split(".")]
            for r, op in enumerate(gather_ops()):
                side[ix(ks[r])] = side.get(ix(ks[r]), []) + [lambda op=op: emit_op(op, "gat")]
        if OPT["gearly"] >= 0:
            side[N2 - 6] = side.get(N2 - 6, []) + [gpart1]
            side[N2 - 1] = side.get(N2 - 1, []) + [gpart2]
    else:
        BO, BP, ONES, MK, BP0 = 104, 108, 112, 116, 120
        cst += [f"ds_read_b128 {vr(104+4*k,4)}, v126 offset:{k*1024}" for k in range(4)] + [f"ds_read_b128 {vr(BP0,4)}, v126 offset:1024", "v_mov_b32 v127, 0"]
        def foreign():
            a(f"s_xor_b32 s3, s{sWV}, 4"); a(f"s_mul_i32 s3, s3, 3072")
            a(f"v_add_u32 v{vT}, s3, v{vL8}")
            for rt in range(2):
                o = EXB + (4 if rt else 5) * 512
                if c == 0: a(f"ds_read_b64 {vr(Ev+2+2*rt,2)}, v{vT} offset:{o}")
                else:
                    for h in "ab": a(f"ds_read_b64 {vr(KA[(h,rt)]+2,2)}, v{vT} offset:{o}")
        def foreign2():
            a(f"s_cmp_eq_u32 s{sI}, 0"); a(f"s_cbranch_scc1 L_nof2_{P}")
            a("s_waitcnt lgkmcnt(6)")
            a(f"s_sub_u32 s3, s{sI}, 1"); a(f"s_mul_i32 s3, s3, 3072")
            a(f"v_add_u32 v{vT}, s3, v{vL8}")
            cb = EXB + c * 4 * 3072
            sl = list(a.lg); a.lg = []
            a(f"ds_read_b64 {vr(KA[('a',-1)],2)}, v{vT} offset:{cb}")
            a(f"ds_read_b64 {vr(KA[('b',-1)],2)}, v{vT} offset:{cb + 512}")
            a(f"ds_read_b64 {vr(Va,2)}, v{vT} offset:{cb + 1024}")
            a(f"ds_read_b64 {vr(Vb,2)}, v{vT} offset:{cb + 1536}")
            for h in "ab": a(f"ds_read_b64 {vr(KA[(h,-1)]+2,2)}, v{vT} offset:{EXB + 2048}")
            a(f"ds_read_b64 {vr(Ev,2)}, v{vT} offset:{EXB + 4*3072 + 2048}")
            a.lg = sl
            a.label(f"L_nof2_{P}")
        EQ = {0: 156, 1: 158}
        side[ix(4) + 1] = cst + eqaddr
        side[ix(6)] = [foreign]
        side[ix(9)] = [foreign2]
        if c == 0:
            side[iEQ] = pack_ins(acc2(2, 0), EQ[0]) + pack_ins(acc2(2, 1), EQ[1]) + [f"ds_write_b64 v{vEQo}, {vr(EQ[rt],2)} offset:{EQX + rt*512}" for rt in range(2)]
        side[iQA] = pack_ins(acc2(0, 0), QB[("a", 0)]) + pack_ins(acc2(0, 1), QB[("a", 1)])
    wf2 = [WF2 + 4 * k for k in range(4)] + ([32, 36] if c == 1 else [])
    pipeline(N2, reads2, mf2, {ix(4 * u): u for u in range(5)}, bnd2, OPT["L2"], OPT["Lb2"] if c == 0 else OPT["Lb2"] - 1, wf2,
             newbufs={ix(8): [128 + 4 * k for k in range(7)]}, side=side, side_rate=OPT["srate"] + (0 if c == 0 else 1), prio=None, front=OPT["front2"])
    if c == 1 and OPT["prep"] >= 0: a(f"s_setprio {OPT['prep']}")
    stamp("p2end")

    if A_:
        if OPT["gearly"] < 0: gpart1()
        late(3)
        phi_pack(acc2(1, 0), 8, [], 136)
        pack(acc2(1, 0), QB[("b", 0)]); pack(acc2(1, 1), QB[("b", 1)])
        if OPT["gearly"] < 0: gpart2()
        late(99)
        a.wait(lg="all")
        a("s_barrier")
        stamp("E2")
        if OPT["opr"]:
            A1a, A1b, Axa = 128, 132, 136
            ob = OPS + c * 4096
            tq = [a(f"ds_read_b64 {vr(QB[(h,rt)]+2,2)}, v{vEQo} offset:{EQX + rt*512}") for rt in range(2) for h in "ab"] if c == 1 else []
            tq.append(a(f"ds_read_b128 {vr(Axa,4)}, v{vL16} offset:{ob + 2048}"))
            tq.append(a(f"ds_read_b128 {vr(A1a,4)}, v{vL16} offset:{ob}"))
            tq.append(a(f"ds_read_b64 {vr(Axb,2)}, v{vL16} offset:{ob + 3072}"))
            tq.append(a(f"ds_read_b128 {vr(A1b,4)}, v{vL16} offset:{ob + 1024}"))
            late(99, True)
            if OPT["prel_at"] == 5: opreload()
        else:
            A1a, A1b, Axa, T3, T2 = 128, 132, 136, 140, 142
            ob = OPS + c * 2048
            t3 = a(f"ds_read_b64 {vr(T3,2)}, v{vL8} offset:{ob + 1536}")
            t2 = a(f"ds_read_b64 {vr(T2,2)}, v{vL8} offset:{ob + 1024}")
            t4 = a(f"ds_read_b64 {vr(Axa+2,2)}, v{vOX} offset:{ob + 1536}")
            t0 = a(f"ds_read_b64 {vr(A1a,2)}, v{vL8} offset:{ob}")
            t1 = a(f"ds_read_b64 {vr(A1b,2)}, v{vL8} offset:{ob + 512}")
            tq = [a(f"ds_read_b64 {vr(QB[(h,rt)]+2,2)}, v{vEQo} offset:{EQX + rt*512}") for rt in range(2) for h in "ab"] if c == 1 else [t1]
            late(99, True)
            if OPT["prel_at"] == 5: opreload()
            ma = lambda l: (0x11dd >> (l & 15)) & 1
            Z = Axb + 2
            set_mask("vcc", gm(hA)); a.wait(lg=t3)
            for j in range(2): a(f"v_cndmask_b32 v{A1a+2+j}, v{Z}, v{T3+j}, vcc")
            set_mask("vcc", gm(hB))
            for j in range(2): a(f"v_cndmask_b32 v{A1b+2+j}, v{Z}, v{T3+j}, vcc")
            set_mask("vcc", 0x11dd11dd11dd11dd); a.wait(lg=t4)
            for j in range(2):
                a(f"v_cndmask_b32 v{Axa+j}, v{Z}, v{T2+j}, vcc")
                a(f"v_cndmask_b32 v{Axb+j}, v{T2+j}, v{Z}, vcc")
            set_mask("vcc", lanemask(lambda l: ((l >> 4) == hA and ma(l)) or ((l >> 4) == hB and not ma(l))))
            for j in range(2): a(f"v_cndmask_b32 v{Axa+2+j}, v{Z}, v{Axa+2+j}, vcc")
        O = {(k, rt): 16 + (rt * 3 + i) * 4 for rt in range(2) for i, k in enumerate("xab")}
        a.wait(lg=tq if not OPT["opr"] else tq[-4])
        for rt in (c, oc): mfma(O[("x", rt)], Axa, QB[("a", rt)], C0)
        if OPT["opr"]: a.wait(lg=tq[-3])
        for rt in (c, oc): mfma(O[("a", rt)], A1a, QB[("a", rt)], "0")
        if OPT["opr"]: a.wait(lg=tq[-2])
        for rt in (c, oc): mfma(O[("x", rt)], Axb, QB[("b", rt)], O[("x", rt)])
        if OPT["opr"]: a.wait(lg=tq[-1])
        for rt in (c, oc): mfma(O[("b", rt)], A1b, QB[("b", rt)], "0")
        OM = [176, 180]; OX = [184, 186]
        set_mask("vcc", lanemask(lambda l: l < 32))
        for rt in (c, oc):
            x = O[("x", rt)]
            a(f"v_rcp_f32 v{x}, v{x}"); a(f"v_rcp_f32 v{x+1}, v{x+1}")
        for rt in (c, oc):
            x = O[("x", rt)]
            for j in range(4): a(f"v_mul_f32 v{O[('a',rt)]+j}, v{O[('a',rt)]+j}, v{x}")
            for j in range(4): a(f"v_mul_f32 v{O[('b',rt)]+j}, v{O[('b',rt)]+j}, v{x+1}")
            a(f"v_cndmask_b32 v{x}, v{x+1}, v{x}, vcc")
            pack(O[("a", rt)], OM[rt]); pack(O[("b", rt)], OM[rt] + 2)
            for j in (2, 3): a(f"v_mul_f32 v{x+j}, v{x+j}, v{x}")
            a(f"v_cvt_pk_bf16_f32 v{OX[rt]}, v{x+2}, v{x+3}")
    else:
        late(3)
        for rt in range(2): pack(acc2(1, rt), QB[("b", rt)])
        a(f"s_cmp_eq_u32 s{sI}, 0"); a(f"s_cbranch_scc0 L_hdone_{P}")
        a(f"s_cmp_eq_u32 s{sRT}, 0"); a(f"s_cbranch_scc0 L_hwait_{P}")
        for d in HL: a(f"v_mov_b32 v{d}, 0"); a(f"v_mov_b32 v{d+1}, 0")
        for j in range(4): a(f"v_mov_b32 v{BP0+j}, 0x{f2u(-1e30):x}")
        a(f"s_branch L_hok_{P}")
        a.label(f"L_hwait_{P}")
        def htest():
            a(f"v_max3_u32 v228, v{HL[0]}, v{HL[0]+1}, v{HL[1]}")
            a(f"v_max3_u32 v228, v228, v{HL[1]+1}, v{HL[2]}")
            a(f"v_max3_u32 v228, v228, v{HL[2]+1}, v{HL[3]}")
            a(f"v_max3_u32 v228, v228, v{HL[3]+1}, v{HL[4]}")
            a(f"v_max3_u32 v228, v228, v{HL[4]+1}, v{HL[5]}")
            a(f"v_max3_u32 v228, v228, v{HL[5]+1}, v{HL[6]}")
            a(f"v_max_u32 v228, v228, v{HL[6]+1}")
            a(f"v_cmp_eq_u32 vcc, -1, v228")
            a(f"s_cbranch_vccz L_hok_{P}")
        a.wait(vm="~h0halo", keep=True)
        htest()
        spin_begin(f"L_hsp_{P}")
        if OPT["stamps"]: a(f"v_writelane_b32 v{vST}, s{sHV}, 43")
        halo_loads("~x"); a("s_waitcnt vmcnt(0)"); htest()
        spin_check(f"L_hsp_{P}", f"L_hok_{P}")
        a.label(f"L_hdone_{P}")
        def qmask(rt):
            for h, hh in (("a", hA), ("b", hB)):
                set_mask("vcc", gm(hh))
                for j in range(2): a(f"v_cndmask_b32 v{QB[(h,rt)]+2+j}, v127, v{EQ[rt]+j}, vcc")
        if c == 0: qmask(0); qmask(1)
        a.wait(lg="all")
        if c == 1 or not OPT["esk"]:
            a("s_barrier")
            stamp("E2")
        if c == 1: tq = [a(f"ds_read_b64 {vr(EQ[rt],2)}, v{vEQo} offset:{EQX + rt*512}") for rt in range(2)]
        units = [(h, rt) for rt in (0, 1) for h in "ab"]
        S = {u: 176 + 8 * k for k, u in enumerate(units)}
        PB = {u: 208 + 4 * k for k, u in enumerate(units)}
        Om = dict(zip(units, (16, 28, 40, 128)))
        SV = {u: 228 + 2 * k for k, u in enumerate(units)}
        MX = {u: 236 + k for k, u in enumerate(units)}
        def smf(u):
            h, rt = u
            mfma(S[u], KA[(h, rt - 1)], QB[u], BP0 if rt == 0 else BP)
            mfma(S[u] + 4, KA[(h, rt)], QB[u], BO)
        if c == 1:
            a.wait(lg=tq[0]); qmask(0); smf(units[0]); smf(units[1])
            a.wait(lg=tq[1]); qmask(1); smf(units[2]); smf(units[3])
        else:
            for u in units: smf(u)
            if OPT["esk"]:
                a("s_barrier")
                stamp("E2")
        late(99 if OPT["prel_at"] == 5 else 2, True)
        if OPT["prel_at"] == 5: opreload()
        for u in units:
            s_, v = S[u], SV[u]
            a(f"v_max3_f32 v{v}, v{s_}, v{s_+1}, v{s_+4}"); a(f"v_max3_f32 v{v+1}, v{s_+2}, v{s_+3}, v{s_+6}")
            a(f"v_max_f32 v{v}, v{v}, v{s_+5}"); a(f"v_max_f32 v{v+1}, v{v+1}, v{s_+7}")
            a(f"v_max_f32 v{MX[u]}, v{v}, v{v+1}")
        m0_, m1_, m2_, m3_ = [MX[u] for u in units]
        a(f"v_permlane32_swap_b32 v{m0_}, v{m1_}"); a(f"v_permlane32_swap_b32 v{m2_}, v{m3_}")
        a(f"v_max_f32 v{m0_}, v{m0_}, v{m1_}"); a(f"v_max_f32 v{m2_}, v{m2_}, v{m3_}")
        a(f"v_permlane16_swap_b32 v{m0_}, v{m2_}")
        a(f"v_max_f32 v{m0_}, v{m0_}, v{m2_}")
        cs = LOG2E * 20 ** -0.5
        a(f"v_mul_f32 v{m0_}, 0x{f2u(-cs):x}, v{m0_}")
        a(f"v_mov_b32 v{m2_}, v{m0_}")
        a(f"v_permlane16_swap_b32 v{m0_}, v{m2_}")
        a(f"v_mov_b32 v{m1_}, v{m0_}"); a(f"v_mov_b32 v{m3_}, v{m2_}")
        a(f"v_permlane32_swap_b32 v{m0_}, v{m1_}"); a(f"v_permlane32_swap_b32 v{m2_}, v{m3_}")
        late(99, True)
        V = {"a": Va, "b": Vb}
        for u in units:
            for j in range(2): a(f"v_fmamk_f32 v{SV[u]+j}, v{SV[u]+j}, 0x{f2u(cs):x}, v{MX[u]}")
        for u in units:
            for j in range(2): a(f"v_exp_f32 v{SV[u]+j}, v{SV[u]+j}")
        for u in units:
            h, rt = u; v = SV[u]
            for j in range(2): a(f"v_cvt_pk_bf16_f32 v{v+j}, v{v+j}, v{v+j}")
            for k in range(4): a(f"v_and_b32 v{PB[u]+k}, v{v+(k&1)}, v{MK+k}")
            mfma(Om[u] + 8, ONES, PB[u], "0")
            mfma(Om[u], V[h] + 2 * rt, PB[u], "0")
            mfma(Om[u] + 4, Ev + 2 * rt, PB[u], "0")
        OM = [176, 180]; OX = [184, 186]
        set_mask("vcc", gm(hA))
        for rt in (c, oc):
            ua, ub = ("a", rt), ("b", rt)
            for u in (ua, ub): a(f"v_rcp_f32 v{Om[u]+8}, v{Om[u]+8}")
            for j in range(4): a(f"v_cndmask_b32 v{Om[ua]+4+j}, v{Om[ub]+4+j}, v{Om[ua]+4+j}, vcc")
            for u in (ua, ub):
                for j in range(4): a(f"v_mul_f32 v{Om[u]+j}, v{Om[u]+j}, v{Om[u]+8}")
            a(f"v_cndmask_b32 v{Om[ua]+8}, v{Om[ub]+8}, v{Om[ua]+8}, vcc")
            pack(Om[ua], OM[rt]); pack(Om[ub], OM[rt] + 2)
            for j in range(4): a(f"v_mul_f32 v{Om[ua]+4+j}, v{Om[ua]+4+j}, v{Om[ua]+8}")
            pack(Om[ua] + 4, OX[rt])
    a(f"s_mul_i32 s3, s{sHG}, {2*OP_}"); a(f"s_add_u32 s3, s3, s{sOB}"); a(f"s_add_u32 s3, s3, {c*OP_}")
    a(f"s_add_u32 s4, s3, {OT}")
    a(f"s_lshr_b32 s5, s{sHG}, 1"); a(f"s_mul_i32 s5, s5, {4*OP_}"); a(f"s_and_b32 s6, s{sHG}, 1"); a(f"s_lshl_b32 s6, s6, 3")
    a(f"s_add_u32 s5, s5, s6"); a(f"s_add_u32 s5, s5, s{sOB}")
    a(f"s_add_u32 s6, s5, {OT}")
    a(f"v_lshrrev_b32 v{vXE}, 4, v{vL}"); a(f"v_mul_u32_u24 v{vXE}, {OP_ - 256}, v{vXE}"); a(f"v_add_u32 v{vXE}, v{vXE}, v{vL16}")
    a(f"v_mov_b32 v{vT}, s{sN}")
    a(f"s_cmp_eq_u32 s{sFAST}, 1"); a(f"s_cbranch_scc1 L_fast_{P}")
    for fl, end in ((" sc1", f"s_branch L_pubd_{P}"), ((" " + OPT["ofl"]) if OPT["ofl"] != "none" else "", None)):
        if not end: a.label(f"L_fast_{P}")
        a(f"buffer_store_dwordx4 {vr(OM[0],4)}, v{vL16}, {sr(OS,4)}, s3 offen{fl}")
        a(f"buffer_store_dwordx4 {vr(OM[1],4)}, v{vL16}, {sr(OS,4)}, s4 offen{fl}")
        if A_:
            a(f"buffer_store_dword v{OX[0]}, v{vXE}, {sr(OS,4)}, s5 offen offset:{1024 + 4*c}{fl}")
            a(f"buffer_store_dword v{OX[1]}, v{vXE}, {sr(OS,4)}, s6 offen offset:{1024 + 4*c}{fl}")
        else:
            a(f"s_mov_b32 exec_{'hi' if c == 0 else 'lo'}, 0")
            a(f"buffer_store_dwordx2 {vr(OX[0],2)}, v{vXE}, {sr(OS,4)}, s5 offen offset:1024{fl}")
            a(f"buffer_store_dwordx2 {vr(OX[1],2)}, v{vXE}, {sr(OS,4)}, s6 offen offset:1024{fl}")
        if end: a(end)
    a.label(f"L_pubd_{P}")
    a("s_mov_b64 exec, -1")
    stamp("ostore")
    phase2_setup(A_, c)
    if OPT["e3e"]:
        assert not late_wo
        a("s_waitcnt vmcnt(4) lgkmcnt(0)")
    else:
        a(f"s_cmp_eq_u32 s{sFAST}, 1")
        a("s_mov_b64 exec, 1")
        a("s_waitcnt vmcnt(0) lgkmcnt(0)")
        a(f"s_cbranch_scc1 L_fast2_{P}")
        a(f"buffer_store_dword v{vT}, off, {sr(SS,4)}, s{sFP} sc1")
        a(f"s_branch L_pubd2_{P}")
        a.label(f"L_fast2_{P}")
        a(f"buffer_store_dword v{vT}, off, {sr(SS,4)}, s{sFP}")
        a.label(f"L_pubd2_{P}")
        a("s_mov_b64 exec, -1")
        if late_wo:
            late(99, 2)
            phase2_setup2()
            a("s_waitcnt vmcnt(0)")
    a.vm = ["flag"]
    stamp("oack")
    a("s_branch L_phase2")

vM0, vE0, vPA, vPD, vSA = 1, 2, 3, 0, 5
RA = [8, 9, 11]; GA_ = [12, 13, 95]
vRW, vRR = 4, 7
RX = 43008
RX = 0
OST2 = 40960
def phase2_setup(A_, c):
    a(f"s_mul_i32 s7, s{sKH}, 51200"); a(f"s_add_u32 s7, s7, {WO_BASE}")
    half = "s7"
    a(f"v_and_b32 v{vPD}, 3, v{vL}")
    a(f"v_lshrrev_b32 v{vM0}, 2, v{vL}"); a(f"v_mul_u32_u24 v{vM0}, 160, v{vM0}")
    a(f"v_lshl_add_u32 v{vM0}, v{vPD}, 3, v{vM0}"); a(f"v_add_u32 v{vM0}, {half}, v{vM0}")
    if A_:
        a(f"v_bfe_u32 v{vE0}, v{vL}, 3, 1"); a(f"v_mul_u32_u24 v{vE0}, 40, v{vE0}")
        a(f"v_lshrrev_b32 v{vPA}, 5, v{vL}"); a(f"v_mad_u32_u24 v{vE0}, v{vPA}, 20, v{vE0}")
        a(f"v_bfe_u32 v{vPA}, v{vL}, 4, 1"); a(f"v_lshl_add_u32 v{vE0}, v{vPA}, 1, v{vE0}")
        a(f"v_bfe_u32 v{vPA}, v{vL}, 2, 1"); a(f"v_add_u32 v{vE0}, v{vE0}, v{vPA}")
    else:
        a(f"v_lshrrev_b32 v{vE0}, 4, v{vL}"); a(f"v_mul_u32_u24 v{vE0}, 20, v{vE0}")
        a(f"v_bfe_u32 v{vPA}, v{vL}, 2, 2"); a(f"v_add_u32 v{vE0}, v{vE0}, v{vPA}")
    a(f"v_mul_u32_u24 v{vE0}, 160, v{vE0}")
    a(f"v_lshl_add_u32 v{vE0}, v{vPD}, 3, v{vE0}"); a(f"v_add_u32 v{vE0}, {half}, v{vE0}")
    a(f"v_lshlrev_b32 v{vPA}, 2, v{vL}")
    a(f"s_mul_i32 s7, s{sWV}, 5120"); a(f"v_add_u32 v{vRR}, s7, v{vXA0}")
    a(f"s_xor_b32 s7, s{sWV}, 1"); a(f"s_mul_i32 s7, s7, 5120"); a(f"v_add_u32 v{vRW}, s7, v{vXA0}")
    a(f"s_mul_i32 s7, s{sWV}, 2560"); a(f"s_add_u32 s7, s7, {OST2}")
    a(f"v_mov_b32 v16, s7"); a("v_mov_b32 v17, 0"); a("ds_write_b32 v16, v17")

def phase2_setup2():
    a(f"s_mul_i32 s7, s{sWV}, 2560"); a(f"s_add_u32 s7, s7, {OST2}")
    for j in range(3):
        a(f"v_add_u32 v{RA[j]}, {64*j}, v{vL}")
        a(f"v_mul_u32_u24 v{GA_[j]}, 6554, v{RA[j]}"); a(f"v_lshrrev_b32 v{GA_[j]}, 16, v{GA_[j]}")
        a(f"v_mul_u32_u24 v{vSA}, 2400, v{GA_[j]}")
        a(f"v_lshlrev_b32 v{RA[j]}, 4, v{RA[j]}")
        a(f"v_add_u32 v{GA_[j]}, v{vSA}, v{RA[j]}")
        a(f"v_add_u32 v{RA[j]}, s7, v{RA[j]}")
    a(f"v_and_b32 v{vSA}, 15, v{vL}"); a(f"v_mul_u32_u24 v{vSA}, 160, v{vSA}")
    a(f"v_lshrrev_b32 v16, 4, v{vL}"); a(f"v_lshlrev_b32 v16, 3, v16"); a(f"v_add3_u32 v{vSA}, v{vSA}, v16, s7")

def phase2():
    a.label("L_phase2")
    a.vm = ["flag"]; a.lg = []
    vL16 = vXA0
    PP = OPT["prepoll"]
    if not PP:
        a("s_barrier")
        stamp("E3")
    OF = 176; ACC = 16
    def of(k, rt): return OF + (k * 2 + rt) * 4
    bufs = ([56 + 4 * k for k in range(9)] + [96 + 4 * k for k in range(20)])[:OPT["npre"]]
    NB = len(bufs)
    def reads(n):
        k, t = divmod(n, 5); w = bufs[n % NB]; tg = []
        for h in range(2):
            if k < 8: row = 40 * k + 20 * h; base = vM0
            else: row = 80 * (2 * (k - 8) + h) + 16; base = vE0
            tg.append(a(f"ds_read_b64_tr_b16 {vr(w+2*h,2)}, v{base} offset:{row * 160 + 32 * t}"))
        return tg
    def oload(j):
        k, rt = divmod(j, 2)
        if k < 8:
            if k % 2 == 0: a(f"s_add_u32 s{3+rt}, s{sOC}, {rt*OT + k*OP_}")
            a(f"buffer_load_dwordx4 {vr(of(k,rt),4)}, v{vL16}, {sr(OS,4)}, s{3+rt} offen offset:{(k%2)*OP_} sc1", f"o{k}")
        else:
            a(f"s_add_u32 s{3+rt}, s{sOE}, {rt*OT + (k-8)*4*OP_}")
            a(f"buffer_load_dwordx4 {vr(of(k,rt),4)}, v{vXE}, {sr(OS,4)}, s{3+rt} offen offset:1024 sc1", f"o{k}")
    NP = OPT["npoll"]; per = NB // NP
    batches = [list(range(k * per, (k + 1) * per if k < NP - 1 else NB)) for k in range(NP)]
    tags = {}
    def poll_issue():
        a("s_mov_b64 exec, 0xff"); a(f"buffer_load_dword v{vPD}, v{vPA}, {sr(SS,4)}, s{sFC} offen sc1"); a("s_mov_b64 exec, -1")
    def poll_check(lbl):
        a("s_waitcnt vmcnt(0)")
        a(f"v_cmp_ne_u32 vcc, s{sN}, v{vPD}"); a("s_and_b32 vcc_lo, vcc_lo, 0xff"); a(f"s_cbranch_scc0 {lbl}" if not OPT["hackpoll"] else f"s_branch {lbl}")
    lgs = []
    if OPT["e3e"]:
        n0 = OPT["e3n"]
        rest = list(range(n0, NB)); per = len(rest) // NP
        batches[:] = [rest[k * per:(k + 1) * per if k < NP - 1 else len(rest)] for k in range(NP)]
        if OPT["pb"]:
            sz = [int(x) for x in str(OPT["pb"]).split(".")]; assert len(sz) == NP - 1
            cut = [0]
            for z in sz: cut.append(cut[-1] + z)
            cut.append(len(rest))
            batches[:] = [rest[cut[k]:cut[k + 1]] for k in range(NP)]
        for n in range(n0): tags[n] = reads(n)
        if OPT["su2"]: phase2_setup2()
        a(f"v_mov_b32 v94, s{sN}")
        a(f"s_cmp_eq_u32 s{sFAST}, 1")
        a("s_mov_b64 exec, 1")
        a("s_waitcnt vmcnt(0)")
        a("s_cbranch_scc1 L_fl1")
        a(f"buffer_store_dword v94, off, {sr(SS,4)}, s{sFP} sc1"); a("s_branch L_fl2")
        a.label("L_fl1"); a(f"buffer_store_dword v94, off, {sr(SS,4)}, s{sFP}"); a.label("L_fl2")
        a("s_mov_b64 exec, -1")
    if PP:
        poll_issue()
        if not OPT['woaft']: phase2_setup2()
        for r_ in range(PP - 1):
            poll_check("L_gopre"); poll_issue()
        poll_check("L_gopre")
        a("s_barrier")
        stamp("E3")
    for k in range(NP):
        poll_issue()
        for n in batches[k]: tags[n] = reads(n)
        if k == 0 and not OPT['woaft'] and not PP and not OPT["su2"]: phase2_setup2()
        lgs.append(list(a.lg))
        poll_check(f"L_go{k}")
    spin_begin("L_poll")
    poll_issue(); poll_check(f"L_go{NP-1}")
    spin_check("L_poll", "L_pollx")
    XL = OPT["oburst"] + NP - 1
    full = list(a.lg)
    XL += 1 if PP else 0
    for k in range(NP - 1, -2 if PP else -1, -1):
        a.label(f"L_go{k}" if k >= 0 else "L_gopre")
        a.vm = []; a.lg = list(lgs[k]) if k >= 0 else []
        stamp("polled")
        nxt = 0
        for _ in range(OPT["oburst"]): oload(nxt); nxt += 1
        if k < 0:
            a("s_barrier")
            stamp("E3")
        for j in range(k + 1, NP):
            for n in batches[j]: reads(n)
            oload(nxt); nxt += 1
        while nxt < XL: oload(nxt); nxt += 1
        if k > (-1 if PP else 0): a("s_branch L_conv")
    a.label("L_conv")
    a.lg = full[-12:]
    a("s_waitcnt lgkmcnt(12)")
    rd = NB
    NLOOP = 45 if OPT["lastk"] else 50
    for n in range(NLOOP):
        k, t = divmod(n, 5)
        p3 = parse_pr(OPT["pr3"])
        if (n % 10) in p3:
            a(f"s_bitcmp1_b32 s{sWV}, 2"); a(f"s_cbranch_scc0 L_np{n}"); a(f"s_setprio {p3[n % 10]}"); a.label(f"L_np{n}")
        a.wait(vm=f"o{k}" if t == 0 else None, lg=tags[n])
        if n == 0: stamp("ofirst")
        if n == 45 and AL:
            a(f"v_mov_b32 v{vPD}, s{sN}"); a("s_mov_b64 exec, 1")
            a(f"s_cmp_eq_u32 s{sFAST}, 1"); a("s_cbranch_scc1 L_df1")
            a(f"buffer_store_dword v{vPD}, off, {sr(SS,4)}, s{sDFP} sc1"); a("s_branch L_df2")
            a.label("L_df1"); a(f"buffer_store_dword v{vPD}, off, {sr(SS,4)}, s{sDFP}"); a.label("L_df2")
            a("s_mov_b64 exec, -1")
        for rt in ((1, 0) if (OPT["snake"] and t % 2) else (0, 1)):
            d = ACC + (rt * 5 + t) * 4
            mfma(d, bufs[n % NB], of(k, rt), d if k else "0")
        if t in (0, 2) and nxt < 20: oload(nxt); nxt += 1
        if OPT["wb"] >= 3 and n == OPT["wbn"]:
            a(f"s_xor_b32 s3, s{sWV}, {OPT['wbw']}")
            if OPT["wb"] == 3: a(f"s_or_b32 s3, s3, s{sHG}")
            else: a(f"s_and_b32 s4, s{sHG}, 3"); a("s_or_b32 s3, s3, s4")
            a(f"s_cmp_eq_u32 s3, 0"); a(f"s_cselect_b32 s3, s{sFAST}, 0"); a("s_cmp_eq_u32 s3, 1")
            a("s_cbranch_scc0 L_nowb")
            a("buffer_wbl2 sc1", "~wb")
            a.label("L_nowb")
        if t == 1 and nxt == 20 and OPT["wb"] in (1, 2):
            nxt = 21
            if OPT["wb"] == 1: a(f"s_or_b32 s3, s{sWV}, s{sHG}")
            else: a(f"s_mov_b32 s3, s{sWV}")
            a(f"s_cmp_eq_u32 s3, 0"); a(f"s_cselect_b32 s3, s{sFAST}, 0"); a("s_cmp_eq_u32 s3, 1")
            a("s_cbranch_scc0 L_nowb")
            a("buffer_wbl2 sc1", "~wb")
            a.label("L_nowb")
        if rd < 50: tags[rd] = reads(rd); rd += 1
    if not OPT["lastk"]: stamp("g2end")
    assert not (AL and OPT["lastk"])
    if AL: a("s_mov_b64 exec, 0xffff"); a(f"buffer_load_dword v{vPD}, v{vPA}, {sr(SS,4)}, s{sDFC} offen sc1"); a("s_mov_b64 exec, -1")
    else: a("s_nop 2")
    a(f"s_xor_b32 s7, s{sWV}, 1"); a(f"s_mul_i32 s7, s7, 2560"); a(f"s_add_u32 s7, s7, {OST2}")
    a(f"v_mov_b32 v92, s7"); a(f"s_mul_i32 s7, s{sWV}, 2560"); a(f"s_add_u32 s7, s7, {OST2}"); a(f"v_mov_b32 v93, s7")
    if OPT["lastk"]: a.wait(vm="o9", lg="all")
    a(f"s_cmp_eq_u32 s{sKH}, 0"); a("s_cbranch_scc0 L_red1")
    for c in range(2):
        if c == 1: a.label("L_red1")
        a.lg = []
        give = ACC + (1 - c) * 20; keep = ACC + c * 20
        if OPT["lastk"]:
            for t in range(5): mfma(give + 4 * t, bufs[(45 + t) % NB], of(9, 1 - c), give + 4 * t)
            for t in range(5):
                mfma(keep + 4 * t, bufs[(45 + t) % NB], of(9, c), keep + 4 * t)
                if t >= 2: a(f"ds_write_b128 v{vRW}, {vr(give+4*(t-2),4)} offset:{RX + (t-2)*1024}")
            for t in (3, 4): a(f"ds_write_b128 v{vRW}, {vr(give+4*t,4)} offset:{RX + t*1024}")
            stamp("g2end")
        else:
            for t in range(5): a(f"ds_write_b128 v{vRW}, {vr(give+4*t,4)} offset:{RX + t*1024}")
        a.wait(lg="all")
        a("ds_write_b32 v92, v92")
        spin_begin(f"L_pw{c}")
        a("ds_read_b32 v94, v93"); a("s_waitcnt lgkmcnt(0)")
        a("v_cmp_ne_u32 vcc, 0, v94"); a(f"s_cbranch_vccnz L_pwok{c}")
        spin_check(f"L_pw{c}", f"L_pwok{c}")
        a.lg = []
        tg = [a(f"ds_read_b128 {vr(56+4*t,4)}, v{vRR} offset:{RX + t*1024}") for t in range(5)]
        for t in range(5):
            a.wait(lg=tg[t])
            for j in range(4): a(f"v_add_f32 v{56+4*t+j}, v{56+4*t+j}, v{keep+4*t+j}")
            pack(56 + 4 * t, 80 + 2 * t)
            a(f"ds_write_b64 v{vSA}, {vr(80+2*t,2)} offset:{32*t}")
        if c == 0: a("s_branch L_red2")
    a.label("L_red2")
    a.wait(lg="all")
    tg = []
    for j in range(3):
        if j == 2: a("s_mov_b32 exec_hi, 0")
        tg.append(a(f"ds_read_b128 {vr(96+4*j,4)}, v{RA[j]}"))
    a("s_mov_b64 exec, -1")
    def dfcheck():
        a("s_waitcnt vmcnt(0)")
        a(f"v_cmp_ne_u32 vcc, s{sN}, v{vPD}"); a("s_and_b32 vcc_lo, vcc_lo, 0xffff"); a("s_cbranch_scc0 L_dfok")
    if AL:
        dfcheck()
        spin_begin("L_dfs")
        a("s_mov_b64 exec, 0xffff"); a(f"buffer_load_dword v{vPD}, v{vPA}, {sr(SS,4)}, s{sDFC} offen sc1"); a("s_mov_b64 exec, -1")
        dfcheck()
        spin_check("L_dfs", "L_dfok")
    fl = OPT["outflag"].replace("+", " "); fl = "" if fl == "none" else " " + fl
    for j in range(3):
        a.wait(lg=tg[j])
        if j == 2: a("s_mov_b32 exec_hi, 0")
        a(f"buffer_store_dwordx4 {vr(96+4*j,4)}, v{GA_[j]}, {sr(SD,4)}, s{sOUT} offen{fl}")
    if OPT["wbe"]:
        a(f"s_xor_b32 s3, s{sWV}, {OPT['wbw']}"); a(f"s_and_b32 s4, s{sHG}, {OPT['wbe']-1 if OPT['wbe'] > 1 else 7}"); a("s_or_b32 s3, s3, s4")
        a("s_cmp_eq_u32 s3, 0"); a("s_cbranch_scc0 L_nowbe")
        a("s_waitcnt vmcnt(0)"); a("buffer_wbl2 sc1")
        a.label("L_nowbe")
    if OPT["stamps"]:
        a("s_mov_b64 exec, -1")
        a("s_waitcnt vmcnt(0)")
        stamp("end")
        a(f"s_memrealtime s[100:101]"); a("s_waitcnt lgkmcnt(0)"); a(f"v_writelane_b32 v{vST}, s100, 41")
        a(f"v_writelane_b32 v{vST}, s{sFAST}, 42")
        a(f"s_lshl_b32 s3, s2, 3"); a(f"s_add_u32 s3, s3, s{sWV}"); a("s_lshl_b32 s3, s3, 8"); a(f"s_add_u32 s3, s3, {WS_STAMP}")
        a(f"v_lshlrev_b32 v0, 2, v{vL}")
        a(f"buffer_store_dword v{vST}, v0, {sr(SS,4)}, s3 offen")
    a.label("L_end")
    a("s_endpgm")
    a.label("L_codeend")

prologue()
sv0 = list(a.vm)
for b, c in ((0, 0), (0, 1), (1, 0), (1, 1)):
    a.vm = list(sv0); a.lg = []
    path(b, c)
phase2()
a.raw(f""".section .rodata,"a"
.p2align 6
.amdhsa_kernel {KNAME}
  .amdhsa_next_free_vgpr 256
  .amdhsa_next_free_sgpr 102
  .amdhsa_accum_offset 256
  .amdhsa_group_segment_fixed_size 0
  .amdhsa_kernarg_size 72
  .amdhsa_user_sgpr_count 2
  .amdhsa_user_sgpr_kernarg_segment_ptr 1
  .amdhsa_system_sgpr_workgroup_id_x 1
.end_amdhsa_kernel""")
open(sys.argv[1], "w").write(a.text())
print("nops inserted:", a.nops_inserted, "lines:", len(a.lines), file=sys.stderr)
```

```python
import re

TRANS = ("v_exp_f32", "v_log_f32", "v_rcp_f32", "v_rsq_f32", "v_sqrt_f32", "v_sin_f32", "v_cos_f32")

def regs_of(tok):
    tok = tok.strip()
    tok = re.sub(r"^-", "", tok)
    tok = re.sub(r"^\|(.*)\|$", r"\1", tok)
    m = re.fullmatch(r"abs\((.*)\)", tok)
    if m: tok = m.group(1)
    m = re.fullmatch(r"([vs])\[(\d+):(\d+)\]", tok)
    if m: return [(m.group(1), i) for i in range(int(m.group(2)), int(m.group(3)) + 1)]
    m = re.fullmatch(r"([vs])(\d+)", tok)
    if m: return [(m.group(1), int(m.group(2)))]
    if tok in ("vcc", "vcc_lo", "vcc_hi"): return [("x", "vcc")]
    if tok in ("exec", "exec_lo", "exec_hi"): return [("x", "exec")]
    if tok == "m0": return [("x", "m0")]
    return []

class Ins:
    def __init__(self, text):
        self.text = text
        t = text.split(";")[0].strip()
        parts = t.split(None, 1)
        self.op = parts[0]
        ops = []
        if len(parts) > 1:
            for o in parts[1].split(","):
                o = o.strip()
                ops.append(o.split()[0] if o else o)
        self.ops = ops
        op = self.op
        base = re.sub(r"_(e32|e64|dpp|sdwa)$", "", op)
        self.base = base
        self.is_mfma = op.startswith("v_mfma")
        self.is_valu = op.startswith("v_") and not self.is_mfma
        self.is_salu = op.startswith("s_")
        self.is_ds = op.startswith("ds_")
        self.is_vmem = op.startswith("buffer_") or op.startswith("global_")
        self.is_trans = base in TRANS
        self.is_perm = base.startswith("v_permlane")
        self.is_dpp = "quad_perm" in text or "row_" in text or op.endswith("_dpp")
        self.is_ldsdma = self.is_vmem and re.search(r"\blds\b", t) is not None
        R = [regs_of(o) for o in ops]
        self.w = []; self.r = []
        if self.is_mfma:
            self.w = R[0]; self.ra = R[1] + R[2]; self.rc = R[3]; self.r = self.ra + self.rc
        elif self.is_valu:
            if base.startswith("v_cmp"):
                self.w = R[0]; self.r = sum(R[1:], [])
            elif self.is_perm:
                self.w = R[0] + R[1]; self.r = R[0] + R[1]
            elif base in ("v_add_co_u32", "v_addc_co_u32", "v_sub_co_u32"):
                self.w = R[0] + R[1]; self.r = sum(R[2:], [])
            else:
                self.w = R[0]; self.r = sum(R[1:], [])
                if base in ("v_fmac_f32", "v_dot2c_f32_bf16", "v_writelane_b32"): self.r += R[0]
                if base == "v_cndmask_b32" and len(ops) == 3: self.r += [("x", "vcc")]
        elif self.is_ds:
            if "read" in op or "bpermute" in op or "swizzle" in op:
                self.w = R[0]; self.r = sum(R[1:], [])
            else:
                self.r = sum(R, [])
        elif self.is_vmem:
            if op.startswith("buffer_wbl2") or op.startswith("buffer_inv"):
                pass
            elif "load" in op and not self.is_ldsdma:
                self.w = R[0]; self.r = sum(R[1:], [])
            else:
                self.r = sum(R, [])
                if self.is_ldsdma: self.r += [("x", "m0")]
            self.store_wide = ("store" in op and ("x3" in op or "x4" in op))
            self.sdata = []
            if self.store_wide:
                self.sdata = R[0] if op.startswith("buffer_") else R[1]
        elif self.is_salu:
            if op.startswith("s_cmp") or op.startswith("s_cbranch") or op in ("s_branch", "s_waitcnt", "s_barrier", "s_nop", "s_endpgm", "s_sleep", "s_setprio", "s_bitcmp1_b32", "s_bitcmp0_b32", "s_setpc_b64"):
                self.r = sum(R, [])
            else:
                self.w = R[0] if R else []; self.r = sum(R[1:], [])
        self.states = 1
        if op == "s_nop": self.states = int(ops[0], 0) + 1

class Asm:
    def __init__(self):
        self.lines = []
        self.hist = []
        self.vm = []
        self.lg = []
        self.nops_inserted = 0
        self.uid = 0
        self.padding = None
        self.ghost_cond = {}

    def raw(self, s):
        self.lines.append(s)

    def comment(self, s):
        self.lines.append("    ; " + s)

    def label(self, name, reset=True):
        self.lines.append(name + ":")

    def need(self, ins):
        need = 0; dist = 0
        for p in reversed(self.hist):
            if dist >= 20: break
            req = 0
            pw = set(p.w)
            if p.is_valu:
                vw = {x for x in pw if x[0] == "v"}
                sw = {x for x in pw if x[0] == "s" or x == ("x", "vcc")}
                if ins.is_mfma and vw & set(ins.r): req = max(req, 2)
                if p.is_trans and ins.is_valu and not ins.is_trans and vw & set(ins.r): req = max(req, 1)
                if (ins.is_perm or ins.is_dpp) and vw & set(ins.r): req = max(req, 2)
                if ins.base in ("v_readfirstlane_b32", "v_readlane_b32") and vw & set(ins.r): req = max(req, 1)
                if ins.is_valu and sw & set(ins.r): req = max(req, 4 if ins.base in ("v_readlane_b32", "v_writelane_b32") else 2)
                if ins.is_vmem and sw & set(ins.r): req = max(req, 5)
                if ins.is_salu and sw & set(ins.r) and not ins.op.startswith("s_cbranch"): req = max(req, 1)
                if ("x", "exec") in pw: req = max(req, 5)
            if p.is_mfma:
                if ins.is_mfma:
                    if pw & set(ins.ra): req = max(req, 8)
                    if pw & set(ins.rc) and p.w != ins.rc: req = max(req, 6)
                    if pw & set(ins.w) and p.w != ins.rc: req = max(req, 8)
                elif ins.is_valu or ins.is_ds or ins.is_vmem:
                    if pw & (set(ins.r) | set(ins.w)): req = max(req, 8)
                if ins.is_valu and set(p.rc) & set(ins.w): req = max(req, 3)
            if p.is_salu and ("x", "m0") in pw and ins.is_vmem and ins.is_ldsdma: req = max(req, 1)
            if p.is_vmem and p.store_wide and set(p.sdata) & set(ins.w): req = max(req, 2)
            if req - dist > need: need = req - dist
            dist += p.states
        return need

    def est_size(self, text):
        t = text.split(";")[0]
        op = t.split()[0]
        if op.startswith(("buffer_", "global_", "ds_", "s_load", "s_mem", "v_mfma")): return 8
        if op in ("v_lshl_add_u32", "v_add3_u32", "v_bfe_u32", "v_mad_u32_u24", "v_writelane_b32", "v_cvt_pk_bf16_f32"): return 8
        for m in re.finditer(r"(?<![\w\[:])(0x[0-9a-f]+|-?\d+)(?![\w\]:])", t[len(op):]):
            v = int(m.group(1), 0)
            if (v > 64 or v < -16) and not op.startswith(("s_waitcnt", "s_nop", "s_cbranch", "s_branch")): return 8
        if "L_" in t and not op.startswith(("s_cbranch", "s_branch")): return 8
        return 4

    def __call__(self, text, tag=None):
        if self.padding is not None:
            p = self.padding
            if p["acc"] >= p["every"] and p["n"] < p["max"]:
                p["acc"] = 0; p["n"] += 1
                self.lines.append(f"L_ip{p['n']}:"); self.lines.append("    s_cbranch_execz L_ires")
                self.hist.append(Ins("s_nop 0"))
            p["acc"] += self.est_size(text)
        ins = Ins(text)
        if ins.is_ds and len(self.lg) >= 15:
            self.lg = self.lg[-12:]
            self("s_waitcnt lgkmcnt(12)")
        n = self.need(ins)
        while n > 0:
            k = min(n, 16)
            nop = Ins(f"s_nop {k-1}")
            self.lines.append(f"    s_nop {k-1}"); self.hist.append(nop); self.nops_inserted += k
            n -= k
        self.lines.append("    " + text)
        self.hist.append(ins)
        if len(self.hist) > 64: self.hist = self.hist[-40:]
        if tag is None:
            self.uid += 1; tag = f"_{self.uid}"
        if ins.is_vmem: self.vm.append(tag)
        if ins.is_ds: self.lg.append(tag)
        return tag

    def fence(self, n=10):
        self(f"s_nop {n-1}")

    def wait(self, vm=None, lg=None, keep=False):
        parts = []; k_vm = None; after = []
        if vm is not None:
            if vm == "all": k = 0
            else:
                tags = vm if isinstance(vm, (list, tuple)) else [vm]
                idx = [i for i, t in enumerate(self.vm) if t in tags]
                k = sum(1 for t in self.vm[max(idx) + 1:] if not t.startswith("~")) if idx else None
            if k is not None:
                kk = min(k, 63); parts.append(f"vmcnt({kk})"); k_vm = k
                if vm != "all": after = self.vm[max(idx) + 1:]
                if vm == "all": self.vm = []
                elif not keep: self.vm = self.vm[max(idx) + 1:]
        if lg is not None:
            if lg == "all": k = 0
            else:
                tags = lg if isinstance(lg, (list, tuple)) else [lg]
                idx = [i for i, t in enumerate(self.lg) if t in tags]
                k = len(self.lg) - 1 - max(idx) if idx else None
            if k is not None:
                kk = min(k, 15); parts.append(f"lgkmcnt({kk})"); self.lg = self.lg[len(self.lg) - kk:] if kk else []
        if parts and vm not in (None, "all") and k_vm is not None and not keep and self.ghost_cond:
            classes = {}
            for t in after:
                if t.startswith("~"):
                    cl = t[1:3]
                    if cl in self.ghost_cond: classes[cl] = classes.get(cl, 0) + 1
            if classes:
                cl = max(classes, key=classes.get)
                self.uid += 1; u = self.uid
                for i in self.ghost_cond[cl]: self(i)
                self(f"s_cbranch_scc1 L_gw{u}")
                self("s_waitcnt " + " ".join(parts))
                self(f"s_branch L_gx{u}")
                self.label(f"L_gw{u}")
                alt = [f"vmcnt({min(63, k_vm + classes[cl])})" if p.startswith("vmcnt") else p for p in parts]
                self("s_waitcnt " + " ".join(alt))
                self.label(f"L_gx{u}")
                return
        if parts: self("s_waitcnt " + " ".join(parts))

    def text(self):
        return "\n".join(self.lines) + "\n"

def vr(a, n=1):
    return f"v{a}" if n == 1 else f"v[{a}:{a+n-1}]"
def sr(a, n=1):
    return f"s{a}" if n == 1 else f"s[{a}:{a+n-1}]"
```

```python
import sys, os, struct
from collections import deque
from asmlib import Asm, vr, sr

KNAME = "concat_heads__linear_attn_block__sliding_local_dilated__prompt_kernel"
OPT = dict(grot=0, cptail=0, ipar=0, ipe=144, ip0=64, cpos=0, warm=0, p1all=0, p1mid=0, cpl=1, pb="", su2=0, gk="", front=0, front2=0, ahead=0, ordB="", axf=5, p1late=1, tlb=-2, opr=1, e3e=1, e3n=6, oxb=1, oxt=2, oxpos=0, oxf=4, aot=-2, awn=5, snake=0, prepoll=0, eoff=0, axt=-1, awt=-2, xw=-1, xq=-1, ecpar=-1, rv=0, dmap="", ord="q", ordoff=1, lean2=1, lean=1, lastk=0, rot2=0, hal_at=3, fewb=1, woA="2:0,4:1", esk=0, rts=0, woaft=0, gearly=54, tbal=1, exact=1, hackwo=0, hackgat=0, hackphi=0, hackpoll=0, sched="", tcm="", pr1="", pr2="", pr3="", prep=-1, hackport=0, hackdma=0, tcs=0, tc="", tcw=3, tc0=0, tcpos=0, alias=0, wbe=0, worot=0, wbn=49, wbw=4, tqonly=0, st0=-1, stn=6, stq=1, stp=1, srate=3, prel1=-1, ofl="nt", npoll=2, pre1=10, gspread=1, LA=2, p1n=1, win="", ea=0, eb=-1, ec=3, ecg=0, pst=-1, rev0=0, wodef=3, wnt=0, wont=0, pnt=0, xrot=1, prest=0, xnt=0, t0=0, wosched=0, G=10, stamps=0, L=4, Lb=2, L2=8, Lb2=4, force_slow=0, wb=0, codepf=4, outflag="nt", gat_at=3, pro=2, tq=-1,
           oburst=8, npre=27, rdy_at=4, prel_at=1, stampset="all")
for x in sys.argv[2:]:
    k, v = x.split("="); OPT[k] = int(v) if v.lstrip("-").isdigit() else v

def f2u(x): return struct.unpack("<I", struct.pack("<f", x))[0]

SLOT = 36864; UNIT = 10240
SC = 20480
EE_A = SC; RED = SC + 8192; OPS = 40960; EQX = SC + 28672; EXB = SC; OST = SC
BCAST = 147456 + 64
WO_BASE = 6 * UNIT
WQ_UNIT = [8, 10, 12, 0, 14]
CST = 148480
EE_A2 = 154624
OPX = 0
WS_KV = 0x600000; WS_HALO = 0x700000; WS_FLAG = 0x800000; WS_RDY = 0x810000; WS_E = 0x820000; WS_STAMP = 0x900000
WS_SIZE = 0x10000000
SPIN_MAX = 200000
EPS = f2u(1e-6)
LOG2E = 1.4426950408889634

SX, SW, SO, SD, SS, SG = 16, 20, 24, 28, 32, 36
sB, sRT, sHG, sWV, sI, sC, sXCC, sN, sFAST = 40, 41, 42, 43, 44, 45, 46, 47, 48
sXO, sWK = 50, 60
sW1K, sX2K = 70, 71
sT0, sT1, sT2, sT3 = 72, 73, 74, 75
sOB, sKVP, sKVG, sHP, sHG2, sFP, sFC = 76, 77, 78, 79, 49, 9, 8
sM = 80
sHV = 87; sTI = 86; sSPIN = 92; sCUR = 93; sDUTY = 90
sK = 94; sTM = 96; sOC = 98; sOUT = 99; sOE = 91; sKH = 85; sDFP = 84; sDFC = 83; sFPL = 82
vXD0, vXD1, vWD = 1, 2, 3
vXA0, vXA1, vWA, vWE, vL = 6, 7, 8, 9, 10
vT = 11; vST = 15
vWO = 90; vPRE = 93; vGAD = 94; vXE = 14
ACC1 = 16; WF = 56; XB = 96
def X(ks, rt): return XB + (ks * 2 + rt) * 4

a = Asm()
if OPT["exact"]:
    a.ghost_cond = {"w0": [f"s_cmp_eq_u32 s{sWV}, 0"], "i3": [f"s_cmp_eq_u32 s{sI}, 3"], "h0": [f"s_cmp_lg_u32 s{sHV}, 0"]}
AL = OPT['alias']
OS = SD if AL else SS
OP_ = 2560 if AL else 1280
OT = 16 * OP_
STAMPS = ["start", "issued", "b0", "b1", "b2", "b3", "b4", "b5", "b6", "b7", "b8", "b9", "p1end", "E1", "pub1", "p1", "p2", "p3", "p4", "p2end", "E2", "ostore", "oack", "E3", "polled", "ofirst", "g2end", "end", "first"]
FEW = {"first", "b0", "b1", "b2", "b4", "b6", "p1end", "pub1", "p2end", "ostore", "ofirst", "g2end", "end"}
def stamp(name):
    if not OPT["stamps"]: return
    if OPT["stampset"] == "few" and name not in FEW: return
    if OPT["stampset"] == "end" and name not in ("end",): return
    a(f"s_memtime {sr(sTM,2)}")
    RT = {"b0": 44, "b1": 45, "b6": 46, "p1end": 47, "pub1": 48, "p2end": 49, "ostore": 50, "ofirst": 51, "g2end": 52}
    if name in RT and OPT["rts"]: a("s_memrealtime s[100:101]")
    a("s_waitcnt lgkmcnt(0)"); a.lg = []
    a(f"v_writelane_b32 v{vST}, s{sTM}, {STAMPS.index(name)}")
    if name in RT and OPT["rts"]: a(f"v_writelane_b32 v{vST}, s100, {RT[name]}")

def srd(d, lo, hi, size):
    a(f"s_mov_b32 s{d}, s{lo}"); a(f"s_mov_b32 s{d+1}, s{hi}")
    a(f"s_mov_b32 s{d+2}, {size}"); a(f"s_mov_b32 s{d+3}, 0x20000")
def mask_ins(s, val):
    if s == "vcc": return [f"s_mov_b32 vcc_lo, 0x{val & 0xffffffff:x}", f"s_mov_b32 vcc_hi, 0x{val >> 32:x}"]
    return [f"s_mov_b32 s{s}, 0x{val & 0xffffffff:x}", f"s_mov_b32 s{s+1}, 0x{val >> 32:x}"]
def set_mask(s, val):
    for i in mask_ins(s, val): a(i)
def lanemask(f):
    m = 0
    for l in range(64):
        if f(l): m |= 1 << l
    return m

V0OK = [True]
def wvoff_ins(dst, q, pitch, swap, second):
    if q == 0: r = [f"v_and_b32 v{vT}, 0x1ff, v0" if V0OK[0] else f"v_lshl_add_u32 v{vT}, s{sWV}, 6, v{vL}"]
    elif q == 2: r = [f"s_lshl_b32 s{sT0}, s{sWV}, 6", f"s_add_u32 s{sT0}, s{sT0}, 384", f"s_mov_b32 s{sT1}, {second}", f"v_add_u32 v{vT}, s{sT0}, v{vL}"]
    else: r = [f"s_add_u32 s{sT0}, s{sWV}, {8*q}", f"s_cmp_ge_u32 s{sT0}, 10", f"s_cselect_b32 s{sT1}, {second}, 0", f"s_cselect_b32 s{sT2}, 10, 0",
         f"s_sub_u32 s{sT0}, s{sT0}, s{sT2}", f"s_lshl_b32 s{sT0}, s{sT0}, 6", f"v_add_u32 v{vT}, s{sT0}, v{vL}"]
    r += [ f"v_mul_u32_u24 v{vT+1}, 6554, v{vT}", f"v_lshrrev_b32 v{vT+1}, 16, v{vT+1}",
         f"v_mul_u32_u24 v{vT+2}, 10, v{vT+1}", f"v_sub_u32 v{vT}, v{vT}, v{vT+2}"]
    if swap:
        r += [f"v_lshrrev_b32 v{vT+2}, 1, v{vT+1}", f"v_xor_b32 v{vT+2}, v{vT+2}, v{vT+1}", f"v_and_b32 v{vT+2}, 4, v{vT+2}",
              f"v_mul_u32_u24 v{vT+2}, 3, v{vT+2}", f"v_xor_b32 v{vT+1}, v{vT+1}, v{vT+2}"]
    r += [f"v_mul_u32_u24 v{vT+1}, {pitch}, v{vT+1}", f"v_lshlrev_b32 v{vT}, 4, v{vT}", f"v_add3_u32 v{dst}, v{vT}, v{vT+1}, s{sT1}" if q else f"v_add_u32 v{dst}, v{vT}, v{vT+1}"]
    return r
def wvoff(*args):
    for i in wvoff_ins(*args): a(i)

XF = " nt" if OPT["xnt"] else ""
WFL = " nt" if OPT["wnt"] else ""
WOFL = " nt" if OPT["wont"] else ""
def dma_chunk(c, step):
    base = (step % 4) * SLOT
    ops = [([f"s_add_u32 m0, s{sX2K}, {base}"], f"buffer_load_dwordx4 v{vXD0}, {sr(SX,4)}, s{sXO+step} offen{XF} lds"),
           ([f"s_add_u32 m0, s{sX2K}, {base + 1024}"], f"buffer_load_dwordx4 v{vXD1}, {sr(SX,4)}, s{sXO+step} offen{XF} lds")]
    for q in range(3 if c == 0 else 2):
        if OPT["hackdma"] and q >= 1 and step >= 2: continue
        ops.append(([f"s_add_u32 m0, s{sW1K}, {base + 16384 + q*8192}"], f"buffer_load_dwordx4 v{vWD+q}, {sr(SW,4)}, s{sWK+step} offen{WFL} lds"))
    return ops
def dma_wq(c, u):
    base = WQ_UNIT[u] * UNIT
    ops = []
    for q in range(3 if c == 0 else 2):
        pre = []
        if q == 0: pre.append(f"s_sub_u32 s{sT3}, s{sWK+2*u}, 1280")
        elif q == 2 or c == 1: pre.append(f"s_sub_u32 s{sT3}, s{sWK+2*u+1}, 1280")
        else: pre += [f"s_cmp_lt_u32 s{sWV}, 2", f"s_cselect_b32 s{sT3}, s{sWK+2*u}, s{sWK+2*u+1}", f"s_sub_u32 s{sT3}, s{sT3}, 1280"]
        pre.append(f"s_add_u32 m0, s{sW1K}, {base + q*8192}")
        ops.append((pre, f"buffer_load_dwordx4 v{vWD+q}, {sr(SW,4)}, s{sT3} offen{WFL} lds"))
    return ops
sWOR = 86
def dma_wo(c, u):
    base = WO_BASE + u * 2 * UNIT
    ops = []
    if OPT["hackwo"]: return ops
    if u < OPT["worot"]:
        for q in range(3 if c == 0 else 2):
            pre = [f"s_lshl_b32 s{sT3}, s{sWOR+u}, 3", f"s_add_u32 s{sT3}, s{sT3}, s{sCUR}", f"s_add_u32 s{sT2}, s{sW1K}, s{sWOR+u}", f"s_add_u32 m0, s{sT2}, {WO_BASE + q*8192}"]
            ops.append((pre, f"buffer_load_dwordx4 v{vWO+q}, {sr(SO,4)}, s{sT3} offen{WOFL} lds"))
        return ops
    for q in range(3 if c == 0 else 2):
        pre = [f"s_add_u32 s{sT3}, s{sCUR}, {u*128*1280}", f"s_add_u32 m0, s{sW1K}, {base + q*8192}"]
        ops.append((pre, f"buffer_load_dwordx4 v{vWO+q}, {sr(SO,4)}, s{sT3} offen{WOFL} lds"))
    return ops
def emit_op(op, tag):
    if callable(op): return op()
    for p in op[0]: a(p)
    a(op[1], tag)

def padlabel(name, fall):
    if OPT["warm"]:
        if fall: a(f"s_branch {name}")
        a.label(f"W{name}")
        a("s_setpc_b64 s[6:7]")
    a.label(name)
WN = [0]
def warm_call(name):
    WN[0] += 1
    a("s_getpc_b64 s[4:5]"); a.label(f"L_wc{WN[0]}")
    a(f"s_add_u32 s4, s4, W{name}-L_wc{WN[0]}"); a("s_addc_u32 s5, s5, 0")
    a("s_swappc_b64 s[6:7], s[4:5]")

def spin_begin(name):
    a(f"s_mov_b32 s{sSPIN}, 0"); a.label(name)
def spin_check(name, done, pad=False):
    a.vm = [t for t in a.vm if t != "~x"]
    a(f"s_add_u32 s{sSPIN}, s{sSPIN}, 1"); a(f"s_cmp_lt_u32 s{sSPIN}, {SPIN_MAX}"); a(f"s_cbranch_scc1 {name}")
    padlabel(done, True) if pad else a.label(done)

def phi_ins(src, n, dst_list, tmp):
    r = []
    if OPT["hackphi"]:
        for d in dst_list:
            for i in range(0, n, 2): r.append(f"v_cvt_pk_bf16_f32 v{d+i//2}, v{src+i}, v{src+i+1}")
        return r
    for i in range(n): r.append(f"v_mul_f32 v{tmp+i}, s{sK}, v{src+i}")
    for i in range(n):
        r.append(f"v_exp_f32_e64 v{tmp+i}, v{tmp+i} clamp")
        r.append(f"v_max_f32 v{src+i}, s{sK+1}, v{src+i}")
    for i in range(n): r.append(f"v_add_f32 v{src+i}, v{src+i}, v{tmp+i}")
    for d in dst_list:
        for i in range(0, n, 2): r.append(f"v_cvt_pk_bf16_f32 v{d+i//2}, v{src+i}, v{src+i+1}")
    return r
def phi_pack(*args):
    for i in phi_ins(*args): a(i)
def pack_ins(src, dst):
    return [f"v_cvt_pk_bf16_f32 v{dst}, v{src}, v{src+1}", f"v_cvt_pk_bf16_f32 v{dst+1}, v{src+2}, v{src+3}"]
def pack(src, dst):
    for i in pack_ins(src, dst): a(i)
def mfma(d, A, B, C):
    c = C if isinstance(C, str) else vr(C, 4)
    a(f"v_mfma_f32_16x16x32_bf16 {vr(d,4)}, {vr(A,4)}, {vr(B,4)}, {c}")

def emit_side(x):
    if callable(x): x(); return 4
    if isinstance(x, list):
        for y in x: a(y)
        return max(1, sum(1 for y in x if y.startswith("v_")))
    a(x); return 1

def parse_pr(x):
    return {int(e.split(':')[0]): int(e.split(':')[1]) for e in str(x).split(',') if e}

def pipeline(N, reads, mf, bounds, boundary, L, Lb, bufs, newbufs={}, side={}, side_rate=3, prio=None, front=0):
    rd = 0; m = 0; tags = {}; bufof = {}; pend = []; every = 1; cnt = 0
    free = deque(bufs); bl = sorted(bounds); sq = deque()
    while m < N:
        can_read = rd < N and rd - m < L + 1 and len(free) > 0
        if can_read and rd in bounds and rd - m > Lb: can_read = False
        if can_read:
            if rd in bounds:
                for op in pend: emit_op(op[0], op[1])
                pend = list(boundary(bounds[rd]))
                nxt = [x for x in bl if x > rd]
                span = (nxt[0] if nxt else N) - rd
                every = max(1, (span - 1) // max(1, len(pend))); cnt = 0
                if front == 1: every = 1
                if front == 2:
                    for op in pend: emit_op(op[0], op[1])
                    pend = []
            bufof[rd] = free.popleft()
            tags[rd] = reads(rd, bufof[rd]); rd += 1
        else:
            if prio and (m % prio[0]) in prio[1]: a(f"s_setprio {prio[1][m % prio[0]]}")
            a.wait(lg=tags[m])
            cnt += 1; op = None
            if pend and cnt % every == 0:
                op = pend.pop(0)
                if not callable(op[0]):
                    for p in op[0][0]: a(p)
            mf(m, bufof[m])
            free.append(bufof[m])
            for b_ in newbufs.get(m, []): free.append(b_)
            if op is not None:
                if callable(op[0]): op[0]()
                else: a(op[0][1], op[1])
            for x in side.get(m, []): sq.append(x)
            k = 0
            while sq and k < side_rate:
                k += emit_side(sq.popleft())
            m += 1
    for op in pend: emit_op(op[0], op[1])
    while sq: emit_side(sq.popleft())

def step_offsets_win(s):
    sizes = [int(x) for x in str(OPT["win"]).split(",")]
    w0 = 0
    for sz in sizes:
        if s < w0 + sz: break
        w0 += sz
    if sz == 1:
        a(f"s_add_u32 s{sWK+s}, s5, {s*245760}"); a(f"s_add_u32 s{sXO+s}, s4, {s*128}")
        return
    a(f"s_add_u32 s{sT3}, s{sCUR}, {s - w0}"); a(f"s_and_b32 s{sT3}, s{sT3}, {sz-1}"); a(f"s_add_u32 s{sT3}, s{sT3}, {w0}")
    a(f"s_mul_i32 s{sWK+s}, s{sT3}, 245760"); a(f"s_add_u32 s{sWK+s}, s{sWK+s}, s5")
    a(f"s_lshl_b32 s{sXO+s}, s{sT3}, 7"); a(f"s_add_u32 s{sXO+s}, s{sXO+s}, s4")

def touch_steps(c, s0, n, par, tag):
    a(f"s_lshr_b32 s3, s2, 3"); a(f"s_and_b32 s6, s3, 1"); a(f"s_cmp_eq_u32 s6, {par}"); a(f"s_cbranch_scc0 L_nt_{tag}")
    a(f"s_lshr_b32 s3, s3, 1")
    a(f"s_and_b32 s6, s2, 3")
    if c == 1:
        a(f"s_cmp_eq_u32 s{sWV}, 4"); a(f"s_cbranch_scc0 L_tw_{tag}")
    if n < 5 and c == 1: a(f"s_branch L_nt_{tag}")
    else:
        a(f"s_lshl_b32 s6, s6, 4"); a(f"s_add_u32 s6, s6, s3"); a(f"s_mul_i32 s6, s6, {32*1280}")
        a(f"s_lshl_b32 s7, s{sWV}, 7"); a(f"s_add_u32 s6, s6, s7"); a(f"s_add_u32 s6, s6, {s0*128}")
        a(f"v_mul_u32_u24 v86, 1280, v{vL}")
        a("s_mov_b32 exec_hi, 0")
        a(f"buffer_load_dword v87, v86, {sr(SX,4)}, s6 offen nt", "~t")
        a("s_mov_b32 exec_hi, -1")
        if c == 1: a(f"s_branch L_nt_{tag}")
    if c == 1:
        a.label(f"L_tw_{tag}")
        a(f"s_lshl_b32 s6, s6, 4"); a(f"s_add_u32 s6, s6, s3"); a(f"s_mul_i32 s6, s6, 3840"); a(f"s_add_u32 s6, s6, {s0*245760 + 1280}")
        a(f"s_sub_u32 s7, s{sWV}, 5"); a(f"s_mul_i32 s7, s7, 34")
        a(f"v_add_u32 v86, s7, v{vL}"); a(f"v_min_u32 v86, {20*n-1}, v86")
        a(f"v_mul_u32_u24 v87, 3277, v86"); a(f"v_lshrrev_b32 v87, 16, v87")
        a(f"v_mul_u32_u24 v88, 20, v87"); a(f"v_sub_u32 v86, v86, v88"); a(f"v_lshlrev_b32 v86, 7, v86")
        a(f"v_mul_u32_u24 v87, 245760, v87"); a(f"v_add_u32 v86, v86, v87")
        a("s_mov_b32 exec_hi, 3")
        a(f"buffer_load_dword v87, v86, {sr(SW,4)}, s6 offen", "~t")
        a("s_mov_b32 exec_hi, -1")
    a.label(f"L_nt_{tag}")

vTX, vTW, vTD = 79, 89, 95
sTXB, sTWB = 12, 13
def tc_setup(sx, sw):
    a(f"v_lshrrev_b32 v{vTX}, 1, v{vL}"); a(f"v_mul_u32_u24 v{vTX}, 1280, v{vTX}"); a(f"v_and_b32 v{vTW}, 1, v{vL}"); a(f"v_lshl_add_u32 v{vTX}, v{vTW}, 7, v{vTX}")
    a(f"v_mul_u32_u24 v{vTW}, 3277, v{vL}"); a(f"v_lshrrev_b32 v{vTW}, 16, v{vTW}"); a(f"v_mul_u32_u24 v{vTW}, {3840 - 2560}, v{vTW}")
    a(f"v_lshl_add_u32 v{vTW}, v{vL}, 7, v{vTW}")
    a(f"s_lshr_b32 s6, s2, 3"); a(f"s_and_b32 s7, s2, 3"); a("s_lshl_b32 s7, s7, 5"); a("s_add_u32 s7, s7, s6"); a(f"s_mul_i32 s{sx}, s7, 20480")
    a(f"s_mul_i32 s{sw}, s6, 15360"); a(f"s_add_u32 s{sw}, s{sw}, 1280")
def tc_issue(s0, sx, sw, tag="~t"):
    a(f"s_add_u32 s6, s{sx}, {s0*128}"); a(f"s_add_u32 s7, s{sw}, {s0*245760}")
    a("s_mov_b32 exec_hi, 0")
    a(f"buffer_load_dword v{vTD}, v{vTX}, {sr(SX,4)}, s6 offen", tag)
    a("s_mov_b32 exec_hi, 0xff")
    a(f"buffer_load_dword v{vTD}, v{vTW}, {sr(SW,4)}, s7 offen", tag)
    a("s_add_u32 s7, s7, 7680")
    a(f"buffer_load_dword v{vTD}, v{vTW}, {sr(SW,4)}, s7 offen", tag)
    a("s_mov_b32 exec_hi, -1")

TQN = [0]
sAP = 12
CURB = [0]
def touch_ax(c, what):
    a(f"s_lshl_b32 s3, s{sRT}, 3"); a(f"s_add_u32 s3, s3, s{sHG}")
    if what == "o":
        a(f"s_lshl_b32 s3, s3, 3"); a(f"s_add_u32 s3, s3, s{sWV}"); a("s_mul_i32 s3, s3, 2560")
        a(f"v_lshlrev_b32 v86, 7, v{vL}")
        a("s_mov_b64 exec, 0xfffff")
        a(f"buffer_load_dword v95, v86, {sr(SS,4)}, s3 offen")
        a("s_mov_b64 exec, -1")
        return
    if what == "x":
        a(f"s_lshl_b32 s3, s3, 3"); a(f"s_add_u32 s3, s3, s{sWV}"); a("s_mul_i32 s3, s3, 2560")
        if OPT["axf"]:
            n = 10 - OPT["axf"]
            a(f"s_lshr_b32 s6, s{sRT}, 2"); a("s_mul_i32 s6, s6, 5"); a("s_add_u32 s6, s6, 1"); a("s_lshr_b32 s6, s6, 1"); a(f"s_add_u32 s6, s6, {OPT['axf']}")
            a(f"v_cmp_le_u32 vcc, {n}, v{vL}")
            a(f"v_add_u32 v86, s6, v{vL}"); a(f"v_subrev_u32 v87, {n}, v86"); a("v_cndmask_b32 v86, v86, v87, vcc")
            a("v_subrev_u32 v87, 10, v86"); a("v_min_u32 v86, v86, v87")
            a("v_lshlrev_b32 v86, 7, v86"); a("v_add_u32 v87, 1280, v86"); a("v_cndmask_b32 v86, v86, v87, vcc")
        else: a(f"v_lshlrev_b32 v86, 7, v{vL}")
        a("s_mov_b32 s4, s14"); a("s_mov_b32 s5, s15"); a("s_mov_b32 s6, 2621440"); a("s_mov_b32 s7, 0x20000")
        a(f"s_mov_b64 exec, {(1 << (2 * (10 - OPT['axf']))) - 1}")
    else:
        a(f"s_mul_i32 s3, s3, 5"); a(f"s_min_u32 s4, s{sWV}, 4"); a(f"s_add_u32 s3, s3, s4"); a("s_mul_i32 s3, s3, 3840"); a("s_add_u32 s3, s3, 1280")
        a(f"v_lshlrev_b32 v86, 7, v{vL}")
        a(f"s_cmp_lt_u32 s{sWV}, {OPT['awn']}"); a("s_cselect_b32 vcc_lo, 0xfffff, 1")
        a("s_mov_b32 s4, s100"); a("s_mov_b32 s5, s101"); a("s_mov_b32 s6, 2457600"); a("s_mov_b32 s7, 0x20000")
        a("s_mov_b32 exec_lo, vcc_lo"); a("s_mov_b32 exec_hi, 0")
    a(f"buffer_load_dword v95, v86, s[4:7], s3 offen")
    a("s_mov_b64 exec, -1")

def touch_qo(c):
    if OPT["tqonly"] == 1 and c == 1: return
    if OPT["tqonly"] == 2 and c == 0: return
    if OPT["eoff"] and CURB[0] == 0: return
    if OPT["ecpar"] >= 0:
        TQN[0] += 1
        a(f"s_add_u32 s3, s{sRT}, s{sHG}"); a(f"s_bitcmp1_b32 s3, 0"); a(f"s_cbranch_scc{1 - OPT['ecpar']} L_noq{TQN[0]}")
        a(f"s_lshl_b32 s3, s{sRT}, 2"); a(f"s_lshr_b32 s6, s{sHG}, 1"); a("s_add_u32 s3, s3, s6"); a(f"s_mul_i32 s3, s3, 100"); a(f"s_mul_i32 s6, s{sI}, 25"); a("s_add_u32 s3, s3, s6")
    else:
        a(f"s_lshl_b32 s3, s{sRT}, 3"); a(f"s_add_u32 s3, s3, s{sHG}"); a(f"s_mul_i32 s3, s3, 50"); a(f"s_mul_i32 s6, s{sI}, 13"); a("s_add_u32 s3, s3, s6")
    a(f"v_add_u32 v86, s3, v{vL}")
    if c == 0:
        a(f"v_mul_u32_u24 v87, 52429, v86"); a(f"v_lshrrev_b32 v87, 19, v87")
        a(f"v_mul_u32_u24 v88, 10, v87"); a(f"v_sub_u32 v86, v86, v88"); a(f"v_lshlrev_b32 v86, 7, v86")
        a(f"v_mul_u32_u24 v87, 3840, v87"); a(f"v_add_u32 v86, v86, v87")
    else:
        a(f"v_lshlrev_b32 v86, 7, v86")
    a(f"s_mov_b64 exec, {0x1fff if OPT['ecpar'] < 0 else 0x1ffffff}")
    if OPT["ecpar"] >= 0:
        a.ghost_cond["eq"] = [f"s_add_u32 s3, s{sRT}, s{sHG}", "s_and_b32 s3, s3, 1", f"s_cmp_eq_u32 s3, {OPT['ecpar']}"]
    a(f"buffer_load_dword v95, v86, {sr(SW if c == 0 else SO,4)}, 0 offen", "~eq" if OPT["ecpar"] >= 0 else None)
    if OPT["eoff"]:
        a(f"s_mov_b32 s4, s{sAP}"); a(f"s_mov_b32 s5, s{sAP+1}"); a(f"s_mov_b32 s6, {2457600 if c == 0 else 819200}"); a("s_mov_b32 s7, 0x20000")
        a(f"buffer_load_dword v95, v86, s[4:7], 0 offen")
    a("s_mov_b64 exec, -1")
    if OPT["ecpar"] >= 0: a.label(f"L_noq{TQN[0]}")

def prestore(c):
    a(f"s_lshl_b32 s3, s{sHG}, 11"); a(f"s_add_u32 s3, s3, s{sOB}"); a(f"s_add_u32 s3, s3, {c*1024}"); a("s_add_u32 s4, s3, 20480")
    a(f"s_lshl_b32 s5, s{sHG}, 9"); a(f"s_add_u32 s5, s5, s{sOB}"); a(f"s_add_u32 s5, s5, {16384 + c*256}"); a("s_add_u32 s6, s5, 20480")
    a(f"v_lshlrev_b32 v79, 4, v{vL}")
    a(f"buffer_store_dwordx4 v[80:83], v79, {sr(SS,4)}, s3 offen sc1")
    a(f"buffer_store_dwordx4 v[80:83], v79, {sr(SS,4)}, s4 offen sc1")
    a("s_mov_b64 exec, 0xffff")
    a(f"buffer_store_dwordx4 v[80:83], v79, {sr(SS,4)}, s5 offen sc1")
    a(f"buffer_store_dwordx4 v[80:83], v79, {sr(SS,4)}, s6 offen sc1")
    a("s_mov_b64 exec, -1")

ORDS = {
 "a": ["0213645789", "0142358679", "1302475689", "1053246978"],
 "b": ["0412385679", "1253049678", "2306145789", "3012745689"],
 "c": ["0123456789"] * 4,
 "d": ["0246135789", "0357124689", "1024683579", "1035792468"],
 "g": ["0213465789", "0132457689", "1024356879", "1023546798"],
 "h": ["0216345789", "0142835679", "1307245689", "1052934678"],
 "i": ["0213645789", "0142358679", "1302475689", "1053249678"],
 "j": ["0214365879", "0132547698", "1302456789", "1023456789"],
 "k": ["0321645789", "0145238679", "1203475689", "1054326978"],
 "l": ["0261345789", "0148235679", "1370245689", "1059234678"],
 "m": ["0316425789", "1047235689", "2150834679", "0125934678"],
 "n": ["0246135789", "0135724689", "1380245679", "1029345678"],
 "o": ["0213645789", "0142835679", "1302745689", "1053294678"],
 "p": ["0246135789", "0158234679", "1370245689", "1029345678"],
 "q": ["0245136789", "0136782459", "1302456789", "1023945678"],
 "r": ["0247135689", "0135824679", "1369024578", "1023456789"],
 "s": ["0241635789", "0135274689", "1308245679", "1023945678"],
 "t": ["0357124689", "1046235789", "2180345679", "0129345678"],
 "u": ["0234561789", "0167823459", "1023945678", "1023456789"],
 "v": ["0241356789", "0126834579", "1350246789", "1037924568"],
 "w": ["0241356789", "0126348579", "1350246789", "1037294568"],
 "x": ["0241635789", "0126345789".replace("6345", "7345").replace("789", "689"), "1350824679", "1032945678"],
 "y": ["0241356789", "0162834579", "1350246789", "1073924568"],
 "z": ["0124356789", "0135624789", "1046235789", "1057234689"],
 "A": ["0123465789", "1230547689", "2301456879", "3012456798"],
 "B": ["0142356789", "1203564789", "2310457689", "3021845679"],
 "C": ["0124563789", "1035742689", "2016834579", "0129345678"],
 "D": ["0213457689", "0132645879", "1302456798", "1023546789"],
 "E": ["0245136789", "0134678259", "1302456789", "1023459678"],
 "F": ["0214536789", "0136782459", "1302456789", "1023945678"],
 "e": ["0231645789", "0145238679", "1320475689", "1054326978"],
}
sORD = 84
assert OPT["lean2"] or not OPT["ord"], "ord keeps the XCD offset in s83, which lean2=0 loads a pointer into"
def step_offsets_ord(s):
    tabs = ORDS[OPT["ord"]]
    tabsB = ORDS[OPT["ordB"]] if OPT["ordB"] else tabs
    for t in tabs + tabsB: assert sorted(t) == list("0123456789")
    for t, u in zip(tabs, tabsB): assert t[0] == u[0]
    if s == 0:
        a(f"s_add_u32 s{sCUR}, s3, s{sHG}"); a(f"s_and_b32 s{sCUR}, s{sCUR}, 3")
        f0 = sum(int(t[0]) << (4 * k) for k, t in enumerate(tabs))
        a(f"s_lshl_b32 s{sT1}, s{sCUR}, 2"); a(f"s_lshr_b32 s{sT3}, 0x{f0:x}, s{sT1}"); a(f"s_and_b32 s{sT3}, s{sT3}, 15")
        if OPT["ordoff"]:
            a(f"s_and_b32 s83, s2, 3"); a("s_mul_i32 s83, s83, 5"); a("s_add_u32 s83, s83, 1"); a("s_lshr_b32 s83, s83, 1")
    else:
        if s == 1:
            pk = [sum(int(ch) << (4 * k) for k, ch in enumerate(t[1:9])) for t in tabs]
            p9 = sum(int(t[9]) << (4 * k) for k, t in enumerate(tabs))
            if tabsB is tabs:
                a(f"s_mov_b32 s{sORD}, 0x{pk[0]:x}")
                for k in (1, 2, 3): a(f"s_cmp_eq_u32 s{sCUR}, {k}"); a(f"s_cselect_b32 s{sORD}, 0x{pk[k]:x}, s{sORD}")
                a(f"s_lshl_b32 s{sT1}, s{sCUR}, 2"); a(f"s_lshr_b32 s{sORD+1}, 0x{p9:x}, s{sT1}"); a(f"s_and_b32 s{sORD+1}, s{sORD+1}, 15")
            else:
                pk += [sum(int(ch) << (4 * k) for k, ch in enumerate(t[1:9])) for t in tabsB]
                p9 |= sum(int(t[9]) << (16 + 4 * k) for k, t in enumerate(tabsB))
                a(f"s_lshl_b32 s{sT2}, s{sB}, 2"); a(f"s_add_u32 s{sT2}, s{sT2}, s{sCUR}")
                a(f"s_mov_b32 s{sORD}, 0x{pk[0]:x}")
                for k in range(1, 8): a(f"s_cmp_eq_u32 s{sT2}, {k}"); a(f"s_cselect_b32 s{sORD}, 0x{pk[k]:x}, s{sORD}")
                a(f"s_lshl_b32 s{sT1}, s{sT2}, 2"); a(f"s_lshr_b32 s{sORD+1}, 0x{p9:x}, s{sT1}"); a(f"s_and_b32 s{sORD+1}, s{sORD+1}, 15")
        if s < 9: a(f"s_bfe_u32 s{sT3}, s{sORD}, 0x{(4 << 16) | (4 * (s - 1)):x}")
        else: a(f"s_mov_b32 s{sT3}, s{sORD+1}")
    if OPT["ordoff"]:
        a(f"s_add_u32 s{sT3}, s{sT3}, s83"); a(f"s_cmp_ge_u32 s{sT3}, 10"); a(f"s_cselect_b32 s{sT1}, 10, 0"); a(f"s_sub_u32 s{sT3}, s{sT3}, s{sT1}")
    a(f"s_mul_i32 s{sWK+s}, s{sT3}, 245760"); a(f"s_add_u32 s{sWK+s}, s{sWK+s}, s5")
    a(f"s_lshl_b32 s{sXO+s}, s{sT3}, 7"); a(f"s_add_u32 s{sXO+s}, s{sXO+s}, s4")

def step_offsets(s):
    if OPT["ord"]: return step_offsets_ord(s)
    if OPT["win"]: return step_offsets_win(s)
    G = OPT["G"]; w0 = (s // G) * G
    if w0: a(f"s_add_u32 s{sT3}, s{sCUR}, {w0}"); src = sT3
    else: src = sCUR
    a(f"s_mul_i32 s{sWK+s}, s{src}, 245760"); a(f"s_add_u32 s{sWK+s}, s{sWK+s}, s5")
    a(f"s_lshl_b32 s{sXO+s}, s{src}, 7"); a(f"s_add_u32 s{sXO+s}, s{sXO+s}, s4")
    if G > 1 and s < 9:
        a(f"s_add_u32 s{sCUR}, s{sCUR}, 1"); a(f"s_cmp_eq_u32 s{sCUR}, {G}"); a(f"s_cselect_b32 s{sCUR}, 0, s{sCUR}")

sTCX, sTCW = 88, 89
def tc_start():
    f0 = OPT["tcpos"]
    a(f"s_cmp_lt_u32 s{sWV}, {OPT['tc0']}"); a("s_cbranch_scc0 L_notc0")
    a(f"s_mul_i32 s6, s{sWV}, 256"); a(f"s_add_u32 s{sT0}, s{sTCX}, s6"); a(f"s_mul_i32 s6, s{sWV}, {2*245760}"); a(f"s_add_u32 s{sT1}, s{sTCW}, s6")
    tc_issue(OPT["tcs"], sT0, sT1)
    a.label("L_notc0")

SCHED = {}
for ent in str(OPT["sched"]).split(","):
    if ent:
        p_, ks = ent.split(":"); SCHED[int(p_)] = [int(x) for x in ks.split(".")]
for p_, ks in SCHED.items():
    for k in ks: assert k - p_ <= 3 and k - p_ >= 1

def tlb_warm():
    a(f"v_lshlrev_b32 v88, 20, v{vL}")
    a("s_mov_b64 exec, 0x1f")
    a(f"buffer_load_dword v95, v88, {sr(SD,4)}, 0 offen")
    a("s_mov_b64 exec, 0x1ff")
    a(f"buffer_load_dword v95, v88, {sr(SS,4)}, 0 offen")
    a("s_mov_b64 exec, 1")
    a(f"buffer_load_dword v95, v88, {sr(SO,4)}, 0 offen")
    a("s_mov_b64 exec, -1")

def own_x_touch():
    if OPT["oxb"]: a(f"s_cmp_eq_u32 s{sB}, 0"); a("s_cbranch_scc1 L_noox")
    a(f"s_and_b32 s3, s2, 3"); a("s_lshl_b32 s3, s3, 5"); a("s_lshr_b32 s6, s2, 3"); a("s_add_u32 s3, s3, s6")
    a(f"s_lshl_b32 s3, s3, 3"); a(f"s_add_u32 s3, s3, s{sWV}"); a("s_mul_i32 s3, s3, 2560")
    if OPT["oxt"] == 1:
        a(f"v_lshlrev_b32 v88, 7, v{vL}"); a("s_mov_b64 exec, 0xfffff")
    else:
        n = 10 - OPT["oxf"]
        a(f"v_cmp_le_u32 vcc, {n}, v{vL}"); a(f"s_add_u32 s6, s83, {OPT['oxf']}")
        a(f"v_add_u32 v88, s6, v{vL}"); a(f"v_subrev_u32 v87, {n}, v88"); a("v_cndmask_b32 v88, v88, v87, vcc")
        a("v_subrev_u32 v87, 10, v88"); a("v_min_u32 v88, v88, v87")
        a("v_lshlrev_b32 v88, 7, v88"); a("v_add_u32 v87, 1280, v88"); a("v_cndmask_b32 v88, v88, v87, vcc")
        a(f"s_mov_b64 exec, {(1 << (2 * n)) - 1}")
    a(f"buffer_load_dword v95, v88, {sr(SX,4)}, s3 offen", "~oxB" if OPT["oxb"] else None)
    a("s_mov_b64 exec, -1")
    if OPT["oxb"]: a.label("L_noox")

HEADER = """
Fused linear-attention (A) + sliding-window attention (B) block, one persistent launch, one workgroup per CU.
kernarg: A_x, A_wqkv, A_wo, B_x, B_wqkv, B_wo, d_out, d_debug, d_ws (8 B each).
workgroup id -> branch b = bit 2, row tile rt (128 rows) = (id&3)*4 + ((id>>3)&3), head group hg (4 heads) = id>>5.
 pass 1 : K,V = x*Wk,Wv (x, W staged by LDS-DMA, W read with ds_read_b64_tr_b16, x fragments stay in VGPRs)
          A: phi(k)^T v and sum phi(k) per tile -> bf16 partials in d_ws ; B: last 16 rows of k,v -> d_ws (halo)
 pass 2 : Q = x*Wq while that exchange is under way ; A: sum the 16 partials (MFMA), o = num/den ; B: windowed softmax by MFMA
 phase 2: o handed over through d_ws inside the 8 workgroups of a row tile, out = o*Wo (K split over wave pairs)
hand-offs: per-launch nonce (published in d_debug[0]) tags all flags; partial/halo buffers are pre-filled with a
sentinel each launch and guarded by per-workgroup ready words; plain stores are used for o only when the ready
words show the whole group on one XCD, otherwise write-through (sc1).  Generated by a script written for this kernel.
"""

def prologue():
    a.raw(f"; @launch grid=(256,1,1) block=(512,1,1) lds=163840")
    for l in HEADER.strip("\n").split("\n"): a.raw(("; " + l).rstrip())
    a.raw('.amdgcn_target "amdgcn-amd-amdhsa--gfx950"')
    a.raw(".text"); a.raw(f".globl {KNAME}"); a.raw(".p2align 8"); a.raw(f".type {KNAME},@function")
    a.label(KNAME)
    assert OPT["ord"] and OPT["ordoff"] and OPT["lean2"]
    tabs = ORDS[OPT["ord"]]
    offs = [0, 3, 5, 8]
    assert tabs[0][0] == tabs[1][0] and tabs[2][0] == tabs[3][0]
    k0 = sum(((int(tabs[2 * t][0]) + offs[q]) % 10) << (4 * (2 * q + t)) for q in range(4) for t in range(2))
    def cpf():
        a("s_getpc_b64 s[6:7]")
        a.label(f"L_pc")
        a(f"s_lshr_b32 s{sT0}, s2, 3"); a(f"s_lshl3_add_u32 s{sT0}, s{sT0}, s{sWV}"); a(f"s_lshl_b32 s{sT0}, s{sT0}, 7")
        if OPT["cptail"]:
            a(f"s_cmp_lt_u32 s2, 8"); a(f"s_cselect_b32 s{sT1}, 0, s{sB}")
            a(f"s_mul_i32 s{sT1}, s{sT1}, L_phase2-L_path_00"); a(f"s_add_u32 s{sT0}, s{sT0}, s{sT1}")
            a(f"s_min_u32 s{sT0}, s{sT0}, L_codeend-L_path_00+1020"); a(f"s_add_u32 s{sT0}, s{sT0}, L_path_00-1024-L_pc")
        else:
            a(f"s_mul_i32 s{sT1}, s{sB}, L_phase2-L_path_00"); a(f"s_add_u32 s{sT0}, s{sT0}, s{sT1}")
            a(f"s_min_u32 s{sT0}, s{sT0}, L_codeend-L_path_00-4"); a(f"s_add_u32 s{sT0}, s{sT0}, L_path_00-L_pc")
        a(f"s_add_u32 s6, s6, s{sT0}"); a("s_addc_u32 s7, s7, 0")
        a("v_mov_b32 v86, s6"); a("v_mov_b32 v87, s7")
        a("s_mov_b64 exec, 1"); a(f"global_load_dword v95, v[86:87], off"); a("s_mov_b64 exec, -1")
    a("s_cmp_ge_u32 s2, 256")
    a("s_cbranch_scc1 L_end")
    a(f"s_bitcmp1_b32 s2, 2"); a("s_cselect_b32 s76, 24, 0")
    a(f"s_load_dwordx2 s[{SX}:{SX+1}], s[0:1], s76")
    a(f"s_load_dwordx2 s[{SW}:{SW+1}], s[0:1], s76 offset:8")
    a(f"v_lshrrev_b32 v{vT}, 6, v0")
    a(f"v_lshrrev_b32 v{vT+1}, 4, v0")
    a(f"v_readfirstlane_b32 s{sWV}, v{vT}")
    if OPT["stamps"]:
        a(f"v_mov_b32 v{vST}, 0"); a(f"s_memtime {sr(sTM,2)}"); a("s_memrealtime s[100:101]")
    if OPT["ipar"]:
        a("s_mov_b64 exec, 0")
        for w_ in range(1, 8): a(f"s_cmp_eq_u32 s{sWV}, {w_}"); a(f"s_cbranch_scc1 L_ip{w_}")
        a.label("L_ires")
        a("s_mov_b64 exec, -1")
        a.padding = dict(acc=OPT["ipe"] - OPT["ip0"], every=OPT["ipe"], n=0, max=7)
    if OPT["cpos"] == 0:
        a(f"s_lshr_b32 s{sB}, s76, 4"); cpf()
    a(f"v_xor_b32 v{vT+1}, v{vT+1}, v0"); a(f"v_and_b32 v{vT+1}, 7, v{vT+1}")
    a(f"v_bfe_u32 v{vT}, v0, 3, 3"); a(f"v_mul_u32_u24 v{vT}, 1280, v{vT}")
    a(f"s_lshr_b32 s3, s2, 3"); a(f"s_lshr_b32 s{sHG}, s2, 5"); a(f"s_add_u32 s{sCUR}, s3, s{sHG}")
    a(f"s_and_b32 s83, s2, 3"); a(f"s_and_b32 s3, s3, 3"); a(f"s_lshl2_add_u32 s{sRT}, s83, s3")
    a(f"s_lshl3_add_u32 s4, s{sRT}, s{sWV}"); a("s_mul_i32 s4, s4, 20480")
    a(f"s_and_b32 s{sT3}, s{sCUR}, 2"); a(f"s_lshl2_add_u32 s{sT3}, s83, s{sT3}"); a(f"s_lshl_b32 s{sT3}, s{sT3}, 1")
    a(f"s_lshr_b32 s{sT3}, 0x{k0:x}, s{sT3}"); a(f"s_and_b32 s{sT3}, s{sT3}, 15")
    a(f"s_lshl_b32 s{sXO}, s{sT3}, 7"); a(f"s_add_u32 s{sXO}, s{sXO}, s4")
    a(f"s_mov_b32 s{SX+2}, 2621440"); a(f"s_mov_b32 s{SX+3}, 0x20000")
    a(f"s_lshl_b32 s{sX2K}, s{sWV}, 11"); a(f"s_mov_b32 m0, s{sX2K}")
    a(f"v_lshl_add_u32 v{vXD0}, v{vT+1}, 4, v{vT}")
    a(f"v_and_b32 v{vT}, 64, v0"); a(f"v_xor_b32 v{vXD0}, v{vXD0}, v{vT}")
    a("s_waitcnt lgkmcnt(0)")
    if OPT["stamps"]:
        a(f"v_writelane_b32 v{vST}, s{sTM}, 0"); stamp("first")
    ops = dma_chunk(0, 0)
    a(ops[0][1], "ch0")
    a(f"v_xor_b32 v{vXD1}, 64, v{vXD0}"); a(f"s_add_u32 m0, s{sX2K}, 1024"); a(f"v_add_u32 v{vXD1}, 10240, v{vXD1}")
    a(ops[1][1], "ch0")
    if OPT["cpos"] == 1:
        a(f"s_lshr_b32 s{sB}, s76, 4"); cpf()
    a(f"s_mov_b32 s{SW+2}, 2457600"); a(f"s_mov_b32 s{SW+3}, s{SX+3}")
    a(f"s_mul_i32 s5, s{sHG}, 160"); a(f"s_add_u32 s5, s5, 1280")
    a(f"s_mul_i32 s{sWK}, s{sT3}, 245760"); a(f"s_add_u32 s{sWK}, s{sWK}, s5")
    a(f"s_lshl_b32 s{sW1K}, s{sWV}, 10")
    wvoff(vWD, 0, 3840, True, 1280)
    emit_op(ops[2], "ch0")
    if OPT["cpos"] == 2:
        a(f"s_lshr_b32 s{sB}, s76, 4"); cpf()
    a(f"s_load_dwordx2 s[8:9], s[0:1], s76 offset:16"); a("s_load_dwordx4 s[12:15], s[0:1], 48"); a("s_load_dwordx2 s[10:11], s[0:1], 64")
    a(f"v_and_b32 v{vL}, 63, v0")
    a(f"s_lshr_b32 s{sC}, s{sWV}, 2"); a(f"s_and_b32 s{sCUR}, s{sCUR}, 3")
    a("s_mul_i32 s83, s83, 5"); a("s_add_u32 s83, s83, 1"); a("s_lshr_b32 s83, s83, 1")
    wvoff(vWD + 1, 1, 3840, True, 1280)
    emit_op(ops[3], "ch0")
    wvoff(vWD + 2, 2, 3840, True, 1280)
    a(f"s_cmp_eq_u32 s{sC}, 0"); a("s_cbranch_scc0 L_no5")
    emit_op(ops[4], "~c0")
    a.label("L_no5")
    if OPT["oxt"] and OPT["oxpos"] == 0: own_x_touch()
    if OPT["stamps"]:
        a(f"v_writelane_b32 v{vST}, s100, 40")
    if OPT["lean2"]: a("s_waitcnt lgkmcnt(0)")
    srd(SS, 10, 11, WS_SIZE); srd(SG, 14, 15, 256)
    a(f"s_and_b32 s{sI}, s{sWV}, 3")
    a(f"s_or_b32 s3, s2, s{sWV}"); a("s_cmp_eq_u32 s3, 0"); a(f"s_cbranch_scc0 L_nn0")
    a(f"s_add_u32 s6, s10, {WS_E}"); a("s_addc_u32 s7, s11, 0")
    a(f"s_load_dword s{sN}, s[6:7], 0")
    a.label("L_nn0")
    if OPT["tbal"]: a(f"s_mul_i32 s7, s{sC}, 3"); a(f"s_xor_b32 s{sTI}, s{sI}, s7")
    else: a(f"s_mov_b32 s{sTI}, s{sI}")
    a(f"s_lshl_b32 s6, s{sHG}, 16"); a(f"s_lshl_b32 s7, s{sTI}, 9"); a(f"s_add_u32 s6, s6, s7")
    a(f"s_lshl_b32 s7, s{sC}, 11"); a("s_add_u32 s6, s6, s7")
    a(f"s_add_u32 s{sKVG}, s6, {WS_KV}")
    a(f"s_lshl_b32 s7, s{sRT}, 12"); a(f"s_add_u32 s{sKVP}, s{sKVG}, s7")
    a(f"s_lshl_b32 s6, s{sRT}, 3"); a(f"s_add_u32 s6, s6, s{sHG}"); a(f"s_mul_i32 s6, s6, 6144")
    a(f"s_mul_i32 s7, s{sC}, 3072"); a(f"s_add_u32 s{sHP}, s6, s7"); a(f"s_add_u32 s{sHP}, s{sHP}, {WS_HALO}")
    a(f"s_add_u32 s{sHG2}, s6, {WS_HALO - 8*6144}")
    a(f"v_mov_b32 v76, -1"); a(f"v_mov_b32 v77, -1"); a(f"v_lshlrev_b32 v78, 3, v{vL}")
    a(f"s_cmp_eq_u32 s{sB}, 0"); a(f"s_cbranch_scc0 L_preB")
    a(f"buffer_store_dwordx2 v[76:77], v78, {sr(SS,4)}, s{sKVP} offen sc1", "~preA")
    a(f"s_branch L_pred")
    a.label(f"L_preB")
    a(f"s_cmp_eq_u32 s{sI}, 3"); a(f"s_cbranch_scc0 L_pred")
    for k in range(5): a(f"buffer_store_dwordx2 v[76:77], v78, {sr(SS,4)}, s{sHP} offen offset:{k*512} sc1", "~preB")
    a.label(f"L_pred")
    step_offsets(1)
    if OPT["p1all"]:
        OPT["p1n"] = 5
        o1 = dma_chunk(0, 1)
        for op in o1[:4]: emit_op(op, "ch1")
        a(f"s_cmp_eq_u32 s{sC}, 0"); a("s_cbranch_scc0 L_no15")
        emit_op(o1[4], "~c1")
        a.label("L_no15")
    else:
        for op in dma_chunk(0, 1)[:OPT["p1n"]]: emit_op(op, "ch1")
    if OPT["oxt"] and OPT["oxpos"] == 1: own_x_touch()
    stamp("issued")
    a(f"s_lshl_b32 s3, s{sB}, 1"); a(f"s_add_u32 s3, s3, s{sC}")
    if OPT["ipar"]:
        assert a.padding["n"] == 7, a.padding
        a.padding = None
    a("s_cmp_eq_u32 s3, 1"); a("s_cbranch_scc1 L_path_01")
    a("s_cmp_eq_u32 s3, 2"); a("s_cbranch_scc1 L_path_10")
    a("s_cmp_eq_u32 s3, 3"); a("s_cbranch_scc1 L_path_11")

def prologue2(b, c):
    P = f"{b}{c}"
    if OPT["p1mid"]:
        for op in dma_chunk(c, 1)[OPT["p1n"]:]: emit_op(op, "ch1")
    if OPT["ea"]: touch_steps(c, 1, 5, 0, f"ea{P}")
    for s in range(2, 10): step_offsets(s)
    srd(SO, 8, 9, 819200); srd(SD, 12, 13, 5242880)
    CURB[0] = b
    if OPT["tlb"] == -1 and c == 1:
        a(f"s_cmp_eq_u32 s{sWV}, 7"); a(f"s_cbranch_scc0 L_notlb_{P}")
        n0 = len(a.vm); tlb_warm(); a.vm = a.vm[:n0] + ["~w7"] * 3
        a.ghost_cond["w7"] = [f"s_cmp_eq_u32 s{sWV}, 7"]
        a.label(f"L_notlb_{P}")
    if b == 1 and (OPT["eoff"] or OPT["axt"] > -2 or OPT["awt"] > -2):
        a(f"s_load_dwordx2 s[12:13], s[0:1], {8 if c == 0 else 16}"); a("s_load_dwordx2 s[14:15], s[0:1], 0")
        if OPT["awt"] > -2: a("s_load_dwordx2 s[100:101], s[0:1], 8")
        a("s_waitcnt lgkmcnt(0)")
        if OPT["axt"] == -1: touch_ax(c, "x")
        if OPT["awt"] == -1: touch_ax(c, "w")
        if OPT["aot"] == -1: touch_ax(c, "o")
    a(f"s_getreg_b32 s{sXCC}, hwreg(HW_REG_XCC_ID, 0, 3)")
    a(f"s_mul_i32 s{sCUR}, s{sHG}, 160")
    if P == "00":
        a(f"s_or_b32 s3, s2, s{sWV}"); a("s_cmp_eq_u32 s3, 0"); a(f"s_cbranch_scc0 L_nononce")
        a("s_waitcnt lgkmcnt(0)")
        a(f"s_add_u32 s6, s{sN}, 0x9e3779b0"); a("s_or_b32 s6, s6, 8"); a("s_andn2_b32 s6, s6, 7")
        a(f"v_mov_b32 v{vT}, s6"); a(f"v_mov_b32 v{vT+1}, 0"); a(f"s_mov_b32 s3, {WS_E}")
        a("s_mov_b64 exec, 1")
        a(f"buffer_store_dword v{vT}, v{vT+1}, {sr(SG,4)}, 0 offen sc1", "~n")
        a(f"buffer_store_dword v{vT}, v{vT+1}, {sr(SS,4)}, s3 offen sc1", "~n")
        a("s_mov_b64 exec, -1")
        a.label("L_nononce")
    a(f"v_and_b32 v{vT}, 15, v{vL}"); a(f"v_lshrrev_b32 v{vT+1}, 4, v{vL}")
    a(f"v_lshrrev_b32 v{vT+2}, 1, v{vT}"); a(f"v_xor_b32 v{vT+2}, v{vT+2}, v{vT+1}"); a(f"v_lshlrev_b32 v{vT+2}, 4, v{vT+2}")
    a(f"v_lshl_add_u32 v{vT+2}, v{vT}, 7, v{vT+2}")
    a(f"s_lshl_b32 s3, s{sI}, 12")
    a(f"v_add_u32 v{vXA0}, s3, v{vT+2}"); a(f"v_xor_b32 v{vXA1}, 64, v{vXA0}")
    a(f"v_lshrrev_b32 v{vT}, 5, v{vL}"); a(f"v_lshlrev_b32 v{vT}, 4, v{vT}")
    a(f"v_bfe_u32 v{vT+2}, v{vL}, 2, 3"); a(f"v_add_u32 v{vT}, v{vT}, v{vT+2}"); a(f"v_mul_u32_u24 v{vT}, 160, v{vT}")
    a(f"v_and_b32 v{vT+1}, 3, v{vL}")
    a(f"v_lshl_add_u32 v{vWA}, v{vT+1}, 3, v{vT}")
    if c: a(f"v_add_u32 v{vWA}, 80, v{vWA}")
    a(f"v_mad_u32_u24 v{vWE}, v{vT+1}, 40, v{vT}")
    a(f"v_add_u32 v{vWE}, {32 + (UNIT if c else 0)}, v{vWE}")
    a(f"s_lshl_b32 s3, s{sB}, 4"); a(f"s_add_u32 s3, s3, s{sRT}")
    a(f"s_lshl_b32 s4, s{sRT}, 3")
    boff = (1280 if AL else 128 * OT) * b
    a(f"s_lshl_b32 s5, s{sI}, 1"); a(f"s_add_u32 s5, s5, s4"); a(f"s_mul_i32 s{sOB}, s5, {OT}")
    if b: a(f"s_add_u32 s{sOB}, s{sOB}, {boff}")
    a(f"s_and_b32 s{sKH}, s{sWV}, 1")
    a(f"s_add_u32 s5, s4, s{sWV}"); a(f"s_mul_i32 s{sOUT}, s5, 40960")
    if b: a(f"s_add_u32 s{sOUT}, s{sOUT}, 1280")
    a(f"s_sub_u32 s5, s5, s{sKH}"); a(f"s_mul_i32 s{sOC}, s5, {OT}")
    a(f"s_mul_i32 s5, s{sKH}, {8*OP_}"); a(f"s_add_u32 s{sOC}, s{sOC}, s5")
    if b: a(f"s_add_u32 s{sOC}, s{sOC}, {boff}")
    a(f"s_mov_b32 s{sOE}, s{sOC}")
    a(f"s_add_u32 s{sOUT}, s{sOUT}, s{sCUR}")
    a(f"s_lshl_b32 s4, s3, 2")
    a(f"s_add_u32 s5, s4, s{sI}"); a(f"s_lshl_b32 s5, s5, 7"); a(f"s_lshl_b32 s6, s{sHG}, 3"); a(f"s_add_u32 s5, s5, s6")
    a(f"s_add_u32 s{sFP}, s5, {WS_FLAG + 4*c}")
    a(f"s_lshr_b32 s5, s{sWV}, 1"); a(f"s_add_u32 s5, s5, s4"); a(f"s_lshl_b32 s5, s5, 7"); a(f"s_add_u32 s5, s5, {WS_FLAG}")
    a(f"s_add_u32 s{sDFC}, s5, 64")
    a(f"s_lshl_b32 s7, s{sKH}, 2"); a(f"s_add_u32 s{sDFP}, s{sDFC}, s6"); a(f"s_add_u32 s{sDFP}, s{sDFP}, s7")
    a(f"s_lshl_b32 s7, s{sKH}, 5"); a(f"s_add_u32 s{sFC}, s5, s7")
    a(f"s_mov_b32 s{sK}, 0x{f2u(LOG2E):x}"); a(f"s_mov_b32 s{sK+1}, 0x{EPS:x}")
    for i in range(4): a(f"v_mov_b32 v{80+i}, s{sK+1}")
    a("v_mov_b32 v84, 0")
    if OPT["t0"]: touch_qo(c)
    if OPT["worot"]:
        R_ = OPT["worot"]
        a(f"s_and_b32 s3, s{sRT}, 3")
        for u in range(R_):
            a(f"s_add_u32 s4, s3, {u}")
            for _ in range(2): a(f"s_cmp_ge_u32 s4, {R_}"); a(f"s_cselect_b32 s5, {R_}, 0"); a("s_sub_u32 s4, s4, s5")
            a(f"s_mul_i32 s{sWOR+u}, s4, 20480")
    if OPT["dmap"]:
        dm = sum(int(ch) << (4 * k) for k, ch in enumerate(str(OPT["dmap"])[-4:]))
        a(f"s_and_b32 s3, s{sRT}, 3"); a(f"s_add_u32 s3, s3, s{sHG}"); a("s_and_b32 s3, s3, 3"); a("s_lshl_b32 s3, s3, 2")
        a(f"s_lshr_b32 s{sDUTY}, 0x{dm:x}, s3"); a(f"s_and_b32 s{sDUTY}, s{sDUTY}, 15")
    elif OPT["st0"] >= 0:
        a(f"s_lshr_b32 s3, s2, 3"); a(f"s_mul_i32 s4, s3, {(65536 + OPT['stn'] - 1) // OPT['stn']}"); a("s_lshr_b32 s4, s4, 16")
        a(f"s_mul_i32 s4, s4, {OPT['stn']}"); a(f"s_sub_u32 s{sDUTY}, s3, s4")
    if (OPT["tc"] or OPT["tcm"]) and not OPT["tc0"]: tc_setup(sTCX, sTCW)
    for q in range(3 if c == 0 else 2): wvoff(vWO + q, q, 1280, False, 64 * 1280)
    a(f"v_and_b32 v{vT}, 7, v{vL}"); a(f"v_lshlrev_b32 v{vT}, 7, v{vT}")
    a(f"s_mul_i32 s3, s{sHG}, {2*OP_}"); a(f"s_add_u32 s3, s3, {c*OP_}")
    a(f"v_add_u32 v{vT}, s3, v{vT}")
    a(f"v_bfe_u32 v{vT+1}, v{vL}, 3, 1"); a(f"v_mul_u32_u24 v{vT+1}, {OT}, v{vT+1}"); a(f"v_add_u32 v{vT}, v{vT}, v{vT+1}")
    a(f"v_and_b32 v{vT+1}, 1, v{vL}"); a(f"v_lshlrev_b32 v{vT+1}, 7, v{vT+1}")
    a(f"s_add_u32 s3, s3, 1024")
    a(f"v_add_u32 v{vT+1}, s3, v{vT+1}")
    a(f"v_bfe_u32 v{vT+2}, v{vL}, 1, 1"); a(f"v_mul_u32_u24 v{vT+2}, {OT}, v{vT+2}"); a(f"v_add_u32 v{vT+1}, v{vT+1}, v{vT+2}")
    set_mask("vcc", 0xffff)
    a(f"v_cndmask_b32 v{vPRE}, v{vT+1}, v{vT}, vcc")
    Z = 56; T1 = 57; T2_ = 58
    a(f"v_mov_b32 v{Z}, 0")
    if b == 0:
        a(f"v_and_b32 v{vGAD}, 31, v{vL}"); a(f"v_lshlrev_b32 v{vGAD}, 4, v{vGAD}"); a(f"v_lshrrev_b32 v{vT}, 5, v{vL}"); a(f"v_lshl_add_u32 v{vGAD}, v{vT}, 15, v{vGAD}")
        selm = lambda l: ((l >> 3) & 1) == ((l >> 4) & 1)
        a(f"v_mov_b32 v{T1}, 0x3f80"); a(f"v_mov_b32 v{T2_}, 0x3f800000")
        set_mask("vcc", lanemask(lambda l: l & 1)); a(f"v_cndmask_b32 v{T1}, v{T1}, v{T2_}, vcc")
        for r in range(4):
            set_mask("vcc", lanemask(lambda l: selm(l) and ((l & 7) >> 1) == r)); a(f"v_cndmask_b32 v{16+r}, v{Z}, v{T1}, vcc")
        a(f"v_mov_b32 v20, s{sK+1}"); a(f"v_mov_b32 v21, s{sK+1}"); a("v_mov_b32 v22, 0"); a("v_mov_b32 v23, 0")
        a(f"v_and_b32 v24, 15, v{vL}"); a("v_lshlrev_b32 v24, 1, v24"); a(f"v_and_b32 v25, 32, v{vL}"); a("v_add_u32 v24, v24, v25")
        a(f"v_bfe_u32 v25, v{vL}, 4, 1"); a("v_add_u32 v24, v24, v25"); a(f"v_lshlrev_b32 v24, {4 if OPT['opr'] else 3}, v24")
        if OPT["opr"]: a("v_xor_b32 v25, 512, v24")
        else: a(f"v_lshlrev_b32 v25, 3, v{vL}"); a("v_xor_b32 v25, 256, v25")
        a("v_mov_b32 v26, 0"); a("v_mov_b32 v26, 0"); a("v_mov_b32 v27, 0")
        ncst = 3
    else:
        dd = lambda l, j: (l & 15) - 4 * (l >> 4) - j
        own = lambda l, j: dd(l, j) >= 0 and dd(l, j) % 2 == 0
        prv = lambda l, j: dd(l, j) <= -2 and dd(l, j) % 2 == 0
        a(f"v_mov_b32 v{T1}, 0x{f2u(-1e30):x}")
        for j in range(4):
            set_mask("vcc", lanemask(lambda l: own(l, j))); a(f"v_cndmask_b32 v{16+j}, v{T1}, v{Z}, vcc")
            set_mask("vcc", lanemask(lambda l: prv(l, j))); a(f"v_cndmask_b32 v{20+j}, v{T1}, v{Z}, vcc")
            a(f"v_mov_b32 v{24+j}, 0x3f803f80")
        a(f"v_mov_b32 v{T1}, 0xffff"); a(f"v_mov_b32 v{T2_}, 0xffff0000")
        set_mask("vcc", lanemask(lambda l: l & 1)); a(f"v_cndmask_b32 v{T1}, v{T1}, v{T2_}, vcc")
        for k, (fn, pr) in enumerate(((prv, 0), (prv, 1), (own, 0), (own, 1))):
            set_mask("vcc", lanemask(lambda l: fn(l, 2 * pr + (l & 1)))); a(f"v_cndmask_b32 v{28+k}, v{Z}, v{T1}, vcc")
        ncst = 4
    a(f"v_lshlrev_b32 v{vT}, 4, v{vL}"); a(f"v_add_u32 v{vT}, {CST}, v{vT}")
    for k in range(ncst): a(f"ds_write_b128 v{vT}, {vr(16+4*k,4)} offset:{k*1024}")
    a.wait(lg="all")

def path(b, c):
    P = f"{b}{c}"; A_ = (b == 0)
    FB = A_ and OPT["fewb"]
    WQ_UNIT[:] = [8, 10, 12, 0, 2] if FB else [8, 10, 12, 0, 14]
    a.label(f"L_path_{P}")
    pstart = len(a.lines)
    a.vm = [("ch0" if (t == "~c0" and c == 0) else t) for t in a.vm]
    a.vm = [("ch1" if (t == "~c1" and c == 0) else t) for t in a.vm if not (t == "~c1" and c == 1)]
    a.vm = [t for t in a.vm if not (t == "~preA" and b == 1) and not (t == "~preB" and b == 0) and not (t == "~c0")]
    a.vm = [t for t in a.vm if not (t == "~oxB" and b == 0)]
    a.vm = [{"~preA": "preA", "~preB": "~i3pre", "~oxB": "oxB"}.get(t, t) for t in a.vm]
    a(f"s_cmp_eq_u32 s{sI}, 0"); a(f"s_cselect_b32 s{sHV}, s{sRT}, 0")
    prologue2(b, c)
    def warm_all():
        own = [f"L_t23_{P}", f"L_t3_{P}", f"L_tdone_{P}", f"L_gok_{P}"] if b == 0 else [f"L_hok_{P}", None, None, None]
        sh = (["L_phase2", "L_go0", "L_conv", "L_go1"] if c == 0 else ["L_red1", "L_red2", None, None])
        for i_ in range(4):
            tg = [t for t in (own[i_], sh[i_]) if t]
            if not tg: continue
            a(f"s_cmp_eq_u32 s{sI}, {i_}"); a(f"s_cbranch_scc0 L_nw{i_}_{P}")
            for t in tg: warm_call(t)
            a.label(f"L_nw{i_}_{P}")
    if OPT["warm"] == 1: warm_all()
    if OPT["p1late"]:
        if not OPT["p1mid"]:
            for op in dma_chunk(c, 1)[OPT["p1n"]:]: emit_op(op, "ch1")
        for op in dma_chunk(c, 2)[:OPT["p1late"] - 1]: emit_op(op, "ch2")
    if OPT["warm"] == 2: warm_all()
    if OPT["oxt"] and OPT["oxpos"] == 2:
        if OPT["ordoff"]: a(f"s_and_b32 s83, s2, 3"); a("s_mul_i32 s83, s83, 5"); a("s_add_u32 s83, s83, 1"); a("s_lshr_b32 s83, s83, 1")
        assert not AL and not OPT["oxb"]
        own_x_touch()
    vN0, vN1 = 84, 85
    def w0_begin(tag): a(f"s_cmp_eq_u32 s{sWV}, 0"); a(f"s_cbranch_scc0 L_{tag}_{P}")
    def w0_end(tag): a.label(f"L_{tag}_{P}")
    def nonce_load():
        w0_begin("nl")
        a(f"v_mov_b32 v{vN0}, 0")
        a(f"buffer_load_dword v{vN1}, v{vN0}, {sr(SG,4)}, 0 offen sc1", "~w0nonce")
        w0_end("nl")
    def nonce_check():
        w0_begin("nc")
        a.wait(vm="~w0nonce", keep=True)
        a(f"v_readfirstlane_b32 s{sN}, v{vN1}")
        a(f"s_cmp_lg_u32 s{sN}, 0"); a(f"s_cbranch_scc1 L_nok_{P}")
        spin_begin(f"L_nsp_{P}")
        a(f"buffer_load_dword v{vN1}, v{vN0}, {sr(SG,4)}, 0 offen sc1", "~x"); a("s_waitcnt vmcnt(0)")
        a(f"v_readfirstlane_b32 s{sN}, v{vN1}")
        a(f"s_cmp_lg_u32 s{sN}, 0"); a(f"s_cbranch_scc1 L_nok_{P}")
        spin_check(f"L_nsp_{P}", f"L_nok_{P}")
        a(f"s_lshl_b32 s3, s{sB}, 4"); a(f"s_add_u32 s3, s3, s{sRT}"); a(f"s_lshl_b32 s3, s3, 3"); a(f"s_add_u32 s3, s3, s{sHG}")
        a(f"s_lshl_b32 s3, s3, 7"); a(f"s_add_u32 s3, s3, {WS_RDY}")
        a(f"s_or_b32 s4, s{sN}, s{sXCC}")
        a(f"v_mov_b32 v{vN1}, s4")
        a("s_mov_b64 exec, 1")
        a(f"buffer_store_dword v{vN1}, v{vN0}, {sr(SS,4)}, s3 offen sc1", "~w0st")
        a("s_mov_b64 exec, -1")
        w0_end("nc")
    def rdy_load():
        w0_begin("rl")
        a(f"s_lshl_b32 s3, s{sB}, 4"); a(f"s_add_u32 s4, s3, s{sRT}"); a(f"s_lshl_b32 s4, s4, 3")
        a(f"v_add_u32 v{vN0}, s4, v{vL}")
        if A_:
            a(f"s_lshl_b32 s5, s3, 3"); a(f"s_add_u32 s5, s5, s{sHG}"); a(f"s_sub_u32 s5, s5, 64")
            a(f"v_lshl_add_u32 v{vN1}, v{vL}, 3, s5")
        else:
            a(f"s_max_u32 s5, s{sRT}, 1"); a(f"s_sub_u32 s5, s5, 1"); a(f"s_add_u32 s5, s5, s3"); a(f"s_lshl_b32 s5, s5, 3"); a(f"s_add_u32 s5, s5, s{sHG}")
            a(f"v_mov_b32 v{vN1}, s5")
        set_mask(sM, 0xff)
        a(f"v_cndmask_b32_e64 v{vN0}, v{vN1}, v{vN0}, {sr(sM,2)}")
        a(f"v_lshlrev_b32 v{vN0}, 7, v{vN0}")
        a(f"s_mov_b32 s3, {WS_RDY}")
        a(f"s_mov_b64 exec, {0xffffff if A_ else 0x1ff}")
        a(f"buffer_load_dword v{vN1}, v{vN0}, {sr(SS,4)}, s3 offen sc1", "~w0rdy")
        a("s_mov_b64 exec, -1")
        w0_end("rl")
    def rdy_check():
        em = 0xffffff if A_ else 0x1ff
        w0_begin("rc")
        a.wait(vm="~w0rdy", keep=True)
        def test():
            a(f"v_and_b32 v{vN1+1}, -8, v{vN1}")
            a(f"s_mov_b64 exec, {em}")
            a(f"v_cmp_ne_u32 vcc, s{sN}, v{vN1+1}")
            a("s_mov_b64 exec, -1")
            a(f"s_cbranch_vccz L_rok_{P}")
        test()
        spin_begin(f"L_rsp_{P}")
        a(f"s_mov_b32 s3, {WS_RDY}")
        a(f"s_mov_b64 exec, {em}")
        a(f"buffer_load_dword v{vN1}, v{vN0}, {sr(SS,4)}, s3 offen sc1", "~x"); a("s_waitcnt vmcnt(0)")
        test()
        spin_check(f"L_rsp_{P}", f"L_rok_{P}")
        a(f"s_or_b32 s3, s{sN}, s{sXCC}")
        a("s_mov_b64 exec, 0xff")
        a(f"v_cmp_ne_u32 vcc, s3, v{vN1}")
        a("s_mov_b64 exec, -1")
        a(f"s_cmp_eq_u32 vcc_lo, 0")
        a(f"s_cselect_b32 s3, {0 if OPT['force_slow'] else 1}, 0")
        a(f"s_or_b32 s3, s3, s{sN}")
        a(f"v_mov_b32 v{vN1}, s3"); a(f"v_mov_b32 v{vN0}, {BCAST}")
        sl = list(a.lg)
        a(f"ds_write_b32 v{vN0}, v{vN1}")
        a.lg = sl
        w0_end("rc")
    def bcast_read():
        a(f"v_mov_b32 v{vN0}, {BCAST}")
        a(f"ds_read_b32 v{vN1}, v{vN0}", "bc")
    def bcast_use():
        a.wait(lg="bc")
        a(f"v_readfirstlane_b32 s3, v{vN1}")
        a(f"s_and_b32 s{sFAST}, s3, 1"); a(f"s_andn2_b32 s{sN}, s3, 7")
    def touch():
        a(f"s_mul_i32 s3, s{sI}, 50"); a(f"v_add_u32 v86, s3, v{vL}"); a(f"s_lshr_b32 s4, s2, 3")
        if c == 0:
            a(f"v_mul_u32_u24 v87, 6554, v86"); a(f"v_lshrrev_b32 v87, 16, v87")
            a(f"v_mul_u32_u24 v88, 10, v87"); a(f"v_sub_u32 v86, v86, v88"); a(f"v_lshlrev_b32 v86, 7, v86")
            a(f"v_mul_u32_u24 v87, 3840, v87"); a(f"v_add_u32 v86, v86, v87"); a(f"s_mul_i32 s4, s4, {20*3840}")
        else:
            a(f"v_lshlrev_b32 v86, 7, v86"); a(f"s_mul_i32 s4, s4, 25600")
        a("s_mov_b32 exec_hi, 0x3ffff")
        a(f"buffer_load_dword v87, v86, {sr(SW if c == 0 else SO,4)}, s4 offen")
        a("s_mov_b32 exec_hi, -1")
    def opreload():
        a("s_mov_b64 exec, 0xfffff")
        a(f"buffer_load_dword v95, v{vPRE}, {sr(OS,4)}, s{sOB} offen{['', ' sc1', ' nt'][OPT['pnt']]}")
        a("s_mov_b64 exec, 1")
        a(f"buffer_load_dword v95, off, {sr(SS,4)}, s{sFC}")
        a("s_mov_b64 exec, -1")

    def xcd_touch(kind):
        a(f"s_and_b32 s3, s{sRT}, 3"); a(f"s_add_u32 s4, s3, s{sHG}"); a("s_bitcmp1_b32 s4, 1"); a(f"s_cbranch_scc0 L_nxt{kind}_{P}")
        a("s_and_b32 s4, s4, 1"); a("s_lshl_b32 s3, s3, 2"); a("s_add_u32 s3, s3, s4"); a(f"s_lshr_b32 s4, s{sHG}, 2"); a("s_lshl_b32 s4, s4, 1"); a("s_add_u32 s3, s3, s4")
        a("s_mul_i32 s3, s3, 400"); a(f"s_mul_i32 s4, s{sWV}, 50"); a("s_add_u32 s3, s3, s4")
        a(f"v_add_u32 v86, s3, v{vL}")
        if kind == "q":
            a(f"v_mul_u32_u24 v87, 52429, v86"); a(f"v_lshrrev_b32 v87, 19, v87")
            a(f"v_mul_u32_u24 v88, 10, v87"); a(f"v_sub_u32 v86, v86, v88"); a(f"v_lshlrev_b32 v86, 7, v86")
            a(f"v_mul_u32_u24 v87, 3840, v87"); a(f"v_add_u32 v86, v86, v87")
        else:
            a(f"v_lshlrev_b32 v86, 7, v86")
        a("s_mov_b32 exec_hi, 0x3ffff")
        a.ghost_cond["x2"] = [f"s_add_u32 s3, s{sRT}, s{sHG}", "s_bitcmp1_b32 s3, 1"]
        a(f"buffer_load_dword v95, v86, {sr(SW if kind == 'q' else SO,4)}, 0 offen", "~x2")
        a("s_mov_b32 exec_hi, -1")
        a.label(f"L_nxt{kind}_{P}")
    def fix_wd_for_q():
        if c == 0:
            a(f"s_cmp_lt_u32 s{sWV}, 2"); a(f"s_cselect_b32 s3, 0, 1280")
            a(f"v_subrev_u32 v{vWD+1}, s3, v{vWD+1}"); a(f"v_subrev_u32 v{vWD+2}, 1280, v{vWD+2}")
        else:
            a(f"v_subrev_u32 v{vWD+1}, 1280, v{vWD+1}")

    def acc1(t, rt): return ACC1 + (t * 2 + rt) * 4
    Tor = [not A_, not A_, False, False, (not A_) and c == 0]
    eps1 = [A_, A_, False, False, A_ and c == 0]
    items1 = [(sg, t) for sg in range(18) for t in range(5)] + [(18, 0), (18, 4), (18, 1), (19, 0), (19, 4), (19, 1), (18, 2), (18, 3), (19, 2), (19, 3)]
    seenx = set()
    def reads(n, w):
        sg, t = items1[n]; s = sg & 1; tg = []
        if sg not in seenx:
            seenx.add(sg)
            for rt in range(2): tg.append(a(f"ds_read_b128 {vr(X(sg,rt),4)}, v{vXA1 if s else vXA0} offset:{rt*2048}"))
        for h in range(2):
            if OPT["hackport"] in (1, 2) and t == 4 and sg > 0: continue
            if OPT["hackport"] == 4 and t in (1, 3, 4) and sg > 0: continue
            off = 16384 + s * 5120 + h * 1280
            if t < 4: tg.append(a(f"ds_read_b64_tr_b16 {vr(w+2*h,2)}, v{vWA} offset:{off + (UNIT if t >= 2 else 0) + 40*(t&1)}"))
            else: tg.append(a(f"ds_read_b64_tr_b16 {vr(w+2*h,2)}, v{vWE} offset:{off}"))
        return tg
    def mf(n, w):
        sg, t = items1[n]
        if OPT["hackport"] in (1, 3) and t == 4 and sg > 0: return
        for rt in ((1, 0) if (OPT["snake"] and n % 2) else (0, 1)):
            C = acc1(t, rt) if sg else (80 if eps1[t] else "0")
            if Tor[t]: mfma(acc1(t, rt), w, X(sg, rt), C)
            else: mfma(acc1(t, rt), X(sg, rt), w, C)
    R = OPT["rdy_at"]
    def bnd1(ch):
        if ch > 0:
            d = SLOT if ch % 4 else -3 * SLOT
            for r in (vXA0, vXA1, vWA, vWE): a(f"v_add_u32 v{r}, {d}, v{r}")
        a.wait(vm=f"ch{ch}", lg="all" if (ch and OPT["LA"] == 3) or ch == 9 or (OPT["ahead"] and 1 <= ch <= 6) or any(k - ch >= 3 for k in SCHED.get(ch, [])) and ch else None)
        a("s_barrier")
        stamp(f"b{ch}")
        ops = []
        if c == 0:
            if ch == 0: ops.append((nonce_load, None))
            if ch == 1: ops.append((nonce_check, None))
            if ch == R: ops.append((rdy_load, None))
            if ch == R + 2: ops.append((rdy_check, None))
        if ch == R + 3: ops.append((bcast_read, None))
        if OPT["LA"] == 3:
            if ch == 0 and OPT["pro"] < 3: ops += [(op, "ch2") for op in dma_chunk(c, 2)]
            if ch + 3 <= 9: ops += [(op, f"ch{ch+3}") for op in dma_chunk(c, ch + 3)]
        elif OPT["sched"]:
            if ch == 0: ops += [(op, "ch1") for op in dma_chunk(c, 1)[OPT["p1n"]:]]
            for k in SCHED.get(ch, []): ops += [(op, f"ch{k}") for op in dma_chunk(c, k)]
        else:
            if ch == 0 and not OPT["p1late"]: ops += [(op, "ch1") for op in dma_chunk(c, 1)[OPT["p1n"]:]]
            AH = OPT["ahead"]
            if ch + 2 <= 9: ops += [(op, f"ch{ch+2}") for op in dma_chunk(c, ch + 2)[(max(0, OPT["p1late"] - 1) if ch == 0 else (AH if ch >= 2 else 0)):]]
            if AH and ch >= 1 and ch + 3 <= 9: ops += [(op, f"ch{ch+3}") for op in dma_chunk(c, ch + 3)[:AH]]
        if ch == R + 3: ops.append((bcast_use, None))
        if ch == OPT["tq"]: ops.append((touch, None))
        if ch == OPT["eb"]: ops.insert(0, (lambda: touch_steps(c, 6, 4, 1, f"eb{P}"), None))
        if ch == OPT["eb"] + 100 or (OPT["eb"] >= 100 and ch == OPT["eb"] - 100): ops.append((lambda: touch_steps(c, 6, 4, 1, f"eb{P}"), None))
        if ch == OPT["ec"] and not (OPT["st0"] >= 0 and OPT["stq"]): ops.append((lambda: touch_qo(c), None))
        if OPT["tc"]:
            for ent in str(OPT["tc"]).split(","):
                per, st = (int(x) for x in ent.split(":"))
                if per == ch and c == OPT["tcw"] >> 2:
                    def tcl(st=st):
                        a(f"s_cmp_eq_u32 s{sWV}, {OPT['tcw']}"); a(f"s_cbranch_scc0 L_ntc{st}_{P}")
                        tc_issue(st, sTCX, sTCW)
                        a.label(f"L_ntc{st}_{P}")
                    ops.append((tcl, None))
        if OPT["tcm"] and c == 0:
            per, sts = str(OPT["tcm"]).split(":")
            if int(per) == ch:
                def tcm():
                    for w_, st in enumerate(int(x) for x in sts.split(".")):
                        a(f"s_cmp_eq_u32 s{sWV}, {w_ + 1}"); a(f"s_cbranch_scc0 L_tcm{w_}_{P}")
                        tc_issue(st, sTCX, sTCW)
                        a.label(f"L_tcm{w_}_{P}")
                ops.append((tcm, None))
        if ch == OPT["xw"]: ops.append((lambda: xcd_touch("w"), None))
        if ch == OPT["xq"]: ops.append((lambda: xcd_touch("q"), None))
        if ch == OPT["tlb"] and c == 1:
            def tl():
                a(f"s_cmp_eq_u32 s{sWV}, 7"); a(f"s_cbranch_scc0 L_notlb_{P}")
                n0 = len(a.vm); tlb_warm(); a.vm = a.vm[:n0] + ["~w7"] * 3
                a.ghost_cond["w7"] = [f"s_cmp_eq_u32 s{sWV}, 7"]
                a.label(f"L_notlb_{P}")
            ops.append((tl, None))
        if b == 1 and ch == OPT["aot"]: ops.append((lambda: touch_ax(c, "o"), None))
        if b == 1 and ch == OPT["axt"]: ops.insert(0, (lambda: touch_ax(c, "x"), None))
        if b == 1 and ch == OPT["awt"]: ops.insert(0, (lambda: touch_ax(c, "w"), None))
        if ch == OPT["prel1"]: ops.append((opreload, None))
        if OPT["st0"] >= 0 and 0 <= ch - OPT["st0"] < OPT["stn"]:
            def duty(k=ch - OPT["st0"]):
                a(f"s_cmp_eq_u32 s{sDUTY}, {k}"); a(f"s_cbranch_scc0 L_nd{k}_{P}")
                n0 = len(a.vm)
                if OPT["stq"]: touch_qo(c)
                if OPT["stp"]: opreload()
                a.vm = a.vm[:n0] + [f"~d{k}" for _ in a.vm[n0:]]
                a.ghost_cond[f"d{k}"] = [f"s_cmp_eq_u32 s{sDUTY}, {k}"]
                a.label(f"L_nd{k}_{P}")
            ops.append((duty, None))
        if ch == OPT["pst"]: ops.append((lambda: prestore(c), None))
        if OPT["LA"] == 3:
            if ch == 7: ops += [(fix_wd_for_q, None)] + [(op, "wq0") for op in dma_wq(c, 0)]
            if ch == 8: ops += [(op, f"wq{u}") for u in (1, 2) for op in dma_wq(c, u)]
            if ch == 9: ops += [(op, f"wq{u}") for u in (3, 4) for op in dma_wq(c, u)]
        else:
            if ch == 8: ops += [(fix_wd_for_q, None)] + [(op, "wq0") for op in dma_wq(c, 0)]
            if ch == 9: ops += [(op, f"wq{u}") for u in (1, 2) for op in dma_wq(c, u)]
        return ops
    hA, hB = 2 * c, 2 * c + 1
    gm = lambda h: lanemask(lambda l: (l >> 4) == h)
    half = lanemask(lambda l: (l >> 5) == c)
    pipeline(100, reads, mf, {10 * ch: ch for ch in range(10)}, bnd1, OPT["L"], OPT["Lb"], [WF + 4 * k for k in range(5)], prio=(10, parse_pr(OPT["pr1"])) if c == 1 else None, front=OPT["front"])
    if c == 1 and OPT["prep"] >= 0: a(f"s_setprio {OPT['prep']}")
    stamp("p1end")

    vL16, vL8 = vXA0, vXA1
    a(f"v_lshlrev_b32 v{vL16}, 4, v{vL}"); a(f"v_lshlrev_b32 v{vL8}, 3, v{vL}")
    a(f"v_add_u32 v{vWA}, {WQ_UNIT[0]*UNIT - SLOT}, v{vWA}")
    a(f"v_add_u32 v{vWE}, {WQ_UNIT[0]*UNIT - SLOT - (UNIT if c else 0)}, v{vWE}")
    WD = OPT["wodef"]; assert WD >= 2 and OPT["LA"] == 2
    WOA = {u + WD: [u] for u in range(5) if u + WD <= 4}
    if OPT["woA"]:
        WOA = {int(e.split(":")[0]): [int(x) for x in e.split(":")[1].split(".")] for e in OPT["woA"].split(",")}
        for u_, ks in WOA.items():
            for k in ks: assert u_ >= (0, 1, 3, 3, 3)[k]
    if FB: late_wo = [op for u in range(5) if not any(u in v for v in WOA.values()) for op in dma_wo(c, u)]
    else: late_wo = [op for u in range(5) if u + WD > 4 for op in dma_wo(c, u)]
    nq = 3 if c == 0 else 2
    def late(k, last=False):
        for _ in range(k):
            keep_ = nq * OPT["woaft"] if (last or FB) else nq * max(1, OPT["woaft"])
            if last == 2: keep_ = 0
            if len(late_wo) > keep_: emit_op(late_wo.pop(0), "wo")
    if A_:
        KAa, KAb, VBa, VBb, EO = 56, 60, 64, 68, 72
        TMP = 76
        a(f"s_lshl_b32 s3, s{sWV}, 12"); a(f"v_add_u32 v{vT}, s3, v{vL16}")
        a(f"v_add_u32 v{vT+1}, s{sW1K}, v{vL16}"); a(f"v_add_u32 v{vT+1}, {EE_A2}, v{vT+1}")
        phi_pack(acc1(0, 0), 8, [KAa], TMP)
        a(f"ds_write_b128 v{vT}, {vr(KAa,4)} offset:{OPX}")
        if c == 0: phi_pack(acc1(4, 0), 8, [EO], TMP)
        else: pack(acc1(4, 0), EO); pack(acc1(4, 1), EO + 2)
        a(f"ds_write_b128 v{vT+1}, {vr(EO,4)}")
        phi_pack(acc1(1, 0), 8, [KAb], TMP)
        a(f"ds_write_b128 v{vT}, {vr(KAb,4)} offset:{OPX + 1024}")
        for t, d in ((2, VBa), (3, VBb)):
            pack(acc1(t, 0), d); pack(acc1(t, 1), d + 2)
            a(f"ds_write_b128 v{vT}, {vr(d,4)} offset:{OPX + t*1024}")
        a(f"v_add_u32 v{vT}, {OPX + c*16384}, v{vL16}")
        a(f"v_add_u32 v{vT+1}, {EE_A2}, v{vL16}")
        a(f"v_and_b32 v{vT+2}, 0x31, v{vL}"); a(f"v_bfe_u32 v{vT+3}, v{vL}, 2, 2")
        a(f"v_lshl_add_u32 v{vT+2}, v{vT+3}, 1, v{vT+2}"); a(f"v_lshlrev_b32 v{vT+2}, 4, v{vT+2}")
        a(f"v_add_u32 v{vT+2}, {EE_A2 + 4096 + 128*c}, v{vT+2}")
        a(f"v_mov_b32 v89, 0x3f803f80")
        for i in range(4): a(f"v_mov_b32 v{80+i}, s{sK+1}")
    else:
        KA = {("a", 0): 56, ("b", 0): 60, ("a", 1): 64, ("b", 1): 68, ("a", -1): 96, ("b", -1): 100}
        Va, Vb, Ev = 72, 78, 84
        for rt in (1, 0):
            pack(acc1(0, rt), KA[("a", rt)]); pack(acc1(1, rt), KA[("b", rt)])
            if c == 0: pack(acc1(4, rt), KA[("a", rt)] + 2); pack(acc1(4, rt), KA[("b", rt)] + 2)
            else: pack(acc1(4, rt), Ev + 2 + 2 * rt)
            pack(acc1(2, rt), Va + 2 + 2 * rt); pack(acc1(3, rt), Vb + 2 + 2 * rt)
        Eown = [KA[("a", 0)] + 2, KA[("a", 1)] + 2] if c == 0 else [Ev + 2, Ev + 4]
        xs = [KA[("a", 1)], KA[("b", 1)], Va + 4, Vb + 4, Eown[1], Eown[0]]
        a(f"s_mul_i32 s3, s{sWV}, 3072")
        a(f"v_add_u32 v{vT}, s3, v{vL8}")
    a.wait(vm="wq0", lg="all")
    a("s_barrier")
    stamp("E1")
    if A_:
        R0 = 16
        D0, D1, D2 = 84, 72, 76
        def rd(dst, areg, off): return a(f"ds_read_b128 {vr(dst,4)}, v{areg} offset:{off}")
        def evb(dst):
            for j in range(4): a(f"v_cndmask_b32 v{dst+j}, v{dst+j}, v89, vcc")
        a(f"s_cmp_lt_u32 s{sTI}, 2"); a(f"s_cbranch_scc0 L_t23_{P}")
        a(f"s_lshl_b32 s3, s{sTI}, 10"); a(f"v_add_u32 v{vT}, s3, v{vT}")
        a.lg = []
        tg = []
        for g in range(4): tg.append([rd(R0 + 8 * g, vT, g * 4096), rd(R0 + 8 * g + 4, vT, g * 4096 + 2048)])
        for g in range(4):
            a.wait(lg=tg[g]); mfma(D0, R0 + 8 * g, R0 + 8 * g + 4, D0 if g else "0")
        a("s_nop 7")
        a(f"s_branch L_tdone_{P}")
        padlabel(f"L_t23_{P}", False)
        set_mask("vcc", 0x3333333333333333)
        a(f"s_cmp_eq_u32 s{sTI}, 2"); a(f"s_cbranch_scc0 L_t3_{P}")
        a.lg = []
        tg = []
        for g in range(4): tg.append([rd(R0 + 12 * g, vT + 2, g * 1024), rd(R0 + 12 * g + 4, vT, g * 4096), rd(R0 + 12 * g + 8, vT, g * 4096 + 1024)])
        for g in range(4):
            a.wait(lg=tg[g]); evb(R0 + 12 * g)
            mfma(D0, R0 + 12 * g + 4, R0 + 12 * g, D0 if g else "0")
            mfma(D1, R0 + 12 * g + 8, R0 + 12 * g, D1 if g else "0")
        set_mask("vcc", 0x11dd11dd11dd11dd)
        for j in range(4): a(f"v_cndmask_b32 v{D0+j}, v{D1+j}, v{D0+j}, vcc")
        a(f"s_branch L_tdone_{P}")
        padlabel(f"L_t3_{P}", False)
        a.lg = []
        tg = []
        B0 = [16, 32, 48, 16]
        def rd3(g): return [rd(B0[g], vT + 2, g * 1024), rd(B0[g] + 4, vT + 1, g * 1024), rd(B0[g] + 8, vT, g * 4096 + 2048), rd(B0[g] + 12, vT, g * 4096 + 3072)]
        for g in range(3): tg.append(rd3(g))
        for g in range(4):
            a.wait(lg=tg[g]); evb(B0[g])
            mfma(D0, B0[g] + 4, B0[g] + 8, D0 if g else "0")
            mfma(D1, B0[g] + 4, B0[g] + 12, D1 if g else "0")
            mfma(D2, B0[g] + 4, B0[g], D2 if g else "0")
            if g == 0: tg.append(rd3(3))
        set_mask("vcc", gm(hA))
        for j in range(4): a(f"v_cndmask_b32 v{D0+j}, v{D1+j}, v{D0+j}, vcc")
        for j in range(4):
            if c == 0: a(f"v_permlane32_swap_b32 v{D0+j}, v{D2+j}")
            else: a(f"v_permlane32_swap_b32 v{D2+j}, v{D0+j}")
        padlabel(f"L_tdone_{P}", True)
        a.lg = []
        pack(D0, 88)
        a(f"v_min_u32 v{D0}, -2, v88"); a(f"v_min_u32 v{D0+1}, -2, v89")
        a(f"buffer_store_dwordx2 {vr(D0,2)}, v{vL8}, {sr(SS,4)}, s{sKVP} offen sc1")
    else:
        for k in range(6): a(f"ds_write_b64 v{vT}, {vr(xs[k],2)} offset:{EXB + k*512}")
        a(f"s_cmp_eq_u32 s{sI}, 3"); a(f"s_cbranch_scc0 L_nohp_{P}")
        for k in range(5):
            for j in range(2): a(f"v_min_u32 v{xs[k]+j}, -2, v{xs[k]+j}")
            a(f"buffer_store_dwordx2 {vr(xs[k],2)}, v{vL8}, {sr(SS,4)}, s{sHP} offen offset:{k*512} sc1", "~i3hp")
        a.label(f"L_nohp_{P}")
    stamp("pub1")

    ACC2 = 16; WF2 = 40
    oc = 1 - c
    NT2 = 3 if c == 0 else 2
    def acc2(t, rt): return ACC2 + (t * 2 + rt) * 4
    items2 = [(sg, t) for sg in range(16) for t in range(NT2)] + [(sg, t) for t in ((2, 0, 1) if c == 0 else (0, 1)) for sg in range(16, 20)]
    N2 = len(items2)
    def ix(sg): return NT2 * sg
    iEQ = N2 - 8; iQA = N2 - 4
    def reads2(n, w):
        sg, t = items2[n]; tg = []
        for h in range(2):
            off = ((sg >> 1) & 1) * UNIT + (sg & 1) * 5120 + h * 1280
            if t < 2: tg.append(a(f"ds_read_b64_tr_b16 {vr(w+2*h,2)}, v{vWA} offset:{off + 40*t}"))
            else: tg.append(a(f"ds_read_b64_tr_b16 {vr(w+2*h,2)}, v{vWE} offset:{off}"))
        return tg
    def mf2(n, w):
        sg, t = items2[n]
        for rt in ((1, 0) if (OPT["snake"] and n % 2) else (0, 1)):
            C = acc2(t, rt) if sg else (80 if A_ else "0")
            mfma(acc2(t, rt), w, X(sg, rt), C)
    GA = 56
    def gather(tag="gat"):
        for r in range(8):
            a(f"s_add_u32 s3, s{sKVG}, {r*4096}")
            a(f"buffer_load_dwordx4 {vr(GA+4*r,4)}, v{vGAD}, {sr(SS,4)}, s3 offen sc1", tag)
    def gather_ops():
        if OPT["hackgat"]: return []
        if OPT["grot"]:
            return [([f"s_lshl_b32 s3, s{sRT}, 13", f"s_add_u32 s3, s3, {r*4096}", "s_and_b32 s3, s3, 0x7fff", f"s_add_u32 s3, s3, s{sKVG}"],
                     f"buffer_load_dwordx4 {vr(GA+4*r,4)}, v{vGAD}, {sr(SS,4)}, s3 offen sc1") for r in range(8)]
        return [([f"s_add_u32 s3, s{sKVG}, {r*4096}"], f"buffer_load_dwordx4 {vr(GA+4*r,4)}, v{vGAD}, {sr(SS,4)}, s3 offen sc1") for r in range(8)]
    HL = [KA[("a", -1)], KA[("b", -1)], Va, Vb, KA[("a", -1)] + 2, Ev, KA[("b", -1)] + 2] if not A_ else None
    def halo_loads(tag="~h0halo"):
        offs = [c*3072, c*3072 + 512, c*3072 + 1024, c*3072 + 1536, 2048, 3072 + 2048, 2048]
        for d, o in zip(HL, offs):
            a(f"s_add_u32 s3, s{sHG2}, {o}")
            a(f"buffer_load_dwordx2 {vr(d,2)}, v{vL8}, {sr(SS,4)}, s3 offen sc1", tag)
    def halo_issue():
        a(f"s_cmp_eq_u32 s{sHV}, 0")
        a(f"s_cbranch_scc1 L_nohl_{P}")
        halo_loads()
        a.label(f"L_nohl_{P}")
    def bnd2(u):
        ops = []
        if u > 0:
            d = (WQ_UNIT[u] - WQ_UNIT[u - 1]) * UNIT
            for r in (vWA, vWE): a(f"v_add_u32 v{r}, {d}, v{r}")
            if not FB or u in (1, 3):
                a.wait(vm=f"wq{u + 1 if FB else u}", lg="all")
                a("s_barrier")
            stamp(f"p{u}")
        if FB:
            if u == 1: ops += [(op, f"wq{k}") for k in (3, 4) for op in dma_wq(c, k)]
            ops += [(op, "wo") for k in WOA.get(u, []) for op in dma_wo(c, k)]
        else:
            if u in (1, 2): ops += [(op, f"wq{u+2}") for op in dma_wq(c, u + 2)]
            if u >= WD: ops += [(op, "wo") for op in dma_wo(c, u - WD)]
        if u == OPT["prel_at"] and OPT["prel1"] < 0 and not (OPT["st0"] >= 0 and OPT["stp"]): ops = ops + [(opreload, None)]
        if A_ and OPT["gk"]: return ops
        if u == (OPT["gat_at"] if A_ else OPT["hal_at"]):
            g = gather_ops()
            if OPT["gspread"]: g = g[:4]
            ops = ([(op, "gat") for op in g] if A_ else [(halo_issue, None)]) + ops
        if u == OPT["gat_at"] + 1 and A_ and OPT["gspread"]:
            ops = [(op, "gat") for op in gather_ops()[4:]] + ops
        return ops
    QB = {("a", 0): 160, ("b", 0): 164, ("a", 1): 168, ("b", 1): 172}
    side = {}
    vEQo, vEQp = 124, 125
    eqaddr = [[f"s_lshl_b32 s4, s{sI}, 10", f"v_add_u32 v{vEQo}, s4, v{vL8}"]]
    cst = [f"v_add_u32 v126, {CST}, v{vL16}"]
    if A_:
        SEL, C0, CA = 96, 100, 104
        Axb = 104; vOW = 126; vOX = 127
        cst += [f"ds_read_b128 {vr(96+4*k,4)}, v126 offset:{k*1024}" for k in range(3)]
        def cfix():
            a.wait(lg="all")
            if OPT["opr"]: a(f"v_mov_b32 v{vOW}, v{CA}")
            else: a(f"s_lshl_b32 s4, s{sTI}, 9"); a(f"v_add_u32 v{vOW}, s4, v{CA}")
            a(f"v_mov_b32 v{vOX}, v{CA+1}")
        GS = 108; GT = 88
        def gsum():
            for r in range(8): mfma(GS, SEL, GA + 4 * r, GS if r else "0")
        def gpart1():
            assert OPT["hackgat"] or sum(1 for l in a.lines[pstart:] if f"v{vGAD}, s[32:35]" in l) == 8, "gather not fully issued"
            a.wait(vm="gat"); gsum()
        def gpart2():
            a(f"v_add_f32 v{GT}, v{GS}, v{GS+1}"); a(f"v_add_f32 v{GT+1}, v{GS+2}, v{GS+3}"); a(f"v_add_f32 v{GT}, v{GT}, v{GT+1}")
            a(f"v_cmp_u_f32 vcc, v{GT}, v{GT}")
            a(f"s_cbranch_vccz L_gok_{P}" if not OPT["hackgat"] else f"s_branch L_gok_{P}")
            spin_begin(f"L_gsp_{P}")
            a(f"v_max3_u32 v{GT}, v{GA}, v{GA+1}, v{GA+2}")
            for k in range(3, 31, 2): a(f"v_max3_u32 v{GT}, v{GT}, v{GA+k}, v{GA+k+1}")
            a(f"v_max_u32 v{GT}, v{GT}, v{GA+31}")
            a(f"v_cmp_eq_u32 vcc, -1, v{GT}")
            a(f"s_cbranch_vccz L_gre_{P}")
            gather("~x"); a("s_waitcnt vmcnt(0)")
            spin_check(f"L_gsp_{P}", f"L_gre_{P}")
            gsum(); a("s_nop 7")
            if OPT["stamps"]:
                a(f"s_add_u32 s3, s{sSPIN}, 1"); a(f"v_writelane_b32 v{vST}, s3, 43")
            padlabel(f"L_gok_{P}", True)
            pack(GS, GT)
            if not OPT["opr"]:
                a(f"ds_write_b64 v{vOW}, {vr(GT,2)} offset:{OPS + c*2048}")
                return
            ob = OPS + c * 4096
            nu = lambda l: 32 * (l >> 5) + 2 * (l & 15) + ((l >> 4) & 1)
            ma_ = lambda l: (0x11dd >> (l & 15)) & 1
            m7 = lambda l: ((l >> 4) == hA and ma_(l)) or ((l >> 4) == hB and not ma_(l))
            Z_ = CA + 2
            def wr(mask, addr, off, tmp):
                set_mask("vcc", lanemask(mask))
                for j in range(2): a(f"v_cndmask_b32 v{tmp+j}, v{Z_}, v{GT+j}, vcc")
                a(f"ds_write_b64 v{addr}, {vr(tmp,2)} offset:{off}")
            sl = list(a.lg)
            a(f"s_cmp_lt_u32 s{sTI}, 2"); a(f"s_cbranch_scc0 L_w23_{P}")
            a(f"s_lshl_b32 s4, s{sTI}, 10"); a(f"v_add_u32 v{GS}, s4, v{vOW}")
            a(f"ds_write_b64 v{GS}, {vr(GT,2)} offset:{ob}")
            a(f"s_branch L_wd_{P}")
            a.label(f"L_w23_{P}")
            a(f"s_cmp_eq_u32 s{sTI}, 2"); a(f"s_cbranch_scc0 L_w3_{P}")
            wr(lambda l: ma_(nu(l)), vOW, ob + 2048, GS)
            wr(lambda l: not ma_(nu(l)), vOW, ob + 3072, GS + 2)
            a(f"s_branch L_wd_{P}")
            a.label(f"L_w3_{P}")
            wr(lambda l: m7(nu(l) ^ 32), vOX, ob + 2048 + 8, GS)
            wr(lambda l: (nu(l) >> 4) == hA, vOW, ob + 8, GS + 2)
            wr(lambda l: (nu(l) >> 4) == hB, vOW, ob + 1024 + 8, GS)
            a.label(f"L_wd_{P}")
            a.lg = sl
        side[ix(4) + 1] = cst + eqaddr
        side[ix(8) - 1] = [cfix]
        if c == 0:
            e = phi_ins(acc2(2, 0), 8, [], 112)
            for rt in range(2):
                e += pack_ins(acc2(2, rt), QB[("a", rt)] + 2) + [f"ds_write_b64 v{vEQo}, {vr(QB[('a',rt)]+2,2)} offset:{EQX + rt*512}"]
                e += [f"v_mov_b32 v{QB[('b',rt)]+2+j}, v{QB[('a',rt)]+2+j}" for j in range(2)]
            side[iEQ] = e
        side[iQA] = phi_ins(acc2(0, 0), 8, [], 112) + pack_ins(acc2(0, 0), QB[("a", 0)]) + pack_ins(acc2(0, 1), QB[("a", 1)])
        if OPT["gk"]:
            ks = [int(x) for x in str(OPT["gk"]).split(".")]
            for r, op in enumerate(gather_ops()):
                side[ix(ks[r])] = side.get(ix(ks[r]), []) + [lambda op=op: emit_op(op, "gat")]
        if OPT["gearly"] >= 0:
            side[N2 - 6] = side.get(N2 - 6, []) + [gpart1]
            side[N2 - 1] = side.get(N2 - 1, []) + [gpart2]
    else:
        BO, BP, ONES, MK, BP0 = 104, 108, 112, 116, 120
        cst += [f"ds_read_b128 {vr(104+4*k,4)}, v126 offset:{k*1024}" for k in range(4)] + [f"ds_read_b128 {vr(BP0,4)}, v126 offset:1024", "v_mov_b32 v127, 0"]
        def foreign():
            a(f"s_xor_b32 s3, s{sWV}, 4"); a(f"s_mul_i32 s3, s3, 3072")
            a(f"v_add_u32 v{vT}, s3, v{vL8}")
            for rt in range(2):
                o = EXB + (4 if rt else 5) * 512
                if c == 0: a(f"ds_read_b64 {vr(Ev+2+2*rt,2)}, v{vT} offset:{o}")
                else:
                    for h in "ab": a(f"ds_read_b64 {vr(KA[(h,rt)]+2,2)}, v{vT} offset:{o}")
        def foreign2():
            a(f"s_cmp_eq_u32 s{sI}, 0"); a(f"s_cbranch_scc1 L_nof2_{P}")
            a("s_waitcnt lgkmcnt(6)")
            a(f"s_sub_u32 s3, s{sI}, 1"); a(f"s_mul_i32 s3, s3, 3072")
            a(f"v_add_u32 v{vT}, s3, v{vL8}")
            cb = EXB + c * 4 * 3072
            sl = list(a.lg); a.lg = []
            a(f"ds_read_b64 {vr(KA[('a',-1)],2)}, v{vT} offset:{cb}")
            a(f"ds_read_b64 {vr(KA[('b',-1)],2)}, v{vT} offset:{cb + 512}")
            a(f"ds_read_b64 {vr(Va,2)}, v{vT} offset:{cb + 1024}")
            a(f"ds_read_b64 {vr(Vb,2)}, v{vT} offset:{cb + 1536}")
            for h in "ab": a(f"ds_read_b64 {vr(KA[(h,-1)]+2,2)}, v{vT} offset:{EXB + 2048}")
            a(f"ds_read_b64 {vr(Ev,2)}, v{vT} offset:{EXB + 4*3072 + 2048}")
            a.lg = sl
            a.label(f"L_nof2_{P}")
        EQ = {0: 156, 1: 158}
        side[ix(4) + 1] = cst + eqaddr
        side[ix(6)] = [foreign]
        side[ix(9)] = [foreign2]
        if c == 0:
            side[iEQ] = pack_ins(acc2(2, 0), EQ[0]) + pack_ins(acc2(2, 1), EQ[1]) + [f"ds_write_b64 v{vEQo}, {vr(EQ[rt],2)} offset:{EQX + rt*512}" for rt in range(2)]
        side[iQA] = pack_ins(acc2(0, 0), QB[("a", 0)]) + pack_ins(acc2(0, 1), QB[("a", 1)])
    wf2 = [WF2 + 4 * k for k in range(4)] + ([32, 36] if c == 1 else [])
    pipeline(N2, reads2, mf2, {ix(4 * u): u for u in range(5)}, bnd2, OPT["L2"], OPT["Lb2"] if c == 0 else OPT["Lb2"] - 1, wf2,
             newbufs={ix(8): [128 + 4 * k for k in range(7)]}, side=side, side_rate=OPT["srate"] + (0 if c == 0 else 1), prio=None, front=OPT["front2"])
    if c == 1 and OPT["prep"] >= 0: a(f"s_setprio {OPT['prep']}")
    stamp("p2end")

    if A_:
        if OPT["gearly"] < 0: gpart1()
        late(3)
        phi_pack(acc2(1, 0), 8, [], 136)
        pack(acc2(1, 0), QB[("b", 0)]); pack(acc2(1, 1), QB[("b", 1)])
        if OPT["gearly"] < 0: gpart2()
        late(99)
        a.wait(lg="all")
        a("s_barrier")
        stamp("E2")
        if OPT["opr"]:
            A1a, A1b, Axa = 128, 132, 136
            ob = OPS + c * 4096
            tq = [a(f"ds_read_b64 {vr(QB[(h,rt)]+2,2)}, v{vEQo} offset:{EQX + rt*512}") for rt in range(2) for h in "ab"] if c == 1 else []
            tq.append(a(f"ds_read_b128 {vr(Axa,4)}, v{vL16} offset:{ob + 2048}"))
            tq.append(a(f"ds_read_b128 {vr(A1a,4)}, v{vL16} offset:{ob}"))
            tq.append(a(f"ds_read_b64 {vr(Axb,2)}, v{vL16} offset:{ob + 3072}"))
            tq.append(a(f"ds_read_b128 {vr(A1b,4)}, v{vL16} offset:{ob + 1024}"))
            late(99, True)
            if OPT["prel_at"] == 5: opreload()
        else:
            A1a, A1b, Axa, T3, T2 = 128, 132, 136, 140, 142
            ob = OPS + c * 2048
            t3 = a(f"ds_read_b64 {vr(T3,2)}, v{vL8} offset:{ob + 1536}")
            t2 = a(f"ds_read_b64 {vr(T2,2)}, v{vL8} offset:{ob + 1024}")
            t4 = a(f"ds_read_b64 {vr(Axa+2,2)}, v{vOX} offset:{ob + 1536}")
            t0 = a(f"ds_read_b64 {vr(A1a,2)}, v{vL8} offset:{ob}")
            t1 = a(f"ds_read_b64 {vr(A1b,2)}, v{vL8} offset:{ob + 512}")
            tq = [a(f"ds_read_b64 {vr(QB[(h,rt)]+2,2)}, v{vEQo} offset:{EQX + rt*512}") for rt in range(2) for h in "ab"] if c == 1 else [t1]
            late(99, True)
            if OPT["prel_at"] == 5: opreload()
            ma = lambda l: (0x11dd >> (l & 15)) & 1
            Z = Axb + 2
            set_mask("vcc", gm(hA)); a.wait(lg=t3)
            for j in range(2): a(f"v_cndmask_b32 v{A1a+2+j}, v{Z}, v{T3+j}, vcc")
            set_mask("vcc", gm(hB))
            for j in range(2): a(f"v_cndmask_b32 v{A1b+2+j}, v{Z}, v{T3+j}, vcc")
            set_mask("vcc", 0x11dd11dd11dd11dd); a.wait(lg=t4)
            for j in range(2):
                a(f"v_cndmask_b32 v{Axa+j}, v{Z}, v{T2+j}, vcc")
                a(f"v_cndmask_b32 v{Axb+j}, v{T2+j}, v{Z}, vcc")
            set_mask("vcc", lanemask(lambda l: ((l >> 4) == hA and ma(l)) or ((l >> 4) == hB and not ma(l))))
            for j in range(2): a(f"v_cndmask_b32 v{Axa+2+j}, v{Z}, v{Axa+2+j}, vcc")
        O = {(k, rt): 16 + (rt * 3 + i) * 4 for rt in range(2) for i, k in enumerate("xab")}
        a.wait(lg=tq if not OPT["opr"] else tq[-4])
        for rt in (c, oc): mfma(O[("x", rt)], Axa, QB[("a", rt)], C0)
        if OPT["opr"]: a.wait(lg=tq[-3])
        for rt in (c, oc): mfma(O[("a", rt)], A1a, QB[("a", rt)], "0")
        if OPT["opr"]: a.wait(lg=tq[-2])
        for rt in (c, oc): mfma(O[("x", rt)], Axb, QB[("b", rt)], O[("x", rt)])
        if OPT["opr"]: a.wait(lg=tq[-1])
        for rt in (c, oc): mfma(O[("b", rt)], A1b, QB[("b", rt)], "0")
        OM = [176, 180]; OX = [184, 186]
        set_mask("vcc", lanemask(lambda l: l < 32))
        for rt in (c, oc):
            x = O[("x", rt)]
            a(f"v_rcp_f32 v{x}, v{x}"); a(f"v_rcp_f32 v{x+1}, v{x+1}")
        for rt in (c, oc):
            x = O[("x", rt)]
            for j in range(4): a(f"v_mul_f32 v{O[('a',rt)]+j}, v{O[('a',rt)]+j}, v{x}")
            for j in range(4): a(f"v_mul_f32 v{O[('b',rt)]+j}, v{O[('b',rt)]+j}, v{x+1}")
            a(f"v_cndmask_b32 v{x}, v{x+1}, v{x}, vcc")
            pack(O[("a", rt)], OM[rt]); pack(O[("b", rt)], OM[rt] + 2)
            for j in (2, 3): a(f"v_mul_f32 v{x+j}, v{x+j}, v{x}")
            a(f"v_cvt_pk_bf16_f32 v{OX[rt]}, v{x+2}, v{x+3}")
    else:
        late(3)
        for rt in range(2): pack(acc2(1, rt), QB[("b", rt)])
        a(f"s_cmp_eq_u32 s{sI}, 0"); a(f"s_cbranch_scc0 L_hdone_{P}")
        a(f"s_cmp_eq_u32 s{sRT}, 0"); a(f"s_cbranch_scc0 L_hwait_{P}")
        for d in HL: a(f"v_mov_b32 v{d}, 0"); a(f"v_mov_b32 v{d+1}, 0")
        for j in range(4): a(f"v_mov_b32 v{BP0+j}, 0x{f2u(-1e30):x}")
        a(f"s_branch L_hok_{P}")
        a.label(f"L_hwait_{P}")
        def htest():
            a(f"v_max3_u32 v228, v{HL[0]}, v{HL[0]+1}, v{HL[1]}")
            a(f"v_max3_u32 v228, v228, v{HL[1]+1}, v{HL[2]}")
            a(f"v_max3_u32 v228, v228, v{HL[2]+1}, v{HL[3]}")
            a(f"v_max3_u32 v228, v228, v{HL[3]+1}, v{HL[4]}")
            a(f"v_max3_u32 v228, v228, v{HL[4]+1}, v{HL[5]}")
            a(f"v_max3_u32 v228, v228, v{HL[5]+1}, v{HL[6]}")
            a(f"v_max_u32 v228, v228, v{HL[6]+1}")
            a(f"v_cmp_eq_u32 vcc, -1, v228")
            a(f"s_cbranch_vccz L_hok_{P}")
        a.wait(vm="~h0halo", keep=True)
        htest()
        spin_begin(f"L_hsp_{P}")
        if OPT["stamps"]: a(f"v_writelane_b32 v{vST}, s{sHV}, 43")
        halo_loads("~x"); a("s_waitcnt vmcnt(0)"); htest()
        spin_check(f"L_hsp_{P}", f"L_hok_{P}", True)
        a.label(f"L_hdone_{P}")
        def qmask(rt):
            for h, hh in (("a", hA), ("b", hB)):
                set_mask("vcc", gm(hh))
                for j in range(2): a(f"v_cndmask_b32 v{QB[(h,rt)]+2+j}, v127, v{EQ[rt]+j}, vcc")
        if c == 0: qmask(0); qmask(1)
        a.wait(lg="all")
        if c == 1 or not OPT["esk"]:
            a("s_barrier")
            stamp("E2")
        if c == 1: tq = [a(f"ds_read_b64 {vr(EQ[rt],2)}, v{vEQo} offset:{EQX + rt*512}") for rt in range(2)]
        units = [(h, rt) for rt in (0, 1) for h in "ab"]
        S = {u: 176 + 8 * k for k, u in enumerate(units)}
        PB = {u: 208 + 4 * k for k, u in enumerate(units)}
        Om = dict(zip(units, (16, 28, 40, 128)))
        SV = {u: 228 + 2 * k for k, u in enumerate(units)}
        MX = {u: 236 + k for k, u in enumerate(units)}
        def smf(u):
            h, rt = u
            mfma(S[u], KA[(h, rt - 1)], QB[u], BP0 if rt == 0 else BP)
            mfma(S[u] + 4, KA[(h, rt)], QB[u], BO)
        if c == 1:
            a.wait(lg=tq[0]); qmask(0); smf(units[0]); smf(units[1])
            a.wait(lg=tq[1]); qmask(1); smf(units[2]); smf(units[3])
        else:
            for u in units: smf(u)
            if OPT["esk"]:
                a("s_barrier")
                stamp("E2")
        late(99 if OPT["prel_at"] == 5 else 2, True)
        if OPT["prel_at"] == 5: opreload()
        for u in units:
            s_, v = S[u], SV[u]
            a(f"v_max3_f32 v{v}, v{s_}, v{s_+1}, v{s_+4}"); a(f"v_max3_f32 v{v+1}, v{s_+2}, v{s_+3}, v{s_+6}")
            a(f"v_max_f32 v{v}, v{v}, v{s_+5}"); a(f"v_max_f32 v{v+1}, v{v+1}, v{s_+7}")
            a(f"v_max_f32 v{MX[u]}, v{v}, v{v+1}")
        m0_, m1_, m2_, m3_ = [MX[u] for u in units]
        a(f"v_permlane32_swap_b32 v{m0_}, v{m1_}"); a(f"v_permlane32_swap_b32 v{m2_}, v{m3_}")
        a(f"v_max_f32 v{m0_}, v{m0_}, v{m1_}"); a(f"v_max_f32 v{m2_}, v{m2_}, v{m3_}")
        a(f"v_permlane16_swap_b32 v{m0_}, v{m2_}")
        a(f"v_max_f32 v{m0_}, v{m0_}, v{m2_}")
        cs = LOG2E * 20 ** -0.5
        a(f"v_mul_f32 v{m0_}, 0x{f2u(-cs):x}, v{m0_}")
        a(f"v_mov_b32 v{m2_}, v{m0_}")
        a(f"v_permlane16_swap_b32 v{m0_}, v{m2_}")
        a(f"v_mov_b32 v{m1_}, v{m0_}"); a(f"v_mov_b32 v{m3_}, v{m2_}")
        a(f"v_permlane32_swap_b32 v{m0_}, v{m1_}"); a(f"v_permlane32_swap_b32 v{m2_}, v{m3_}")
        late(99, True)
        V = {"a": Va, "b": Vb}
        for u in units:
            for j in range(2): a(f"v_fmamk_f32 v{SV[u]+j}, v{SV[u]+j}, 0x{f2u(cs):x}, v{MX[u]}")
        for u in units:
            for j in range(2): a(f"v_exp_f32 v{SV[u]+j}, v{SV[u]+j}")
        for u in units:
            h, rt = u; v = SV[u]
            for j in range(2): a(f"v_cvt_pk_bf16_f32 v{v+j}, v{v+j}, v{v+j}")
            for k in range(4): a(f"v_and_b32 v{PB[u]+k}, v{v+(k&1)}, v{MK+k}")
            mfma(Om[u] + 8, ONES, PB[u], "0")
            mfma(Om[u], V[h] + 2 * rt, PB[u], "0")
            mfma(Om[u] + 4, Ev + 2 * rt, PB[u], "0")
        OM = [176, 180]; OX = [184, 186]
        set_mask("vcc", gm(hA))
        for rt in (c, oc):
            ua, ub = ("a", rt), ("b", rt)
            for u in (ua, ub): a(f"v_rcp_f32 v{Om[u]+8}, v{Om[u]+8}")
            for j in range(4): a(f"v_cndmask_b32 v{Om[ua]+4+j}, v{Om[ub]+4+j}, v{Om[ua]+4+j}, vcc")
            for u in (ua, ub):
                for j in range(4): a(f"v_mul_f32 v{Om[u]+j}, v{Om[u]+j}, v{Om[u]+8}")
            a(f"v_cndmask_b32 v{Om[ua]+8}, v{Om[ub]+8}, v{Om[ua]+8}, vcc")
            pack(Om[ua], OM[rt]); pack(Om[ub], OM[rt] + 2)
            for j in range(4): a(f"v_mul_f32 v{Om[ua]+4+j}, v{Om[ua]+4+j}, v{Om[ua]+8}")
            pack(Om[ua] + 4, OX[rt])
    a(f"s_mul_i32 s3, s{sHG}, {2*OP_}"); a(f"s_add_u32 s3, s3, s{sOB}"); a(f"s_add_u32 s3, s3, {c*OP_}")
    a(f"s_add_u32 s4, s3, {OT}")
    a(f"s_lshr_b32 s5, s{sHG}, 1"); a(f"s_mul_i32 s5, s5, {4*OP_}"); a(f"s_and_b32 s6, s{sHG}, 1"); a(f"s_lshl_b32 s6, s6, 3")
    a(f"s_add_u32 s5, s5, s6"); a(f"s_add_u32 s5, s5, s{sOB}")
    a(f"s_add_u32 s6, s5, {OT}")
    a(f"v_lshrrev_b32 v{vXE}, 4, v{vL}"); a(f"v_mul_u32_u24 v{vXE}, {OP_ - 256}, v{vXE}"); a(f"v_add_u32 v{vXE}, v{vXE}, v{vL16}")
    a(f"v_mov_b32 v{vT}, s{sN}")
    a(f"s_cmp_eq_u32 s{sFAST}, 1"); a(f"s_cbranch_scc1 L_fast_{P}")
    for fl, end in ((" sc1", f"s_branch L_pubd_{P}"), ((" " + OPT["ofl"]) if OPT["ofl"] != "none" else "", None)):
        if not end: a.label(f"L_fast_{P}")
        a(f"buffer_store_dwordx4 {vr(OM[0],4)}, v{vL16}, {sr(OS,4)}, s3 offen{fl}")
        a(f"buffer_store_dwordx4 {vr(OM[1],4)}, v{vL16}, {sr(OS,4)}, s4 offen{fl}")
        if A_:
            a(f"buffer_store_dword v{OX[0]}, v{vXE}, {sr(OS,4)}, s5 offen offset:{1024 + 4*c}{fl}")
            a(f"buffer_store_dword v{OX[1]}, v{vXE}, {sr(OS,4)}, s6 offen offset:{1024 + 4*c}{fl}")
        else:
            a(f"s_mov_b32 exec_{'hi' if c == 0 else 'lo'}, 0")
            a(f"buffer_store_dwordx2 {vr(OX[0],2)}, v{vXE}, {sr(OS,4)}, s5 offen offset:1024{fl}")
            a(f"buffer_store_dwordx2 {vr(OX[1],2)}, v{vXE}, {sr(OS,4)}, s6 offen offset:1024{fl}")
        if end: a(end)
    a.label(f"L_pubd_{P}")
    a("s_mov_b64 exec, -1")
    stamp("ostore")
    phase2_setup(A_, c)
    if OPT["e3e"]:
        assert not late_wo
        a("s_waitcnt vmcnt(4) lgkmcnt(0)")
    else:
        a(f"s_cmp_eq_u32 s{sFAST}, 1")
        a("s_mov_b64 exec, 1")
        a("s_waitcnt vmcnt(0) lgkmcnt(0)")
        a(f"s_cbranch_scc1 L_fast2_{P}")
        a(f"buffer_store_dword v{vT}, off, {sr(SS,4)}, s{sFP} sc1")
        a(f"s_branch L_pubd2_{P}")
        a.label(f"L_fast2_{P}")
        a(f"buffer_store_dword v{vT}, off, {sr(SS,4)}, s{sFP}")
        a.label(f"L_pubd2_{P}")
        a("s_mov_b64 exec, -1")
        if late_wo:
            late(99, 2)
            phase2_setup2()
            a("s_waitcnt vmcnt(0)")
    a.vm = ["flag"]
    stamp("oack")
    a("s_branch L_phase2")

vM0, vE0, vPA, vPD, vSA = 1, 2, 3, 0, 5
RA = [8, 9, 11]; GA_ = [12, 13, 95]
vRW, vRR = 4, 7
RX = 43008
RX = 0
OST2 = 40960
def phase2_setup(A_, c):
    a(f"s_mul_i32 s7, s{sKH}, 51200"); a(f"s_add_u32 s7, s7, {WO_BASE}")
    half = "s7"
    a(f"v_and_b32 v{vPD}, 3, v{vL}")
    a(f"v_lshrrev_b32 v{vM0}, 2, v{vL}"); a(f"v_mul_u32_u24 v{vM0}, 160, v{vM0}")
    a(f"v_lshl_add_u32 v{vM0}, v{vPD}, 3, v{vM0}"); a(f"v_add_u32 v{vM0}, {half}, v{vM0}")
    if A_:
        a(f"v_bfe_u32 v{vE0}, v{vL}, 3, 1"); a(f"v_mul_u32_u24 v{vE0}, 40, v{vE0}")
        a(f"v_lshrrev_b32 v{vPA}, 5, v{vL}"); a(f"v_mad_u32_u24 v{vE0}, v{vPA}, 20, v{vE0}")
        a(f"v_bfe_u32 v{vPA}, v{vL}, 4, 1"); a(f"v_lshl_add_u32 v{vE0}, v{vPA}, 1, v{vE0}")
        a(f"v_bfe_u32 v{vPA}, v{vL}, 2, 1"); a(f"v_add_u32 v{vE0}, v{vE0}, v{vPA}")
    else:
        a(f"v_lshrrev_b32 v{vE0}, 4, v{vL}"); a(f"v_mul_u32_u24 v{vE0}, 20, v{vE0}")
        a(f"v_bfe_u32 v{vPA}, v{vL}, 2, 2"); a(f"v_add_u32 v{vE0}, v{vE0}, v{vPA}")
    a(f"v_mul_u32_u24 v{vE0}, 160, v{vE0}")
    a(f"v_lshl_add_u32 v{vE0}, v{vPD}, 3, v{vE0}"); a(f"v_add_u32 v{vE0}, {half}, v{vE0}")
    a(f"v_lshlrev_b32 v{vPA}, 2, v{vL}")
    a(f"s_mul_i32 s7, s{sWV}, 5120"); a(f"v_add_u32 v{vRR}, s7, v{vXA0}")
    a(f"s_xor_b32 s7, s{sWV}, 1"); a(f"s_mul_i32 s7, s7, 5120"); a(f"v_add_u32 v{vRW}, s7, v{vXA0}")

def phase2_setup2():
    a(f"s_mul_i32 s7, s{sWV}, 2560"); a(f"s_add_u32 s7, s7, {OST2}")
    for j in range(3):
        a(f"v_add_u32 v{RA[j]}, {64*j}, v{vL}")
        a(f"v_mul_u32_u24 v{GA_[j]}, 6554, v{RA[j]}"); a(f"v_lshrrev_b32 v{GA_[j]}, 16, v{GA_[j]}")
        a(f"v_mul_u32_u24 v{vSA}, 2400, v{GA_[j]}")
        a(f"v_lshlrev_b32 v{RA[j]}, 4, v{RA[j]}")
        a(f"v_add_u32 v{GA_[j]}, v{vSA}, v{RA[j]}")
        a(f"v_add_u32 v{RA[j]}, s7, v{RA[j]}")
    a(f"v_and_b32 v{vSA}, 15, v{vL}"); a(f"v_mul_u32_u24 v{vSA}, 160, v{vSA}")
    a(f"v_lshrrev_b32 v16, 4, v{vL}"); a(f"v_lshlrev_b32 v16, 3, v16"); a(f"v_add3_u32 v{vSA}, v{vSA}, v16, s7")

def phase2():
    padlabel("L_phase2", False)
    a.vm = ["flag"]; a.lg = []
    vL16 = vXA0
    PP = OPT["prepoll"]
    if not PP:
        a("s_barrier")
        stamp("E3")
    OF = 176; ACC = 16
    def of(k, rt): return OF + (k * 2 + rt) * 4
    bufs = ([56 + 4 * k for k in range(9)] + [96 + 4 * k for k in range(20)])[:OPT["npre"]]
    NB = len(bufs)
    def reads(n):
        k, t = divmod(n, 5); w = bufs[n % NB]; tg = []
        for h in range(2):
            if k < 8: row = 40 * k + 20 * h; base = vM0
            else: row = 80 * (2 * (k - 8) + h) + 16; base = vE0
            tg.append(a(f"ds_read_b64_tr_b16 {vr(w+2*h,2)}, v{base} offset:{row * 160 + 32 * t}"))
        return tg
    def oload(j):
        k, rt = divmod(j, 2)
        if k < 8:
            if k % 2 == 0: a(f"s_add_u32 s{3+rt}, s{sOC}, {rt*OT + k*OP_}")
            a(f"buffer_load_dwordx4 {vr(of(k,rt),4)}, v{vL16}, {sr(OS,4)}, s{3+rt} offen offset:{(k%2)*OP_} sc1", f"o{k}")
        else:
            a(f"s_add_u32 s{3+rt}, s{sOE}, {rt*OT + (k-8)*4*OP_}")
            a(f"buffer_load_dwordx4 {vr(of(k,rt),4)}, v{vXE}, {sr(OS,4)}, s{3+rt} offen offset:1024 sc1", f"o{k}")
    NP = OPT["npoll"]; per = NB // NP
    batches = [list(range(k * per, (k + 1) * per if k < NP - 1 else NB)) for k in range(NP)]
    tags = {}
    def poll_issue():
        a("s_mov_b64 exec, 0xff"); a(f"buffer_load_dword v{vPD}, v{vPA}, {sr(SS,4)}, s{sFC} offen sc1"); a("s_mov_b64 exec, -1")
    def poll_check(lbl):
        a("s_waitcnt vmcnt(0)")
        a(f"v_cmp_ne_u32 vcc, s{sN}, v{vPD}"); a("s_and_b32 vcc_lo, vcc_lo, 0xff"); a(f"s_cbranch_scc0 {lbl}" if not OPT["hackpoll"] else f"s_branch {lbl}")
    lgs = []
    if OPT["e3e"]:
        n0 = OPT["e3n"]
        rest = list(range(n0, NB)); per = len(rest) // NP
        batches[:] = [rest[k * per:(k + 1) * per if k < NP - 1 else len(rest)] for k in range(NP)]
        if OPT["pb"]:
            sz = [int(x) for x in str(OPT["pb"]).split(".")]; assert len(sz) == NP - 1
            cut = [0]
            for z in sz: cut.append(cut[-1] + z)
            cut.append(len(rest))
            batches[:] = [rest[cut[k]:cut[k + 1]] for k in range(NP)]
        for n in range(n0): tags[n] = reads(n)
        if OPT["su2"]: phase2_setup2()
        a(f"v_mov_b32 v94, s{sN}")
        a(f"s_cmp_eq_u32 s{sFAST}, 1")
        a("s_mov_b64 exec, 1")
        a("s_waitcnt vmcnt(0)")
        a("s_cbranch_scc1 L_fl1")
        a(f"buffer_store_dword v94, off, {sr(SS,4)}, s{sFP} sc1"); a("s_branch L_fl2")
        a.label("L_fl1"); a(f"buffer_store_dword v94, off, {sr(SS,4)}, s{sFP}"); a.label("L_fl2")
        a("s_mov_b64 exec, -1")
    if PP:
        poll_issue()
        if not OPT['woaft']: phase2_setup2()
        for r_ in range(PP - 1):
            poll_check("L_gopre"); poll_issue()
        poll_check("L_gopre")
        a("s_barrier")
        stamp("E3")
    for k in range(NP):
        poll_issue()
        for n in batches[k]: tags[n] = reads(n)
        if k == 0 and not OPT['woaft'] and not PP and not OPT["su2"]: phase2_setup2()
        lgs.append(list(a.lg))
        poll_check(f"L_go{k}")
    spin_begin("L_poll")
    poll_issue(); poll_check(f"L_go{NP-1}")
    spin_check("L_poll", "L_pollx")
    XL = OPT["oburst"] + NP - 1
    full = list(a.lg)
    XL += 1 if PP else 0
    for k in range(NP - 1, -2 if PP else -1, -1):
        padlabel(f"L_go{k}" if k >= 0 else "L_gopre", k == NP - 1)
        a.vm = []; a.lg = list(lgs[k]) if k >= 0 else []
        stamp("polled")
        nxt = 0
        for _ in range(OPT["oburst"]): oload(nxt); nxt += 1
        if k < 0:
            a("s_barrier")
            stamp("E3")
        for j in range(k + 1, NP):
            for n in batches[j]: reads(n)
            oload(nxt); nxt += 1
        while nxt < XL: oload(nxt); nxt += 1
        if k > (-1 if PP else 0): a("s_branch L_conv")
    padlabel("L_conv", True)
    a.lg = full[-12:]
    a("s_waitcnt lgkmcnt(12)")
    rd = NB
    NLOOP = 45 if OPT["lastk"] else 50
    for n in range(NLOOP):
        k, t = divmod(n, 5)
        p3 = parse_pr(OPT["pr3"])
        if (n % 10) in p3:
            a(f"s_bitcmp1_b32 s{sWV}, 2"); a(f"s_cbranch_scc0 L_np{n}"); a(f"s_setprio {p3[n % 10]}"); a.label(f"L_np{n}")
        a.wait(vm=f"o{k}" if t == 0 else None, lg=tags[n])
        if n == 0: stamp("ofirst")
        if n == 45 and AL:
            a(f"v_mov_b32 v{vPD}, s{sN}"); a("s_mov_b64 exec, 1")
            a(f"s_cmp_eq_u32 s{sFAST}, 1"); a("s_cbranch_scc1 L_df1")
            a(f"buffer_store_dword v{vPD}, off, {sr(SS,4)}, s{sDFP} sc1"); a("s_branch L_df2")
            a.label("L_df1"); a(f"buffer_store_dword v{vPD}, off, {sr(SS,4)}, s{sDFP}"); a.label("L_df2")
            a("s_mov_b64 exec, -1")
        for rt in ((1, 0) if (OPT["snake"] and t % 2) else (0, 1)):
            d = ACC + (rt * 5 + t) * 4
            mfma(d, bufs[n % NB], of(k, rt), d if k else "0")
        if t in (0, 2) and nxt < 20: oload(nxt); nxt += 1
        if OPT["wb"] >= 3 and n == OPT["wbn"]:
            a(f"s_xor_b32 s3, s{sWV}, {OPT['wbw']}")
            if OPT["wb"] == 3: a(f"s_or_b32 s3, s3, s{sHG}")
            else: a(f"s_and_b32 s4, s{sHG}, 3"); a("s_or_b32 s3, s3, s4")
            a(f"s_cmp_eq_u32 s3, 0"); a(f"s_cselect_b32 s3, s{sFAST}, 0"); a("s_cmp_eq_u32 s3, 1")
            a("s_cbranch_scc0 L_nowb")
            a("buffer_wbl2 sc1", "~wb")
            a.label("L_nowb")
        if t == 1 and nxt == 20 and OPT["wb"] in (1, 2):
            nxt = 21
            if OPT["wb"] == 1: a(f"s_or_b32 s3, s{sWV}, s{sHG}")
            else: a(f"s_mov_b32 s3, s{sWV}")
            a(f"s_cmp_eq_u32 s3, 0"); a(f"s_cselect_b32 s3, s{sFAST}, 0"); a("s_cmp_eq_u32 s3, 1")
            a("s_cbranch_scc0 L_nowb")
            a("buffer_wbl2 sc1", "~wb")
            a.label("L_nowb")
        if rd < 50: tags[rd] = reads(rd); rd += 1
    if not OPT["lastk"]: stamp("g2end")
    assert not (AL and OPT["lastk"])
    if AL: a("s_mov_b64 exec, 0xffff"); a(f"buffer_load_dword v{vPD}, v{vPA}, {sr(SS,4)}, s{sDFC} offen sc1"); a("s_mov_b64 exec, -1")
    else: a("s_nop 2")
    a(f"s_xor_b32 s7, s{sWV}, 1"); a(f"s_mul_i32 s7, s7, 2560"); a(f"s_add_u32 s7, s7, {OST2}")
    a(f"v_mov_b32 v92, s7"); a(f"s_mul_i32 s7, s{sWV}, 2560"); a(f"s_add_u32 s7, s7, {OST2}"); a(f"v_mov_b32 v93, s7")
    if OPT["lastk"]: a.wait(vm="o9", lg="all")
    a(f"s_cmp_eq_u32 s{sKH}, 0"); a("s_cbranch_scc0 L_red1")
    for c in range(2):
        if c == 1: padlabel("L_red1", False)
        a.lg = []
        give = ACC + (1 - c) * 20; keep = ACC + c * 20
        if OPT["lastk"]:
            for t in range(5): mfma(give + 4 * t, bufs[(45 + t) % NB], of(9, 1 - c), give + 4 * t)
            for t in range(5):
                mfma(keep + 4 * t, bufs[(45 + t) % NB], of(9, c), keep + 4 * t)
                if t >= 2: a(f"ds_write_b128 v{vRW}, {vr(give+4*(t-2),4)} offset:{RX + (t-2)*1024}")
            for t in (3, 4): a(f"ds_write_b128 v{vRW}, {vr(give+4*t,4)} offset:{RX + t*1024}")
            stamp("g2end")
        else:
            for t in range(5): a(f"ds_write_b128 v{vRW}, {vr(give+4*t,4)} offset:{RX + t*1024}")
        a.wait(lg="all")
        a(f"v_mov_b32 v94, s{sN}"); a("ds_write_b32 v92, v94")
        spin_begin(f"L_pw{c}")
        a("ds_read_b32 v91, v93"); a("s_waitcnt lgkmcnt(0)")
        a(f"v_cmp_eq_u32 vcc, s{sN}, v91"); a(f"s_cbranch_vccnz L_pwok{c}")
        spin_check(f"L_pw{c}", f"L_pwok{c}")
        a.lg = []
        tg = [a(f"ds_read_b128 {vr(56+4*t,4)}, v{vRR} offset:{RX + t*1024}") for t in range(5)]
        for t in range(5):
            a.wait(lg=tg[t])
            for j in range(4): a(f"v_add_f32 v{56+4*t+j}, v{56+4*t+j}, v{keep+4*t+j}")
            pack(56 + 4 * t, 80 + 2 * t)
            a(f"ds_write_b64 v{vSA}, {vr(80+2*t,2)} offset:{32*t}")
        if c == 0: a("s_branch L_red2")
    padlabel("L_red2", True)
    a.wait(lg="all")
    tg = []
    for j in range(3):
        if j == 2: a("s_mov_b32 exec_hi, 0")
        tg.append(a(f"ds_read_b128 {vr(96+4*j,4)}, v{RA[j]}"))
    a("s_mov_b64 exec, -1")
    def dfcheck():
        a("s_waitcnt vmcnt(0)")
        a(f"v_cmp_ne_u32 vcc, s{sN}, v{vPD}"); a("s_and_b32 vcc_lo, vcc_lo, 0xffff"); a("s_cbranch_scc0 L_dfok")
    if AL:
        dfcheck()
        spin_begin("L_dfs")
        a("s_mov_b64 exec, 0xffff"); a(f"buffer_load_dword v{vPD}, v{vPA}, {sr(SS,4)}, s{sDFC} offen sc1"); a("s_mov_b64 exec, -1")
        dfcheck()
        spin_check("L_dfs", "L_dfok")
    fl = OPT["outflag"].replace("+", " "); fl = "" if fl == "none" else " " + fl
    for j in range(3):
        a.wait(lg=tg[j])
        if j == 2: a("s_mov_b32 exec_hi, 0")
        a(f"buffer_store_dwordx4 {vr(96+4*j,4)}, v{GA_[j]}, {sr(SD,4)}, s{sOUT} offen{fl}")
    if OPT["wbe"]:
        a(f"s_xor_b32 s3, s{sWV}, {OPT['wbw']}"); a(f"s_and_b32 s4, s{sHG}, {OPT['wbe']-1 if OPT['wbe'] > 1 else 7}"); a("s_or_b32 s3, s3, s4")
        a("s_cmp_eq_u32 s3, 0"); a("s_cbranch_scc0 L_nowbe")
        a("s_waitcnt vmcnt(0)"); a("buffer_wbl2 sc1")
        a.label("L_nowbe")
    if OPT["stamps"]:
        a("s_mov_b64 exec, -1")
        a("s_waitcnt vmcnt(0)")
        stamp("end")
        a(f"s_memrealtime s[100:101]"); a("s_waitcnt lgkmcnt(0)"); a(f"v_writelane_b32 v{vST}, s100, 41")
        a(f"v_writelane_b32 v{vST}, s{sFAST}, 42")
        a(f"s_lshl_b32 s3, s2, 3"); a(f"s_add_u32 s3, s3, s{sWV}"); a("s_lshl_b32 s3, s3, 8"); a(f"s_add_u32 s3, s3, {WS_STAMP}")
        a(f"v_lshlrev_b32 v0, 2, v{vL}")
        a(f"buffer_store_dword v{vST}, v0, {sr(SS,4)}, s3 offen")
    a.label("L_end")
    a("s_endpgm")

prologue()
sv0 = list(a.vm)
for b, c in ((0, 0), (0, 1), (1, 0), (1, 1)):
    if (b, c) == (1, 0): phase2()
    a.vm = list(sv0); a.lg = []
    path(b, c)
a.label("L_codeend")
a.raw(f""".section .rodata,"a"
.p2align 6
.amdhsa_kernel {KNAME}
  .amdhsa_next_free_vgpr 256
  .amdhsa_next_free_sgpr 102
  .amdhsa_accum_offset 256
  .amdhsa_group_segment_fixed_size 0
  .amdhsa_kernarg_size 72
  .amdhsa_user_sgpr_count 2
  .amdhsa_user_sgpr_kernarg_segment_ptr 1
  .amdhsa_system_sgpr_workgroup_id_x 1
.end_amdhsa_kernel""")
open(sys.argv[1], "w").write(a.text())
print("nops inserted:", a.nops_inserted, "lines:", len(a.lines), file=sys.stderr)
```

```python
import sys, os, struct
from collections import deque
from asmlib import Asm, vr, sr

KNAME = "concat_heads__linear_attn_block__sliding_local_dilated__prompt_kernel"
OPT = dict(fred=2, grot=0, cptail=0, ipar=0, ipe=144, ip0=64, cpos=0, warm=0, p1all=0, p1mid=0, cpl=1, pb="", su2=0, gk="", front=0, front2=0, ahead=0, ordB="", axf=5, p1late=1, tlb=-2, opr=1, e3e=1, e3n=6, oxb=1, oxt=2, oxpos=0, oxf=4, aot=-2, awn=5, snake=0, prepoll=0, eoff=0, axt=-1, awt=-2, xw=-1, xq=-1, ecpar=-1, rv=0, dmap="", ord="q", ordoff=1, lean2=1, lean=1, lastk=0, rot2=0, hal_at=3, fewb=1, woA="2:0,4:1", esk=0, rts=0, woaft=0, gearly=54, tbal=1, exact=1, hackwo=0, hackgat=0, hackphi=0, hackpoll=0, sched="", tcm="", pr1="", pr2="", pr3="", prep=-1, hackport=0, hackdma=0, tcs=0, tc="", tcw=3, tc0=0, tcpos=0, alias=0, wbe=0, worot=0, wbn=49, wbw=4, tqonly=0, st0=-1, stn=6, stq=1, stp=1, srate=3, prel1=-1, ofl="nt", npoll=2, pre1=10, gspread=1, LA=2, p1n=1, win="", ea=0, eb=-1, ec=3, ecg=0, pst=-1, rev0=0, wodef=3, wnt=0, wont=0, pnt=0, xrot=1, prest=0, xnt=0, t0=0, wosched=0, G=10, stamps=0, L=4, Lb=2, L2=8, Lb2=4, force_slow=0, wb=0, codepf=4, outflag="nt", gat_at=3, pro=2, tq=-1,
           oburst=8, npre=27, rdy_at=4, prel_at=1, stampset="all")
for x in sys.argv[2:]:
    k, v = x.split("="); OPT[k] = int(v) if v.lstrip("-").isdigit() else v

def f2u(x): return struct.unpack("<I", struct.pack("<f", x))[0]

SLOT = 36864; UNIT = 10240
SC = 20480
EE_A = SC; RED = SC + 8192; OPS = 40960; EQX = SC + 28672; EXB = SC; OST = SC
BCAST = 147456 + 64
WO_BASE = 6 * UNIT
WQ_UNIT = [8, 10, 12, 0, 14]
CST = 148480
EE_A2 = 154624
OPX = 0
WS_KV = 0x600000; WS_HALO = 0x700000; WS_FLAG = 0x800000; WS_RDY = 0x810000; WS_E = 0x820000; WS_STAMP = 0x900000
WS_SIZE = 0x10000000
SPIN_MAX = 200000
EPS = f2u(1e-6)
LOG2E = 1.4426950408889634

SX, SW, SO, SD, SS, SG = 16, 20, 24, 28, 32, 36
sB, sRT, sHG, sWV, sI, sC, sXCC, sN, sFAST = 40, 41, 42, 43, 44, 45, 46, 47, 48
sXO, sWK = 50, 60
sW1K, sX2K = 70, 71
sT0, sT1, sT2, sT3 = 72, 73, 74, 75
sOB, sKVP, sKVG, sHP, sHG2, sFP, sFC = 76, 77, 78, 79, 49, 9, 8
sM = 80
sHV = 87; sTI = 86; sSPIN = 92; sCUR = 93; sDUTY = 90
sK = 94; sTM = 96; sOC = 98; sOUT = 99; sOE = 91; sKH = 85; sDFP = 84; sDFC = 83; sFPL = 82
vXD0, vXD1, vWD = 1, 2, 3
vXA0, vXA1, vWA, vWE, vL = 6, 7, 8, 9, 10
vT = 11; vST = 15
vWO = 90; vPRE = 93; vGAD = 94; vXE = 14
ACC1 = 16; WF = 56; XB = 96
def X(ks, rt): return XB + (ks * 2 + rt) * 4

a = Asm()
if OPT["exact"]:
    a.ghost_cond = {"w0": [f"s_cmp_eq_u32 s{sWV}, 0"], "i3": [f"s_cmp_eq_u32 s{sI}, 3"], "h0": [f"s_cmp_lg_u32 s{sHV}, 0"]}
AL = OPT['alias']
OS = SD if AL else SS
OP_ = 2560 if AL else 1280
OT = 16 * OP_
STAMPS = ["start", "issued", "b0", "b1", "b2", "b3", "b4", "b5", "b6", "b7", "b8", "b9", "p1end", "E1", "pub1", "p1", "p2", "p3", "p4", "p2end", "E2", "ostore", "oack", "E3", "polled", "ofirst", "g2end", "end", "first"]
FEW = {"first", "b0", "b1", "b2", "b4", "b6", "p1end", "pub1", "p2end", "ostore", "ofirst", "g2end", "end"}
def stamp(name):
    if not OPT["stamps"]: return
    if OPT["stampset"] == "few" and name not in FEW: return
    if OPT["stampset"] == "end" and name not in ("end",): return
    a(f"s_memtime {sr(sTM,2)}")
    RT = {"b0": 44, "b1": 45, "b6": 46, "p1end": 47, "pub1": 48, "p2end": 49, "ostore": 50, "ofirst": 51, "g2end": 52}
    if name in RT and OPT["rts"]: a("s_memrealtime s[100:101]")
    a("s_waitcnt lgkmcnt(0)"); a.lg = []
    a(f"v_writelane_b32 v{vST}, s{sTM}, {STAMPS.index(name)}")
    if name in RT and OPT["rts"]: a(f"v_writelane_b32 v{vST}, s100, {RT[name]}")

def srd(d, lo, hi, size):
    a(f"s_mov_b32 s{d}, s{lo}"); a(f"s_mov_b32 s{d+1}, s{hi}")
    a(f"s_mov_b32 s{d+2}, {size}"); a(f"s_mov_b32 s{d+3}, 0x20000")
def mask_ins(s, val):
    if s == "vcc": return [f"s_mov_b32 vcc_lo, 0x{val & 0xffffffff:x}", f"s_mov_b32 vcc_hi, 0x{val >> 32:x}"]
    return [f"s_mov_b32 s{s}, 0x{val & 0xffffffff:x}", f"s_mov_b32 s{s+1}, 0x{val >> 32:x}"]
def set_mask(s, val):
    for i in mask_ins(s, val): a(i)
def lanemask(f):
    m = 0
    for l in range(64):
        if f(l): m |= 1 << l
    return m

V0OK = [True]
def wvoff_ins(dst, q, pitch, swap, second):
    if q == 0: r = [f"v_and_b32 v{vT}, 0x1ff, v0" if V0OK[0] else f"v_lshl_add_u32 v{vT}, s{sWV}, 6, v{vL}"]
    elif q == 2: r = [f"s_lshl_b32 s{sT0}, s{sWV}, 6", f"s_add_u32 s{sT0}, s{sT0}, 384", f"s_mov_b32 s{sT1}, {second}", f"v_add_u32 v{vT}, s{sT0}, v{vL}"]
    else: r = [f"s_add_u32 s{sT0}, s{sWV}, {8*q}", f"s_cmp_ge_u32 s{sT0}, 10", f"s_cselect_b32 s{sT1}, {second}, 0", f"s_cselect_b32 s{sT2}, 10, 0",
         f"s_sub_u32 s{sT0}, s{sT0}, s{sT2}", f"s_lshl_b32 s{sT0}, s{sT0}, 6", f"v_add_u32 v{vT}, s{sT0}, v{vL}"]
    r += [ f"v_mul_u32_u24 v{vT+1}, 6554, v{vT}", f"v_lshrrev_b32 v{vT+1}, 16, v{vT+1}",
         f"v_mul_u32_u24 v{vT+2}, 10, v{vT+1}", f"v_sub_u32 v{vT}, v{vT}, v{vT+2}"]
    if swap:
        r += [f"v_lshrrev_b32 v{vT+2}, 1, v{vT+1}", f"v_xor_b32 v{vT+2}, v{vT+2}, v{vT+1}", f"v_and_b32 v{vT+2}, 4, v{vT+2}",
              f"v_mul_u32_u24 v{vT+2}, 3, v{vT+2}", f"v_xor_b32 v{vT+1}, v{vT+1}, v{vT+2}"]
    r += [f"v_mul_u32_u24 v{vT+1}, {pitch}, v{vT+1}", f"v_lshlrev_b32 v{vT}, 4, v{vT}", f"v_add3_u32 v{dst}, v{vT}, v{vT+1}, s{sT1}" if q else f"v_add_u32 v{dst}, v{vT}, v{vT+1}"]
    return r
def wvoff(*args):
    for i in wvoff_ins(*args): a(i)

XF = " nt" if OPT["xnt"] else ""
WFL = " nt" if OPT["wnt"] else ""
WOFL = " nt" if OPT["wont"] else ""
def dma_chunk(c, step):
    base = (step % 4) * SLOT
    ops = [([f"s_add_u32 m0, s{sX2K}, {base}"], f"buffer_load_dwordx4 v{vXD0}, {sr(SX,4)}, s{sXO+step} offen{XF} lds"),
           ([f"s_add_u32 m0, s{sX2K}, {base + 1024}"], f"buffer_load_dwordx4 v{vXD1}, {sr(SX,4)}, s{sXO+step} offen{XF} lds")]
    for q in range(3 if c == 0 else 2):
        if OPT["hackdma"] and q >= 1 and step >= 2: continue
        ops.append(([f"s_add_u32 m0, s{sW1K}, {base + 16384 + q*8192}"], f"buffer_load_dwordx4 v{vWD+q}, {sr(SW,4)}, s{sWK+step} offen{WFL} lds"))
    return ops
def dma_wq(c, u):
    base = WQ_UNIT[u] * UNIT
    ops = []
    for q in range(3 if c == 0 else 2):
        pre = []
        if q == 0: pre.append(f"s_sub_u32 s{sT3}, s{sWK+2*u}, 1280")
        elif q == 2 or c == 1: pre.append(f"s_sub_u32 s{sT3}, s{sWK+2*u+1}, 1280")
        else: pre += [f"s_cmp_lt_u32 s{sWV}, 2", f"s_cselect_b32 s{sT3}, s{sWK+2*u}, s{sWK+2*u+1}", f"s_sub_u32 s{sT3}, s{sT3}, 1280"]
        pre.append(f"s_add_u32 m0, s{sW1K}, {base + q*8192}")
        ops.append((pre, f"buffer_load_dwordx4 v{vWD+q}, {sr(SW,4)}, s{sT3} offen{WFL} lds"))
    return ops
sWOR = 86
def dma_wo(c, u):
    base = WO_BASE + u * 2 * UNIT
    ops = []
    if OPT["hackwo"]: return ops
    if u < OPT["worot"]:
        for q in range(3 if c == 0 else 2):
            pre = [f"s_lshl_b32 s{sT3}, s{sWOR+u}, 3", f"s_add_u32 s{sT3}, s{sT3}, s{sCUR}", f"s_add_u32 s{sT2}, s{sW1K}, s{sWOR+u}", f"s_add_u32 m0, s{sT2}, {WO_BASE + q*8192}"]
            ops.append((pre, f"buffer_load_dwordx4 v{vWO+q}, {sr(SO,4)}, s{sT3} offen{WOFL} lds"))
        return ops
    for q in range(3 if c == 0 else 2):
        pre = [f"s_add_u32 s{sT3}, s{sCUR}, {u*128*1280}", f"s_add_u32 m0, s{sW1K}, {base + q*8192}"]
        ops.append((pre, f"buffer_load_dwordx4 v{vWO+q}, {sr(SO,4)}, s{sT3} offen{WOFL} lds"))
    return ops
def emit_op(op, tag):
    if callable(op): return op()
    for p in op[0]: a(p)
    a(op[1], tag)

def padlabel(name, fall):
    if OPT["warm"]:
        if fall: a(f"s_branch {name}")
        a.label(f"W{name}")
        a("s_setpc_b64 s[6:7]")
    a.label(name)
WN = [0]
def warm_call(name):
    WN[0] += 1
    a("s_getpc_b64 s[4:5]"); a.label(f"L_wc{WN[0]}")
    a(f"s_add_u32 s4, s4, W{name}-L_wc{WN[0]}"); a("s_addc_u32 s5, s5, 0")
    a("s_swappc_b64 s[6:7], s[4:5]")

def spin_begin(name):
    a(f"s_mov_b32 s{sSPIN}, 0"); a.label(name)
def spin_check(name, done, pad=False):
    a.vm = [t for t in a.vm if t != "~x"]
    a(f"s_add_u32 s{sSPIN}, s{sSPIN}, 1"); a(f"s_cmp_lt_u32 s{sSPIN}, {SPIN_MAX}"); a(f"s_cbranch_scc1 {name}")
    padlabel(done, True) if pad else a.label(done)

def phi_ins(src, n, dst_list, tmp):
    r = []
    if OPT["hackphi"]:
        for d in dst_list:
            for i in range(0, n, 2): r.append(f"v_cvt_pk_bf16_f32 v{d+i//2}, v{src+i}, v{src+i+1}")
        return r
    for i in range(n): r.append(f"v_mul_f32 v{tmp+i}, s{sK}, v{src+i}")
    for i in range(n):
        r.append(f"v_exp_f32_e64 v{tmp+i}, v{tmp+i} clamp")
        r.append(f"v_max_f32 v{src+i}, s{sK+1}, v{src+i}")
    for i in range(n): r.append(f"v_add_f32 v{src+i}, v{src+i}, v{tmp+i}")
    for d in dst_list:
        for i in range(0, n, 2): r.append(f"v_cvt_pk_bf16_f32 v{d+i//2}, v{src+i}, v{src+i+1}")
    return r
def phi_pack(*args):
    for i in phi_ins(*args): a(i)
def pack_ins(src, dst):
    return [f"v_cvt_pk_bf16_f32 v{dst}, v{src}, v{src+1}", f"v_cvt_pk_bf16_f32 v{dst+1}, v{src+2}, v{src+3}"]
def pack(src, dst):
    for i in pack_ins(src, dst): a(i)
def mfma(d, A, B, C):
    c = C if isinstance(C, str) else vr(C, 4)
    a(f"v_mfma_f32_16x16x32_bf16 {vr(d,4)}, {vr(A,4)}, {vr(B,4)}, {c}")

def emit_side(x):
    if callable(x): x(); return 4
    if isinstance(x, list):
        for y in x: a(y)
        return max(1, sum(1 for y in x if y.startswith("v_")))
    a(x); return 1

def parse_pr(x):
    return {int(e.split(':')[0]): int(e.split(':')[1]) for e in str(x).split(',') if e}

def pipeline(N, reads, mf, bounds, boundary, L, Lb, bufs, newbufs={}, side={}, side_rate=3, prio=None, front=0):
    rd = 0; m = 0; tags = {}; bufof = {}; pend = []; every = 1; cnt = 0
    free = deque(bufs); bl = sorted(bounds); sq = deque()
    while m < N:
        can_read = rd < N and rd - m < L + 1 and len(free) > 0
        if can_read and rd in bounds and rd - m > Lb: can_read = False
        if can_read:
            if rd in bounds:
                for op in pend: emit_op(op[0], op[1])
                pend = list(boundary(bounds[rd]))
                nxt = [x for x in bl if x > rd]
                span = (nxt[0] if nxt else N) - rd
                every = max(1, (span - 1) // max(1, len(pend))); cnt = 0
                if front == 1: every = 1
                if front == 2:
                    for op in pend: emit_op(op[0], op[1])
                    pend = []
            bufof[rd] = free.popleft()
            tags[rd] = reads(rd, bufof[rd]); rd += 1
        else:
            if prio and (m % prio[0]) in prio[1]: a(f"s_setprio {prio[1][m % prio[0]]}")
            a.wait(lg=tags[m])
            cnt += 1; op = None
            if pend and cnt % every == 0:
                op = pend.pop(0)
                if not callable(op[0]):
                    for p in op[0][0]: a(p)
            mf(m, bufof[m])
            free.append(bufof[m])
            for b_ in newbufs.get(m, []): free.append(b_)
            if op is not None:
                if callable(op[0]): op[0]()
                else: a(op[0][1], op[1])
            for x in side.get(m, []): sq.append(x)
            k = 0
            while sq and k < side_rate:
                k += emit_side(sq.popleft())
            m += 1
    for op in pend: emit_op(op[0], op[1])
    while sq: emit_side(sq.popleft())

def step_offsets_win(s):
    sizes = [int(x) for x in str(OPT["win"]).split(",")]
    w0 = 0
    for sz in sizes:
        if s < w0 + sz: break
        w0 += sz
    if sz == 1:
        a(f"s_add_u32 s{sWK+s}, s5, {s*245760}"); a(f"s_add_u32 s{sXO+s}, s4, {s*128}")
        return
    a(f"s_add_u32 s{sT3}, s{sCUR}, {s - w0}"); a(f"s_and_b32 s{sT3}, s{sT3}, {sz-1}"); a(f"s_add_u32 s{sT3}, s{sT3}, {w0}")
    a(f"s_mul_i32 s{sWK+s}, s{sT3}, 245760"); a(f"s_add_u32 s{sWK+s}, s{sWK+s}, s5")
    a(f"s_lshl_b32 s{sXO+s}, s{sT3}, 7"); a(f"s_add_u32 s{sXO+s}, s{sXO+s}, s4")

def touch_steps(c, s0, n, par, tag):
    a(f"s_lshr_b32 s3, s2, 3"); a(f"s_and_b32 s6, s3, 1"); a(f"s_cmp_eq_u32 s6, {par}"); a(f"s_cbranch_scc0 L_nt_{tag}")
    a(f"s_lshr_b32 s3, s3, 1")
    a(f"s_and_b32 s6, s2, 3")
    if c == 1:
        a(f"s_cmp_eq_u32 s{sWV}, 4"); a(f"s_cbranch_scc0 L_tw_{tag}")
    if n < 5 and c == 1: a(f"s_branch L_nt_{tag}")
    else:
        a(f"s_lshl_b32 s6, s6, 4"); a(f"s_add_u32 s6, s6, s3"); a(f"s_mul_i32 s6, s6, {32*1280}")
        a(f"s_lshl_b32 s7, s{sWV}, 7"); a(f"s_add_u32 s6, s6, s7"); a(f"s_add_u32 s6, s6, {s0*128}")
        a(f"v_mul_u32_u24 v86, 1280, v{vL}")
        a("s_mov_b32 exec_hi, 0")
        a(f"buffer_load_dword v87, v86, {sr(SX,4)}, s6 offen nt", "~t")
        a("s_mov_b32 exec_hi, -1")
        if c == 1: a(f"s_branch L_nt_{tag}")
    if c == 1:
        a.label(f"L_tw_{tag}")
        a(f"s_lshl_b32 s6, s6, 4"); a(f"s_add_u32 s6, s6, s3"); a(f"s_mul_i32 s6, s6, 3840"); a(f"s_add_u32 s6, s6, {s0*245760 + 1280}")
        a(f"s_sub_u32 s7, s{sWV}, 5"); a(f"s_mul_i32 s7, s7, 34")
        a(f"v_add_u32 v86, s7, v{vL}"); a(f"v_min_u32 v86, {20*n-1}, v86")
        a(f"v_mul_u32_u24 v87, 3277, v86"); a(f"v_lshrrev_b32 v87, 16, v87")
        a(f"v_mul_u32_u24 v88, 20, v87"); a(f"v_sub_u32 v86, v86, v88"); a(f"v_lshlrev_b32 v86, 7, v86")
        a(f"v_mul_u32_u24 v87, 245760, v87"); a(f"v_add_u32 v86, v86, v87")
        a("s_mov_b32 exec_hi, 3")
        a(f"buffer_load_dword v87, v86, {sr(SW,4)}, s6 offen", "~t")
        a("s_mov_b32 exec_hi, -1")
    a.label(f"L_nt_{tag}")

vTX, vTW, vTD = 79, 89, 95
sTXB, sTWB = 12, 13
def tc_setup(sx, sw):
    a(f"v_lshrrev_b32 v{vTX}, 1, v{vL}"); a(f"v_mul_u32_u24 v{vTX}, 1280, v{vTX}"); a(f"v_and_b32 v{vTW}, 1, v{vL}"); a(f"v_lshl_add_u32 v{vTX}, v{vTW}, 7, v{vTX}")
    a(f"v_mul_u32_u24 v{vTW}, 3277, v{vL}"); a(f"v_lshrrev_b32 v{vTW}, 16, v{vTW}"); a(f"v_mul_u32_u24 v{vTW}, {3840 - 2560}, v{vTW}")
    a(f"v_lshl_add_u32 v{vTW}, v{vL}, 7, v{vTW}")
    a(f"s_lshr_b32 s6, s2, 3"); a(f"s_and_b32 s7, s2, 3"); a("s_lshl_b32 s7, s7, 5"); a("s_add_u32 s7, s7, s6"); a(f"s_mul_i32 s{sx}, s7, 20480")
    a(f"s_mul_i32 s{sw}, s6, 15360"); a(f"s_add_u32 s{sw}, s{sw}, 1280")
def tc_issue(s0, sx, sw, tag="~t"):
    a(f"s_add_u32 s6, s{sx}, {s0*128}"); a(f"s_add_u32 s7, s{sw}, {s0*245760}")
    a("s_mov_b32 exec_hi, 0")
    a(f"buffer_load_dword v{vTD}, v{vTX}, {sr(SX,4)}, s6 offen", tag)
    a("s_mov_b32 exec_hi, 0xff")
    a(f"buffer_load_dword v{vTD}, v{vTW}, {sr(SW,4)}, s7 offen", tag)
    a("s_add_u32 s7, s7, 7680")
    a(f"buffer_load_dword v{vTD}, v{vTW}, {sr(SW,4)}, s7 offen", tag)
    a("s_mov_b32 exec_hi, -1")

TQN = [0]
sAP = 12
CURB = [0]
def touch_ax(c, what):
    a(f"s_lshl_b32 s3, s{sRT}, 3"); a(f"s_add_u32 s3, s3, s{sHG}")
    if what == "o":
        a(f"s_lshl_b32 s3, s3, 3"); a(f"s_add_u32 s3, s3, s{sWV}"); a("s_mul_i32 s3, s3, 2560")
        a(f"v_lshlrev_b32 v86, 7, v{vL}")
        a("s_mov_b64 exec, 0xfffff")
        a(f"buffer_load_dword v95, v86, {sr(SS,4)}, s3 offen")
        a("s_mov_b64 exec, -1")
        return
    if what == "x":
        a(f"s_lshl_b32 s3, s3, 3"); a(f"s_add_u32 s3, s3, s{sWV}"); a("s_mul_i32 s3, s3, 2560")
        if OPT["axf"]:
            n = 10 - OPT["axf"]
            a(f"s_lshr_b32 s6, s{sRT}, 2"); a("s_mul_i32 s6, s6, 5"); a("s_add_u32 s6, s6, 1"); a("s_lshr_b32 s6, s6, 1"); a(f"s_add_u32 s6, s6, {OPT['axf']}")
            a(f"v_cmp_le_u32 vcc, {n}, v{vL}")
            a(f"v_add_u32 v86, s6, v{vL}"); a(f"v_subrev_u32 v87, {n}, v86"); a("v_cndmask_b32 v86, v86, v87, vcc")
            a("v_subrev_u32 v87, 10, v86"); a("v_min_u32 v86, v86, v87")
            a("v_lshlrev_b32 v86, 7, v86"); a("v_add_u32 v87, 1280, v86"); a("v_cndmask_b32 v86, v86, v87, vcc")
        else: a(f"v_lshlrev_b32 v86, 7, v{vL}")
        a("s_mov_b32 s4, s14"); a("s_mov_b32 s5, s15"); a("s_mov_b32 s6, 2621440"); a("s_mov_b32 s7, 0x20000")
        a(f"s_mov_b64 exec, {(1 << (2 * (10 - OPT['axf']))) - 1}")
    else:
        a(f"s_mul_i32 s3, s3, 5"); a(f"s_min_u32 s4, s{sWV}, 4"); a(f"s_add_u32 s3, s3, s4"); a("s_mul_i32 s3, s3, 3840"); a("s_add_u32 s3, s3, 1280")
        a(f"v_lshlrev_b32 v86, 7, v{vL}")
        a(f"s_cmp_lt_u32 s{sWV}, {OPT['awn']}"); a("s_cselect_b32 vcc_lo, 0xfffff, 1")
        a("s_mov_b32 s4, s100"); a("s_mov_b32 s5, s101"); a("s_mov_b32 s6, 2457600"); a("s_mov_b32 s7, 0x20000")
        a("s_mov_b32 exec_lo, vcc_lo"); a("s_mov_b32 exec_hi, 0")
    a(f"buffer_load_dword v95, v86, s[4:7], s3 offen")
    a("s_mov_b64 exec, -1")

def touch_qo(c):
    if OPT["tqonly"] == 1 and c == 1: return
    if OPT["tqonly"] == 2 and c == 0: return
    if OPT["eoff"] and CURB[0] == 0: return
    if OPT["ecpar"] >= 0:
        TQN[0] += 1
        a(f"s_add_u32 s3, s{sRT}, s{sHG}"); a(f"s_bitcmp1_b32 s3, 0"); a(f"s_cbranch_scc{1 - OPT['ecpar']} L_noq{TQN[0]}")
        a(f"s_lshl_b32 s3, s{sRT}, 2"); a(f"s_lshr_b32 s6, s{sHG}, 1"); a("s_add_u32 s3, s3, s6"); a(f"s_mul_i32 s3, s3, 100"); a(f"s_mul_i32 s6, s{sI}, 25"); a("s_add_u32 s3, s3, s6")
    else:
        a(f"s_lshl_b32 s3, s{sRT}, 3"); a(f"s_add_u32 s3, s3, s{sHG}"); a(f"s_mul_i32 s3, s3, 50"); a(f"s_mul_i32 s6, s{sI}, 13"); a("s_add_u32 s3, s3, s6")
    a(f"v_add_u32 v86, s3, v{vL}")
    if c == 0:
        a(f"v_mul_u32_u24 v87, 52429, v86"); a(f"v_lshrrev_b32 v87, 19, v87")
        a(f"v_mul_u32_u24 v88, 10, v87"); a(f"v_sub_u32 v86, v86, v88"); a(f"v_lshlrev_b32 v86, 7, v86")
        a(f"v_mul_u32_u24 v87, 3840, v87"); a(f"v_add_u32 v86, v86, v87")
    else:
        a(f"v_lshlrev_b32 v86, 7, v86")
    a(f"s_mov_b64 exec, {0x1fff if OPT['ecpar'] < 0 else 0x1ffffff}")
    if OPT["ecpar"] >= 0:
        a.ghost_cond["eq"] = [f"s_add_u32 s3, s{sRT}, s{sHG}", "s_and_b32 s3, s3, 1", f"s_cmp_eq_u32 s3, {OPT['ecpar']}"]
    a(f"buffer_load_dword v95, v86, {sr(SW if c == 0 else SO,4)}, 0 offen", "~eq" if OPT["ecpar"] >= 0 else None)
    if OPT["eoff"]:
        a(f"s_mov_b32 s4, s{sAP}"); a(f"s_mov_b32 s5, s{sAP+1}"); a(f"s_mov_b32 s6, {2457600 if c == 0 else 819200}"); a("s_mov_b32 s7, 0x20000")
        a(f"buffer_load_dword v95, v86, s[4:7], 0 offen")
    a("s_mov_b64 exec, -1")
    if OPT["ecpar"] >= 0: a.label(f"L_noq{TQN[0]}")

def prestore(c):
    a(f"s_lshl_b32 s3, s{sHG}, 11"); a(f"s_add_u32 s3, s3, s{sOB}"); a(f"s_add_u32 s3, s3, {c*1024}"); a("s_add_u32 s4, s3, 20480")
    a(f"s_lshl_b32 s5, s{sHG}, 9"); a(f"s_add_u32 s5, s5, s{sOB}"); a(f"s_add_u32 s5, s5, {16384 + c*256}"); a("s_add_u32 s6, s5, 20480")
    a(f"v_lshlrev_b32 v79, 4, v{vL}")
    a(f"buffer_store_dwordx4 v[80:83], v79, {sr(SS,4)}, s3 offen sc1")
    a(f"buffer_store_dwordx4 v[80:83], v79, {sr(SS,4)}, s4 offen sc1")
    a("s_mov_b64 exec, 0xffff")
    a(f"buffer_store_dwordx4 v[80:83], v79, {sr(SS,4)}, s5 offen sc1")
    a(f"buffer_store_dwordx4 v[80:83], v79, {sr(SS,4)}, s6 offen sc1")
    a("s_mov_b64 exec, -1")

ORDS = {
 "a": ["0213645789", "0142358679", "1302475689", "1053246978"],
 "b": ["0412385679", "1253049678", "2306145789", "3012745689"],
 "c": ["0123456789"] * 4,
 "d": ["0246135789", "0357124689", "1024683579", "1035792468"],
 "g": ["0213465789", "0132457689", "1024356879", "1023546798"],
 "h": ["0216345789", "0142835679", "1307245689", "1052934678"],
 "i": ["0213645789", "0142358679", "1302475689", "1053249678"],
 "j": ["0214365879", "0132547698", "1302456789", "1023456789"],
 "k": ["0321645789", "0145238679", "1203475689", "1054326978"],
 "l": ["0261345789", "0148235679", "1370245689", "1059234678"],
 "m": ["0316425789", "1047235689", "2150834679", "0125934678"],
 "n": ["0246135789", "0135724689", "1380245679", "1029345678"],
 "o": ["0213645789", "0142835679", "1302745689", "1053294678"],
 "p": ["0246135789", "0158234679", "1370245689", "1029345678"],
 "q": ["0245136789", "0136782459", "1302456789", "1023945678"],
 "r": ["0247135689", "0135824679", "1369024578", "1023456789"],
 "s": ["0241635789", "0135274689", "1308245679", "1023945678"],
 "t": ["0357124689", "1046235789", "2180345679", "0129345678"],
 "u": ["0234561789", "0167823459", "1023945678", "1023456789"],
 "v": ["0241356789", "0126834579", "1350246789", "1037924568"],
 "w": ["0241356789", "0126348579", "1350246789", "1037294568"],
 "x": ["0241635789", "0126345789".replace("6345", "7345").replace("789", "689"), "1350824679", "1032945678"],
 "y": ["0241356789", "0162834579", "1350246789", "1073924568"],
 "z": ["0124356789", "0135624789", "1046235789", "1057234689"],
 "A": ["0123465789", "1230547689", "2301456879", "3012456798"],
 "B": ["0142356789", "1203564789", "2310457689", "3021845679"],
 "C": ["0124563789", "1035742689", "2016834579", "0129345678"],
 "D": ["0213457689", "0132645879", "1302456798", "1023546789"],
 "E": ["0245136789", "0134678259", "1302456789", "1023459678"],
 "F": ["0214536789", "0136782459", "1302456789", "1023945678"],
 "e": ["0231645789", "0145238679", "1320475689", "1054326978"],
}
sORD = 84
assert OPT["lean2"] or not OPT["ord"], "ord keeps the XCD offset in s83, which lean2=0 loads a pointer into"
def step_offsets_ord(s):
    tabs = ORDS[OPT["ord"]]
    tabsB = ORDS[OPT["ordB"]] if OPT["ordB"] else tabs
    for t in tabs + tabsB: assert sorted(t) == list("0123456789")
    for t, u in zip(tabs, tabsB): assert t[0] == u[0]
    if s == 0:
        a(f"s_add_u32 s{sCUR}, s3, s{sHG}"); a(f"s_and_b32 s{sCUR}, s{sCUR}, 3")
        f0 = sum(int(t[0]) << (4 * k) for k, t in enumerate(tabs))
        a(f"s_lshl_b32 s{sT1}, s{sCUR}, 2"); a(f"s_lshr_b32 s{sT3}, 0x{f0:x}, s{sT1}"); a(f"s_and_b32 s{sT3}, s{sT3}, 15")
        if OPT["ordoff"]:
            a(f"s_and_b32 s83, s2, 3"); a("s_mul_i32 s83, s83, 5"); a("s_add_u32 s83, s83, 1"); a("s_lshr_b32 s83, s83, 1")
    else:
        if s == 1:
            pk = [sum(int(ch) << (4 * k) for k, ch in enumerate(t[1:9])) for t in tabs]
            p9 = sum(int(t[9]) << (4 * k) for k, t in enumerate(tabs))
            if tabsB is tabs:
                a(f"s_mov_b32 s{sORD}, 0x{pk[0]:x}")
                for k in (1, 2, 3): a(f"s_cmp_eq_u32 s{sCUR}, {k}"); a(f"s_cselect_b32 s{sORD}, 0x{pk[k]:x}, s{sORD}")
                a(f"s_lshl_b32 s{sT1}, s{sCUR}, 2"); a(f"s_lshr_b32 s{sORD+1}, 0x{p9:x}, s{sT1}"); a(f"s_and_b32 s{sORD+1}, s{sORD+1}, 15")
            else:
                pk += [sum(int(ch) << (4 * k) for k, ch in enumerate(t[1:9])) for t in tabsB]
                p9 |= sum(int(t[9]) << (16 + 4 * k) for k, t in enumerate(tabsB))
                a(f"s_lshl_b32 s{sT2}, s{sB}, 2"); a(f"s_add_u32 s{sT2}, s{sT2}, s{sCUR}")
                a(f"s_mov_b32 s{sORD}, 0x{pk[0]:x}")
                for k in range(1, 8): a(f"s_cmp_eq_u32 s{sT2}, {k}"); a(f"s_cselect_b32 s{sORD}, 0x{pk[k]:x}, s{sORD}")
                a(f"s_lshl_b32 s{sT1}, s{sT2}, 2"); a(f"s_lshr_b32 s{sORD+1}, 0x{p9:x}, s{sT1}"); a(f"s_and_b32 s{sORD+1}, s{sORD+1}, 15")
        if s < 9: a(f"s_bfe_u32 s{sT3}, s{sORD}, 0x{(4 << 16) | (4 * (s - 1)):x}")
        else: a(f"s_mov_b32 s{sT3}, s{sORD+1}")
    if OPT["ordoff"]:
        a(f"s_add_u32 s{sT3}, s{sT3}, s83"); a(f"s_cmp_ge_u32 s{sT3}, 10"); a(f"s_cselect_b32 s{sT1}, 10, 0"); a(f"s_sub_u32 s{sT3}, s{sT3}, s{sT1}")
    a(f"s_mul_i32 s{sWK+s}, s{sT3}, 245760"); a(f"s_add_u32 s{sWK+s}, s{sWK+s}, s5")
    a(f"s_lshl_b32 s{sXO+s}, s{sT3}, 7"); a(f"s_add_u32 s{sXO+s}, s{sXO+s}, s4")

def step_offsets(s):
    if OPT["ord"]: return step_offsets_ord(s)
    if OPT["win"]: return step_offsets_win(s)
    G = OPT["G"]; w0 = (s // G) * G
    if w0: a(f"s_add_u32 s{sT3}, s{sCUR}, {w0}"); src = sT3
    else: src = sCUR
    a(f"s_mul_i32 s{sWK+s}, s{src}, 245760"); a(f"s_add_u32 s{sWK+s}, s{sWK+s}, s5")
    a(f"s_lshl_b32 s{sXO+s}, s{src}, 7"); a(f"s_add_u32 s{sXO+s}, s{sXO+s}, s4")
    if G > 1 and s < 9:
        a(f"s_add_u32 s{sCUR}, s{sCUR}, 1"); a(f"s_cmp_eq_u32 s{sCUR}, {G}"); a(f"s_cselect_b32 s{sCUR}, 0, s{sCUR}")

sTCX, sTCW = 88, 89
def tc_start():
    f0 = OPT["tcpos"]
    a(f"s_cmp_lt_u32 s{sWV}, {OPT['tc0']}"); a("s_cbranch_scc0 L_notc0")
    a(f"s_mul_i32 s6, s{sWV}, 256"); a(f"s_add_u32 s{sT0}, s{sTCX}, s6"); a(f"s_mul_i32 s6, s{sWV}, {2*245760}"); a(f"s_add_u32 s{sT1}, s{sTCW}, s6")
    tc_issue(OPT["tcs"], sT0, sT1)
    a.label("L_notc0")

SCHED = {}
for ent in str(OPT["sched"]).split(","):
    if ent:
        p_, ks = ent.split(":"); SCHED[int(p_)] = [int(x) for x in ks.split(".")]
for p_, ks in SCHED.items():
    for k in ks: assert k - p_ <= 3 and k - p_ >= 1

def tlb_warm():
    a(f"v_lshlrev_b32 v88, 20, v{vL}")
    a("s_mov_b64 exec, 0x1f")
    a(f"buffer_load_dword v95, v88, {sr(SD,4)}, 0 offen")
    a("s_mov_b64 exec, 0x1ff")
    a(f"buffer_load_dword v95, v88, {sr(SS,4)}, 0 offen")
    a("s_mov_b64 exec, 1")
    a(f"buffer_load_dword v95, v88, {sr(SO,4)}, 0 offen")
    a("s_mov_b64 exec, -1")

def own_x_touch():
    if OPT["oxb"]: a(f"s_cmp_eq_u32 s{sB}, 0"); a("s_cbranch_scc1 L_noox")
    a(f"s_and_b32 s3, s2, 3"); a("s_lshl_b32 s3, s3, 5"); a("s_lshr_b32 s6, s2, 3"); a("s_add_u32 s3, s3, s6")
    a(f"s_lshl_b32 s3, s3, 3"); a(f"s_add_u32 s3, s3, s{sWV}"); a("s_mul_i32 s3, s3, 2560")
    if OPT["oxt"] == 1:
        a(f"v_lshlrev_b32 v88, 7, v{vL}"); a("s_mov_b64 exec, 0xfffff")
    else:
        n = 10 - OPT["oxf"]
        a(f"v_cmp_le_u32 vcc, {n}, v{vL}"); a(f"s_add_u32 s6, s83, {OPT['oxf']}")
        a(f"v_add_u32 v88, s6, v{vL}"); a(f"v_subrev_u32 v87, {n}, v88"); a("v_cndmask_b32 v88, v88, v87, vcc")
        a("v_subrev_u32 v87, 10, v88"); a("v_min_u32 v88, v88, v87")
        a("v_lshlrev_b32 v88, 7, v88"); a("v_add_u32 v87, 1280, v88"); a("v_cndmask_b32 v88, v88, v87, vcc")
        a(f"s_mov_b64 exec, {(1 << (2 * n)) - 1}")
    a(f"buffer_load_dword v95, v88, {sr(SX,4)}, s3 offen", "~oxB" if OPT["oxb"] else None)
    a("s_mov_b64 exec, -1")
    if OPT["oxb"]: a.label("L_noox")

HEADER = """
Fused linear-attention (A) + sliding-window attention (B) block, one persistent launch, one workgroup per CU.
kernarg: A_x, A_wqkv, A_wo, B_x, B_wqkv, B_wo, d_out, d_debug, d_ws (8 B each).
workgroup id -> branch b = bit 2, row tile rt (128 rows) = (id&3)*4 + ((id>>3)&3), head group hg (4 heads) = id>>5.
 pass 1 : K,V = x*Wk,Wv (x, W staged by LDS-DMA, W read with ds_read_b64_tr_b16, x fragments stay in VGPRs)
          A: phi(k)^T v and sum phi(k) per tile -> bf16 partials in d_ws ; B: last 16 rows of k,v -> d_ws (halo)
 pass 2 : Q = x*Wq while that exchange is under way ; A: sum the 16 partials (MFMA), o = num/den ; B: windowed softmax by MFMA
 phase 2: o handed over through d_ws inside the 8 workgroups of a row tile, out = o*Wo (K split over wave pairs)
hand-offs: per-launch nonce (published in d_debug[0]) tags all flags; partial/halo buffers are pre-filled with a
sentinel each launch and guarded by per-workgroup ready words; plain stores are used for o only when the ready
words show the whole group on one XCD, otherwise write-through (sc1).  Generated by a script written for this kernel.
"""

def prologue():
    a.raw(f"; @launch grid=(256,1,1) block=(512,1,1) lds=163840")
    for l in HEADER.strip("\n").split("\n"): a.raw(("; " + l).rstrip())
    a.raw('.amdgcn_target "amdgcn-amd-amdhsa--gfx950"')
    a.raw(".text"); a.raw(f".globl {KNAME}"); a.raw(".p2align 8"); a.raw(f".type {KNAME},@function")
    a.label(KNAME)
    assert OPT["ord"] and OPT["ordoff"] and OPT["lean2"]
    tabs = ORDS[OPT["ord"]]
    offs = [0, 3, 5, 8]
    assert tabs[0][0] == tabs[1][0] and tabs[2][0] == tabs[3][0]
    k0 = sum(((int(tabs[2 * t][0]) + offs[q]) % 10) << (4 * (2 * q + t)) for q in range(4) for t in range(2))
    def cpf():
        a("s_getpc_b64 s[6:7]")
        a.label(f"L_pc")
        a(f"s_lshr_b32 s{sT0}, s2, 3"); a(f"s_lshl3_add_u32 s{sT0}, s{sT0}, s{sWV}"); a(f"s_lshl_b32 s{sT0}, s{sT0}, 7")
        if OPT["cptail"]:
            a(f"s_cmp_lt_u32 s2, 8"); a(f"s_cselect_b32 s{sT1}, 0, s{sB}")
            a(f"s_mul_i32 s{sT1}, s{sT1}, L_phase2-L_path_00"); a(f"s_add_u32 s{sT0}, s{sT0}, s{sT1}")
            a(f"s_min_u32 s{sT0}, s{sT0}, L_codeend-L_path_00+1020"); a(f"s_add_u32 s{sT0}, s{sT0}, L_path_00-1024-L_pc")
        else:
            a(f"s_mul_i32 s{sT1}, s{sB}, L_phase2-L_path_00"); a(f"s_add_u32 s{sT0}, s{sT0}, s{sT1}")
            a(f"s_min_u32 s{sT0}, s{sT0}, L_codeend-L_path_00-4"); a(f"s_add_u32 s{sT0}, s{sT0}, L_path_00-L_pc")
        a(f"s_add_u32 s6, s6, s{sT0}"); a("s_addc_u32 s7, s7, 0")
        a("v_mov_b32 v86, s6"); a("v_mov_b32 v87, s7")
        a("s_mov_b64 exec, 1"); a(f"global_load_dword v95, v[86:87], off"); a("s_mov_b64 exec, -1")
    a("s_cmp_ge_u32 s2, 256")
    a("s_cbranch_scc1 L_end")
    a(f"s_bitcmp1_b32 s2, 2"); a("s_cselect_b32 s76, 24, 0")
    a(f"s_load_dwordx2 s[{SX}:{SX+1}], s[0:1], s76")
    a(f"s_load_dwordx2 s[{SW}:{SW+1}], s[0:1], s76 offset:8")
    a(f"v_lshrrev_b32 v{vT}, 6, v0")
    a(f"v_lshrrev_b32 v{vT+1}, 4, v0")
    a(f"v_readfirstlane_b32 s{sWV}, v{vT}")
    if OPT["stamps"]:
        a(f"v_mov_b32 v{vST}, 0"); a(f"s_memtime {sr(sTM,2)}"); a("s_memrealtime s[100:101]")
    if OPT["ipar"]:
        a("s_mov_b64 exec, 0")
        for w_ in range(1, 8): a(f"s_cmp_eq_u32 s{sWV}, {w_}"); a(f"s_cbranch_scc1 L_ip{w_}")
        a.label("L_ires")
        a("s_mov_b64 exec, -1")
        a.padding = dict(acc=OPT["ipe"] - OPT["ip0"], every=OPT["ipe"], n=0, max=7)
    if OPT["cpos"] == 0:
        a(f"s_lshr_b32 s{sB}, s76, 4"); cpf()
    a(f"v_xor_b32 v{vT+1}, v{vT+1}, v0"); a(f"v_and_b32 v{vT+1}, 7, v{vT+1}")
    a(f"v_bfe_u32 v{vT}, v0, 3, 3"); a(f"v_mul_u32_u24 v{vT}, 1280, v{vT}")
    a(f"s_lshr_b32 s3, s2, 3"); a(f"s_lshr_b32 s{sHG}, s2, 5"); a(f"s_add_u32 s{sCUR}, s3, s{sHG}")
    a(f"s_and_b32 s83, s2, 3"); a(f"s_and_b32 s3, s3, 3"); a(f"s_lshl2_add_u32 s{sRT}, s83, s3")
    a(f"s_lshl3_add_u32 s4, s{sRT}, s{sWV}"); a("s_mul_i32 s4, s4, 20480")
    a(f"s_and_b32 s{sT3}, s{sCUR}, 2"); a(f"s_lshl2_add_u32 s{sT3}, s83, s{sT3}"); a(f"s_lshl_b32 s{sT3}, s{sT3}, 1")
    a(f"s_lshr_b32 s{sT3}, 0x{k0:x}, s{sT3}"); a(f"s_and_b32 s{sT3}, s{sT3}, 15")
    a(f"s_lshl_b32 s{sXO}, s{sT3}, 7"); a(f"s_add_u32 s{sXO}, s{sXO}, s4")
    a(f"s_mov_b32 s{SX+2}, 2621440"); a(f"s_mov_b32 s{SX+3}, 0x20000")
    a(f"s_lshl_b32 s{sX2K}, s{sWV}, 11"); a(f"s_mov_b32 m0, s{sX2K}")
    a(f"v_lshl_add_u32 v{vXD0}, v{vT+1}, 4, v{vT}")
    a(f"v_and_b32 v{vT}, 64, v0"); a(f"v_xor_b32 v{vXD0}, v{vXD0}, v{vT}")
    a("s_waitcnt lgkmcnt(0)")
    if OPT["stamps"]:
        a(f"v_writelane_b32 v{vST}, s{sTM}, 0"); stamp("first")
    ops = dma_chunk(0, 0)
    a(ops[0][1], "ch0")
    a(f"v_xor_b32 v{vXD1}, 64, v{vXD0}"); a(f"s_add_u32 m0, s{sX2K}, 1024"); a(f"v_add_u32 v{vXD1}, 10240, v{vXD1}")
    a(ops[1][1], "ch0")
    if OPT["cpos"] == 1:
        a(f"s_lshr_b32 s{sB}, s76, 4"); cpf()
    a(f"s_mov_b32 s{SW+2}, 2457600"); a(f"s_mov_b32 s{SW+3}, s{SX+3}")
    a(f"s_mul_i32 s5, s{sHG}, 160"); a(f"s_add_u32 s5, s5, 1280")
    a(f"s_mul_i32 s{sWK}, s{sT3}, 245760"); a(f"s_add_u32 s{sWK}, s{sWK}, s5")
    a(f"s_lshl_b32 s{sW1K}, s{sWV}, 10")
    wvoff(vWD, 0, 3840, True, 1280)
    emit_op(ops[2], "ch0")
    if OPT["cpos"] == 2:
        a(f"s_lshr_b32 s{sB}, s76, 4"); cpf()
    a(f"s_load_dwordx2 s[8:9], s[0:1], s76 offset:16"); a("s_load_dwordx4 s[12:15], s[0:1], 48"); a("s_load_dwordx2 s[10:11], s[0:1], 64")
    a(f"v_and_b32 v{vL}, 63, v0")
    a(f"s_lshr_b32 s{sC}, s{sWV}, 2"); a(f"s_and_b32 s{sCUR}, s{sCUR}, 3")
    a("s_mul_i32 s83, s83, 5"); a("s_add_u32 s83, s83, 1"); a("s_lshr_b32 s83, s83, 1")
    wvoff(vWD + 1, 1, 3840, True, 1280)
    emit_op(ops[3], "ch0")
    wvoff(vWD + 2, 2, 3840, True, 1280)
    a(f"s_cmp_eq_u32 s{sC}, 0"); a("s_cbranch_scc0 L_no5")
    emit_op(ops[4], "~c0")
    a.label("L_no5")
    if OPT["oxt"] and OPT["oxpos"] == 0: own_x_touch()
    if OPT["stamps"]:
        a(f"v_writelane_b32 v{vST}, s100, 40")
    if OPT["lean2"]: a("s_waitcnt lgkmcnt(0)")
    srd(SS, 10, 11, WS_SIZE); srd(SG, 14, 15, 256)
    a(f"s_and_b32 s{sI}, s{sWV}, 3")
    a(f"s_or_b32 s3, s2, s{sWV}"); a("s_cmp_eq_u32 s3, 0"); a(f"s_cbranch_scc0 L_nn0")
    a(f"s_add_u32 s6, s10, {WS_E}"); a("s_addc_u32 s7, s11, 0")
    a(f"s_load_dword s{sN}, s[6:7], 0")
    a.label("L_nn0")
    if OPT["tbal"]: a(f"s_mul_i32 s7, s{sC}, 3"); a(f"s_xor_b32 s{sTI}, s{sI}, s7")
    else: a(f"s_mov_b32 s{sTI}, s{sI}")
    a(f"s_lshl_b32 s6, s{sHG}, 16"); a(f"s_lshl_b32 s7, s{sTI}, 9"); a(f"s_add_u32 s6, s6, s7")
    a(f"s_lshl_b32 s7, s{sC}, 11"); a("s_add_u32 s6, s6, s7")
    a(f"s_add_u32 s{sKVG}, s6, {WS_KV}")
    a(f"s_lshl_b32 s7, s{sRT}, 12"); a(f"s_add_u32 s{sKVP}, s{sKVG}, s7")
    a(f"s_lshl_b32 s6, s{sRT}, 3"); a(f"s_add_u32 s6, s6, s{sHG}"); a(f"s_mul_i32 s6, s6, 6144")
    a(f"s_mul_i32 s7, s{sC}, 3072"); a(f"s_add_u32 s{sHP}, s6, s7"); a(f"s_add_u32 s{sHP}, s{sHP}, {WS_HALO}")
    a(f"s_add_u32 s{sHG2}, s6, {WS_HALO - 8*6144}")
    a(f"v_mov_b32 v76, -1"); a(f"v_mov_b32 v77, -1"); a(f"v_lshlrev_b32 v78, 3, v{vL}")
    a(f"s_cmp_eq_u32 s{sB}, 0"); a(f"s_cbranch_scc0 L_preB")
    a(f"buffer_store_dwordx2 v[76:77], v78, {sr(SS,4)}, s{sKVP} offen sc1", "~preA")
    a(f"s_branch L_pred")
    a.label(f"L_preB")
    a(f"s_cmp_eq_u32 s{sI}, 3"); a(f"s_cbranch_scc0 L_pred")
    for k in range(5): a(f"buffer_store_dwordx2 v[76:77], v78, {sr(SS,4)}, s{sHP} offen offset:{k*512} sc1", "~preB")
    a.label(f"L_pred")
    step_offsets(1)
    if OPT["p1all"]:
        OPT["p1n"] = 5
        o1 = dma_chunk(0, 1)
        for op in o1[:4]: emit_op(op, "ch1")
        a(f"s_cmp_eq_u32 s{sC}, 0"); a("s_cbranch_scc0 L_no15")
        emit_op(o1[4], "~c1")
        a.label("L_no15")
    else:
        for op in dma_chunk(0, 1)[:OPT["p1n"]]: emit_op(op, "ch1")
    if OPT["oxt"] and OPT["oxpos"] == 1: own_x_touch()
    stamp("issued")
    a(f"s_lshl_b32 s3, s{sB}, 1"); a(f"s_add_u32 s3, s3, s{sC}")
    if OPT["ipar"]:
        assert a.padding["n"] == 7, a.padding
        a.padding = None
    a("s_cmp_eq_u32 s3, 1"); a("s_cbranch_scc1 L_path_01")
    a("s_cmp_eq_u32 s3, 2"); a("s_cbranch_scc1 L_path_10")
    a("s_cmp_eq_u32 s3, 3"); a("s_cbranch_scc1 L_path_11")

def prologue2(b, c):
    P = f"{b}{c}"
    if OPT["p1mid"]:
        for op in dma_chunk(c, 1)[OPT["p1n"]:]: emit_op(op, "ch1")
    if OPT["ea"]: touch_steps(c, 1, 5, 0, f"ea{P}")
    for s in range(2, 10): step_offsets(s)
    srd(SO, 8, 9, 819200); srd(SD, 12, 13, 5242880)
    CURB[0] = b
    if OPT["tlb"] == -1 and c == 1:
        a(f"s_cmp_eq_u32 s{sWV}, 7"); a(f"s_cbranch_scc0 L_notlb_{P}")
        n0 = len(a.vm); tlb_warm(); a.vm = a.vm[:n0] + ["~w7"] * 3
        a.ghost_cond["w7"] = [f"s_cmp_eq_u32 s{sWV}, 7"]
        a.label(f"L_notlb_{P}")
    if b == 1 and (OPT["eoff"] or OPT["axt"] > -2 or OPT["awt"] > -2):
        a(f"s_load_dwordx2 s[12:13], s[0:1], {8 if c == 0 else 16}"); a("s_load_dwordx2 s[14:15], s[0:1], 0")
        if OPT["awt"] > -2: a("s_load_dwordx2 s[100:101], s[0:1], 8")
        a("s_waitcnt lgkmcnt(0)")
        if OPT["axt"] == -1: touch_ax(c, "x")
        if OPT["awt"] == -1: touch_ax(c, "w")
        if OPT["aot"] == -1: touch_ax(c, "o")
    a(f"s_getreg_b32 s{sXCC}, hwreg(HW_REG_XCC_ID, 0, 3)")
    a(f"s_mul_i32 s{sCUR}, s{sHG}, 160")
    if P == "00":
        a(f"s_or_b32 s3, s2, s{sWV}"); a("s_cmp_eq_u32 s3, 0"); a(f"s_cbranch_scc0 L_nononce")
        a("s_waitcnt lgkmcnt(0)")
        a(f"s_add_u32 s6, s{sN}, 0x9e3779b0"); a("s_or_b32 s6, s6, 8"); a("s_andn2_b32 s6, s6, 7")
        a(f"v_mov_b32 v{vT}, s6"); a(f"v_mov_b32 v{vT+1}, 0"); a(f"s_mov_b32 s3, {WS_E}")
        a("s_mov_b64 exec, 1")
        a(f"buffer_store_dword v{vT}, v{vT+1}, {sr(SG,4)}, 0 offen sc1", "~n")
        a(f"buffer_store_dword v{vT}, v{vT+1}, {sr(SS,4)}, s3 offen sc1", "~n")
        a("s_mov_b64 exec, -1")
        a.label("L_nononce")
    a(f"v_and_b32 v{vT}, 15, v{vL}"); a(f"v_lshrrev_b32 v{vT+1}, 4, v{vL}")
    a(f"v_lshrrev_b32 v{vT+2}, 1, v{vT}"); a(f"v_xor_b32 v{vT+2}, v{vT+2}, v{vT+1}"); a(f"v_lshlrev_b32 v{vT+2}, 4, v{vT+2}")
    a(f"v_lshl_add_u32 v{vT+2}, v{vT}, 7, v{vT+2}")
    a(f"s_lshl_b32 s3, s{sI}, 12")
    a(f"v_add_u32 v{vXA0}, s3, v{vT+2}"); a(f"v_xor_b32 v{vXA1}, 64, v{vXA0}")
    a(f"v_lshrrev_b32 v{vT}, 5, v{vL}"); a(f"v_lshlrev_b32 v{vT}, 4, v{vT}")
    a(f"v_bfe_u32 v{vT+2}, v{vL}, 2, 3"); a(f"v_add_u32 v{vT}, v{vT}, v{vT+2}"); a(f"v_mul_u32_u24 v{vT}, 160, v{vT}")
    a(f"v_and_b32 v{vT+1}, 3, v{vL}")
    a(f"v_lshl_add_u32 v{vWA}, v{vT+1}, 3, v{vT}")
    if c: a(f"v_add_u32 v{vWA}, 80, v{vWA}")
    a(f"v_mad_u32_u24 v{vWE}, v{vT+1}, 40, v{vT}")
    a(f"v_add_u32 v{vWE}, {32 + (UNIT if c else 0)}, v{vWE}")
    a(f"s_lshl_b32 s3, s{sB}, 4"); a(f"s_add_u32 s3, s3, s{sRT}")
    a(f"s_lshl_b32 s4, s{sRT}, 3")
    boff = (1280 if AL else 128 * OT) * b
    a(f"s_lshl_b32 s5, s{sI}, 1"); a(f"s_add_u32 s5, s5, s4"); a(f"s_mul_i32 s{sOB}, s5, {OT}")
    if b: a(f"s_add_u32 s{sOB}, s{sOB}, {boff}")
    a(f"s_and_b32 s{sKH}, s{sWV}, 1")
    a(f"s_add_u32 s5, s4, s{sWV}"); a(f"s_mul_i32 s{sOUT}, s5, 40960")
    if b: a(f"s_add_u32 s{sOUT}, s{sOUT}, 1280")
    a(f"s_sub_u32 s5, s5, s{sKH}"); a(f"s_mul_i32 s{sOC}, s5, {OT}")
    a(f"s_mul_i32 s5, s{sKH}, {8*OP_}"); a(f"s_add_u32 s{sOC}, s{sOC}, s5")
    if b: a(f"s_add_u32 s{sOC}, s{sOC}, {boff}")
    a(f"s_mov_b32 s{sOE}, s{sOC}")
    a(f"s_add_u32 s{sOUT}, s{sOUT}, s{sCUR}")
    a(f"s_lshl_b32 s4, s3, 2")
    a(f"s_add_u32 s5, s4, s{sI}"); a(f"s_lshl_b32 s5, s5, 7"); a(f"s_lshl_b32 s6, s{sHG}, 3"); a(f"s_add_u32 s5, s5, s6")
    a(f"s_add_u32 s{sFP}, s5, {WS_FLAG + 4*c}")
    a(f"s_lshr_b32 s5, s{sWV}, 1"); a(f"s_add_u32 s5, s5, s4"); a(f"s_lshl_b32 s5, s5, 7"); a(f"s_add_u32 s5, s5, {WS_FLAG}")
    a(f"s_add_u32 s{sDFC}, s5, 64")
    a(f"s_lshl_b32 s7, s{sKH}, 2"); a(f"s_add_u32 s{sDFP}, s{sDFC}, s6"); a(f"s_add_u32 s{sDFP}, s{sDFP}, s7")
    a(f"s_lshl_b32 s7, s{sKH}, 5"); a(f"s_add_u32 s{sFC}, s5, s7")
    a(f"s_mov_b32 s{sK}, 0x{f2u(LOG2E):x}"); a(f"s_mov_b32 s{sK+1}, 0x{EPS:x}")
    for i in range(4): a(f"v_mov_b32 v{80+i}, s{sK+1}")
    a("v_mov_b32 v84, 0")
    if OPT["t0"]: touch_qo(c)
    if OPT["worot"]:
        R_ = OPT["worot"]
        a(f"s_and_b32 s3, s{sRT}, 3")
        for u in range(R_):
            a(f"s_add_u32 s4, s3, {u}")
            for _ in range(2): a(f"s_cmp_ge_u32 s4, {R_}"); a(f"s_cselect_b32 s5, {R_}, 0"); a("s_sub_u32 s4, s4, s5")
            a(f"s_mul_i32 s{sWOR+u}, s4, 20480")
    if OPT["dmap"]:
        dm = sum(int(ch) << (4 * k) for k, ch in enumerate(str(OPT["dmap"])[-4:]))
        a(f"s_and_b32 s3, s{sRT}, 3"); a(f"s_add_u32 s3, s3, s{sHG}"); a("s_and_b32 s3, s3, 3"); a("s_lshl_b32 s3, s3, 2")
        a(f"s_lshr_b32 s{sDUTY}, 0x{dm:x}, s3"); a(f"s_and_b32 s{sDUTY}, s{sDUTY}, 15")
    elif OPT["st0"] >= 0:
        a(f"s_lshr_b32 s3, s2, 3"); a(f"s_mul_i32 s4, s3, {(65536 + OPT['stn'] - 1) // OPT['stn']}"); a("s_lshr_b32 s4, s4, 16")
        a(f"s_mul_i32 s4, s4, {OPT['stn']}"); a(f"s_sub_u32 s{sDUTY}, s3, s4")
    if (OPT["tc"] or OPT["tcm"]) and not OPT["tc0"]: tc_setup(sTCX, sTCW)
    for q in range(3 if c == 0 else 2): wvoff(vWO + q, q, 1280, False, 64 * 1280)
    a(f"v_and_b32 v{vT}, 7, v{vL}"); a(f"v_lshlrev_b32 v{vT}, 7, v{vT}")
    a(f"s_mul_i32 s3, s{sHG}, {2*OP_}"); a(f"s_add_u32 s3, s3, {c*OP_}")
    a(f"v_add_u32 v{vT}, s3, v{vT}")
    a(f"v_bfe_u32 v{vT+1}, v{vL}, 3, 1"); a(f"v_mul_u32_u24 v{vT+1}, {OT}, v{vT+1}"); a(f"v_add_u32 v{vT}, v{vT}, v{vT+1}")
    a(f"v_and_b32 v{vT+1}, 1, v{vL}"); a(f"v_lshlrev_b32 v{vT+1}, 7, v{vT+1}")
    a(f"s_add_u32 s3, s3, 1024")
    a(f"v_add_u32 v{vT+1}, s3, v{vT+1}")
    a(f"v_bfe_u32 v{vT+2}, v{vL}, 1, 1"); a(f"v_mul_u32_u24 v{vT+2}, {OT}, v{vT+2}"); a(f"v_add_u32 v{vT+1}, v{vT+1}, v{vT+2}")
    set_mask("vcc", 0xffff)
    a(f"v_cndmask_b32 v{vPRE}, v{vT+1}, v{vT}, vcc")
    Z = 56; T1 = 57; T2_ = 58
    a(f"v_mov_b32 v{Z}, 0")
    if b == 0:
        a(f"v_and_b32 v{vGAD}, 31, v{vL}"); a(f"v_lshlrev_b32 v{vGAD}, 4, v{vGAD}"); a(f"v_lshrrev_b32 v{vT}, 5, v{vL}"); a(f"v_lshl_add_u32 v{vGAD}, v{vT}, 15, v{vGAD}")
        selm = lambda l: ((l >> 3) & 1) == ((l >> 4) & 1)
        a(f"v_mov_b32 v{T1}, 0x3f80"); a(f"v_mov_b32 v{T2_}, 0x3f800000")
        set_mask("vcc", lanemask(lambda l: l & 1)); a(f"v_cndmask_b32 v{T1}, v{T1}, v{T2_}, vcc")
        for r in range(4):
            set_mask("vcc", lanemask(lambda l: selm(l) and ((l & 7) >> 1) == r)); a(f"v_cndmask_b32 v{16+r}, v{Z}, v{T1}, vcc")
        a(f"v_mov_b32 v20, s{sK+1}"); a(f"v_mov_b32 v21, s{sK+1}"); a("v_mov_b32 v22, 0"); a("v_mov_b32 v23, 0")
        a(f"v_and_b32 v24, 15, v{vL}"); a("v_lshlrev_b32 v24, 1, v24"); a(f"v_and_b32 v25, 32, v{vL}"); a("v_add_u32 v24, v24, v25")
        a(f"v_bfe_u32 v25, v{vL}, 4, 1"); a("v_add_u32 v24, v24, v25"); a(f"v_lshlrev_b32 v24, {4 if OPT['opr'] else 3}, v24")
        if OPT["opr"]: a("v_xor_b32 v25, 512, v24")
        else: a(f"v_lshlrev_b32 v25, 3, v{vL}"); a("v_xor_b32 v25, 256, v25")
        a("v_mov_b32 v26, 0"); a("v_mov_b32 v26, 0"); a("v_mov_b32 v27, 0")
        ncst = 3
    else:
        dd = lambda l, j: (l & 15) - 4 * (l >> 4) - j
        own = lambda l, j: dd(l, j) >= 0 and dd(l, j) % 2 == 0
        prv = lambda l, j: dd(l, j) <= -2 and dd(l, j) % 2 == 0
        a(f"v_mov_b32 v{T1}, 0x{f2u(-1e30):x}")
        for j in range(4):
            set_mask("vcc", lanemask(lambda l: own(l, j))); a(f"v_cndmask_b32 v{16+j}, v{T1}, v{Z}, vcc")
            set_mask("vcc", lanemask(lambda l: prv(l, j))); a(f"v_cndmask_b32 v{20+j}, v{T1}, v{Z}, vcc")
            a(f"v_mov_b32 v{24+j}, 0x3f803f80")
        a(f"v_mov_b32 v{T1}, 0xffff"); a(f"v_mov_b32 v{T2_}, 0xffff0000")
        set_mask("vcc", lanemask(lambda l: l & 1)); a(f"v_cndmask_b32 v{T1}, v{T1}, v{T2_}, vcc")
        for k, (fn, pr) in enumerate(((prv, 0), (prv, 1), (own, 0), (own, 1))):
            set_mask("vcc", lanemask(lambda l: fn(l, 2 * pr + (l & 1)))); a(f"v_cndmask_b32 v{28+k}, v{Z}, v{T1}, vcc")
        ncst = 4
    a(f"v_lshlrev_b32 v{vT}, 4, v{vL}"); a(f"v_add_u32 v{vT}, {CST}, v{vT}")
    for k in range(ncst): a(f"ds_write_b128 v{vT}, {vr(16+4*k,4)} offset:{k*1024}")
    a.wait(lg="all")

def path(b, c):
    P = f"{b}{c}"; A_ = (b == 0)
    FB = A_ and OPT["fewb"]
    WQ_UNIT[:] = [8, 10, 12, 0, 2] if FB else [8, 10, 12, 0, 14]
    a.label(f"L_path_{P}")
    pstart = len(a.lines)
    a.vm = [("ch0" if (t == "~c0" and c == 0) else t) for t in a.vm]
    a.vm = [("ch1" if (t == "~c1" and c == 0) else t) for t in a.vm if not (t == "~c1" and c == 1)]
    a.vm = [t for t in a.vm if not (t == "~preA" and b == 1) and not (t == "~preB" and b == 0) and not (t == "~c0")]
    a.vm = [t for t in a.vm if not (t == "~oxB" and b == 0)]
    a.vm = [{"~preA": "preA", "~preB": "~i3pre", "~oxB": "oxB"}.get(t, t) for t in a.vm]
    a(f"s_cmp_eq_u32 s{sI}, 0"); a(f"s_cselect_b32 s{sHV}, s{sRT}, 0")
    prologue2(b, c)
    def warm_all():
        own = [f"L_t23_{P}", f"L_t3_{P}", f"L_tdone_{P}", f"L_gok_{P}"] if b == 0 else [f"L_hok_{P}", None, None, None]
        sh = (["L_phase2", "L_go0", "L_conv", "L_go1"] if c == 0 else ["L_red1", "L_red2", None, None])
        for i_ in range(4):
            tg = [t for t in (own[i_], sh[i_]) if t]
            if not tg: continue
            a(f"s_cmp_eq_u32 s{sI}, {i_}"); a(f"s_cbranch_scc0 L_nw{i_}_{P}")
            for t in tg: warm_call(t)
            a.label(f"L_nw{i_}_{P}")
    if OPT["warm"] == 1: warm_all()
    if OPT["p1late"]:
        if not OPT["p1mid"]:
            for op in dma_chunk(c, 1)[OPT["p1n"]:]: emit_op(op, "ch1")
        for op in dma_chunk(c, 2)[:OPT["p1late"] - 1]: emit_op(op, "ch2")
    if OPT["warm"] == 2: warm_all()
    if OPT["oxt"] and OPT["oxpos"] == 2:
        if OPT["ordoff"]: a(f"s_and_b32 s83, s2, 3"); a("s_mul_i32 s83, s83, 5"); a("s_add_u32 s83, s83, 1"); a("s_lshr_b32 s83, s83, 1")
        assert not AL and not OPT["oxb"]
        own_x_touch()
    vN0, vN1 = 84, 85
    def w0_begin(tag): a(f"s_cmp_eq_u32 s{sWV}, 0"); a(f"s_cbranch_scc0 L_{tag}_{P}")
    def w0_end(tag): a.label(f"L_{tag}_{P}")
    def nonce_load():
        w0_begin("nl")
        a(f"v_mov_b32 v{vN0}, 0")
        a(f"buffer_load_dword v{vN1}, v{vN0}, {sr(SG,4)}, 0 offen sc1", "~w0nonce")
        w0_end("nl")
    def nonce_check():
        w0_begin("nc")
        a.wait(vm="~w0nonce", keep=True)
        a(f"v_readfirstlane_b32 s{sN}, v{vN1}")
        a(f"s_cmp_lg_u32 s{sN}, 0"); a(f"s_cbranch_scc1 L_nok_{P}")
        spin_begin(f"L_nsp_{P}")
        a(f"buffer_load_dword v{vN1}, v{vN0}, {sr(SG,4)}, 0 offen sc1", "~x"); a("s_waitcnt vmcnt(0)")
        a(f"v_readfirstlane_b32 s{sN}, v{vN1}")
        a(f"s_cmp_lg_u32 s{sN}, 0"); a(f"s_cbranch_scc1 L_nok_{P}")
        spin_check(f"L_nsp_{P}", f"L_nok_{P}")
        a(f"s_lshl_b32 s3, s{sB}, 4"); a(f"s_add_u32 s3, s3, s{sRT}"); a(f"s_lshl_b32 s3, s3, 3"); a(f"s_add_u32 s3, s3, s{sHG}")
        a(f"s_lshl_b32 s3, s3, 7"); a(f"s_add_u32 s3, s3, {WS_RDY}")
        a(f"s_or_b32 s4, s{sN}, s{sXCC}")
        a(f"v_mov_b32 v{vN1}, s4")
        a("s_mov_b64 exec, 1")
        a(f"buffer_store_dword v{vN1}, v{vN0}, {sr(SS,4)}, s3 offen sc1", "~w0st")
        a("s_mov_b64 exec, -1")
        w0_end("nc")
    def rdy_load():
        w0_begin("rl")
        a(f"s_lshl_b32 s3, s{sB}, 4"); a(f"s_add_u32 s4, s3, s{sRT}"); a(f"s_lshl_b32 s4, s4, 3")
        a(f"v_add_u32 v{vN0}, s4, v{vL}")
        if A_:
            a(f"s_lshl_b32 s5, s3, 3"); a(f"s_add_u32 s5, s5, s{sHG}"); a(f"s_sub_u32 s5, s5, 64")
            a(f"v_lshl_add_u32 v{vN1}, v{vL}, 3, s5")
        else:
            a(f"s_max_u32 s5, s{sRT}, 1"); a(f"s_sub_u32 s5, s5, 1"); a(f"s_add_u32 s5, s5, s3"); a(f"s_lshl_b32 s5, s5, 3"); a(f"s_add_u32 s5, s5, s{sHG}")
            a(f"v_mov_b32 v{vN1}, s5")
        set_mask(sM, 0xff)
        a(f"v_cndmask_b32_e64 v{vN0}, v{vN1}, v{vN0}, {sr(sM,2)}")
        a(f"v_lshlrev_b32 v{vN0}, 7, v{vN0}")
        a(f"s_mov_b32 s3, {WS_RDY}")
        a(f"s_mov_b64 exec, {0xffffff if A_ else 0x1ff}")
        a(f"buffer_load_dword v{vN1}, v{vN0}, {sr(SS,4)}, s3 offen sc1", "~w0rdy")
        a("s_mov_b64 exec, -1")
        w0_end("rl")
    def rdy_check():
        em = 0xffffff if A_ else 0x1ff
        w0_begin("rc")
        a.wait(vm="~w0rdy", keep=True)
        def test():
            a(f"v_and_b32 v{vN1+1}, -8, v{vN1}")
            a(f"s_mov_b64 exec, {em}")
            a(f"v_cmp_ne_u32 vcc, s{sN}, v{vN1+1}")
            a("s_mov_b64 exec, -1")
            a(f"s_cbranch_vccz L_rok_{P}")
        test()
        spin_begin(f"L_rsp_{P}")
        a(f"s_mov_b32 s3, {WS_RDY}")
        a(f"s_mov_b64 exec, {em}")
        a(f"buffer_load_dword v{vN1}, v{vN0}, {sr(SS,4)}, s3 offen sc1", "~x"); a("s_waitcnt vmcnt(0)")
        test()
        spin_check(f"L_rsp_{P}", f"L_rok_{P}")
        a(f"s_or_b32 s3, s{sN}, s{sXCC}")
        a("s_mov_b64 exec, 0xff")
        a(f"v_cmp_ne_u32 vcc, s3, v{vN1}")
        a("s_mov_b64 exec, -1")
        a(f"s_cmp_eq_u32 vcc_lo, 0")
        a(f"s_cselect_b32 s3, {0 if OPT['force_slow'] else 1}, 0")
        a(f"s_or_b32 s3, s3, s{sN}")
        a(f"v_mov_b32 v{vN1}, s3"); a(f"v_mov_b32 v{vN0}, {BCAST}")
        sl = list(a.lg)
        a(f"ds_write_b32 v{vN0}, v{vN1}")
        a.lg = sl
        w0_end("rc")
    def bcast_read():
        a(f"v_mov_b32 v{vN0}, {BCAST}")
        a(f"ds_read_b32 v{vN1}, v{vN0}", "bc")
    def bcast_use():
        a.wait(lg="bc")
        a(f"v_readfirstlane_b32 s3, v{vN1}")
        a(f"s_and_b32 s{sFAST}, s3, 1"); a(f"s_andn2_b32 s{sN}, s3, 7")
    def touch():
        a(f"s_mul_i32 s3, s{sI}, 50"); a(f"v_add_u32 v86, s3, v{vL}"); a(f"s_lshr_b32 s4, s2, 3")
        if c == 0:
            a(f"v_mul_u32_u24 v87, 6554, v86"); a(f"v_lshrrev_b32 v87, 16, v87")
            a(f"v_mul_u32_u24 v88, 10, v87"); a(f"v_sub_u32 v86, v86, v88"); a(f"v_lshlrev_b32 v86, 7, v86")
            a(f"v_mul_u32_u24 v87, 3840, v87"); a(f"v_add_u32 v86, v86, v87"); a(f"s_mul_i32 s4, s4, {20*3840}")
        else:
            a(f"v_lshlrev_b32 v86, 7, v86"); a(f"s_mul_i32 s4, s4, 25600")
        a("s_mov_b32 exec_hi, 0x3ffff")
        a(f"buffer_load_dword v87, v86, {sr(SW if c == 0 else SO,4)}, s4 offen")
        a("s_mov_b32 exec_hi, -1")
    def opreload():
        a("s_mov_b64 exec, 0xfffff")
        a(f"buffer_load_dword v95, v{vPRE}, {sr(OS,4)}, s{sOB} offen{['', ' sc1', ' nt'][OPT['pnt']]}")
        a("s_mov_b64 exec, 1")
        a(f"buffer_load_dword v95, off, {sr(SS,4)}, s{sFC}")
        a("s_mov_b64 exec, -1")

    def xcd_touch(kind):
        a(f"s_and_b32 s3, s{sRT}, 3"); a(f"s_add_u32 s4, s3, s{sHG}"); a("s_bitcmp1_b32 s4, 1"); a(f"s_cbranch_scc0 L_nxt{kind}_{P}")
        a("s_and_b32 s4, s4, 1"); a("s_lshl_b32 s3, s3, 2"); a("s_add_u32 s3, s3, s4"); a(f"s_lshr_b32 s4, s{sHG}, 2"); a("s_lshl_b32 s4, s4, 1"); a("s_add_u32 s3, s3, s4")
        a("s_mul_i32 s3, s3, 400"); a(f"s_mul_i32 s4, s{sWV}, 50"); a("s_add_u32 s3, s3, s4")
        a(f"v_add_u32 v86, s3, v{vL}")
        if kind == "q":
            a(f"v_mul_u32_u24 v87, 52429, v86"); a(f"v_lshrrev_b32 v87, 19, v87")
            a(f"v_mul_u32_u24 v88, 10, v87"); a(f"v_sub_u32 v86, v86, v88"); a(f"v_lshlrev_b32 v86, 7, v86")
            a(f"v_mul_u32_u24 v87, 3840, v87"); a(f"v_add_u32 v86, v86, v87")
        else:
            a(f"v_lshlrev_b32 v86, 7, v86")
        a("s_mov_b32 exec_hi, 0x3ffff")
        a.ghost_cond["x2"] = [f"s_add_u32 s3, s{sRT}, s{sHG}", "s_bitcmp1_b32 s3, 1"]
        a(f"buffer_load_dword v95, v86, {sr(SW if kind == 'q' else SO,4)}, 0 offen", "~x2")
        a("s_mov_b32 exec_hi, -1")
        a.label(f"L_nxt{kind}_{P}")
    def fix_wd_for_q():
        if c == 0:
            a(f"s_cmp_lt_u32 s{sWV}, 2"); a(f"s_cselect_b32 s3, 0, 1280")
            a(f"v_subrev_u32 v{vWD+1}, s3, v{vWD+1}"); a(f"v_subrev_u32 v{vWD+2}, 1280, v{vWD+2}")
        else:
            a(f"v_subrev_u32 v{vWD+1}, 1280, v{vWD+1}")

    def acc1(t, rt): return ACC1 + (t * 2 + rt) * 4
    Tor = [not A_, not A_, False, False, (not A_) and c == 0]
    eps1 = [A_, A_, False, False, A_ and c == 0]
    items1 = [(sg, t) for sg in range(18) for t in range(5)] + [(18, 0), (18, 4), (18, 1), (19, 0), (19, 4), (19, 1), (18, 2), (18, 3), (19, 2), (19, 3)]
    seenx = set()
    def reads(n, w):
        sg, t = items1[n]; s = sg & 1; tg = []
        if sg not in seenx:
            seenx.add(sg)
            for rt in range(2): tg.append(a(f"ds_read_b128 {vr(X(sg,rt),4)}, v{vXA1 if s else vXA0} offset:{rt*2048}"))
        for h in range(2):
            if OPT["hackport"] in (1, 2) and t == 4 and sg > 0: continue
            if OPT["hackport"] == 4 and t in (1, 3, 4) and sg > 0: continue
            off = 16384 + s * 5120 + h * 1280
            if t < 4: tg.append(a(f"ds_read_b64_tr_b16 {vr(w+2*h,2)}, v{vWA} offset:{off + (UNIT if t >= 2 else 0) + 40*(t&1)}"))
            else: tg.append(a(f"ds_read_b64_tr_b16 {vr(w+2*h,2)}, v{vWE} offset:{off}"))
        return tg
    def mf(n, w):
        sg, t = items1[n]
        if OPT["hackport"] in (1, 3) and t == 4 and sg > 0: return
        for rt in ((1, 0) if (OPT["snake"] and n % 2) else (0, 1)):
            C = acc1(t, rt) if sg else (80 if eps1[t] else "0")
            if Tor[t]: mfma(acc1(t, rt), w, X(sg, rt), C)
            else: mfma(acc1(t, rt), X(sg, rt), w, C)
    R = OPT["rdy_at"]
    def bnd1(ch):
        if ch > 0:
            d = SLOT if ch % 4 else -3 * SLOT
            for r in (vXA0, vXA1, vWA, vWE): a(f"v_add_u32 v{r}, {d}, v{r}")
        a.wait(vm=f"ch{ch}", lg="all" if (ch and OPT["LA"] == 3) or ch == 9 or (OPT["ahead"] and 1 <= ch <= 6) or any(k - ch >= 3 for k in SCHED.get(ch, [])) and ch else None)
        a("s_barrier")
        stamp(f"b{ch}")
        ops = []
        if c == 0:
            if ch == 0: ops.append((nonce_load, None))
            if ch == 1: ops.append((nonce_check, None))
            if ch == R: ops.append((rdy_load, None))
            if ch == R + 2: ops.append((rdy_check, None))
        if ch == R + 3: ops.append((bcast_read, None))
        if OPT["LA"] == 3:
            if ch == 0 and OPT["pro"] < 3: ops += [(op, "ch2") for op in dma_chunk(c, 2)]
            if ch + 3 <= 9: ops += [(op, f"ch{ch+3}") for op in dma_chunk(c, ch + 3)]
        elif OPT["sched"]:
            if ch == 0: ops += [(op, "ch1") for op in dma_chunk(c, 1)[OPT["p1n"]:]]
            for k in SCHED.get(ch, []): ops += [(op, f"ch{k}") for op in dma_chunk(c, k)]
        else:
            if ch == 0 and not OPT["p1late"]: ops += [(op, "ch1") for op in dma_chunk(c, 1)[OPT["p1n"]:]]
            AH = OPT["ahead"]
            if ch + 2 <= 9: ops += [(op, f"ch{ch+2}") for op in dma_chunk(c, ch + 2)[(max(0, OPT["p1late"] - 1) if ch == 0 else (AH if ch >= 2 else 0)):]]
            if AH and ch >= 1 and ch + 3 <= 9: ops += [(op, f"ch{ch+3}") for op in dma_chunk(c, ch + 3)[:AH]]
        if ch == R + 3: ops.append((bcast_use, None))
        if ch == OPT["tq"]: ops.append((touch, None))
        if ch == OPT["eb"]: ops.insert(0, (lambda: touch_steps(c, 6, 4, 1, f"eb{P}"), None))
        if ch == OPT["eb"] + 100 or (OPT["eb"] >= 100 and ch == OPT["eb"] - 100): ops.append((lambda: touch_steps(c, 6, 4, 1, f"eb{P}"), None))
        if ch == OPT["ec"] and not (OPT["st0"] >= 0 and OPT["stq"]): ops.append((lambda: touch_qo(c), None))
        if OPT["tc"]:
            for ent in str(OPT["tc"]).split(","):
                per, st = (int(x) for x in ent.split(":"))
                if per == ch and c == OPT["tcw"] >> 2:
                    def tcl(st=st):
                        a(f"s_cmp_eq_u32 s{sWV}, {OPT['tcw']}"); a(f"s_cbranch_scc0 L_ntc{st}_{P}")
                        tc_issue(st, sTCX, sTCW)
                        a.label(f"L_ntc{st}_{P}")
                    ops.append((tcl, None))
        if OPT["tcm"] and c == 0:
            per, sts = str(OPT["tcm"]).split(":")
            if int(per) == ch:
                def tcm():
                    for w_, st in enumerate(int(x) for x in sts.split(".")):
                        a(f"s_cmp_eq_u32 s{sWV}, {w_ + 1}"); a(f"s_cbranch_scc0 L_tcm{w_}_{P}")
                        tc_issue(st, sTCX, sTCW)
                        a.label(f"L_tcm{w_}_{P}")
                ops.append((tcm, None))
        if ch == OPT["xw"]: ops.append((lambda: xcd_touch("w"), None))
        if ch == OPT["xq"]: ops.append((lambda: xcd_touch("q"), None))
        if ch == OPT["tlb"] and c == 1:
            def tl():
                a(f"s_cmp_eq_u32 s{sWV}, 7"); a(f"s_cbranch_scc0 L_notlb_{P}")
                n0 = len(a.vm); tlb_warm(); a.vm = a.vm[:n0] + ["~w7"] * 3
                a.ghost_cond["w7"] = [f"s_cmp_eq_u32 s{sWV}, 7"]
                a.label(f"L_notlb_{P}")
            ops.append((tl, None))
        if b == 1 and ch == OPT["aot"]: ops.append((lambda: touch_ax(c, "o"), None))
        if b == 1 and ch == OPT["axt"]: ops.insert(0, (lambda: touch_ax(c, "x"), None))
        if b == 1 and ch == OPT["awt"]: ops.insert(0, (lambda: touch_ax(c, "w"), None))
        if ch == OPT["prel1"]: ops.append((opreload, None))
        if OPT["st0"] >= 0 and 0 <= ch - OPT["st0"] < OPT["stn"]:
            def duty(k=ch - OPT["st0"]):
                a(f"s_cmp_eq_u32 s{sDUTY}, {k}"); a(f"s_cbranch_scc0 L_nd{k}_{P}")
                n0 = len(a.vm)
                if OPT["stq"]: touch_qo(c)
                if OPT["stp"]: opreload()
                a.vm = a.vm[:n0] + [f"~d{k}" for _ in a.vm[n0:]]
                a.ghost_cond[f"d{k}"] = [f"s_cmp_eq_u32 s{sDUTY}, {k}"]
                a.label(f"L_nd{k}_{P}")
            ops.append((duty, None))
        if ch == OPT["pst"]: ops.append((lambda: prestore(c), None))
        if OPT["LA"] == 3:
            if ch == 7: ops += [(fix_wd_for_q, None)] + [(op, "wq0") for op in dma_wq(c, 0)]
            if ch == 8: ops += [(op, f"wq{u}") for u in (1, 2) for op in dma_wq(c, u)]
            if ch == 9: ops += [(op, f"wq{u}") for u in (3, 4) for op in dma_wq(c, u)]
        else:
            if ch == 8: ops += [(fix_wd_for_q, None)] + [(op, "wq0") for op in dma_wq(c, 0)]
            if ch == 9: ops += [(op, f"wq{u}") for u in (1, 2) for op in dma_wq(c, u)]
        return ops
    hA, hB = 2 * c, 2 * c + 1
    gm = lambda h: lanemask(lambda l: (l >> 4) == h)
    half = lanemask(lambda l: (l >> 5) == c)
    pipeline(100, reads, mf, {10 * ch: ch for ch in range(10)}, bnd1, OPT["L"], OPT["Lb"], [WF + 4 * k for k in range(5)], prio=(10, parse_pr(OPT["pr1"])) if c == 1 else None, front=OPT["front"])
    if c == 1 and OPT["prep"] >= 0: a(f"s_setprio {OPT['prep']}")
    stamp("p1end")

    vL16, vL8 = vXA0, vXA1
    a(f"v_lshlrev_b32 v{vL16}, 4, v{vL}"); a(f"v_lshlrev_b32 v{vL8}, 3, v{vL}")
    a(f"v_add_u32 v{vWA}, {WQ_UNIT[0]*UNIT - SLOT}, v{vWA}")
    a(f"v_add_u32 v{vWE}, {WQ_UNIT[0]*UNIT - SLOT - (UNIT if c else 0)}, v{vWE}")
    WD = OPT["wodef"]; assert WD >= 2 and OPT["LA"] == 2
    WOA = {u + WD: [u] for u in range(5) if u + WD <= 4}
    if OPT["woA"]:
        WOA = {int(e.split(":")[0]): [int(x) for x in e.split(":")[1].split(".")] for e in OPT["woA"].split(",")}
        for u_, ks in WOA.items():
            for k in ks: assert u_ >= (0, 1, 3, 3, 3)[k]
    if FB: late_wo = [op for u in range(5) if not any(u in v for v in WOA.values()) for op in dma_wo(c, u)]
    else: late_wo = [op for u in range(5) if u + WD > 4 for op in dma_wo(c, u)]
    nq = 3 if c == 0 else 2
    def late(k, last=False):
        for _ in range(k):
            keep_ = nq * OPT["woaft"] if (last or FB) else nq * max(1, OPT["woaft"])
            if last == 2: keep_ = 0
            if len(late_wo) > keep_: emit_op(late_wo.pop(0), "wo")
    if A_:
        KAa, KAb, VBa, VBb, EO = 56, 60, 64, 68, 72
        TMP = 76
        a(f"s_lshl_b32 s3, s{sWV}, 12"); a(f"v_add_u32 v{vT}, s3, v{vL16}")
        a(f"v_add_u32 v{vT+1}, s{sW1K}, v{vL16}"); a(f"v_add_u32 v{vT+1}, {EE_A2}, v{vT+1}")
        phi_pack(acc1(0, 0), 8, [KAa], TMP)
        a(f"ds_write_b128 v{vT}, {vr(KAa,4)} offset:{OPX}")
        if c == 0: phi_pack(acc1(4, 0), 8, [EO], TMP)
        else: pack(acc1(4, 0), EO); pack(acc1(4, 1), EO + 2)
        a(f"ds_write_b128 v{vT+1}, {vr(EO,4)}")
        phi_pack(acc1(1, 0), 8, [KAb], TMP)
        a(f"ds_write_b128 v{vT}, {vr(KAb,4)} offset:{OPX + 1024}")
        for t, d in ((2, VBa), (3, VBb)):
            pack(acc1(t, 0), d); pack(acc1(t, 1), d + 2)
            a(f"ds_write_b128 v{vT}, {vr(d,4)} offset:{OPX + t*1024}")
        a(f"v_add_u32 v{vT}, {OPX + c*16384}, v{vL16}")
        a(f"v_add_u32 v{vT+1}, {EE_A2}, v{vL16}")
        a(f"v_and_b32 v{vT+2}, 0x31, v{vL}"); a(f"v_bfe_u32 v{vT+3}, v{vL}, 2, 2")
        a(f"v_lshl_add_u32 v{vT+2}, v{vT+3}, 1, v{vT+2}"); a(f"v_lshlrev_b32 v{vT+2}, 4, v{vT+2}")
        a(f"v_add_u32 v{vT+2}, {EE_A2 + 4096 + 128*c}, v{vT+2}")
        a(f"v_mov_b32 v89, 0x3f803f80")
        for i in range(4): a(f"v_mov_b32 v{80+i}, s{sK+1}")
    else:
        KA = {("a", 0): 56, ("b", 0): 60, ("a", 1): 64, ("b", 1): 68, ("a", -1): 96, ("b", -1): 100}
        Va, Vb, Ev = 72, 78, 84
        for rt in (1, 0):
            pack(acc1(0, rt), KA[("a", rt)]); pack(acc1(1, rt), KA[("b", rt)])
            if c == 0: pack(acc1(4, rt), KA[("a", rt)] + 2); pack(acc1(4, rt), KA[("b", rt)] + 2)
            else: pack(acc1(4, rt), Ev + 2 + 2 * rt)
            pack(acc1(2, rt), Va + 2 + 2 * rt); pack(acc1(3, rt), Vb + 2 + 2 * rt)
        Eown = [KA[("a", 0)] + 2, KA[("a", 1)] + 2] if c == 0 else [Ev + 2, Ev + 4]
        xs = [KA[("a", 1)], KA[("b", 1)], Va + 4, Vb + 4, Eown[1], Eown[0]]
        a(f"s_mul_i32 s3, s{sWV}, 3072")
        a(f"v_add_u32 v{vT}, s3, v{vL8}")
    a.wait(vm="wq0", lg="all")
    a("s_barrier")
    stamp("E1")
    if A_:
        R0 = 16
        D0, D1, D2 = 84, 72, 76
        def rd(dst, areg, off): return a(f"ds_read_b128 {vr(dst,4)}, v{areg} offset:{off}")
        def evb(dst):
            for j in range(4): a(f"v_cndmask_b32 v{dst+j}, v{dst+j}, v89, vcc")
        a(f"s_cmp_lt_u32 s{sTI}, 2"); a(f"s_cbranch_scc0 L_t23_{P}")
        a(f"s_lshl_b32 s3, s{sTI}, 10"); a(f"v_add_u32 v{vT}, s3, v{vT}")
        a.lg = []
        tg = []
        for g in range(4): tg.append([rd(R0 + 8 * g, vT, g * 4096), rd(R0 + 8 * g + 4, vT, g * 4096 + 2048)])
        for g in range(4):
            a.wait(lg=tg[g]); mfma(D0, R0 + 8 * g, R0 + 8 * g + 4, D0 if g else "0")
        a("s_nop 7")
        a(f"s_branch L_tdone_{P}")
        padlabel(f"L_t23_{P}", False)
        set_mask("vcc", 0x3333333333333333)
        a(f"s_cmp_eq_u32 s{sTI}, 2"); a(f"s_cbranch_scc0 L_t3_{P}")
        a.lg = []
        tg = []
        for g in range(4): tg.append([rd(R0 + 12 * g, vT + 2, g * 1024), rd(R0 + 12 * g + 4, vT, g * 4096), rd(R0 + 12 * g + 8, vT, g * 4096 + 1024)])
        for g in range(4):
            a.wait(lg=tg[g]); evb(R0 + 12 * g)
            mfma(D0, R0 + 12 * g + 4, R0 + 12 * g, D0 if g else "0")
            mfma(D1, R0 + 12 * g + 8, R0 + 12 * g, D1 if g else "0")
        set_mask("vcc", 0x11dd11dd11dd11dd)
        for j in range(4): a(f"v_cndmask_b32 v{D0+j}, v{D1+j}, v{D0+j}, vcc")
        a(f"s_branch L_tdone_{P}")
        padlabel(f"L_t3_{P}", False)
        a.lg = []
        tg = []
        B0 = [16, 32, 48, 16]
        def rd3(g): return [rd(B0[g], vT + 2, g * 1024), rd(B0[g] + 4, vT + 1, g * 1024), rd(B0[g] + 8, vT, g * 4096 + 2048), rd(B0[g] + 12, vT, g * 4096 + 3072)]
        for g in range(3): tg.append(rd3(g))
        for g in range(4):
            a.wait(lg=tg[g]); evb(B0[g])
            mfma(D0, B0[g] + 4, B0[g] + 8, D0 if g else "0")
            mfma(D1, B0[g] + 4, B0[g] + 12, D1 if g else "0")
            mfma(D2, B0[g] + 4, B0[g], D2 if g else "0")
            if g == 0: tg.append(rd3(3))
        set_mask("vcc", gm(hA))
        for j in range(4): a(f"v_cndmask_b32 v{D0+j}, v{D1+j}, v{D0+j}, vcc")
        for j in range(4):
            if c == 0: a(f"v_permlane32_swap_b32 v{D0+j}, v{D2+j}")
            else: a(f"v_permlane32_swap_b32 v{D2+j}, v{D0+j}")
        padlabel(f"L_tdone_{P}", True)
        a.lg = []
        pack(D0, 88)
        a(f"v_min_u32 v{D0}, -2, v88"); a(f"v_min_u32 v{D0+1}, -2, v89")
        a(f"buffer_store_dwordx2 {vr(D0,2)}, v{vL8}, {sr(SS,4)}, s{sKVP} offen sc1")
    else:
        for k in range(6): a(f"ds_write_b64 v{vT}, {vr(xs[k],2)} offset:{EXB + k*512}")
        a(f"s_cmp_eq_u32 s{sI}, 3"); a(f"s_cbranch_scc0 L_nohp_{P}")
        for k in range(5):
            for j in range(2): a(f"v_min_u32 v{xs[k]+j}, -2, v{xs[k]+j}")
            a(f"buffer_store_dwordx2 {vr(xs[k],2)}, v{vL8}, {sr(SS,4)}, s{sHP} offen offset:{k*512} sc1", "~i3hp")
        a.label(f"L_nohp_{P}")
    stamp("pub1")

    ACC2 = 16; WF2 = 40
    oc = 1 - c
    NT2 = 3 if c == 0 else 2
    def acc2(t, rt): return ACC2 + (t * 2 + rt) * 4
    items2 = [(sg, t) for sg in range(16) for t in range(NT2)] + [(sg, t) for t in ((2, 0, 1) if c == 0 else (0, 1)) for sg in range(16, 20)]
    N2 = len(items2)
    def ix(sg): return NT2 * sg
    iEQ = N2 - 8; iQA = N2 - 4
    def reads2(n, w):
        sg, t = items2[n]; tg = []
        for h in range(2):
            off = ((sg >> 1) & 1) * UNIT + (sg & 1) * 5120 + h * 1280
            if t < 2: tg.append(a(f"ds_read_b64_tr_b16 {vr(w+2*h,2)}, v{vWA} offset:{off + 40*t}"))
            else: tg.append(a(f"ds_read_b64_tr_b16 {vr(w+2*h,2)}, v{vWE} offset:{off}"))
        return tg
    def mf2(n, w):
        sg, t = items2[n]
        for rt in ((1, 0) if (OPT["snake"] and n % 2) else (0, 1)):
            C = acc2(t, rt) if sg else (80 if A_ else "0")
            mfma(acc2(t, rt), w, X(sg, rt), C)
    GA = 56
    def gather(tag="gat"):
        for r in range(8):
            a(f"s_add_u32 s3, s{sKVG}, {r*4096}")
            a(f"buffer_load_dwordx4 {vr(GA+4*r,4)}, v{vGAD}, {sr(SS,4)}, s3 offen sc1", tag)
    def gather_ops():
        if OPT["hackgat"]: return []
        if OPT["grot"]:
            return [([f"s_lshl_b32 s3, s{sRT}, 13", f"s_add_u32 s3, s3, {r*4096}", "s_and_b32 s3, s3, 0x7fff", f"s_add_u32 s3, s3, s{sKVG}"],
                     f"buffer_load_dwordx4 {vr(GA+4*r,4)}, v{vGAD}, {sr(SS,4)}, s3 offen sc1") for r in range(8)]
        return [([f"s_add_u32 s3, s{sKVG}, {r*4096}"], f"buffer_load_dwordx4 {vr(GA+4*r,4)}, v{vGAD}, {sr(SS,4)}, s3 offen sc1") for r in range(8)]
    HL = [KA[("a", -1)], KA[("b", -1)], Va, Vb, KA[("a", -1)] + 2, Ev, KA[("b", -1)] + 2] if not A_ else None
    def halo_loads(tag="~h0halo"):
        offs = [c*3072, c*3072 + 512, c*3072 + 1024, c*3072 + 1536, 2048, 3072 + 2048, 2048]
        for d, o in zip(HL, offs):
            a(f"s_add_u32 s3, s{sHG2}, {o}")
            a(f"buffer_load_dwordx2 {vr(d,2)}, v{vL8}, {sr(SS,4)}, s3 offen sc1", tag)
    def halo_issue():
        a(f"s_cmp_eq_u32 s{sHV}, 0")
        a(f"s_cbranch_scc1 L_nohl_{P}")
        halo_loads()
        a.label(f"L_nohl_{P}")
    def bnd2(u):
        ops = []
        if u > 0:
            d = (WQ_UNIT[u] - WQ_UNIT[u - 1]) * UNIT
            for r in (vWA, vWE): a(f"v_add_u32 v{r}, {d}, v{r}")
            if not FB or u in (1, 3):
                a.wait(vm=f"wq{u + 1 if FB else u}", lg="all")
                a("s_barrier")
            stamp(f"p{u}")
        if FB:
            if u == 1: ops += [(op, f"wq{k}") for k in (3, 4) for op in dma_wq(c, k)]
            ops += [(op, "wo") for k in WOA.get(u, []) for op in dma_wo(c, k)]
        else:
            if u in (1, 2): ops += [(op, f"wq{u+2}") for op in dma_wq(c, u + 2)]
            if u >= WD: ops += [(op, "wo") for op in dma_wo(c, u - WD)]
        if u == OPT["prel_at"] and OPT["prel1"] < 0 and not (OPT["st0"] >= 0 and OPT["stp"]): ops = ops + [(opreload, None)]
        if A_ and OPT["gk"]: return ops
        if u == (OPT["gat_at"] if A_ else OPT["hal_at"]):
            g = gather_ops()
            if OPT["gspread"]: g = g[:4]
            ops = ([(op, "gat") for op in g] if A_ else [(halo_issue, None)]) + ops
        if u == OPT["gat_at"] + 1 and A_ and OPT["gspread"]:
            ops = [(op, "gat") for op in gather_ops()[4:]] + ops
        return ops
    QB = {("a", 0): 160, ("b", 0): 164, ("a", 1): 168, ("b", 1): 172}
    side = {}
    vEQo, vEQp = 124, 125
    eqaddr = [[f"s_lshl_b32 s4, s{sI}, 10", f"v_add_u32 v{vEQo}, s4, v{vL8}"]]
    cst = [f"v_add_u32 v126, {CST}, v{vL16}"]
    if A_:
        SEL, C0, CA = 96, 100, 104
        Axb = 104; vOW = 126; vOX = 127
        cst += [f"ds_read_b128 {vr(96+4*k,4)}, v126 offset:{k*1024}" for k in range(3)]
        def cfix():
            a.wait(lg="all")
            if OPT["opr"]: a(f"v_mov_b32 v{vOW}, v{CA}")
            else: a(f"s_lshl_b32 s4, s{sTI}, 9"); a(f"v_add_u32 v{vOW}, s4, v{CA}")
            a(f"v_mov_b32 v{vOX}, v{CA+1}")
        GS = 108; GT = 88
        def gsum():
            for r in range(8): mfma(GS, SEL, GA + 4 * r, GS if r else "0")
        def gpart1():
            assert OPT["hackgat"] or sum(1 for l in a.lines[pstart:] if f"v{vGAD}, s[32:35]" in l) == 8, "gather not fully issued"
            a.wait(vm="gat"); gsum()
        def gpart2():
            a(f"v_add_f32 v{GT}, v{GS}, v{GS+1}"); a(f"v_add_f32 v{GT+1}, v{GS+2}, v{GS+3}"); a(f"v_add_f32 v{GT}, v{GT}, v{GT+1}")
            a(f"v_cmp_u_f32 vcc, v{GT}, v{GT}")
            a(f"s_cbranch_vccz L_gok_{P}" if not OPT["hackgat"] else f"s_branch L_gok_{P}")
            spin_begin(f"L_gsp_{P}")
            a(f"v_max3_u32 v{GT}, v{GA}, v{GA+1}, v{GA+2}")
            for k in range(3, 31, 2): a(f"v_max3_u32 v{GT}, v{GT}, v{GA+k}, v{GA+k+1}")
            a(f"v_max_u32 v{GT}, v{GT}, v{GA+31}")
            a(f"v_cmp_eq_u32 vcc, -1, v{GT}")
            a(f"s_cbranch_vccz L_gre_{P}")
            gather("~x"); a("s_waitcnt vmcnt(0)")
            spin_check(f"L_gsp_{P}", f"L_gre_{P}")
            gsum(); a("s_nop 7")
            if OPT["stamps"]:
                a(f"s_add_u32 s3, s{sSPIN}, 1"); a(f"v_writelane_b32 v{vST}, s3, 43")
            padlabel(f"L_gok_{P}", True)
            pack(GS, GT)
            if not OPT["opr"]:
                a(f"ds_write_b64 v{vOW}, {vr(GT,2)} offset:{OPS + c*2048}")
                return
            ob = OPS + c * 4096
            nu = lambda l: 32 * (l >> 5) + 2 * (l & 15) + ((l >> 4) & 1)
            ma_ = lambda l: (0x11dd >> (l & 15)) & 1
            m7 = lambda l: ((l >> 4) == hA and ma_(l)) or ((l >> 4) == hB and not ma_(l))
            Z_ = CA + 2
            def wr(mask, addr, off, tmp):
                set_mask("vcc", lanemask(mask))
                for j in range(2): a(f"v_cndmask_b32 v{tmp+j}, v{Z_}, v{GT+j}, vcc")
                a(f"ds_write_b64 v{addr}, {vr(tmp,2)} offset:{off}")
            sl = list(a.lg)
            a(f"s_cmp_lt_u32 s{sTI}, 2"); a(f"s_cbranch_scc0 L_w23_{P}")
            a(f"s_lshl_b32 s4, s{sTI}, 10"); a(f"v_add_u32 v{GS}, s4, v{vOW}")
            a(f"ds_write_b64 v{GS}, {vr(GT,2)} offset:{ob}")
            a(f"s_branch L_wd_{P}")
            a.label(f"L_w23_{P}")
            a(f"s_cmp_eq_u32 s{sTI}, 2"); a(f"s_cbranch_scc0 L_w3_{P}")
            wr(lambda l: ma_(nu(l)), vOW, ob + 2048, GS)
            wr(lambda l: not ma_(nu(l)), vOW, ob + 3072, GS + 2)
            a(f"s_branch L_wd_{P}")
            a.label(f"L_w3_{P}")
            wr(lambda l: m7(nu(l) ^ 32), vOX, ob + 2048 + 8, GS)
            wr(lambda l: (nu(l) >> 4) == hA, vOW, ob + 8, GS + 2)
            wr(lambda l: (nu(l) >> 4) == hB, vOW, ob + 1024 + 8, GS)
            a.label(f"L_wd_{P}")
            a.lg = sl
        side[ix(4) + 1] = cst + eqaddr
        side[ix(8) - 1] = [cfix]
        if c == 0:
            e = phi_ins(acc2(2, 0), 8, [], 112)
            for rt in range(2):
                e += pack_ins(acc2(2, rt), QB[("a", rt)] + 2) + [f"ds_write_b64 v{vEQo}, {vr(QB[('a',rt)]+2,2)} offset:{EQX + rt*512}"]
                e += [f"v_mov_b32 v{QB[('b',rt)]+2+j}, v{QB[('a',rt)]+2+j}" for j in range(2)]
            side[iEQ] = e
        side[iQA] = phi_ins(acc2(0, 0), 8, [], 112) + pack_ins(acc2(0, 0), QB[("a", 0)]) + pack_ins(acc2(0, 1), QB[("a", 1)])
        if OPT["gk"]:
            ks = [int(x) for x in str(OPT["gk"]).split(".")]
            for r, op in enumerate(gather_ops()):
                side[ix(ks[r])] = side.get(ix(ks[r]), []) + [lambda op=op: emit_op(op, "gat")]
        if OPT["gearly"] >= 0:
            side[N2 - 6] = side.get(N2 - 6, []) + [gpart1]
            side[N2 - 1] = side.get(N2 - 1, []) + [gpart2]
    else:
        BO, BP, ONES, MK, BP0 = 104, 108, 112, 116, 120
        cst += [f"ds_read_b128 {vr(104+4*k,4)}, v126 offset:{k*1024}" for k in range(4)] + [f"ds_read_b128 {vr(BP0,4)}, v126 offset:1024", "v_mov_b32 v127, 0"]
        def foreign():
            a(f"s_xor_b32 s3, s{sWV}, 4"); a(f"s_mul_i32 s3, s3, 3072")
            a(f"v_add_u32 v{vT}, s3, v{vL8}")
            for rt in range(2):
                o = EXB + (4 if rt else 5) * 512
                if c == 0: a(f"ds_read_b64 {vr(Ev+2+2*rt,2)}, v{vT} offset:{o}")
                else:
                    for h in "ab": a(f"ds_read_b64 {vr(KA[(h,rt)]+2,2)}, v{vT} offset:{o}")
        def foreign2():
            a(f"s_cmp_eq_u32 s{sI}, 0"); a(f"s_cbranch_scc1 L_nof2_{P}")
            a("s_waitcnt lgkmcnt(6)")
            a(f"s_sub_u32 s3, s{sI}, 1"); a(f"s_mul_i32 s3, s3, 3072")
            a(f"v_add_u32 v{vT}, s3, v{vL8}")
            cb = EXB + c * 4 * 3072
            sl = list(a.lg); a.lg = []
            a(f"ds_read_b64 {vr(KA[('a',-1)],2)}, v{vT} offset:{cb}")
            a(f"ds_read_b64 {vr(KA[('b',-1)],2)}, v{vT} offset:{cb + 512}")
            a(f"ds_read_b64 {vr(Va,2)}, v{vT} offset:{cb + 1024}")
            a(f"ds_read_b64 {vr(Vb,2)}, v{vT} offset:{cb + 1536}")
            for h in "ab": a(f"ds_read_b64 {vr(KA[(h,-1)]+2,2)}, v{vT} offset:{EXB + 2048}")
            a(f"ds_read_b64 {vr(Ev,2)}, v{vT} offset:{EXB + 4*3072 + 2048}")
            a.lg = sl
            a.label(f"L_nof2_{P}")
        EQ = {0: 156, 1: 158}
        side[ix(4) + 1] = cst + eqaddr
        side[ix(6)] = [foreign]
        side[ix(9)] = [foreign2]
        if c == 0:
            side[iEQ] = pack_ins(acc2(2, 0), EQ[0]) + pack_ins(acc2(2, 1), EQ[1]) + [f"ds_write_b64 v{vEQo}, {vr(EQ[rt],2)} offset:{EQX + rt*512}" for rt in range(2)]
        side[iQA] = pack_ins(acc2(0, 0), QB[("a", 0)]) + pack_ins(acc2(0, 1), QB[("a", 1)])
    wf2 = [WF2 + 4 * k for k in range(4)] + ([32, 36] if c == 1 else [])
    pipeline(N2, reads2, mf2, {ix(4 * u): u for u in range(5)}, bnd2, OPT["L2"], OPT["Lb2"] if c == 0 else OPT["Lb2"] - 1, wf2,
             newbufs={ix(8): [128 + 4 * k for k in range(7)]}, side=side, side_rate=OPT["srate"] + (0 if c == 0 else 1), prio=None, front=OPT["front2"])
    if c == 1 and OPT["prep"] >= 0: a(f"s_setprio {OPT['prep']}")
    stamp("p2end")

    if A_:
        if OPT["gearly"] < 0: gpart1()
        late(3)
        phi_pack(acc2(1, 0), 8, [], 136)
        pack(acc2(1, 0), QB[("b", 0)]); pack(acc2(1, 1), QB[("b", 1)])
        if OPT["gearly"] < 0: gpart2()
        late(99)
        a.wait(lg="all")
        a("s_barrier")
        stamp("E2")
        if OPT["opr"]:
            A1a, A1b, Axa = 128, 132, 136
            ob = OPS + c * 4096
            tq = [a(f"ds_read_b64 {vr(QB[(h,rt)]+2,2)}, v{vEQo} offset:{EQX + rt*512}") for rt in range(2) for h in "ab"] if c == 1 else []
            tq.append(a(f"ds_read_b128 {vr(Axa,4)}, v{vL16} offset:{ob + 2048}"))
            tq.append(a(f"ds_read_b128 {vr(A1a,4)}, v{vL16} offset:{ob}"))
            tq.append(a(f"ds_read_b64 {vr(Axb,2)}, v{vL16} offset:{ob + 3072}"))
            tq.append(a(f"ds_read_b128 {vr(A1b,4)}, v{vL16} offset:{ob + 1024}"))
            late(99, True)
            if OPT["prel_at"] == 5: opreload()
        else:
            A1a, A1b, Axa, T3, T2 = 128, 132, 136, 140, 142
            ob = OPS + c * 2048
            t3 = a(f"ds_read_b64 {vr(T3,2)}, v{vL8} offset:{ob + 1536}")
            t2 = a(f"ds_read_b64 {vr(T2,2)}, v{vL8} offset:{ob + 1024}")
            t4 = a(f"ds_read_b64 {vr(Axa+2,2)}, v{vOX} offset:{ob + 1536}")
            t0 = a(f"ds_read_b64 {vr(A1a,2)}, v{vL8} offset:{ob}")
            t1 = a(f"ds_read_b64 {vr(A1b,2)}, v{vL8} offset:{ob + 512}")
            tq = [a(f"ds_read_b64 {vr(QB[(h,rt)]+2,2)}, v{vEQo} offset:{EQX + rt*512}") for rt in range(2) for h in "ab"] if c == 1 else [t1]
            late(99, True)
            if OPT["prel_at"] == 5: opreload()
            ma = lambda l: (0x11dd >> (l & 15)) & 1
            Z = Axb + 2
            set_mask("vcc", gm(hA)); a.wait(lg=t3)
            for j in range(2): a(f"v_cndmask_b32 v{A1a+2+j}, v{Z}, v{T3+j}, vcc")
            set_mask("vcc", gm(hB))
            for j in range(2): a(f"v_cndmask_b32 v{A1b+2+j}, v{Z}, v{T3+j}, vcc")
            set_mask("vcc", 0x11dd11dd11dd11dd); a.wait(lg=t4)
            for j in range(2):
                a(f"v_cndmask_b32 v{Axa+j}, v{Z}, v{T2+j}, vcc")
                a(f"v_cndmask_b32 v{Axb+j}, v{T2+j}, v{Z}, vcc")
            set_mask("vcc", lanemask(lambda l: ((l >> 4) == hA and ma(l)) or ((l >> 4) == hB and not ma(l))))
            for j in range(2): a(f"v_cndmask_b32 v{Axa+2+j}, v{Z}, v{Axa+2+j}, vcc")
        O = {(k, rt): 16 + (rt * 3 + i) * 4 for rt in range(2) for i, k in enumerate("xab")}
        a.wait(lg=tq if not OPT["opr"] else tq[-4])
        for rt in (c, oc): mfma(O[("x", rt)], Axa, QB[("a", rt)], C0)
        if OPT["opr"]: a.wait(lg=tq[-3])
        for rt in (c, oc): mfma(O[("a", rt)], A1a, QB[("a", rt)], "0")
        if OPT["opr"]: a.wait(lg=tq[-2])
        for rt in (c, oc): mfma(O[("x", rt)], Axb, QB[("b", rt)], O[("x", rt)])
        if OPT["opr"]: a.wait(lg=tq[-1])
        for rt in (c, oc): mfma(O[("b", rt)], A1b, QB[("b", rt)], "0")
        OM = [176, 180]; OX = [184, 186]
        set_mask("vcc", lanemask(lambda l: l < 32))
        for rt in (c, oc):
            x = O[("x", rt)]
            a(f"v_rcp_f32 v{x}, v{x}"); a(f"v_rcp_f32 v{x+1}, v{x+1}")
        for rt in (c, oc):
            x = O[("x", rt)]
            for j in range(4): a(f"v_mul_f32 v{O[('a',rt)]+j}, v{O[('a',rt)]+j}, v{x}")
            for j in range(4): a(f"v_mul_f32 v{O[('b',rt)]+j}, v{O[('b',rt)]+j}, v{x+1}")
            a(f"v_cndmask_b32 v{x}, v{x+1}, v{x}, vcc")
            pack(O[("a", rt)], OM[rt]); pack(O[("b", rt)], OM[rt] + 2)
            for j in (2, 3): a(f"v_mul_f32 v{x+j}, v{x+j}, v{x}")
            a(f"v_cvt_pk_bf16_f32 v{OX[rt]}, v{x+2}, v{x+3}")
    else:
        late(3)
        for rt in range(2): pack(acc2(1, rt), QB[("b", rt)])
        a(f"s_cmp_eq_u32 s{sI}, 0"); a(f"s_cbranch_scc0 L_hdone_{P}")
        a(f"s_cmp_eq_u32 s{sRT}, 0"); a(f"s_cbranch_scc0 L_hwait_{P}")
        for d in HL: a(f"v_mov_b32 v{d}, 0"); a(f"v_mov_b32 v{d+1}, 0")
        for j in range(4): a(f"v_mov_b32 v{BP0+j}, 0x{f2u(-1e30):x}")
        a(f"s_branch L_hok_{P}")
        a.label(f"L_hwait_{P}")
        def htest():
            a(f"v_max3_u32 v228, v{HL[0]}, v{HL[0]+1}, v{HL[1]}")
            a(f"v_max3_u32 v228, v228, v{HL[1]+1}, v{HL[2]}")
            a(f"v_max3_u32 v228, v228, v{HL[2]+1}, v{HL[3]}")
            a(f"v_max3_u32 v228, v228, v{HL[3]+1}, v{HL[4]}")
            a(f"v_max3_u32 v228, v228, v{HL[4]+1}, v{HL[5]}")
            a(f"v_max3_u32 v228, v228, v{HL[5]+1}, v{HL[6]}")
            a(f"v_max_u32 v228, v228, v{HL[6]+1}")
            a(f"v_cmp_eq_u32 vcc, -1, v228")
            a(f"s_cbranch_vccz L_hok_{P}")
        a.wait(vm="~h0halo", keep=True)
        htest()
        spin_begin(f"L_hsp_{P}")
        if OPT["stamps"]: a(f"v_writelane_b32 v{vST}, s{sHV}, 43")
        halo_loads("~x"); a("s_waitcnt vmcnt(0)"); htest()
        spin_check(f"L_hsp_{P}", f"L_hok_{P}", True)
        a.label(f"L_hdone_{P}")
        def qmask(rt):
            for h, hh in (("a", hA), ("b", hB)):
                set_mask("vcc", gm(hh))
                for j in range(2): a(f"v_cndmask_b32 v{QB[(h,rt)]+2+j}, v127, v{EQ[rt]+j}, vcc")
        if c == 0: qmask(0); qmask(1)
        a.wait(lg="all")
        if c == 1 or not OPT["esk"]:
            a("s_barrier")
            stamp("E2")
        if c == 1: tq = [a(f"ds_read_b64 {vr(EQ[rt],2)}, v{vEQo} offset:{EQX + rt*512}") for rt in range(2)]
        units = [(h, rt) for rt in (0, 1) for h in "ab"]
        S = {u: 176 + 8 * k for k, u in enumerate(units)}
        PB = {u: 208 + 4 * k for k, u in enumerate(units)}
        Om = dict(zip(units, (16, 28, 40, 128)))
        SV = {u: 228 + 2 * k for k, u in enumerate(units)}
        MX = {u: 236 + k for k, u in enumerate(units)}
        def smf(u):
            h, rt = u
            mfma(S[u], KA[(h, rt - 1)], QB[u], BP0 if rt == 0 else BP)
            mfma(S[u] + 4, KA[(h, rt)], QB[u], BO)
        if c == 1:
            a.wait(lg=tq[0]); qmask(0); smf(units[0]); smf(units[1])
            a.wait(lg=tq[1]); qmask(1); smf(units[2]); smf(units[3])
        else:
            for u in units: smf(u)
            if OPT["esk"]:
                a("s_barrier")
                stamp("E2")
        late(99 if OPT["prel_at"] == 5 else 2, True)
        if OPT["prel_at"] == 5: opreload()
        for u in units:
            s_, v = S[u], SV[u]
            a(f"v_max3_f32 v{v}, v{s_}, v{s_+1}, v{s_+4}"); a(f"v_max3_f32 v{v+1}, v{s_+2}, v{s_+3}, v{s_+6}")
            a(f"v_max_f32 v{v}, v{v}, v{s_+5}"); a(f"v_max_f32 v{v+1}, v{v+1}, v{s_+7}")
            a(f"v_max_f32 v{MX[u]}, v{v}, v{v+1}")
        m0_, m1_, m2_, m3_ = [MX[u] for u in units]
        a(f"v_permlane32_swap_b32 v{m0_}, v{m1_}"); a(f"v_permlane32_swap_b32 v{m2_}, v{m3_}")
        a(f"v_max_f32 v{m0_}, v{m0_}, v{m1_}"); a(f"v_max_f32 v{m2_}, v{m2_}, v{m3_}")
        a(f"v_permlane16_swap_b32 v{m0_}, v{m2_}")
        a(f"v_max_f32 v{m0_}, v{m0_}, v{m2_}")
        cs = LOG2E * 20 ** -0.5
        a(f"v_mul_f32 v{m0_}, 0x{f2u(-cs):x}, v{m0_}")
        a(f"v_mov_b32 v{m2_}, v{m0_}")
        a(f"v_permlane16_swap_b32 v{m0_}, v{m2_}")
        a(f"v_mov_b32 v{m1_}, v{m0_}"); a(f"v_mov_b32 v{m3_}, v{m2_}")
        a(f"v_permlane32_swap_b32 v{m0_}, v{m1_}"); a(f"v_permlane32_swap_b32 v{m2_}, v{m3_}")
        late(99, True)
        V = {"a": Va, "b": Vb}
        for u in units:
            for j in range(2): a(f"v_fmamk_f32 v{SV[u]+j}, v{SV[u]+j}, 0x{f2u(cs):x}, v{MX[u]}")
        for u in units:
            for j in range(2): a(f"v_exp_f32 v{SV[u]+j}, v{SV[u]+j}")
        for u in units:
            h, rt = u; v = SV[u]
            for j in range(2): a(f"v_cvt_pk_bf16_f32 v{v+j}, v{v+j}, v{v+j}")
            for k in range(4): a(f"v_and_b32 v{PB[u]+k}, v{v+(k&1)}, v{MK+k}")
            mfma(Om[u] + 8, ONES, PB[u], "0")
            mfma(Om[u], V[h] + 2 * rt, PB[u], "0")
            mfma(Om[u] + 4, Ev + 2 * rt, PB[u], "0")
        OM = [176, 180]; OX = [184, 186]
        set_mask("vcc", gm(hA))
        for rt in (c, oc):
            ua, ub = ("a", rt), ("b", rt)
            for u in (ua, ub): a(f"v_rcp_f32 v{Om[u]+8}, v{Om[u]+8}")
            for j in range(4): a(f"v_cndmask_b32 v{Om[ua]+4+j}, v{Om[ub]+4+j}, v{Om[ua]+4+j}, vcc")
            for u in (ua, ub):
                for j in range(4): a(f"v_mul_f32 v{Om[u]+j}, v{Om[u]+j}, v{Om[u]+8}")
            a(f"v_cndmask_b32 v{Om[ua]+8}, v{Om[ub]+8}, v{Om[ua]+8}, vcc")
            pack(Om[ua], OM[rt]); pack(Om[ub], OM[rt] + 2)
            for j in range(4): a(f"v_mul_f32 v{Om[ua]+4+j}, v{Om[ua]+4+j}, v{Om[ua]+8}")
            pack(Om[ua] + 4, OX[rt])
    a(f"s_mul_i32 s3, s{sHG}, {2*OP_}"); a(f"s_add_u32 s3, s3, s{sOB}"); a(f"s_add_u32 s3, s3, {c*OP_}")
    a(f"s_add_u32 s4, s3, {OT}")
    a(f"s_lshr_b32 s5, s{sHG}, 1"); a(f"s_mul_i32 s5, s5, {4*OP_}"); a(f"s_and_b32 s6, s{sHG}, 1"); a(f"s_lshl_b32 s6, s6, 3")
    a(f"s_add_u32 s5, s5, s6"); a(f"s_add_u32 s5, s5, s{sOB}")
    a(f"s_add_u32 s6, s5, {OT}")
    a(f"v_lshrrev_b32 v{vXE}, 4, v{vL}"); a(f"v_mul_u32_u24 v{vXE}, {OP_ - 256}, v{vXE}"); a(f"v_add_u32 v{vXE}, v{vXE}, v{vL16}")
    a(f"v_mov_b32 v{vT}, s{sN}")
    a(f"s_cmp_eq_u32 s{sFAST}, 1"); a(f"s_cbranch_scc1 L_fast_{P}")
    for fl, end in ((" sc1", f"s_branch L_pubd_{P}"), ((" " + OPT["ofl"]) if OPT["ofl"] != "none" else "", None)):
        if not end: a.label(f"L_fast_{P}")
        a(f"buffer_store_dwordx4 {vr(OM[0],4)}, v{vL16}, {sr(OS,4)}, s3 offen{fl}")
        a(f"buffer_store_dwordx4 {vr(OM[1],4)}, v{vL16}, {sr(OS,4)}, s4 offen{fl}")
        if A_:
            a(f"buffer_store_dword v{OX[0]}, v{vXE}, {sr(OS,4)}, s5 offen offset:{1024 + 4*c}{fl}")
            a(f"buffer_store_dword v{OX[1]}, v{vXE}, {sr(OS,4)}, s6 offen offset:{1024 + 4*c}{fl}")
        else:
            a(f"s_mov_b32 exec_{'hi' if c == 0 else 'lo'}, 0")
            a(f"buffer_store_dwordx2 {vr(OX[0],2)}, v{vXE}, {sr(OS,4)}, s5 offen offset:1024{fl}")
            a(f"buffer_store_dwordx2 {vr(OX[1],2)}, v{vXE}, {sr(OS,4)}, s6 offen offset:1024{fl}")
        if end: a(end)
    a.label(f"L_pubd_{P}")
    a("s_mov_b64 exec, -1")
    stamp("ostore")
    phase2_setup(A_, c)
    if OPT["e3e"]:
        assert not late_wo
        a("s_waitcnt vmcnt(4) lgkmcnt(0)")
    else:
        a(f"s_cmp_eq_u32 s{sFAST}, 1")
        a("s_mov_b64 exec, 1")
        a("s_waitcnt vmcnt(0) lgkmcnt(0)")
        a(f"s_cbranch_scc1 L_fast2_{P}")
        a(f"buffer_store_dword v{vT}, off, {sr(SS,4)}, s{sFP} sc1")
        a(f"s_branch L_pubd2_{P}")
        a.label(f"L_fast2_{P}")
        a(f"buffer_store_dword v{vT}, off, {sr(SS,4)}, s{sFP}")
        a.label(f"L_pubd2_{P}")
        a("s_mov_b64 exec, -1")
        if late_wo:
            late(99, 2)
            phase2_setup2()
            a("s_waitcnt vmcnt(0)")
    a.vm = ["flag"]
    stamp("oack")
    a("s_branch L_phase2")

vM0, vE0, vPA, vPD, vSA = 1, 2, 3, 0, 5
RA = [8, 9, 11]; GA_ = [12, 13, 95]
vRW, vRR = 4, 7
RX = 43008
RX = 0
OST2 = 40960
def phase2_setup(A_, c):
    a(f"s_mul_i32 s7, s{sKH}, 51200"); a(f"s_add_u32 s7, s7, {WO_BASE}")
    half = "s7"
    a(f"v_and_b32 v{vPD}, 3, v{vL}")
    a(f"v_lshrrev_b32 v{vM0}, 2, v{vL}"); a(f"v_mul_u32_u24 v{vM0}, 160, v{vM0}")
    a(f"v_lshl_add_u32 v{vM0}, v{vPD}, 3, v{vM0}"); a(f"v_add_u32 v{vM0}, {half}, v{vM0}")
    if A_:
        a(f"v_bfe_u32 v{vE0}, v{vL}, 3, 1"); a(f"v_mul_u32_u24 v{vE0}, 40, v{vE0}")
        a(f"v_lshrrev_b32 v{vPA}, 5, v{vL}"); a(f"v_mad_u32_u24 v{vE0}, v{vPA}, 20, v{vE0}")
        a(f"v_bfe_u32 v{vPA}, v{vL}, 4, 1"); a(f"v_lshl_add_u32 v{vE0}, v{vPA}, 1, v{vE0}")
        a(f"v_bfe_u32 v{vPA}, v{vL}, 2, 1"); a(f"v_add_u32 v{vE0}, v{vE0}, v{vPA}")
    else:
        a(f"v_lshrrev_b32 v{vE0}, 4, v{vL}"); a(f"v_mul_u32_u24 v{vE0}, 20, v{vE0}")
        a(f"v_bfe_u32 v{vPA}, v{vL}, 2, 2"); a(f"v_add_u32 v{vE0}, v{vE0}, v{vPA}")
    a(f"v_mul_u32_u24 v{vE0}, 160, v{vE0}")
    a(f"v_lshl_add_u32 v{vE0}, v{vPD}, 3, v{vE0}"); a(f"v_add_u32 v{vE0}, {half}, v{vE0}")
    a(f"v_lshlrev_b32 v{vPA}, 2, v{vL}")
    a(f"s_mul_i32 s7, s{sWV}, 5120"); a(f"v_add_u32 v{vRR}, s7, v{vXA0}")
    a(f"s_xor_b32 s7, s{sWV}, 1"); a(f"s_mul_i32 s7, s7, 5120"); a(f"v_add_u32 v{vRW}, s7, v{vXA0}")

def phase2_setup2():
    a(f"s_mul_i32 s7, s{sWV}, 2560"); a(f"s_add_u32 s7, s7, {OST2}")
    for j in range(3):
        a(f"v_add_u32 v{RA[j]}, {64*j}, v{vL}")
        a(f"v_mul_u32_u24 v{GA_[j]}, 6554, v{RA[j]}"); a(f"v_lshrrev_b32 v{GA_[j]}, 16, v{GA_[j]}")
        a(f"v_mul_u32_u24 v{vSA}, 2400, v{GA_[j]}")
        a(f"v_lshlrev_b32 v{RA[j]}, 4, v{RA[j]}")
        a(f"v_add_u32 v{GA_[j]}, v{vSA}, v{RA[j]}")
        a(f"v_add_u32 v{RA[j]}, s7, v{RA[j]}")
    a(f"v_and_b32 v{vSA}, 15, v{vL}"); a(f"v_mul_u32_u24 v{vSA}, 160, v{vSA}")
    a(f"v_lshrrev_b32 v16, 4, v{vL}"); a(f"v_lshlrev_b32 v16, 3, v16"); a(f"v_add3_u32 v{vSA}, v{vSA}, v16, s7")

def phase2():
    padlabel("L_phase2", False)
    a.vm = ["flag"]; a.lg = []
    vL16 = vXA0
    PP = OPT["prepoll"]
    if not PP:
        a("s_barrier")
        stamp("E3")
    OF = 176; ACC = 16
    def of(k, rt): return OF + (k * 2 + rt) * 4
    bufs = ([56 + 4 * k for k in range(9)] + [96 + 4 * k for k in range(20)])[:OPT["npre"]]
    NB = len(bufs)
    def reads(n):
        k, t = divmod(n, 5); w = bufs[n % NB]; tg = []
        for h in range(2):
            if k < 8: row = 40 * k + 20 * h; base = vM0
            else: row = 80 * (2 * (k - 8) + h) + 16; base = vE0
            tg.append(a(f"ds_read_b64_tr_b16 {vr(w+2*h,2)}, v{base} offset:{row * 160 + 32 * t}"))
        return tg
    def oload(j):
        k, rt = divmod(j, 2)
        if k < 8:
            if k % 2 == 0: a(f"s_add_u32 s{3+rt}, s{sOC}, {rt*OT + k*OP_}")
            a(f"buffer_load_dwordx4 {vr(of(k,rt),4)}, v{vL16}, {sr(OS,4)}, s{3+rt} offen offset:{(k%2)*OP_} sc1", f"o{k}")
        else:
            a(f"s_add_u32 s{3+rt}, s{sOE}, {rt*OT + (k-8)*4*OP_}")
            a(f"buffer_load_dwordx4 {vr(of(k,rt),4)}, v{vXE}, {sr(OS,4)}, s{3+rt} offen offset:1024 sc1", f"o{k}")
    NP = OPT["npoll"]; per = NB // NP
    batches = [list(range(k * per, (k + 1) * per if k < NP - 1 else NB)) for k in range(NP)]
    tags = {}
    def poll_issue():
        a("s_mov_b64 exec, 0xff"); a(f"buffer_load_dword v{vPD}, v{vPA}, {sr(SS,4)}, s{sFC} offen sc1"); a("s_mov_b64 exec, -1")
    def poll_check(lbl):
        a("s_waitcnt vmcnt(0)")
        a(f"v_cmp_ne_u32 vcc, s{sN}, v{vPD}"); a("s_and_b32 vcc_lo, vcc_lo, 0xff"); a(f"s_cbranch_scc0 {lbl}" if not OPT["hackpoll"] else f"s_branch {lbl}")
    lgs = []
    if OPT["e3e"]:
        n0 = OPT["e3n"]
        rest = list(range(n0, NB)); per = len(rest) // NP
        batches[:] = [rest[k * per:(k + 1) * per if k < NP - 1 else len(rest)] for k in range(NP)]
        if OPT["pb"]:
            sz = [int(x) for x in str(OPT["pb"]).split(".")]; assert len(sz) == NP - 1
            cut = [0]
            for z in sz: cut.append(cut[-1] + z)
            cut.append(len(rest))
            batches[:] = [rest[cut[k]:cut[k + 1]] for k in range(NP)]
        for n in range(n0): tags[n] = reads(n)
        if OPT["su2"]: phase2_setup2()
        a(f"v_mov_b32 v94, s{sN}")
        a(f"s_cmp_eq_u32 s{sFAST}, 1")
        a("s_mov_b64 exec, 1")
        a("s_waitcnt vmcnt(0)")
        a("s_cbranch_scc1 L_fl1")
        a(f"buffer_store_dword v94, off, {sr(SS,4)}, s{sFP} sc1"); a("s_branch L_fl2")
        a.label("L_fl1"); a(f"buffer_store_dword v94, off, {sr(SS,4)}, s{sFP}"); a.label("L_fl2")
        a("s_mov_b64 exec, -1")
    if PP:
        poll_issue()
        if not OPT['woaft']: phase2_setup2()
        for r_ in range(PP - 1):
            poll_check("L_gopre"); poll_issue()
        poll_check("L_gopre")
        a("s_barrier")
        stamp("E3")
    for k in range(NP):
        poll_issue()
        for n in batches[k]: tags[n] = reads(n)
        if k == 0 and not OPT['woaft'] and not PP and not OPT["su2"]: phase2_setup2()
        lgs.append(list(a.lg))
        poll_check(f"L_go{k}")
    spin_begin("L_poll")
    poll_issue(); poll_check(f"L_go{NP-1}")
    spin_check("L_poll", "L_pollx")
    XL = OPT["oburst"] + NP - 1
    full = list(a.lg)
    XL += 1 if PP else 0
    for k in range(NP - 1, -2 if PP else -1, -1):
        padlabel(f"L_go{k}" if k >= 0 else "L_gopre", k == NP - 1)
        a.vm = []; a.lg = list(lgs[k]) if k >= 0 else []
        stamp("polled")
        nxt = 0
        for _ in range(OPT["oburst"]): oload(nxt); nxt += 1
        if k < 0:
            a("s_barrier")
            stamp("E3")
        for j in range(k + 1, NP):
            for n in batches[j]: reads(n)
            oload(nxt); nxt += 1
        while nxt < XL: oload(nxt); nxt += 1
        if k > (-1 if PP else 0): a("s_branch L_conv")
    padlabel("L_conv", True)
    a.lg = full[-12:]
    a("s_waitcnt lgkmcnt(12)")
    rd = NB
    NLOOP = 45 if OPT["lastk"] else 50
    for n in range(NLOOP):
        k, t = divmod(n, 5)
        p3 = parse_pr(OPT["pr3"])
        if (n % 10) in p3:
            a(f"s_bitcmp1_b32 s{sWV}, 2"); a(f"s_cbranch_scc0 L_np{n}"); a(f"s_setprio {p3[n % 10]}"); a.label(f"L_np{n}")
        a.wait(vm=f"o{k}" if t == 0 else None, lg=tags[n])
        if n == 0: stamp("ofirst")
        if n == 45 and AL:
            a(f"v_mov_b32 v{vPD}, s{sN}"); a("s_mov_b64 exec, 1")
            a(f"s_cmp_eq_u32 s{sFAST}, 1"); a("s_cbranch_scc1 L_df1")
            a(f"buffer_store_dword v{vPD}, off, {sr(SS,4)}, s{sDFP} sc1"); a("s_branch L_df2")
            a.label("L_df1"); a(f"buffer_store_dword v{vPD}, off, {sr(SS,4)}, s{sDFP}"); a.label("L_df2")
            a("s_mov_b64 exec, -1")
        for rt in ((1, 0) if (OPT["snake"] and t % 2) else (0, 1)):
            d = ACC + (rt * 5 + t) * 4
            mfma(d, bufs[n % NB], of(k, rt), d if k else "0")
        if t in (0, 2) and nxt < 20: oload(nxt); nxt += 1
        if OPT["wb"] >= 3 and n == OPT["wbn"]:
            a(f"s_xor_b32 s3, s{sWV}, {OPT['wbw']}")
            if OPT["wb"] == 3: a(f"s_or_b32 s3, s3, s{sHG}")
            else: a(f"s_and_b32 s4, s{sHG}, 3"); a("s_or_b32 s3, s3, s4")
            a(f"s_cmp_eq_u32 s3, 0"); a(f"s_cselect_b32 s3, s{sFAST}, 0"); a("s_cmp_eq_u32 s3, 1")
            a("s_cbranch_scc0 L_nowb")
            a("buffer_wbl2 sc1", "~wb")
            a.label("L_nowb")
        if t == 1 and nxt == 20 and OPT["wb"] in (1, 2):
            nxt = 21
            if OPT["wb"] == 1: a(f"s_or_b32 s3, s{sWV}, s{sHG}")
            else: a(f"s_mov_b32 s3, s{sWV}")
            a(f"s_cmp_eq_u32 s3, 0"); a(f"s_cselect_b32 s3, s{sFAST}, 0"); a("s_cmp_eq_u32 s3, 1")
            a("s_cbranch_scc0 L_nowb")
            a("buffer_wbl2 sc1", "~wb")
            a.label("L_nowb")
        if rd < 50: tags[rd] = reads(rd); rd += 1
    if not OPT["lastk"]: stamp("g2end")
    assert not (AL and OPT["lastk"])
    if AL: a("s_mov_b64 exec, 0xffff"); a(f"buffer_load_dword v{vPD}, v{vPA}, {sr(SS,4)}, s{sDFC} offen sc1"); a("s_mov_b64 exec, -1")
    else: a("s_nop 2")
    a(f"s_xor_b32 s7, s{sWV}, 1"); a(f"s_mul_i32 s7, s7, 2560"); a(f"s_add_u32 s7, s7, {OST2}")
    a(f"v_mov_b32 v94, s{sN}")
    a(f"v_mov_b32 v92, s7"); a(f"s_mul_i32 s7, s{sWV}, 2560"); a(f"s_add_u32 s7, s7, {OST2}"); a(f"v_mov_b32 v93, s7")
    if OPT["lastk"]: a.wait(vm="o9", lg="all")
    a(f"s_cmp_eq_u32 s{sKH}, 0"); a("s_cbranch_scc0 L_red1")
    for c in range(2):
        if c == 1: padlabel("L_red1", False)
        a.lg = []
        give = ACC + (1 - c) * 20; keep = ACC + c * 20
        if OPT["lastk"]:
            for t in range(5): mfma(give + 4 * t, bufs[(45 + t) % NB], of(9, 1 - c), give + 4 * t)
            for t in range(5):
                mfma(keep + 4 * t, bufs[(45 + t) % NB], of(9, c), keep + 4 * t)
                if t >= 2: a(f"ds_write_b128 v{vRW}, {vr(give+4*(t-2),4)} offset:{RX + (t-2)*1024}")
            for t in (3, 4): a(f"ds_write_b128 v{vRW}, {vr(give+4*t,4)} offset:{RX + t*1024}")
            stamp("g2end")
        else:
            for t in range(5): a(f"ds_write_b128 v{vRW}, {vr(give+4*t,4)} offset:{RX + t*1024}")
        if OPT["fred"] == 1:
            a("ds_write_b32 v92, v94")
            a.lg = []
            tf = a("ds_read_b32 v91, v93")
            tg = [a(f"ds_read_b128 {vr(56+4*t,4)}, v{vRR} offset:{RX + t*1024}") for t in range(5)]
            a.wait(lg=tf)
            a(f"v_cmp_eq_u32 vcc, s{sN}, v91"); a(f"s_cbranch_vccnz L_pwok{c}")
            keepl = list(a.lg)
            spin_begin(f"L_pw{c}")
            a("ds_read_b32 v91, v93"); a("s_waitcnt lgkmcnt(0)")
            a(f"v_cmp_eq_u32 vcc, s{sN}, v91"); a(f"s_cbranch_vccnz L_pwre{c}")
            spin_check(f"L_pw{c}", f"L_pwre{c}")
            for t in range(5): a(f"ds_read_b128 {vr(56+4*t,4)}, v{vRR} offset:{RX + t*1024}")
            a.lg = keepl
            a.label(f"L_pwok{c}")
        else:
            a.wait(lg="all")
            a(f"v_mov_b32 v94, s{sN}"); a("ds_write_b32 v92, v94")
            spin_begin(f"L_pw{c}")
            a("ds_read_b32 v91, v93"); a("s_waitcnt lgkmcnt(0)")
            a(f"v_cmp_eq_u32 vcc, s{sN}, v91"); a(f"s_cbranch_vccnz L_pwok{c}")
            spin_check(f"L_pw{c}", f"L_pwok{c}")
            a.lg = []
            tg = [a(f"ds_read_b128 {vr(56+4*t,4)}, v{vRR} offset:{RX + t*1024}") for t in range(5)]
        for t in range(5):
            a.wait(lg=tg[t])
            for j in range(4): a(f"v_add_f32 v{56+4*t+j}, v{56+4*t+j}, v{keep+4*t+j}")
            pack(56 + 4 * t, 80 + 2 * t)
            a(f"ds_write_b64 v{vSA}, {vr(80+2*t,2)} offset:{32*t}")
        if c == 0: a("s_branch L_red2")
    padlabel("L_red2", True)
    if OPT["fred"]: a.lg = []
    else: a.wait(lg="all")
    tg = []
    for j in range(3):
        if j == 2: a("s_mov_b32 exec_hi, 0")
        tg.append(a(f"ds_read_b128 {vr(96+4*j,4)}, v{RA[j]}"))
    a("s_mov_b64 exec, -1")
    def dfcheck():
        a("s_waitcnt vmcnt(0)")
        a(f"v_cmp_ne_u32 vcc, s{sN}, v{vPD}"); a("s_and_b32 vcc_lo, vcc_lo, 0xffff"); a("s_cbranch_scc0 L_dfok")
    if AL:
        dfcheck()
        spin_begin("L_dfs")
        a("s_mov_b64 exec, 0xffff"); a(f"buffer_load_dword v{vPD}, v{vPA}, {sr(SS,4)}, s{sDFC} offen sc1"); a("s_mov_b64 exec, -1")
        dfcheck()
        spin_check("L_dfs", "L_dfok")
    fl = OPT["outflag"].replace("+", " "); fl = "" if fl == "none" else " " + fl
    for j in range(3):
        a.wait(lg=tg[j])
        if j == 2: a("s_mov_b32 exec_hi, 0")
        a(f"buffer_store_dwordx4 {vr(96+4*j,4)}, v{GA_[j]}, {sr(SD,4)}, s{sOUT} offen{fl}")
    if OPT["wbe"]:
        a(f"s_xor_b32 s3, s{sWV}, {OPT['wbw']}"); a(f"s_and_b32 s4, s{sHG}, {OPT['wbe']-1 if OPT['wbe'] > 1 else 7}"); a("s_or_b32 s3, s3, s4")
        a("s_cmp_eq_u32 s3, 0"); a("s_cbranch_scc0 L_nowbe")
        a("s_waitcnt vmcnt(0)"); a("buffer_wbl2 sc1")
        a.label("L_nowbe")
    if OPT["stamps"]:
        a("s_mov_b64 exec, -1")
        a("s_waitcnt vmcnt(0)")
        stamp("end")
        a(f"s_memrealtime s[100:101]"); a("s_waitcnt lgkmcnt(0)"); a(f"v_writelane_b32 v{vST}, s100, 41")
        a(f"v_writelane_b32 v{vST}, s{sFAST}, 42")
        a(f"s_lshl_b32 s3, s2, 3"); a(f"s_add_u32 s3, s3, s{sWV}"); a("s_lshl_b32 s3, s3, 8"); a(f"s_add_u32 s3, s3, {WS_STAMP}")
        a(f"v_lshlrev_b32 v0, 2, v{vL}")
        a(f"buffer_store_dword v{vST}, v0, {sr(SS,4)}, s3 offen")
    a.label("L_end")
    a("s_endpgm")

prologue()
sv0 = list(a.vm)
for b, c in ((0, 0), (0, 1), (1, 0), (1, 1)):
    if (b, c) == (1, 0): phase2()
    a.vm = list(sv0); a.lg = []
    path(b, c)
a.label("L_codeend")
a.raw(f""".section .rodata,"a"
.p2align 6
.amdhsa_kernel {KNAME}
  .amdhsa_next_free_vgpr 256
  .amdhsa_next_free_sgpr 102
  .amdhsa_accum_offset 256
  .amdhsa_group_segment_fixed_size 0
  .amdhsa_kernarg_size 72
  .amdhsa_user_sgpr_count 2
  .amdhsa_user_sgpr_kernarg_segment_ptr 1
  .amdhsa_system_sgpr_workgroup_id_x 1
.end_amdhsa_kernel""")
open(sys.argv[1], "w").write(a.text())
print("nops inserted:", a.nops_inserted, "lines:", len(a.lines), file=sys.stderr)
```
